```python
import torch

def _softmax(x, axis=-1):
    return torch.softmax(x, dim=axis)
def _gelu(x):
    return torch.nn.functional.gelu(x, approximate="tanh")
def _silu(x):
    return torch.nn.functional.silu(x)
def _sigmoid(x):
    return torch.sigmoid(x)
def _layernorm(x, axis=-1, eps=1e-5):
    m = x.mean(dim=axis, keepdim=True)
    v = x.var(dim=axis, keepdim=True, unbiased=False)
    return (x - m) / torch.sqrt(v + eps)
def _scatter_add(tgt, idx, src, axis=0):
    return tgt.clone().index_add_(axis, idx, src)
def _segment_sum(src, seg, n):
    out = torch.zeros((n,) + src.shape[1:], dtype=src.dtype)
    return out.index_add_(0, seg, src)
def _pad(x, pw):
    flat = tuple(v for pair in reversed(pw) for v in pair)
    return torch.nn.functional.pad(x, flat)

kernel_name = 'sequential_preLN__sliding_local_dilated__dense_activation_gelu__prompt'

def setup_inputs():

    _w = (lambda a: (lambda t: t.to(torch.bfloat16) if t.is_floating_point() else t)(torch.as_tensor(a)))
    def _A_setup():
        B, S, D = 1, 2048, 1024
        return {
            "x": _w((lambda *s: torch.randn(*s, dtype=torch.bfloat16) * 0.05)(B, S, D)),
            "wqkv": _w((lambda *s: torch.randn(*s, dtype=torch.bfloat16) * 0.05)(D, 3 * D)),
            "wo": _w((lambda *s: torch.randn(*s, dtype=torch.bfloat16) * 0.05)(D, D)),
        }
    _A_in = _A_setup()

    def _B_setup():
        B, S, D, F = 1, 2048, 1024, 3584
        return {
            "x": _w((lambda *s: torch.randn(*s, dtype=torch.bfloat16) * 0.05)(B, S, D)),
            "w1": _w((lambda *s: torch.randn(*s, dtype=torch.bfloat16) * 3.2)(D, F) * (D ** -0.5)),
            "b1": _w((lambda *s: torch.randn(*s, dtype=torch.bfloat16) * 3.2)(F) * 0.01),
            "w2": _w((lambda *s: torch.randn(*s, dtype=torch.bfloat16) * 0.4)(F, D) * (F ** -0.5)),
            "b2": _w((lambda *s: torch.randn(*s, dtype=torch.bfloat16) * 0.4)(D) * 0.01),
        }
    _B_in = _B_setup()

    return {
        "A_x": _A_in["x"],
        "A_wqkv": _A_in["wqkv"],
        "A_wo": _A_in["wo"],
        "B_x": _B_in["x"],
        "B_w1": _B_in["w1"],
        "B_b1": _B_in["b1"],
        "B_w2": _B_in["w2"],
        "B_b2": _B_in["b2"],
    }

def reference(A_x, A_wqkv, A_wo, B_x, B_w1, B_b1, B_w2, B_b2):
    def _A_ref(x, wqkv, wo):
        B, S, D = x.shape
        H = 32; Dh = D // H
        W, dil = 8, 2
        qkv = (lambda x, *d: x.permute(*d))((x @ wqkv).reshape(B, S, 3, H, Dh), 2, 0, 3, 1, 4)
        q, k, v = qkv[0], qkv[1], qkv[2]
        scale = Dh ** -0.5
        pos = torch.arange(S)
        off = torch.arange(W) * dil
        idx = pos[:, None] - off[None, :]
        mask = idx >= 0
        idx_c = torch.where(mask, idx, 0).reshape(-1)
        kg = k[:, :, idx_c, :].reshape(B, H, S, W, Dh)
        vg = v[:, :, idx_c, :].reshape(B, H, S, W, Dh)
        logits = torch.einsum("bhsd,bhswd->bhsw", q, kg) * scale
        logits = torch.where(mask[None, None, :, :], logits, -1e9)
        attn = _softmax(logits, axis=-1)
        o = torch.einsum("bhsw,bhswd->bhsd", attn, vg)
        return (lambda x, *d: x.permute(*d))(o, 0, 2, 1, 3).reshape(B, S, D) @ wo

    def _B_ref(x, w1, b1, w2, b2):
        h = torch.einsum("bsd,df->bsf", x, w1) + b1
        h = _gelu(h)
        return torch.einsum("bsf,fd->bsd", h, w2) + b2

    x = A_x
    h = x + _A_ref(_layernorm(x, axis=-1), A_wqkv, A_wo)
    h2 = h + _B_ref(_layernorm(h, axis=-1), B_w1, B_b1, B_w2, B_b2)
    return h2
```

```python
import math

class Asm:
    def __init__(self):
        self.l = []; self.nlab = 0
    def __call__(self, s):
        for x in s.split('\n'):
            x = x.strip()
            if x: self.l.append(('' if x.endswith(':') else '    ') + x)
    def lab(self, base='L'):
        self.nlab += 1
        return f"{base}_{self.nlab}"
    def c(self, s): self.l.append('    ; ' + s)
    def text(self): return '\n'.join(self.l)

def vr(b, n=1): return f"v{b}" if n == 1 else f"v[{b}:{b+n-1}]"
def sr(b, n=1): return f"s{b}" if n == 1 else f"s[{b}:{b+n-1}]"

S_X, S_WQKV, S_WO, S_BX, S_W1, S_B1, S_W2, S_B2, S_OUT, S_DBG, S_WS = 4, 6, 8, 10, 12, 14, 16, 18, 20, 22, 24
S_WAVE = 26
S_W4 = 27
SRD_A, SRD_B, SRD_C, SRD_D = 28, 32, 36, 40
S_RB, S_CB, S_KH, S_ROT = 44, 45, 46, 47
S_T, S_KA, S_KB, S_LDS, S_CNT = 48, 49, 50, 51, 52
S_T0, S_T1, S_T2, S_T3 = 53, 54, 55, 56
S_TIME = 60
WS_BYTES = 268435456

def srd(a, dst, ptr, nbytes, off=0):
    if off:
        a(f"s_add_u32 s{dst}, s{ptr}, {off}\ns_addc_u32 s{dst+1}, s{ptr+1}, 0")
    else:
        a(f"s_mov_b32 s{dst}, s{ptr}\ns_mov_b32 s{dst+1}, s{ptr+1}")
    a(f"s_mov_b32 s{dst+2}, {nbytes}\ns_mov_b32 s{dst+3}, 0x20000")

def prologue(a, done):
    a(f"s_cmp_ge_u32 s2, 256\ns_cbranch_scc1 {done}")
    a("s_load_dwordx16 s[4:19], s[0:1], 0\ns_load_dwordx4 s[20:23], s[0:1], 64\ns_load_dwordx2 s[24:25], s[0:1], 80")
    a(f"v_lshrrev_b32 v1, 6, v0\nv_and_b32 v0, 63, v0\ns_nop 0\nv_readfirstlane_b32 s{S_WAVE}, v1")
    a(f"s_and_b32 s{S_W4}, s{S_WAVE}, 3")

def slice_of_t(a, S, lead):
    if not lead:
        a(f"s_mov_b32 s{S_T0}, s{S_T}")
        return
    a(f"s_sub_u32 s{S_T1}, s{S_T}, s{S_ROT}\ns_and_b32 s{S_T1}, s{S_T1}, 3")
    a(f"s_add_u32 s{S_T2}, s{S_T}, 1\ns_min_u32 s{S_T2}, s{S_T2}, {S-1}")
    a(f"s_cmp_eq_u32 s{S_T1}, 3\ns_cselect_b32 s{S_T0}, s{S_T2}, s{S_T}")
    a(f"s_max_u32 s{S_T2}, s{S_T}, 1\ns_sub_u32 s{S_T2}, s{S_T2}, 1")
    a(f"s_cmp_eq_u32 s{S_T1}, 0\ns_cselect_b32 s{S_T0}, s{S_T2}, s{S_T0}")

class Phase:
    pass

def emit_stage_loads(a, ph, which='AB'):
    for (kind, voff, sldsw, ldsoff, imm, cond) in ph.pieces:
        if kind not in which: continue
        skip = None
        if cond is not None:
            skip = a.lab('skip')
            a(f"s_cmp_ge_u32 s{S_W4}, {cond}\ns_cbranch_scc1 {skip}")
        if ldsoff is not None:
            a(f"s_add_u32 s{S_T3}, s{S_LDS}, s{sldsw}\ns_add_u32 m0, s{S_T3}, {ldsoff}\ns_nop 0")
        srdn, sk = (SRD_A, S_KA) if kind == 'A' else (SRD_B, S_KB)
        fl = ph.aflags if kind == 'A' else ph.bflags
        a(f"buffer_load_dwordx4 v{voff}, s[{srdn}:{srdn+3}], s{sk} offen" + (f" offset:{imm}" if imm else "") + (" " + fl if fl else "") + " lds")
        if skip: a(f"{skip}:")

def set_stage_k(a, ph):
    slice_of_t(a, ph.S, ph.lead)
    a(f"s_mul_i32 s{S_KA}, s{S_T0}, {ph.ka_step}\ns_mul_i32 s{S_KB}, s{S_T0}, {ph.kb_step}")

def next_slot(a, ph):
    a(f"s_add_u32 s{S_LDS}, s{S_LDS}, {ph.stage}\ns_cmp_ge_u32 s{S_LDS}, {ph.lds0 + ph.NS*ph.stage}\ns_cselect_b32 s{S_LDS}, {ph.lds0}, s{S_LDS}")

def producer_gemm(a, ph, after_first=None, opt={}):
    n = ph.nmin
    bar = "" if opt.get('nobar') else "s_barrier"
    a.c(f"--- producer {ph.name}: prologue")
    a(f"s_mov_b32 s{S_T}, 0\ns_mov_b32 s{S_LDS}, {ph.lds0}")
    def stage():
        set_stage_k(a, ph)
        emit_stage_loads(a, ph)
        next_slot(a, ph)
        a(f"s_add_u32 s{S_T}, s{S_T}, 1")
    pre = ph.NS - 1
    for s in range(pre): stage()
    a(f"s_waitcnt vmcnt({min(63, (pre-1)*n)})\ns_barrier")
    stage()
    if after_first: after_first()
    L = a.lab('ploop')
    a(f"{L}:")
    a(f"s_waitcnt vmcnt({min(63, (ph.NS-2)*n)})\n{bar}")
    stage()
    a(f"s_cmp_lt_u32 s{S_T}, {ph.S}\ns_cbranch_scc1 {L}")
    for s in range(ph.S - ph.NS, ph.S - 1):
        left = (ph.S - 1) - (s + 1)
        a(f"s_waitcnt vmcnt({min(63, left*n)})\n{bar}")

def reads(a, ph, st, kb):
    out = []
    A = []
    for i, (areg, off) in enumerate(ph.afr):
        d = ph.va[st] + 4*i
        A.append(f"ds_read_b128 {vr(d,4)}, v{areg} offset:{off + kb*ph.a_kb}")
    B = []
    for i, (breg, off, half, kbs) in enumerate(ph.bfr):
        d = ph.vb[st] + 4*i
        B.append(f"ds_read_b64_tr_b16 {vr(d,2)}, v{breg} offset:{off + kb*kbs}")
        B.append(f"ds_read_b64_tr_b16 {vr(d+2,2)}, v{breg} offset:{off + kb*kbs + half}")
    return A + B

def mfmas(ph, st, first=False):
    out = []
    for (acc, ai, bi, swap) in ph.mm:
        A = vr(ph.va[st] + 4*ai, 4); B = vr(ph.vb[st] + 4*bi, 4)
        D = vr(ph.vacc + 4*acc, 4)
        C = "0" if first else D
        x, y = (B, A) if swap else (A, B)
        out.append(f"v_mfma_f32_16x16x32_bf16 {D}, {x}, {y}, {C}")
    return out

def interleave(a, M, R, lead=0, extra=None):
    R = list(R)
    per = max(1, math.ceil(len(R) / max(1, len(M) - lead - ph_tail(M, R))))
    for i, m in enumerate(M):
        a(m)
        if i >= lead:
            for _ in range(per):
                if R: a(R.pop(0))
    for r in R: a(r)

def ph_tail(M, R):
    return min(6, max(0, len(M) - len(R)))

def addr_update(a, ph):
    out = []
    out.append(f"s_add_u32 s{S_LDS}, s{S_LDS}, {ph.stage}")
    out.append(f"s_cmp_ge_u32 s{S_LDS}, {ph.NS*ph.stage}")
    out.append(f"s_cselect_b32 s{S_LDS}, 0, s{S_LDS}")
    out.append(f"s_cselect_b32 s{S_T0}, {(-(ph.NS-1)*ph.stage) & 0xffffffff:#x}, {ph.stage}" if False else f"s_cselect_b32 s{S_T0}, s{S_T1}, s{S_T2}")
    for cur in ph.addr_regs:
        out.append(f"v_add_u32 v{cur}, s{S_T0}, v{cur}")
    return out

def spread(a, M, F, start=0, end=None):
    end = len(M) if end is None else end
    n = max(1, end - start)
    F = list(F); k = 0
    for i, m in enumerate(M):
        a(m)
        if start <= i < end:
            want = ((i - start + 1) * len(F) + n - 1) // n
            while k < want: a(F[k]); k += 1
    while k < len(F): a(F[k]); k += 1

def consumer_gemm(a, ph, opt={}):
    a.c(f"--- consumer {ph.name}")
    bar = "" if opt.get('nobar') else "s_barrier"
    tail = opt.get('tail', 6)
    if opt.get('prio'): a(f"s_setprio {opt['prio']}")
    a(f"s_mov_b32 s{S_LDS}, 0\ns_mov_b32 s{S_CNT}, {ph.S - 2}")
    a(f"s_mov_b32 s{S_T1}, {(-(ph.NS-1)*ph.stage) & 0xffffffff:#x}\ns_mov_b32 s{S_T2}, {ph.stage}")
    a("s_barrier")
    if opt.get('stamp'): a("s_memtime s[68:69]")
    for r in reads(a, ph, 0, 0): a(r)
    a("s_waitcnt lgkmcnt(0)")
    nm = len(ph.mm)
    upd = addr_update(a, ph)
    early = opt.get('early', False)
    def half_a(first):
        M = mfmas(ph, 0, first=first)
        R = reads(a, ph, 1, 1)
        if early:
            e = max(1, nm - tail - 4)
            spread(a, M[:e], R)
            spread(a, M[e:], upd, 0, max(1, len(M[e:]) - 1))
        else:
            spread(a, M, R, 0, max(1, nm - tail))
    half_a(True)
    L = a.lab('cloop')
    if opt.get('align'): a(f".p2align {opt['align']}")
    a(f"{L}:")
    pre = opt.get('pre', 0)
    a("s_waitcnt lgkmcnt(0)")
    M = mfmas(ph, 1)
    for m in M[:pre]: a(m)
    a(bar)
    F = ([] if early else upd) + reads(a, ph, 0, 0)
    spread(a, M[pre:], F, 0, max(1, nm - pre - tail))
    a(f"s_waitcnt lgkmcnt(0)")
    half_a(False)
    a(f"s_sub_u32 s{S_CNT}, s{S_CNT}, 1")
    a(f"s_cbranch_scc0 {L}")
    a("s_waitcnt lgkmcnt(0)")
    for m in mfmas(ph, 1): a(m)

def kernel_desc(name, vg=256, sg=96):
    return f""".p2align 6
.amdhsa_kernel {name}
  .amdhsa_next_free_vgpr {vg}
  .amdhsa_next_free_sgpr {sg}
  .amdhsa_accum_offset {(vg+3)//4*4}
  .amdhsa_group_segment_fixed_size 0
  .amdhsa_kernarg_size 88
  .amdhsa_user_sgpr_count 2
  .amdhsa_user_sgpr_kernarg_segment_ptr 1
  .amdhsa_system_sgpr_workgroup_id_x 1
  .amdhsa_float_denorm_mode_32 3
.end_amdhsa_kernel"""
```

```python
import re, sys

def regs(tok):
    tok = tok.strip()
    tok = tok.lstrip('-')
    m = re.fullmatch(r'abs\((.*)\)', tok)
    if m: tok = m.group(1)
    tok = tok.strip('|')
    m = re.fullmatch(r'([vsa])(\d+)', tok)
    if m: return [(m.group(1), int(m.group(2)))]
    m = re.fullmatch(r'([vsa])\[(\d+):(\d+)\]', tok)
    if m: return [(m.group(1), i) for i in range(int(m.group(2)), int(m.group(3))+1)]
    if tok == 'vcc': return [('s', 'vcc_lo'), ('s', 'vcc_hi')]
    if tok in ('vcc_lo', 'vcc_hi'): return [('s', tok)]
    if tok == 'exec': return [('s', 'exec')]
    if tok == 'm0': return [('s', 'm0')]
    return []

TRANS = ('v_exp_f32', 'v_log_f32', 'v_rcp_f32', 'v_rsq_f32', 'v_sqrt_f32', 'v_sin_f32', 'v_cos_f32', 'v_rcp_iflag_f32')

class I:
    pass

def parse(lines):
    ins = []; labels = {}
    for ln, raw in enumerate(lines):
        s = raw.split(';')[0].split('//')[0].strip()
        if not s or s.startswith('.'): continue
        m = re.match(r'^([\w.$]+):\s*(.*)$', s)
        if m:
            labels[m.group(1)] = len(ins); s = m.group(2).strip()
            if not s: continue
        p = s.split(None, 1)
        op = p[0]; rest = p[1] if len(p) > 1 else ''
        op = re.sub(r'_(e32|e64|dpp|sdwa)$', '', op)
        ops = [o.strip() for o in rest.split(',')] if rest else []
        mods = ''
        if ops:
            q = ops[-1].split()
            if len(q) > 1: ops[-1] = q[0]; mods = ' '.join(q[1:])
        x = I(); x.op = op; x.ops = ops; x.mods = mods; x.ln = ln+1; x.text = s
        x.w = []; x.r = []; x.kind = 'other'; x.states = 1
        R = lambda k: [r for o in ops[k:] for r in regs(o)]
        if op == 's_nop': x.states = int(ops[0], 0) + 1; x.kind = 'nop'
        elif op.startswith('v_mfma'):
            x.kind = 'mfma'; x.w = regs(ops[0]); x.ra = regs(ops[1]) + regs(ops[2]); x.rc = regs(ops[3]); x.r = x.ra + x.rc
            x.passes = 4 if '16x16x32' in op or '16x16x16' in op else 8
        elif op.startswith('v_cmp'):
            x.kind = 'valu'; x.w = regs(ops[0]); x.r = R(1)
            if op.startswith('v_cmpx'): x.w += [('s', 'exec')]
        elif op in ('v_readfirstlane_b32', 'v_readlane_b32'):
            x.kind = 'valu'; x.w = regs(ops[0]); x.r = R(1); x.lane_read = True
        elif op.startswith('v_permlane') and 'swap' in op:
            x.kind = 'valu'; x.w = regs(ops[0]) + regs(ops[1]); x.r = x.w[:]; x.perm = True
        elif op.startswith('v_'):
            x.kind = 'valu'
            x.w = regs(ops[0])
            if op in ('v_add_co_u32', 'v_sub_co_u32', 'v_addc_co_u32', 'v_subb_co_u32', 'v_div_scale_f32', 'v_mad_u64_u32'):
                x.w += regs(ops[1]); x.r = R(2)
            else:
                x.r = R(1)
            if op in ('v_fmac_f32', 'v_pk_fmac_f16', 'v_writelane_b32', 'v_dot2c_f32_bf16', 'v_mac_f32'): x.r += x.w
            if op == 'v_cndmask_b32' and len(ops) == 3: x.r += regs('vcc')
            if op in TRANS: x.trans = True
            if 'row_' in mods or 'quad_perm' in mods or 'wave_' in mods or 'row_' in rest or 'quad_perm' in rest: x.dpp = True; x.r += x.w
            if 'op_sel' in rest and not op.startswith('v_pk_') or 'dst_sel' in rest: x.opsel = True
        elif op.startswith('buffer_') or op.startswith('global_') or op.startswith('flat_'):
            x.kind = 'vmem'
            islds = ' lds' in (' ' + mods)
            if 'load' in op and not islds:
                x.w = regs(ops[0]); x.r = R(1)
            elif 'atomic' in op and op.startswith('buffer_'):
                x.r = R(0); x.w = regs(ops[0]) if 'sc0' in mods else []
            else:
                x.r = R(0)
            if islds: x.r += [('s', 'm0')]; x.dma = True
            if 'store' in op and ('x3' in op or 'x4' in op):
                x.widestore = regs(ops[0]) if op.startswith('buffer_') else regs(ops[1])
        elif op.startswith('ds_'):
            x.kind = 'ds'
            if 'read' in op or 'permute' in op or 'swizzle' in op: x.w = regs(ops[0]); x.r = R(1)
            else: x.r = R(0)
        elif op.startswith('s_'):
            x.kind = 'salu'
            if op.startswith('s_cmp') or op.startswith('s_cbranch') or op in ('s_branch', 's_barrier', 's_waitcnt', 's_endpgm', 's_sleep', 's_setprio', 's_bitcmp1_b32', 's_bitcmp0_b32'):
                x.r = R(0)
            else:
                x.w = regs(ops[0]) if ops else []; x.r = R(1)
                if 'saveexec' in op: x.w += [('s', 'exec')]
        ins.append(x)
    return ins, labels

def succ(ins, labels, i):
    x = ins[i]
    if x.op == 's_endpgm': return []
    if x.op == 's_branch': return [labels[x.ops[0]]]
    out = [i+1] if i+1 < len(ins) else []
    if x.op.startswith('s_cbranch'): out.append(labels[x.ops[0]])
    return out

def need(p, c):
    n = 0
    pw = set(p.w);
    V = lambda s: {r for r in s if r[0] in 'va'}
    S = lambda s: {r for r in s if r[0] == 's'}
    if p.kind == 'mfma':
        d = pw
        big = {4: 8, 8: 12}[p.passes]
        if c.kind == 'mfma':
            if d & set(c.ra): n = max(n, big)
            if d & set(c.rc) and set(c.rc) != d: n = max(n, big-2)
            if d & set(c.rc) and set(c.rc) == d and c.passes != p.passes: n = max(n, big-2)
            if d & set(c.w) and not (d & set(c.rc)): n = max(n, big)
        elif c.kind in ('valu', 'vmem', 'ds'):
            if d & (set(c.r) | set(c.w)): n = max(n, big)
        if c.kind == 'valu' and set(p.rc) & set(c.w): n = max(n, {4: 3, 8: 7}[p.passes])
    if p.kind == 'valu':
        if c.kind == 'mfma' and V(pw) & set(c.r): n = max(n, 2)
        if c.kind == 'mfma' and ('s', 'exec') in pw: n = max(n, 4)
        if getattr(c, 'perm', False) and V(pw) & set(c.r): n = max(n, 2)
        if getattr(c, 'dpp', False) and V(pw) & set(c.r): n = max(n, 2)
        if getattr(c, 'dpp', False) and ('s', 'exec') in pw: n = max(n, 5)
        if getattr(c, 'lane_read', False) and V(pw) & set(c.r): n = max(n, 1)
        if c.kind == 'valu' and S(pw) & set(c.r):
            n = max(n, 4 if c.op in ('v_readlane_b32', 'v_writelane_b32') else 2)
        if c.kind == 'vmem' and S(pw) & set(c.r): n = max(n, 5)
        if getattr(p, 'trans', False) and c.kind in ('valu', 'mfma') and not getattr(c, 'trans', False) and V(pw) & set(c.r): n = max(n, 1)
        if getattr(p, 'opsel', False) and c.kind == 'valu' and V(pw) & (set(c.r) | set(c.w)): n = max(n, 1)
        if ('s', 'exec') in pw and (getattr(c, 'lane_read', False) or getattr(c, 'perm', False) or c.op == 'v_writelane_b32'): n = max(n, 4)
    if p.kind == 'salu' and ('s', 'm0') in pw and getattr(c, 'dma', False): n = max(n, 1)
    ws = getattr(p, 'widestore', None)
    if ws and set(ws) & set(c.w): n = max(n, 2 if c.kind in ('valu', 'mfma') else 1)
    return n

def check(text):
    ins, labels = parse(text.split('\n'))
    bad = []
    for p in ins:
        m = re.search(r'offset:(\d+)', p.text)
        if m:
            lim = 4095 if p.kind == 'vmem' else 65535
            if int(m.group(1)) > lim: bad.append((p.ln, p.text, p.ln, 'OFFSET RANGE', lim, int(m.group(1))))
        m = re.search(r'vmcnt\((\d+)\)', p.text)
        if m and int(m.group(1)) > 63: bad.append((p.ln, p.text, p.ln, 'VMCNT RANGE', 63, int(m.group(1))))
        m = re.search(r'lgkmcnt\((\d+)\)', p.text)
        if m and int(m.group(1)) > 15: bad.append((p.ln, p.text, p.ln, 'LGKMCNT RANGE', 15, int(m.group(1))))
    for i, p in enumerate(ins):
        if p.kind not in ('mfma', 'valu', 'salu', 'vmem'): continue
        if p.kind == 'salu' and ('s', 'm0') not in p.w: continue
        if p.kind == 'vmem' and not getattr(p, 'widestore', None): continue
        lim = 12 if p.kind == 'mfma' else 5
        stack = [(j, 0) for j in succ(ins, labels, i)]
        seen = {}
        while stack:
            j, d = stack.pop()
            if d >= lim or seen.get(j, 99) <= d: continue
            seen[j] = d
            c = ins[j]
            n = need(p, c)
            if n > d: bad.append((p.ln, p.text, c.ln, c.text, n, d))
            for k in succ(ins, labels, j): stack.append((k, d + c.states))
    return bad

if __name__ == '__main__':
    b = check(open(sys.argv[1]).read())
    for x in b: print("HAZARD line %d [%s] -> line %d [%s]: need %d have %d" % x)
    print(len(b), "hazards")
```

```python
from gcore import *

WS_XN = 0
WS_O  = 4 << 20
WS_H  = 8 << 20
WS_G  = 12 << 20
WS_ST = 28 << 20
WS_CS = 29 << 20
WS_PX = 32 << 20
WS_FL = 48 << 20
WS_TM = 64 << 20

def map_8x4(a):
    a(f"s_and_b32 s{S_T0}, s2, 1\ns_lshl_b32 s{S_T0}, s{S_T0}, 3\ns_lshr_b32 s{S_T1}, s2, 3\ns_and_b32 s{S_T2}, s{S_T1}, 7\ns_add_u32 s{S_RB}, s{S_T0}, s{S_T2}")
    a(f"s_and_b32 s{S_T0}, s2, 7\ns_lshr_b32 s{S_T0}, s{S_T0}, 1\ns_lshl_b32 s{S_T0}, s{S_T0}, 2\ns_lshr_b32 s{S_T1}, s2, 6\ns_add_u32 s{S_CB}, s{S_T0}, s{S_T1}")
    a(f"s_add_u32 s{S_ROT}, s{S_RB}, s{S_CB}\ns_and_b32 s{S_ROT}, s{S_ROT}, 3")

def tr_lane_part(a, dst, t0, t1, pitch, jreg=None, j=0):
    a(f"v_lshrrev_b32 v{t0}, 2, v0")
    if pitch == 128:
        a(f"v_bfe_u32 v{t1}, v0, 3, 2")
    else:
        a(f"v_bfe_u32 v{t1}, v0, 4, 1")
    if jreg is not None: a(f"v_xor_b32 v{t1}, s{jreg}, v{t1}")
    else: a(f"v_xor_b32 v{t1}, {j}, v{t1}")
    a(f"v_lshlrev_b32 v{t1}, 5, v{t1}")
    a(f"v_lshlrev_b32 v{t0}, {int(math.log2(pitch))}, v{t0}")
    a(f"v_add_u32 v{dst}, v{t0}, v{t1}")
    a(f"v_and_b32 v{t0}, 3, v0\nv_lshlrev_b32 v{t0}, 3, v{t0}\nv_add_u32 v{dst}, v{dst}, v{t0}")

def dma_b_lane(a, dst, t0, t1, ldb, width):
    if width == 128:
        a(f"v_lshrrev_b32 v{t0}, 3, v0\nv_bfe_u32 v{t1}, v0, 4, 2\nv_lshlrev_b32 v{t1}, 1, v{t1}\nv_and_b32 v{dst}, 7, v0")
    else:
        a(f"v_lshrrev_b32 v{t0}, 2, v0\nv_bfe_u32 v{t1}, v0, 4, 1\nv_lshlrev_b32 v{t1}, 1, v{t1}\nv_and_b32 v{dst}, 3, v0")
    a(f"v_xor_b32 v{dst}, v{dst}, v{t1}\nv_lshlrev_b32 v{dst}, 4, v{dst}")
    a(f"v_mul_u32_u24 v{t0}, {ldb}, v{t0}\nv_add_u32 v{dst}, v{dst}, v{t0}")

S_LA, S_LB, S_LH = 57, 58, 59

def make_p3(lead=True, NS=3):
    ph = Phase(); ph.name = 'P3'; ph.S = 16; ph.NS = NS; ph.stage = 45056; ph.lds0 = 0; ph.lead = lead
    ph.ka_step = 2048; ph.kb_step = 64*7168; ph.aflags = ''; ph.bflags = ''
    ph.nmin = 11
    ph.pieces = []
    for i in range(2):
        ph.pieces.append(('A', 10+i, S_LA, i*2048, 0, None))
        ph.pieces.append(('A', 10+i, S_LA, None, 1024, None))
    for t in range(3):
        for i in range(2):
            ph.pieces.append(('B', 12 + t*2 + i, S_LB, 16384 + t*8192 + i*1024, 0, None))
    ph.pieces.append(('B', 18, S_LH, 40960, 0, None))
    ph.addr_regs = list(range(2, 10))
    ph.afr = [(2, 0), (2, 2048), (3, 0), (3, 2048)]
    ph.a_kb = 1024
    ph.bfr = [(4 + (c & 3), (c >> 2)*8192, 2048, 4096) for c in range(6)] + [(8, 0, 1024, 2048), (9, 0, 1024, 2048)]
    ph.va = [16, 32]; ph.vb = [48, 80]; ph.vacc = 112
    ph.mm = [(i*6 + c, i, c, True) for i in range(4) for c in range(6)] + [(24 + i*2 + c, i, 6 + c, True) for i in range(2) for c in range(2)]
    return ph

def p3_producer_setup(a, ph):
    srd(a, SRD_A, S_WS, 4 << 20, WS_H)
    srd(a, SRD_B, S_W1, 1024*3584*2)
    a(f"s_lshl_b32 s{S_LA}, s{S_W4}, 12\ns_lshl_b32 s{S_LB}, s{S_W4}, 11\ns_lshl_b32 s{S_LH}, s{S_W4}, 10")
    a(f"s_lshl_b32 s{S_T0}, s{S_RB}, 3\ns_lshl_b32 s{S_T1}, s{S_W4}, 1\ns_add_u32 s{S_T0}, s{S_T0}, s{S_T1}\ns_lshl_b32 s{S_T0}, s{S_T0}, 15")
    a(f"v_lshlrev_b32 v10, 4, v0\nv_add_u32 v10, s{S_T0}, v10\nv_add_u32 v11, 0x8000, v10")
    a(f"s_mul_i32 s{S_T0}, s{S_CB}, 448\ns_and_b32 s{S_T1}, s{S_CB}, 1\ns_lshl_b32 s{S_T2}, s{S_T1}, 6\ns_add_u32 s{S_T2}, s{S_T2}, s{S_T0}")
    a(f"s_cmp_eq_u32 s{S_T1}, 0\ns_cselect_b32 s{S_T1}, 384, 0\ns_add_u32 s{S_T1}, s{S_T1}, s{S_T0}")
    a(f"s_mul_i32 s{S_T0}, s{S_W4}, {16*7168}\ns_add_u32 s{S_T2}, s{S_T2}, s{S_T0}\ns_add_u32 s{S_T1}, s{S_T1}, s{S_T0}")
    dma_b_lane(a, 12, 20, 21, 7168, 128)
    a(f"v_add_u32 v12, s{S_T2}, v12")
    for t in range(3):
        for i in range(2):
            if t or i: a(f"v_add_u32 v{12+t*2+i}, {t*128 + i*8*7168}, v12")
    dma_b_lane(a, 18, 20, 21, 7168, 64)
    a(f"v_add_u32 v18, s{S_T1}, v18")

def p3_consumer_setup(a, ph):
    a(f"s_lshr_b32 s{S_T0}, s{S_W4}, 1\ns_and_b32 s{S_T1}, s{S_W4}, 1")
    a(f"s_lshl_b32 s{S_T2}, s{S_T0}, 13\ns_lshl_b32 s{S_T3}, s{S_T1}, 12\ns_add_u32 s{S_T3}, s{S_T3}, s{S_T2}")
    if ph.lds0: a(f"s_add_u32 s{S_T3}, s{S_T3}, {ph.lds0}")
    a(f"v_lshlrev_b32 v2, 4, v0\nv_add_u32 v2, s{S_T3}, v2\nv_xor_b32 v3, 0x1000, v2" if ph.lds0 % 8192 == 0 else "ERR")
    for k in range(4):
        a(f"s_lshl_b32 s{S_T2}, s{S_T1}, 1\ns_add_u32 s{S_T2}, s{S_T2}, {k}\ns_and_b32 s{S_T2}, s{S_T2}, 3")
        tr_lane_part(a, 4+k, 10, 11, 128, jreg=S_T2)
        a(f"s_mul_i32 s{S_T2}, s{S_T1}, {8192*(2 if k >= 2 else 1)}\ns_add_u32 s{S_T2}, s{S_T2}, {16384 + ph.lds0}\nv_add_u32 v{4+k}, s{S_T2}, v{4+k}")
    for j in range(2):
        tr_lane_part(a, 8+j, 10, 11, 64, j=j)
        a(f"v_add_u32 v{8+j}, {40960 + ph.lds0}, v{8+j}")

def xor16_32(a, v, t, op):
    a(f"v_mov_b32 v{t}, v{v}\ns_nop 1\nv_permlane16_swap_b32 v{t}, v{v}\ns_nop 0\n{op} v{v}, v{t}, v{v}")
    a(f"v_mov_b32 v{t}, v{v}\ns_nop 1\nv_permlane32_swap_b32 v{t}, v{v}\ns_nop 0\n{op} v{v}, v{t}, v{v}")

def xor16_32_multi(a, vs, ts, op):
    n = len(vs)
    for perm in ('v_permlane16_swap_b32', 'v_permlane32_swap_b32'):
        for v, t in zip(vs, ts): a(f"v_mov_b32 v{t}, v{v}")
        if n < 3: a(f"s_nop {2-n}")
        for v, t in zip(vs, ts): a(f"{perm} v{t}, v{v}")
        for v, t in zip(vs, ts): a(f"{op} v{v}, v{t}, v{v}")

def rbf(a, v):
    a(f"v_cvt_pk_bf16_f32 v{v}, v{v}, v{v}\nv_and_b32 v{v}, 0xffff0000, v{v}")

def ln_scale(a, vmean, vvar, t):
    rbf(a, vmean)
    a(f"v_max_f32 v{vvar}, 0, v{vvar}")
    rbf(a, vvar)
    a(f"v_add_f32 v{vvar}, 0x3727c5ac, v{vvar}")
    rbf(a, vvar)
    a(f"v_sqrt_f32 v{vvar}, v{vvar}\ns_nop 0")
    rbf(a, vvar)
    a(f"v_rcp_f32 v{vvar}, v{vvar}\ns_nop 0")

def tree_sum(a, regs, op="v_add_f32"):
    regs = list(regs)
    while len(regs) > 1:
        nxt = []
        for i in range(0, len(regs) - 1, 2):
            a(f"{op} v{regs[i]}, v{regs[i]}, v{regs[i+1]}"); nxt.append(regs[i])
        if len(regs) % 2: nxt.append(regs[-1])
        regs = nxt
    return regs[0]

def p0_ln(a, sf=''):
    srd(a, SRD_A, S_X, 2048*1024*2)
    srd(a, SRD_C, S_WS, 4 << 20, WS_XN)
    a(f"v_and_b32 v1, 7, v0\nv_lshlrev_b32 v2, 11, v1\nv_bfe_u32 v3, v0, 5, 1\nv_lshlrev_b32 v3, 6, v3\nv_add_u32 v2, v2, v3")
    a(f"v_bfe_u32 v4, v0, 3, 2\nv_lshlrev_b32 v3, 3, v4\nv_add_u32 v2, v2, v3\ns_lshl_b32 s{S_T0}, s{S_W4}, 9\nv_add_u32 v2, s{S_T0}, v2")
    a(f"s_lshl_b32 s{S_T1}, s2, 14")
    for j in range(4):
        a(f"buffer_load_dwordx2 v[{16+4*j}:{17+4*j}], v2, s[{SRD_A}:{SRD_A+3}], s{S_T1} offen offset:{j*128}")
        a(f"buffer_load_dwordx2 v[{18+4*j}:{19+4*j}], v2, s[{SRD_A}:{SRD_A+3}], s{S_T1} offen offset:{j*128+32}")
    a(f"v_bfe_u32 v3, v0, 5, 1\nv_lshlrev_b32 v3, 10, v3\nv_lshlrev_b32 v4, 8, v4\nv_add_u32 v3, v3, v4\nv_lshlrev_b32 v4, 4, v1\nv_add_u32 v3, v3, v4")
    a(f"s_and_b32 s{S_T2}, s2, 1\ns_lshl_b32 s{S_T2}, s{S_T2}, 7\ns_lshl_b32 s{S_T0}, s{S_W4}, 13\ns_add_u32 s{S_T2}, s{S_T2}, s{S_T0}\nv_add_u32 v3, s{S_T2}, v3")
    a(f"s_lshr_b32 s{S_T2}, s2, 1\ns_lshl_b32 s{S_T2}, s{S_T2}, 15")
    a(f"v_lshlrev_b32 v5, 4, v1\ns_lshl_b32 s{S_T0}, s{S_W4}, 2\nv_add_u32 v6, s{S_T0}, v5")
    a("s_waitcnt vmcnt(0)")
    for k in range(16):
        a(f"v_lshlrev_b32 v{32+2*k}, 16, v{16+k}\nv_and_b32 v{33+2*k}, 0xffff0000, v{16+k}")
    for k in range(16): a(f"v_add_f32 v{64+k}, v{32+2*k}, v{33+2*k}")
    tree_sum(a, range(64, 80))
    def wg_reduce(off):
        a("s_nop 1\nv_add_f32_dpp v64, v64, v64 row_ror:8 row_mask:0xf bank_mask:0xf")
        xor16_32(a, 64, 65, "v_add_f32")
        a(f"ds_write_b32 v6, v64 offset:{off}\ns_waitcnt lgkmcnt(0)\ns_barrier\nds_read_b128 v[68:71], v5 offset:{off}\ns_waitcnt lgkmcnt(0)")
        a("v_add_f32 v68, v68, v69\nv_add_f32 v70, v70, v71\nv_add_f32 v68, v68, v70\nv_mul_f32 v68, 0x3a800000, v68")
    wg_reduce(0)
    a("v_mov_b32 v7, v68")
    for k in range(16):
        a(f"v_sub_f32 v80, v{32+2*k}, v7\nv_sub_f32 v81, v{33+2*k}, v7\nv_mul_f32 v{64+k}, v80, v80\nv_fmac_f32 v{64+k}, v81, v81")
    tree_sum(a, range(64, 80))
    wg_reduce(128)
    a("v_mov_b32 v8, v68")
    ln_scale(a, 7, 8, 9)
    for k in range(16):
        a(f"v_sub_f32 v80, v{32+2*k}, v7\nv_sub_f32 v81, v{33+2*k}, v7\nv_cvt_pk_bf16_f32 v82, v80, v81")
        a(f"v_lshlrev_b32 v80, 16, v82\nv_and_b32 v81, 0xffff0000, v82\nv_mul_f32 v80, v80, v8\nv_mul_f32 v81, v81, v8\nv_cvt_pk_bf16_f32 v{16+k}, v80, v81")
    for j in range(4):
        if j == 2: a(f"s_add_u32 s{S_T2}, s{S_T2}, 4096")
        a(f"buffer_store_dwordx4 v[{16+4*j}:{19+4*j}], v3, s[{SRD_C}:{SRD_C+3}], s{S_T2} offen offset:{(j&1)*2048} {sf}")

def p0_colsum(a, lds0, nbar_extra, sf=''):
    srd(a, SRD_B, S_W1, 1024*3584*2)
    srd(a, SRD_D, S_WS, 1 << 20, WS_CS)
    a("v_cmp_le_u32 vcc, 28, v0\nv_subrev_u32 v2, 28, v0\ns_nop 0\nv_cndmask_b32 v2, v0, v2, vcc\nv_cndmask_b32 v3, 0, 1, vcc")
    a(f"v_mul_u32_u24 v4, 7168, v3\nv_lshlrev_b32 v5, 4, v2\nv_add_u32 v4, v4, v5")
    a(f"s_lshr_b32 s{S_T0}, s2, 4\ns_lshl_b32 s{S_T0}, s{S_T0}, 6\ns_lshl_b32 s{S_T1}, s{S_W4}, 4\ns_add_u32 s{S_T0}, s{S_T0}, s{S_T1}\ns_mul_i32 s{S_T0}, s{S_T0}, 7168")
    a(f"s_and_b32 s{S_T1}, s2, 15\ns_mul_i32 s{S_T2}, s{S_T1}, 448\ns_add_u32 s{S_T0}, s{S_T0}, s{S_T2}")
    a("s_mov_b64 exec, 0x00ffffffffffffff" if False else "s_mov_b32 exec_hi, 0x00ffffff")
    for j in range(8):
        a(f"s_add_u32 s{S_T3}, s{S_T0}, {j*2*7168}\nbuffer_load_dwordx4 v[{16+4*j}:{19+4*j}], v4, s[{SRD_B}:{SRD_B+3}], s{S_T3} offen")
    a(f"s_lshl_b32 s{S_T3}, s{S_W4}, 1\nv_add_u32 v6, s{S_T3}, v3\nv_mul_u32_u24 v6, 896, v6\nv_lshlrev_b32 v5, 5, v2\nv_add_u32 v6, v6, v5")
    for j in range(8):
        a(f"s_waitcnt vmcnt({7-j})")
        for k in range(4):
            s = 16 + 4*j + k
            if j == 0:
                a(f"v_lshlrev_b32 v{48+2*k}, 16, v{s}\nv_and_b32 v{49+2*k}, 0xffff0000, v{s}")
            else:
                a(f"v_lshlrev_b32 v56, 16, v{s}\nv_and_b32 v57, 0xffff0000, v{s}\nv_add_f32 v{48+2*k}, v{48+2*k}, v56\nv_add_f32 v{49+2*k}, v{49+2*k}, v57")
    a(f"ds_write_b128 v6, v[48:51] offset:{lds0}\nds_write_b128 v6, v[52:55] offset:{lds0+16}")
    a("s_mov_b64 exec, -1\ns_waitcnt lgkmcnt(0)\ns_barrier")
    a(f"s_mul_i32 s{S_T3}, s{S_W4}, 224\nv_lshlrev_b32 v7, 2, v0\nv_add_u32 v7, s{S_T3}, v7")
    for k in range(8): a(f"ds_read_b32 v{16+k}, v7 offset:{lds0 + k*896}")
    a(f"s_lshr_b32 s{S_T0}, s2, 4\ns_mul_i32 s{S_T0}, s{S_T0}, {3584*4}\ns_mul_i32 s{S_T1}, s{S_T1}, 896\ns_add_u32 s{S_T0}, s{S_T0}, s{S_T1}")
    a("s_waitcnt lgkmcnt(0)")
    tree_sum(a, range(16, 24))
    a(f"s_mov_b32 exec_hi, 0x00ffffff\nbuffer_store_dword v16, v7, s[{SRD_D}:{SRD_D+3}], s{S_T0} offen {sf}\ns_mov_b64 exec, -1")
    for _ in range(nbar_extra): a("s_barrier")

def make_p1(lead=True):
    ph = Phase(); ph.name = 'P1'; ph.S = 16; ph.NS = 3; ph.stage = 43008; ph.lds0 = 0; ph.lead = lead
    ph.ka_step = 2048; ph.kb_step = 64*6144; ph.aflags = ''; ph.bflags = ''
    ph.nmin = 10
    ph.pieces = []
    for i in range(2):
        ph.pieces.append(('A', 10+i, S_LA, 2048 + i*2048, 0, None))
        ph.pieces.append(('A', 10+i, S_LA, None, 1024, None))
    ph.pieces.append(('A', 18, S_LH, 0, 0, 2))
    for t in range(3):
        for i in range(2):
            ph.pieces.append(('B', 12 + t*2 + i, S_LB, 18432 + t*8192 + i*1024, 0, None))
    ph.addr_regs = [2, 4, 5]
    ph.afr = [(2, i*2048) for i in range(5)]
    ph.a_kb = 1024
    ph.bfr = [(4 + c, t*8192, 2048, 4096) for t in range(3) for c in range(2)]
    ph.va = [16, 36]; ph.vb = [56, 80]; ph.vacc = 112
    mm = []
    for i in range(5):
        row = [(i*2 + c, i, 2 + c, True) for c in range(2)] + [(10 + i*2 + c, i, 4 + c, False) for c in range(2)]
        if i: row += [(20 + (i-1)*2 + c, i, c, True) for c in range(2)]
        mm += row if i % 2 == 0 else row[::-1]
    ph.mm = mm
    return ph

def a_frag_voff(a, rts_shift_or_mul, v, extra_sgpr=None):
    pass

def p1_producer_setup(a, ph):
    srd(a, SRD_A, S_WS, 4 << 20, WS_XN)
    srd(a, SRD_B, S_WQKV, 1024*3072*2)
    a(f"s_lshl_b32 s{S_LA}, s{S_W4}, 12\ns_lshl_b32 s{S_LB}, s{S_W4}, 11\ns_lshl_b32 s{S_LH}, s{S_W4}, 10")
    a(f"s_lshl_b32 s{S_T0}, s{S_RB}, 3\ns_lshl_b32 s{S_T1}, s{S_W4}, 1\ns_add_u32 s{S_T1}, s{S_T0}, s{S_T1}\ns_lshl_b32 s{S_T1}, s{S_T1}, 15")
    a(f"v_lshlrev_b32 v18, 4, v0\nv_add_u32 v10, s{S_T1}, v18\nv_add_u32 v11, 0x8000, v10")
    a(f"s_max_u32 s{S_T0}, s{S_T0}, 1\ns_sub_u32 s{S_T0}, s{S_T0}, 1\ns_lshl_b32 s{S_T0}, s{S_T0}, 15\ns_add_u32 s{S_T0}, s{S_T0}, s{S_LH}\nv_add_u32 v18, s{S_T0}, v18")
    a(f"s_lshl_b32 s{S_T2}, s{S_CB}, 7\ns_mul_i32 s{S_T0}, s{S_W4}, {16*6144}\ns_add_u32 s{S_T2}, s{S_T2}, s{S_T0}")
    dma_b_lane(a, 12, 20, 21, 6144, 128)
    a(f"v_add_u32 v12, s{S_T2}, v12")
    for t in range(3):
        for i in range(2):
            if t or i: a(f"v_add_u32 v{12+t*2+i}, {t*2048 + i*8*6144}, v12")

S_MASK = 64

def p1_consumer_setup(a, ph):
    a(f"s_lshr_b32 s{S_T0}, s{S_W4}, 1\ns_and_b32 s{S_T1}, s{S_W4}, 1")
    a(f"s_lshl_b32 s{S_T2}, s{S_T0}, 13\nv_lshlrev_b32 v2, 4, v0\nv_add_u32 v2, s{S_T2}, v2")
    if ph.lds0: a(f"v_add_u32 v2, {ph.lds0}, v2")
    for c in range(2):
        a(f"s_lshl_b32 s{S_T2}, s{S_T1}, 1\ns_add_u32 s{S_T2}, s{S_T2}, {c}")
        tr_lane_part(a, 4+c, 10, 11, 128, jreg=S_T2)
        a(f"v_add_u32 v{4+c}, {18432 + ph.lds0}, v{4+c}")
    a("v_and_b32 v10, 15, v0\nv_lshrrev_b32 v11, 4, v0\nv_lshlrev_b32 v11, 2, v11\nv_sub_u32 v10, v10, v11")
    for t in range(2):
        for r in range(4):
            m = S_MASK + 2*(t*4 + r)
            a(f"v_add_u32 v11, {(16 if t == 0 else 0) - r}, v10\nv_and_b32 v11, 0xfffffff1, v11\nv_cmp_eq_u32 s[{m}:{m+1}], 0, v11")

def p1_epilogue(a, ph, sf=''):
    acc = lambda n: ph.vacc + 4*n
    srd(a, SRD_C, S_WS, 4 << 20, WS_O)
    a(f"s_lshr_b32 s{S_T0}, s{S_W4}, 1\ns_and_b32 s{S_T1}, s{S_W4}, 1\ns_lshl_b32 s{S_T2}, s{S_RB}, 1\ns_add_u32 s{S_T2}, s{S_T2}, s{S_T0}")
    a(f"s_cmp_eq_u32 s{S_T2}, 0\ns_cselect_b64 s[80:81], 0, -1")
    a(f"s_lshl_b32 s{S_T2}, s{S_T2}, 17\ns_lshl_b32 s{S_T3}, s{S_CB}, 1\ns_add_u32 s{S_T3}, s{S_T3}, s{S_T1}\ns_lshl_b32 s{S_T3}, s{S_T3}, 10\ns_add_u32 s{S_T2}, s{S_T2}, s{S_T3}")
    a(f"v_lshlrev_b32 v2, 4, v0\nv_mov_b32 v3, 0xff800000\ns_mov_b32 s82, 0x3e8293ee")
    for r in range(4): a(f"s_and_b64 s[{84+2*r}:{85+2*r}], s[{S_MASK+2*r}:{S_MASK+2*r+1}], s[80:81]")
    KP, QP, VP = 16, 36, 52
    for i in range(5):
        for c in range(2):
            for h in range(2):
                a(f"v_cvt_pk_bf16_f32 v{KP+4*i+2*c+h}, v{acc(i*2+c)+2*h}, v{acc(i*2+c)+2*h+1}")
        if i:
            for c in range(2):
                for h in range(2):
                    a(f"v_cvt_pk_bf16_f32 v{QP+4*(i-1)+2*c+h}, v{acc(20+(i-1)*2+c)+2*h}, v{acc(20+(i-1)*2+c)+2*h+1}")
    SS = 72
    a("s_nop 1")
    for i in range(1, 5):
        for t in range(2):
            d = SS + 8*(i-1) + 4*t
            a(f"v_mfma_f32_16x16x32_bf16 v[{d}:{d+3}], v[{KP+4*(i-1+t)}:{KP+4*(i-1+t)+3}], v[{QP+4*(i-1)}:{QP+4*(i-1)+3}], 0")
    for i in range(5):
        for c in range(2):
            for h in range(2):
                a(f"v_cvt_pk_bf16_f32 v{VP+10*c+2*i+h}, v{acc(10+i*2+c)+2*h}, v{acc(10+i*2+c)+2*h+1}")
    for i in range(4):
        for k in range(8):
            m = (84 + 2*k) if (i == 0 and k < 4) else (S_MASK + 2*k)
            a(f"v_cndmask_b32 v{SS+8*i+k}, v3, v{SS+8*i+k}, s[{m}:{m+1}]")
    MX = [112, 113, 114, 115]; TT = [116, 117, 118, 119]
    for i in range(4):
        b = SS + 8*i
        a(f"v_max3_f32 v{MX[i]}, v{b}, v{b+1}, v{b+2}\nv_max3_f32 v{TT[i]}, v{b+3}, v{b+4}, v{b+5}")
    for i in range(4):
        b = SS + 8*i
        a(f"v_max3_f32 v{MX[i]}, v{MX[i]}, v{b+6}, v{b+7}")
    for i in range(4): a(f"v_max_f32 v{MX[i]}, v{MX[i]}, v{TT[i]}")
    xor16_32_multi(a, MX, TT, "v_max_f32")
    for i in range(4): a(f"v_mul_f32 v{MX[i]}, s82, v{MX[i]}")
    for i in range(4):
        for k in range(8): a(f"v_fma_f32 v{SS+8*i+k}, v{SS+8*i+k}, s82, -v{MX[i]}")
    for i in range(4):
        for k in range(8): a(f"v_exp_f32 v{SS+8*i+k}, v{SS+8*i+k}")
    for i in range(4):
        b = SS + 8*i
        a(f"v_add_f32 v{MX[i]}, v{b}, v{b+1}\nv_add_f32 v{TT[i]}, v{b+2}, v{b+3}")
    for i in range(4):
        b = SS + 8*i
        a(f"v_add_f32 v{MX[i]}, v{MX[i]}, v{b+4}\nv_add_f32 v{TT[i]}, v{TT[i]}, v{b+5}")
    for i in range(4):
        b = SS + 8*i
        a(f"v_add_f32 v{MX[i]}, v{MX[i]}, v{b+6}\nv_add_f32 v{TT[i]}, v{TT[i]}, v{b+7}")
    for i in range(4): a(f"v_add_f32 v{MX[i]}, v{MX[i]}, v{TT[i]}")
    xor16_32_multi(a, MX, TT, "v_add_f32")
    for i in range(4): a(f"v_rcp_f32 v{MX[i]}, v{MX[i]}")
    PP = 120
    for i in range(4):
        for k in range(8): a(f"v_mul_f32 v{SS+8*i+k}, v{SS+8*i+k}, v{MX[i]}")
    for i in range(4):
        for k in range(4): a(f"v_cvt_pk_bf16_f32 v{PP+4*i+k}, v{SS+8*i+2*k}, v{SS+8*i+2*k+1}")
    OO = 136
    a("s_nop 1")
    for i in range(4):
        for c in range(2):
            d = OO + 8*i + 4*c
            a(f"v_mfma_f32_16x16x32_bf16 v[{d}:{d+3}], v[{VP+10*c+2*i}:{VP+10*c+2*i+3}], v[{PP+4*i}:{PP+4*i+3}], 0")
    a("s_nop 1")
    for i in range(4):
        if i == 3: a("s_nop 1")
        for k in range(4): a(f"v_cvt_pk_bf16_f32 v{SS+4*i+k}, v{OO+8*i+2*k}, v{OO+8*i+2*k+1}")
        a(f"s_add_u32 s{S_T3}, s{S_T2}, {i*32768}\nbuffer_store_dwordx4 v[{SS+4*i}:{SS+4*i+3}], v2, s[{SRD_C}:{SRD_C+3}], s{S_T3} offen {sf}")

def map_4x8(a):
    a(f"s_and_b32 s{S_T0}, s2, 3\ns_lshl_b32 s{S_T0}, s{S_T0}, 2\ns_lshr_b32 s{S_T1}, s2, 3\ns_and_b32 s{S_T2}, s{S_T1}, 3\ns_add_u32 s{S_RB}, s{S_T0}, s{S_T2}")
    a(f"s_bfe_u32 s{S_T0}, s2, 0x10002\ns_lshl_b32 s{S_T0}, s{S_T0}, 3\ns_lshr_b32 s{S_T1}, s2, 5\ns_add_u32 s{S_CB}, s{S_T0}, s{S_T1}")
    a(f"s_add_u32 s{S_ROT}, s{S_RB}, s{S_CB}\ns_and_b32 s{S_ROT}, s{S_ROT}, 3")

def make_p2(lead=True):
    ph = Phase(); ph.name = 'P2'; ph.S = 16; ph.NS = 4; ph.stage = 24576; ph.lds0 = 0; ph.lead = lead
    ph.ka_step = 2048; ph.kb_step = 64*2048; ph.aflags = ''; ph.bflags = ''
    ph.nmin = 6
    ph.pieces = []
    for i in range(2):
        ph.pieces.append(('A', 10+i, S_LA, i*2048, 0, None))
        ph.pieces.append(('A', 10+i, S_LA, None, 1024, None))
    for i in range(2):
        ph.pieces.append(('B', 12 + i, S_LB, 16384 + i*1024, 0, None))
    ph.addr_regs = [2, 4, 5, 6, 7]
    ph.afr = [(2, 0), (2, 2048)]
    ph.a_kb = 1024
    ph.bfr = [(4 + j, 0, 2048, 4096) for j in range(4)]
    ph.va = [16, 24]; ph.vb = [32, 48]; ph.vacc = 64
    ph.mm = [(j, 0, j, True) for j in range(4)] + [(4 + j, 1, j, True) for j in range(3, -1, -1)]
    return ph

def p2_producer_setup(a, ph):
    srd(a, SRD_A, S_WS, 4 << 20, WS_O)
    srd(a, SRD_B, S_WO, 1024*1024*2)
    a(f"s_lshl_b32 s{S_LA}, s{S_W4}, 12\ns_lshl_b32 s{S_LB}, s{S_W4}, 11")
    a(f"s_lshl_b32 s{S_T0}, s{S_RB}, 3\ns_lshl_b32 s{S_T1}, s{S_W4}, 1\ns_add_u32 s{S_T1}, s{S_T0}, s{S_T1}\ns_lshl_b32 s{S_T1}, s{S_T1}, 15")
    a(f"v_lshlrev_b32 v10, 4, v0\nv_add_u32 v10, s{S_T1}, v10\nv_add_u32 v11, 0x8000, v10")
    a(f"s_lshl_b32 s{S_T2}, s{S_CB}, 7\ns_lshl_b32 s{S_T0}, s{S_W4}, 15\ns_add_u32 s{S_T2}, s{S_T2}, s{S_T0}")
    dma_b_lane(a, 12, 20, 21, 2048, 128)
    a(f"v_add_u32 v12, s{S_T2}, v12\nv_add_u32 v13, {8*2048}, v12")

P2_X = 96
def p2_consumer_setup(a, ph):
    srd(a, SRD_D, S_X, 2048*1024*2)
    a(f"v_and_b32 v8, 15, v0\nv_lshlrev_b32 v8, 11, v8\nv_lshrrev_b32 v9, 4, v0\nv_lshlrev_b32 v9, 3, v9\nv_add_u32 v8, v8, v9")
    a(f"s_lshl_b32 s{S_T0}, s{S_RB}, 18\ns_lshl_b32 s{S_T1}, s{S_W4}, 16\ns_add_u32 s{S_T0}, s{S_T0}, s{S_T1}\ns_lshl_b32 s{S_T1}, s{S_CB}, 7\ns_add_u32 s{S_T0}, s{S_T0}, s{S_T1}")
    a(f"s_add_u32 s{S_T1}, s{S_T0}, 32768")
    for i in range(2):
        for j in range(4):
            d = P2_X + 2*(i*4 + j)
            a(f"buffer_load_dwordx2 v[{d}:{d+1}], v8, s[{SRD_D}:{SRD_D+3}], s{S_T0+i} offen offset:{j*32}")
    a(f"s_lshl_b32 s{S_T2}, s{S_W4}, 12\nv_lshlrev_b32 v2, 4, v0\nv_add_u32 v2, s{S_T2}, v2")
    if ph.lds0: a(f"v_add_u32 v2, {ph.lds0}, v2")
    for j in range(4):
        tr_lane_part(a, 4+j, 10, 11, 128, j=j)
        a(f"v_add_u32 v{4+j}, {16384 + ph.lds0}, v{4+j}")

def p2_epilogue(a, ph, sf=''):
    acc = ph.vacc
    srd(a, SRD_C, S_WS, 4 << 20, WS_H)
    srd(a, SRD_D, S_WS, 1 << 20, WS_ST)
    a(f"s_lshl_b32 s{S_T0}, s{S_RB}, 3\ns_lshl_b32 s{S_T1}, s{S_W4}, 1\ns_add_u32 s{S_T0}, s{S_T0}, s{S_T1}")
    a(f"s_lshl_b32 s{S_T1}, s{S_T0}, 15\ns_lshl_b32 s{S_T2}, s{S_CB}, 11\ns_add_u32 s{S_T1}, s{S_T1}, s{S_T2}\ns_add_u32 s{S_T2}, s{S_T1}, 32768")
    a(f"s_lshl_b32 s{S_T0}, s{S_T0}, 11\ns_lshl_b32 s{S_T3}, s{S_CB}, 7\ns_add_u32 s{S_T0}, s{S_T0}, s{S_T3}")
    a(f"v_lshlrev_b32 v2, 4, v0\nv_lshlrev_b32 v3, 3, v0")
    a("s_waitcnt vmcnt(0)")
    for n in range(8):
        for h in range(2):
            x = P2_X + 2*n + h
            a(f"v_lshlrev_b32 v16, 16, v{x}\nv_and_b32 v17, 0xffff0000, v{x}")
            a(f"v_add_f32 v{acc+4*n+2*h}, v{acc+4*n+2*h}, v16\nv_add_f32 v{acc+4*n+2*h+1}, v{acc+4*n+2*h+1}, v17")
    for i in range(2):
        for p in range(2):
            d = 20 + 8*i + 4*p
            for k in range(4):
                s = acc + 16*i + 8*p + 2*k
                a(f"v_cvt_pk_bf16_f32 v{d+k}, v{s}, v{s+1}")
            a(f"buffer_store_dwordx4 v[{d}:{d+3}], v2, s[{SRD_C}:{SRD_C+3}], s{S_T1+i} offen offset:{p*1024} {sf}")
    for i in range(2):
        for k in range(8): a(f"v_add_f32 v{40+8*i+k}, v{acc+16*i+2*k}, v{acc+16*i+2*k+1}")
    for i in range(2): tree_sum(a, range(40+8*i, 48+8*i))
    xor16_32_multi(a, [40, 48], [41, 49], "v_add_f32")
    a("v_mul_f32 v42, 0x3c800000, v40\nv_mul_f32 v50, 0x3c800000, v48")
    for i in range(2):
        for k in range(16): a(f"v_sub_f32 v{acc+16*i+k}, v{acc+16*i+k}, v{42+8*i}")
    for i in range(2):
        a(f"v_mul_f32 v{41+8*i}, v{acc+16*i}, v{acc+16*i}\nv_mul_f32 v{43+8*i}, v{acc+16*i+1}, v{acc+16*i+1}")
    for k in range(2, 16, 2):
        for i in range(2):
            a(f"v_fmac_f32 v{41+8*i}, v{acc+16*i+k}, v{acc+16*i+k}\nv_fmac_f32 v{43+8*i}, v{acc+16*i+k+1}, v{acc+16*i+k+1}")
    a("v_add_f32 v41, v41, v43\nv_add_f32 v49, v49, v51")
    xor16_32_multi(a, [41, 49], [43, 51], "v_add_f32")
    a("s_mov_b64 exec, 0xffff")
    a(f"buffer_store_dwordx2 v[40:41], v3, s[{SRD_D}:{SRD_D+3}], s{S_T0} offen {sf}")
    a(f"buffer_store_dwordx2 v[48:49], v3, s[{SRD_D}:{SRD_D+3}], s{S_T0} offen offset:2048 {sf}")
    a("s_mov_b64 exec, -1")

P3_CONST = 135168
def p3_const_issue(a, lf=''):
    srd(a, SRD_C, S_WS, 2 << 20, WS_ST)
    srd(a, SRD_D, S_B1, 3584*2)
    Lc = a.lab('cols'); Le = a.lab('cend')
    a(f"s_cmp_ge_u32 s{S_W4}, 2\ns_cbranch_scc1 {Lc}")
    a(f"v_lshrrev_b32 v22, 4, v0\nv_lshlrev_b32 v22, 11, v22\nv_and_b32 v23, 15, v0\nv_lshlrev_b32 v23, 3, v23\nv_add_u32 v22, v22, v23")
    a(f"s_lshl_b32 s{S_T0}, s{S_RB}, 14\ns_lshl_b32 s{S_T1}, s{S_W4}, 13\ns_add_u32 s{S_T0}, s{S_T0}, s{S_T1}")
    for c in range(16):
        a(f"buffer_load_dwordx2 v[{32+2*c}:{33+2*c}], v22, s[{SRD_C}:{SRD_C+3}], s{S_T0} offen offset:{c*128} {lf}")
    a(f"s_branch {Le}\n{Lc}:")
    a(f"s_mul_i32 s{S_T0}, s{S_CB}, 224\ns_and_b32 s{S_T1}, s{S_CB}, 1\ns_lshl_b32 s{S_T2}, s{S_T1}, 5\ns_add_u32 s{S_T2}, s{S_T2}, s{S_T0}")
    a(f"s_cmp_eq_u32 s{S_T1}, 0\ns_cselect_b32 s{S_T1}, 0, 192\ns_sub_u32 s{S_T1}, s{S_T0}, s{S_T1}")
    a(f"s_and_b32 s{S_T0}, s{S_W4}, 1\ns_lshl_b32 s{S_T0}, s{S_T0}, 7\nv_lshlrev_b32 v23, 1, v0\nv_add_u32 v23, s{S_T0}, v23\nv_min_u32 v23, 222, v23")
    a(f"v_cmp_gt_u32 vcc, 192, v23\nv_mov_b32 v24, s{S_T1}\nv_mov_b32 v25, s{S_T2}\nv_cndmask_b32 v24, v24, v25, vcc\nv_add_u32 v24, v24, v23")
    a(f"v_lshlrev_b32 v22, 2, v24\nv_lshlrev_b32 v24, 1, v24")
    for c in range(16):
        a(f"s_mov_b32 s{S_T0}, {(1 << 20) + c*3584*4}\nbuffer_load_dwordx2 v[{32+2*c}:{33+2*c}], v22, s[{SRD_C}:{SRD_C+3}], s{S_T0} offen {lf}")
    a(f"buffer_load_dword v64, v24, s[{SRD_D}:{SRD_D+3}], 0 offen")
    a(f"{Le}:")

def p3_const_finish(a):
    Lc = a.lab('cols'); Le = a.lab('cend')
    a(f"s_cmp_ge_u32 s{S_W4}, 2\ns_cbranch_scc1 {Lc}")
    for c in range(8): a(f"v_add_f32 v{70+c}, v{32+4*c}, v{34+4*c}")
    tree_sum(a, range(70, 78))
    a("v_mul_f32 v70, 0x3a800000, v70")
    for c in range(16):
        a(f"v_fma_f32 v{32+2*c}, v{32+2*c}, 0x3c800000, -v70" if False else f"v_mul_f32 v{32+2*c}, 0x3c800000, v{32+2*c}\nv_sub_f32 v{32+2*c}, v{32+2*c}, v70")
    for c in range(16):
        a(f"v_mul_f32 v{32+2*c}, v{32+2*c}, v{32+2*c}\nv_mul_f32 v{32+2*c}, 0x42800000, v{32+2*c}\nv_add_f32 v{33+2*c}, v{33+2*c}, v{32+2*c}")
    tree_sum(a, range(33, 64, 2))
    a("v_mul_f32 v71, 0x3a800000, v33")
    ln_scale(a, 70, 71, 72)
    a(f"v_mul_f32 v73, v70, v71\nv_mov_b32 v72, v71\ns_lshl_b32 s{S_T0}, s{S_W4}, 9\nv_lshlrev_b32 v22, 3, v0\nv_add_u32 v22, s{S_T0}, v22\nv_add_u32 v22, {P3_CONST}, v22")
    a(f"ds_write_b64 v22, v[72:73]\ns_branch {Le}\n{Lc}:")
    tree_sum(a, range(32, 64, 2)); tree_sum(a, range(33, 64, 2))
    a(f"v_lshlrev_b32 v34, 16, v64\nv_and_b32 v35, 0xffff0000, v64\nv_lshlrev_b32 v23, 2, v23\nv_add_u32 v23, {P3_CONST + 1024}, v23")
    a(f"ds_write_b64 v23, v[32:33]\nds_write_b64 v23, v[34:35] offset:896")
    a(f"{Le}:\ns_waitcnt lgkmcnt(0)")

def p3_epilogue(a, ph, sf=''):
    acc = lambda n: ph.vacc + 4*n
    srd(a, SRD_C, S_WS, 16 << 20, WS_G)
    a(f"s_lshr_b32 s{S_T0}, s{S_W4}, 1\ns_and_b32 s{S_T1}, s{S_W4}, 1")
    a(f"s_lshl_b32 s{S_T2}, s{S_T0}, 9\ns_lshl_b32 s{S_T3}, s{S_T1}, 8\ns_add_u32 s{S_T2}, s{S_T2}, s{S_T3}\ns_add_u32 s{S_T2}, s{S_T2}, {P3_CONST}")
    a(f"v_and_b32 v2, 15, v0\nv_lshlrev_b32 v2, 3, v2\nv_add_u32 v2, s{S_T2}, v2\nv_xor_b32 v3, 0x100, v2")
    for i in range(4): a(f"ds_read_b64 v[{8+2*i}:{9+2*i}], v{2 + (i >> 1)} offset:{(i & 1)*128}")
    a(f"s_mul_i32 s{S_T2}, s{S_T1}, 384\ns_add_u32 s{S_T2}, s{S_T2}, {P3_CONST + 1024}\nv_and_b32 v5, 0x30, v0\nv_add_u32 v4, s{S_T2}, v5\nv_add_u32 v5, {P3_CONST + 1024 + 768}, v5")
    CS, BB = 16, 48
    for c in range(8):
        r, o = (4, c*64) if c < 6 else (5, (c-6)*64)
        a(f"ds_read_b128 v[{CS+4*c}:{CS+4*c+3}], v{r} offset:{o}\nds_read_b128 v[{BB+4*c}:{BB+4*c+3}], v{r} offset:{o+896}")
    a(f"s_lshl_b32 s{S_T2}, s{S_RB}, 3\ns_lshl_b32 s{S_T3}, s{S_T0}, 2\ns_add_u32 s{S_T2}, s{S_T2}, s{S_T3}\ns_lshl_b32 s{S_T3}, s{S_T1}, 1")
    for i in range(4):
        a(f"s_xor_b32 s{84+i}, s{S_T3}, {i}\ns_add_u32 s{84+i}, s{84+i}, s{S_T2}\ns_mul_i32 s{84+i}, s{84+i}, {112*1024}")
    a(f"s_mul_i32 s{S_T2}, s{S_CB}, 7\ns_and_b32 s{S_T3}, s{S_CB}, 1\ns_mul_i32 s88, s{S_T1}, 3\ns_add_u32 s88, s88, s{S_T2}\ns_add_u32 s88, s88, s{S_T3}\ns_lshl_b32 s88, s88, 10")
    a(f"s_cmp_eq_u32 s{S_T3}, 0\ns_cselect_b32 s89, 6, 0\ns_add_u32 s89, s89, s{S_T2}\ns_lshl_b32 s89, s89, 10")
    a(f"v_lshlrev_b32 v6, 4, v0\nv_add_u32 v7, s89, v6\nv_add_u32 v6, s88, v6")
    k2 = -2.0*0.7978845608028654*1.4426950408889634
    import struct
    f2h = lambda x: struct.unpack('<I', struct.pack('<f', x))[0]
    a(f"s_mov_b32 s90, {f2h(k2*0.044715):#x}\nv_mov_b32 v1, {f2h(k2):#x}")
    a("s_waitcnt lgkmcnt(0)")
    units = [(i, p) for p in range(3) for i in range(4)] + [(0, 3), (1, 3)]
    for n, (i, p) in enumerate(units):
        if p < 3: A = [acc(i*6 + 2*p) + k for k in range(8)]
        else: A = [acc(24 + i*2) + k for k in range(8)]
        T = 80 + 16*(n & 1); U = T + 8
        R, RM = 8 + 2*i, 9 + 2*i
        for k in range(8): a(f"v_fma_f32 v{T+k}, -v{RM}, v{CS+8*p+k}, v{BB+8*p+k}")
        for k in range(8): a(f"v_fma_f32 v{A[k]}, v{R}, v{A[k]}, v{T+k}")
        for k in range(8): a(f"v_mul_f32 v{T+k}, v{A[k]}, v{A[k]}")
        for k in range(8): a(f"v_fma_f32 v{T+k}, v{T+k}, s90, v1")
        for k in range(8): a(f"v_mul_f32 v{T+k}, v{T+k}, v{A[k]}")
        for k in range(8): a(f"v_exp_f32 v{T+k}, v{T+k}")
        for k in range(8): a(f"v_add_f32 v{T+k}, 1.0, v{T+k}")
        for k in range(8): a(f"v_rcp_f32 v{T+k}, v{T+k}")
        for k in range(8): a(f"v_mul_f32 v{A[k]}, v{A[k]}, v{T+k}")
        for k in range(4): a(f"v_cvt_pk_bf16_f32 v{U+k}, v{A[2*k]}, v{A[2*k+1]}")
        if p < 3: a(f"buffer_store_dwordx4 v[{U}:{U+3}], v6, s[{SRD_C}:{SRD_C+3}], s{84+i} offen offset:{p*1024} {sf}")
        else: a(f"buffer_store_dwordx4 v[{U}:{U+3}], v7, s[{SRD_C}:{SRD_C+3}], s{84+i} offen {sf}")

def map_p4(a):
    a(f"s_and_b32 s{S_T0}, s2, 3\ns_lshl_b32 s{S_T0}, s{S_T0}, 2\ns_lshr_b32 s{S_T1}, s2, 3\ns_and_b32 s{S_T2}, s{S_T1}, 3\ns_add_u32 s{S_RB}, s{S_T0}, s{S_T2}")
    a(f"s_bfe_u32 s{S_KH}, s2, 0x10002\ns_lshr_b32 s{S_CB}, s2, 5")
    a(f"s_add_u32 s{S_ROT}, s{S_RB}, s{S_CB}\ns_and_b32 s{S_ROT}, s{S_ROT}, 3")

def make_p4(lead=True):
    ph = Phase(); ph.name = 'P4'; ph.S = 28; ph.NS = 3; ph.stage = 32768; ph.lds0 = 0; ph.lead = lead
    ph.ka_step = 2048; ph.kb_step = 64*2048; ph.aflags = ''; ph.bflags = ''
    ph.nmin = 8
    ph.pieces = []
    for i in range(2):
        ph.pieces.append(('A', 10+i, S_LA, i*2048, 0, None))
        ph.pieces.append(('A', 10+i, S_LA, None, 1024, None))
    for t in range(2):
        for i in range(2):
            ph.pieces.append(('B', 12 + 2*t + i, S_LB, 16384 + t*8192 + i*1024, 0, None))
    ph.addr_regs = [2, 4, 5, 6, 7]
    ph.afr = [(2, i*2048) for i in range(4)]
    ph.a_kb = 1024
    ph.bfr = [(4 + c, 0, 2048, 4096) for c in range(4)]
    ph.va = [16, 32]; ph.vb = [48, 64]; ph.vacc = 112
    ph.mm = [(i*4 + c, i, c, True) for i in range(4) for c in (range(4) if i % 2 == 0 else range(3, -1, -1))]
    return ph

def p4_producer_setup(a, ph):
    srd(a, SRD_A, S_WS, 16 << 20, WS_G)
    srd(a, SRD_B, S_W2, 3584*1024*2)
    a(f"s_lshl_b32 s{S_LA}, s{S_W4}, 12\ns_lshl_b32 s{S_LB}, s{S_W4}, 11")
    a(f"s_lshl_b32 s{S_T0}, s{S_RB}, 3\ns_lshl_b32 s{S_T1}, s{S_W4}, 1\ns_add_u32 s{S_T1}, s{S_T0}, s{S_T1}\ns_mul_i32 s{S_T1}, s{S_T1}, {112*1024}")
    a(f"s_mul_i32 s{S_T0}, s{S_KH}, {56*1024}\ns_add_u32 s{S_T1}, s{S_T1}, s{S_T0}")
    a(f"v_lshlrev_b32 v10, 4, v0\nv_add_u32 v10, s{S_T1}, v10\nv_add_u32 v11, {112*1024}, v10")
    a(f"s_lshl_b32 s{S_T2}, s{S_CB}, 8\ns_lshl_b32 s{S_T0}, s{S_W4}, 15\ns_add_u32 s{S_T2}, s{S_T2}, s{S_T0}\ns_mul_i32 s{S_T0}, s{S_KH}, {1792*2048}\ns_add_u32 s{S_T2}, s{S_T2}, s{S_T0}")
    dma_b_lane(a, 12, 20, 21, 2048, 128)
    a(f"v_add_u32 v12, s{S_T2}, v12\nv_add_u32 v13, {8*2048}, v12\nv_add_u32 v14, 128, v12\nv_add_u32 v15, 128, v13")

P4_H = 80
def p4_consumer_setup(a, ph, lf=''):
    srd(a, SRD_C, S_WS, 4 << 20, WS_H)
    srd(a, SRD_D, S_B2, 1024*2)
    a(f"s_lshr_b32 s{S_T0}, s{S_W4}, 1\ns_and_b32 s{S_T1}, s{S_W4}, 1")
    a(f"s_lshl_b32 s83, s{S_CB}, 2\ns_lshl_b32 s{S_T2}, s{S_KH}, 1\ns_add_u32 s83, s83, s{S_T2}\ns_add_u32 s83, s83, s{S_T1}")
    a(f"s_lshl_b32 s82, s{S_RB}, 3\ns_lshl_b32 s{S_T2}, s{S_T0}, 2\ns_add_u32 s82, s82, s{S_T2}")
    a(f"s_lshl_b32 s{S_T2}, s82, 15\ns_lshl_b32 s{S_T3}, s83, 10\ns_add_u32 s{S_T2}, s{S_T2}, s{S_T3}\nv_lshlrev_b32 v3, 4, v0")
    for i in range(4):
        a(f"s_add_u32 s{S_T3}, s{S_T2}, {i*32768}\nbuffer_load_dwordx4 v[{P4_H+4*i}:{P4_H+4*i+3}], v3, s[{SRD_C}:{SRD_C+3}], s{S_T3} offen {lf}")
    a(f"v_lshrrev_b32 v8, 4, v0\nv_lshlrev_b32 v8, 3, v8\ns_lshl_b32 s{S_T3}, s83, 6")
    a(f"buffer_load_dwordx2 v[96:97], v8, s[{SRD_D}:{SRD_D+3}], s{S_T3} offen\nbuffer_load_dwordx2 v[98:99], v8, s[{SRD_D}:{SRD_D+3}], s{S_T3} offen offset:32")
    a(f"s_lshl_b32 s{S_T2}, s{S_T0}, 13\nv_add_u32 v2, s{S_T2}, v3")
    if ph.lds0: a(f"v_add_u32 v2, {ph.lds0}, v2")
    for c in range(2):
        a(f"s_lshl_b32 s{S_T2}, s{S_T1}, 1\ns_add_u32 s{S_T2}, s{S_T2}, {c}")
        tr_lane_part(a, 4+c, 10, 11, 128, jreg=S_T2)
        a(f"s_lshl_b32 s{S_T2}, s{S_KH}, 13\ns_add_u32 s{S_T2}, s{S_T2}, {16384 + ph.lds0}\nv_add_u32 v{4+c}, s{S_T2}, v{4+c}\nv_xor_b32 v{6+c}, 0x2000, v{4+c}")

def p4_epilogue(a, ph):
    acc = lambda n: ph.vacc + 4*n
    srd(a, SRD_C, S_WS, 8 << 20, WS_PX)
    srd(a, SRD_D, S_WS, 1 << 20, WS_FL)
    srd(a, SRD_A, S_OUT, 2048*1024*2)
    a(f"s_lshl_b32 s{S_T0}, s{S_RB}, 3\ns_add_u32 s{S_T0}, s{S_T0}, s{S_CB}\ns_lshl_b32 s{S_T0}, s{S_T0}, 1\ns_add_u32 s{S_T0}, s{S_T0}, s{S_KH}")
    a(f"s_lshl_b32 s{S_T1}, s{S_T0}, 2\ns_add_u32 s{S_T1}, s{S_T1}, s{S_W4}")
    a(f"s_lshl_b32 s84, s{S_T1}, 13\ns_xor_b32 s85, s84, 0x8000")
    a(f"s_lshl_b32 s86, s{S_T1}, 7\ns_xor_b32 s87, s86, 0x200")
    for i in range(4):
        for c in range(2):
            n = i*2 + c
            if n == 4: a("s_add_u32 s84, s84, 4096")
            a(f"buffer_store_dwordx4 v[{acc(i*4+2+c)}:{acc(i*4+2+c)+3}], v3, s[{SRD_C}:{SRD_C+3}], s84 offen offset:{(n & 3)*1024} sc1")
    a("s_waitcnt vmcnt(8)")
    for h in range(4):
        a(f"v_lshlrev_b32 v{100+2*h}, 16, v{96+h}\nv_and_b32 v{101+2*h}, 0xffff0000, v{96+h}")
    for i in range(4):
        for h in range(4):
            d = acc(i*4) + 2*h
            a(f"v_lshlrev_b32 v16, 16, v{P4_H+4*i+h}\nv_and_b32 v17, 0xffff0000, v{P4_H+4*i+h}")
            a(f"v_add_f32 v16, v16, v{100+2*h}\nv_add_f32 v17, v17, v{101+2*h}\nv_add_f32 v{d}, v{d}, v16\nv_add_f32 v{d+1}, v{d+1}, v17")
    a(f"v_mov_b32 v18, 0\nv_mov_b32 v19, 1\ns_waitcnt vmcnt(0)\ns_mov_b64 exec, 1")
    a(f"buffer_store_dword v19, v18, s[{SRD_D}:{SRD_D+3}], s86 offen sc1")
    L = a.lab('poll')
    a(f"s_mov_b32 s88, 0\n{L}:\ns_add_u32 s88, s88, 1\ns_cmp_gt_u32 s88, 0x40000\ns_cbranch_scc1 {L}_x\nbuffer_load_dword v20, v18, s[{SRD_D}:{SRD_D+3}], s87 offen sc1\ns_waitcnt vmcnt(0)\nv_readfirstlane_b32 s{S_T2}, v20\ns_cmp_lg_u32 s{S_T2}, 1\ns_cbranch_scc1 {L}")
    a(f"{L}_x:\ns_mov_b64 exec, -1")
    RX = 24
    for n in range(8):
        if n == 4: a("s_add_u32 s85, s85, 4096")
        a(f"buffer_load_dwordx4 v[{RX+4*n}:{RX+4*n+3}], v3, s[{SRD_C}:{SRD_C+3}], s85 offen offset:{(n & 3)*1024} sc1")
    a("v_and_b32 v4, 15, v0\nv_lshlrev_b32 v4, 11, v4\nv_bfe_u32 v5, v0, 4, 1\nv_lshlrev_b32 v5, 5, v5\nv_add_u32 v4, v4, v5\nv_bfe_u32 v5, v0, 5, 1\nv_lshlrev_b32 v5, 4, v5\nv_add_u32 v4, v4, v5")
    a(f"s_lshl_b32 s{S_T2}, s82, 15\ns_lshl_b32 s{S_T3}, s83, 6\ns_add_u32 s{S_T2}, s{S_T2}, s{S_T3}")
    for i in range(4):
        a(f"s_waitcnt vmcnt({6 - 2*i + i})")
        d = acc(i*4)
        for k in range(8): a(f"v_add_f32 v{d+k}, v{d+k}, v{RX+8*i+k}")
        U = 64 + 4*i
        for k in range(4): a(f"v_cvt_pk_bf16_f32 v{U+k}, v{d+2*k}, v{d+2*k+1}")
        a(f"s_add_u32 s{S_T3}, s{S_T2}, {i*32768}\ns_nop 0\nv_permlane16_swap_b32 v{U}, v{U+2}\nv_permlane16_swap_b32 v{U+1}, v{U+3}")
        a(f"buffer_store_dwordx4 v[{U}:{U+3}], v4, s[{SRD_A}:{SRD_A+3}], s{S_T3} offen")
```

```python
import sys
from phases import *
import hazard
OPT = dict(early=1, pre=4, tail=4)
kernels = []
def kernel(name, lds, body):
    a = Asm(); a.nlab = 1000*len(kernels)
    done = f"{name}_done"
    prologue(a, done)
    body(a, name)
    a(f"{done}:\ns_endpgm")
    kernels.append((name, lds, a.text()))

def k0(a, n):
    a("s_waitcnt lgkmcnt(0)")
    a(f"s_cmp_ge_u32 s{S_WAVE}, 4\ns_cbranch_scc1 {n}_p")
    p0_ln(a)
    a(f"s_endpgm\n{n}_p:")
    srd(a, SRD_C, S_WS, 1 << 20, WS_FL)
    a(f"s_lshl_b32 s{S_T0}, s2, 9\ns_lshl_b32 s{S_T1}, s{S_W4}, 7\ns_add_u32 s{S_T0}, s{S_T0}, s{S_T1}\nv_mov_b32 v1, 0\ns_mov_b64 exec, 1")
    a(f"buffer_store_dword v1, v1, s[{SRD_C}:{SRD_C+3}], s{S_T0} offen\ns_mov_b64 exec, -1\ns_waitcnt vmcnt(0)")
    p0_colsum(a, 256, 1)

def gemm_kernel(mk, mp, ps, cs, ep, pre=None, after=None, opt=OPT):
    def body(a, n):
        ph = mk()
        mp(a)
        a("s_waitcnt lgkmcnt(0)")
        a(f"s_cmp_ge_u32 s{S_WAVE}, 4\ns_cbranch_scc1 {n}_p")
        cs(a, ph)
        consumer_gemm(a, ph, opt)
        ep(a, ph)
        a(f"s_endpgm\n{n}_p:")
        ps(a, ph)
        if pre: pre(a)
        producer_gemm(a, ph, after_first=(lambda: after(a)) if after else None)
    return body

kernel('k0_kernel', 8192, k0)
kernel('k1_kernel', 3*43008, gemm_kernel(make_p1, map_8x4, p1_producer_setup, p1_consumer_setup, p1_epilogue))
kernel('k2_kernel', 4*24576, gemm_kernel(make_p2, map_4x8, p2_producer_setup, p2_consumer_setup, p2_epilogue, opt=dict(early=0, pre=0, tail=0)))
kernel('k3_kernel', P3_CONST + 2816, gemm_kernel(make_p3, map_8x4, p3_producer_setup, p3_consumer_setup, p3_epilogue, pre=p3_const_issue, after=p3_const_finish))
kernel('k4_kernel', 3*32768, gemm_kernel(make_p4, map_p4, p4_producer_setup, p4_consumer_setup, p4_epilogue, opt=dict(early=0, pre=2, tail=2)))

ref = open('sequential_preLN__sliding_local_dilated__dense_activation_gelu__prompt.s.ref').read().split('\n')
hdr = [l for l in ref if l.startswith(';') and '@launch' not in l and 'Override' not in l and 'grid=ceil' not in l]
out = hdr[:]
for (n, lds, t) in kernels: out.append(f"; @launch kernel={n} grid=(256,1,1) block=(512,1,1) lds={lds}")
out.append('.amdgcn_target "amdgcn-amd-amdhsa--gfx950"\n.text')
for (n, lds, t) in kernels:
    out.append(f".globl {n}\n.p2align 8\n.type {n},@function\n{n}:\n{t}")
out.append('.section .rodata,"a"')
for (n, lds, t) in kernels: out.append(kernel_desc(n))
txt = '\n'.join(out) + '\n'
for x in hazard.check(txt): sys.stderr.write("HAZARD line %d [%s] -> line %d [%s]: need %d have %d\n" % x)
print(txt)
```

```python
import math

class Asm:
    def __init__(self):
        self.l = []; self.nlab = 0
    def __call__(self, s):
        for x in s.split('\n'):
            x = x.strip()
            if x: self.l.append(('' if x.endswith(':') else '    ') + x)
    def lab(self, base='L'):
        self.nlab += 1
        return f"{base}_{self.nlab}"
    def c(self, s): self.l.append('    ; ' + s)
    def text(self): return '\n'.join(self.l)

def vr(b, n=1): return f"v{b}" if n == 1 else f"v[{b}:{b+n-1}]"
def sr(b, n=1): return f"s{b}" if n == 1 else f"s[{b}:{b+n-1}]"

S_X, S_WQKV, S_WO, S_BX, S_W1, S_B1, S_W2, S_B2, S_OUT, S_DBG, S_WS = 4, 6, 8, 10, 12, 14, 16, 18, 20, 22, 24
S_WAVE = 26
S_W4 = 27
SRD_A, SRD_B, SRD_C, SRD_D = 28, 32, 36, 40
S_RB, S_CB, S_KH, S_ROT = 44, 45, 46, 47
S_T, S_KA, S_KB, S_LDS, S_CNT = 48, 49, 50, 51, 52
S_T0, S_T1, S_T2, S_T3 = 53, 54, 55, 56
S_TIME = 60
WS_BYTES = 268435456

def srd(a, dst, ptr, nbytes, off=0):
    if off:
        a(f"s_add_u32 s{dst}, s{ptr}, {off}\ns_addc_u32 s{dst+1}, s{ptr+1}, 0")
    else:
        a(f"s_mov_b32 s{dst}, s{ptr}\ns_mov_b32 s{dst+1}, s{ptr+1}")
    a(f"s_mov_b32 s{dst+2}, {nbytes}\ns_mov_b32 s{dst+3}, 0x20000")

def prologue(a, done):
    a(f"s_cmp_ge_u32 s2, 256\ns_cbranch_scc1 {done}")
    a("s_load_dwordx16 s[4:19], s[0:1], 0\ns_load_dwordx4 s[20:23], s[0:1], 64\ns_load_dwordx2 s[24:25], s[0:1], 80")
    a(f"v_lshrrev_b32 v1, 6, v0\nv_and_b32 v0, 63, v0\ns_nop 0\nv_readfirstlane_b32 s{S_WAVE}, v1")
    a(f"s_and_b32 s{S_W4}, s{S_WAVE}, 3")

def slice_of_t(a, S, lead):
    if not lead:
        a(f"s_mov_b32 s{S_T0}, s{S_T}")
        return
    a(f"s_sub_u32 s{S_T1}, s{S_T}, s{S_ROT}\ns_and_b32 s{S_T1}, s{S_T1}, 3")
    a(f"s_add_u32 s{S_T2}, s{S_T}, 1\ns_min_u32 s{S_T2}, s{S_T2}, {S-1}")
    a(f"s_cmp_eq_u32 s{S_T1}, 3\ns_cselect_b32 s{S_T0}, s{S_T2}, s{S_T}")
    a(f"s_max_u32 s{S_T2}, s{S_T}, 1\ns_sub_u32 s{S_T2}, s{S_T2}, 1")
    a(f"s_cmp_eq_u32 s{S_T1}, 0\ns_cselect_b32 s{S_T0}, s{S_T2}, s{S_T0}")

class Phase:
    pass

def emit_stage_loads(a, ph, which='AB', throttle=None):
    for (kind, voff, sldsw, ldsoff, imm, cond) in ph.pieces:
        if kind not in which: continue
        skip = None
        if cond is not None:
            skip = a.lab('skip')
            a(f"s_cmp_ge_u32 s{S_W4}, {cond}\ns_cbranch_scc1 {skip}")
        if ldsoff is not None:
            a(f"s_add_u32 s{S_T3}, s{S_LDS}, s{sldsw}\ns_add_u32 m0, s{S_T3}, {ldsoff}\ns_nop 0")
        if throttle is not None: a(f"s_waitcnt vmcnt({throttle})")
        srdn, sk = (SRD_A, S_KA) if kind == 'A' else (SRD_B, S_KB)
        fl = ph.aflags if kind == 'A' else ph.bflags
        a(f"buffer_load_dwordx4 v{voff}, s[{srdn}:{srdn+3}], s{sk} offen" + (f" offset:{imm}" if imm else "") + (" " + fl if fl else "") + " lds")
        if skip: a(f"{skip}:")

def set_stage_k(a, ph):
    slice_of_t(a, ph.S, ph.lead)
    a(f"s_mul_i32 s{S_KA}, s{S_T0}, {ph.ka_step}\ns_mul_i32 s{S_KB}, s{S_T0}, {ph.kb_step}")

def next_slot(a, ph):
    a(f"s_add_u32 s{S_LDS}, s{S_LDS}, {ph.stage}\ns_cmp_ge_u32 s{S_LDS}, {ph.lds0 + ph.NS*ph.stage}\ns_cselect_b32 s{S_LDS}, {ph.lds0}, s{S_LDS}")

def producer_gemm(a, ph, after_first=None, opt={}):
    n = ph.nmin
    bar = "" if opt.get('nobar') else "s_barrier"
    a.c(f"--- producer {ph.name}: prologue")
    a(f"s_mov_b32 s{S_T}, 0\ns_mov_b32 s{S_LDS}, {ph.lds0}")
    def stage():
        set_stage_k(a, ph)
        emit_stage_loads(a, ph)
        next_slot(a, ph)
        a(f"s_add_u32 s{S_T}, s{S_T}, 1")
    pre = ph.NS - 1
    for s in range(pre): stage()
    a(f"s_waitcnt vmcnt({min(63, (pre-1)*n)})\ns_barrier")
    stage()
    if after_first: after_first()
    L = a.lab('ploop')
    a(f"{L}:")
    a(f"s_waitcnt vmcnt({min(63, (ph.NS-2)*n)})\n{bar}")
    stage()
    a(f"s_cmp_lt_u32 s{S_T}, {ph.S}\ns_cbranch_scc1 {L}")
    for s in range(ph.S - ph.NS, ph.S - 1):
        left = (ph.S - 1) - (s + 1)
        a(f"s_waitcnt vmcnt({min(63, left*n)})\n{bar}")

def producer_fused(a, ph, handoff, extras=None, nextra=0, finish=None, preA=2, loop_hook=None, thr=6, mid=None):
    NS, S = ph.NS, ph.S
    nA = sum(1 for p in ph.pieces if p[0] == 'A' and p[5] is None)
    nB = sum(1 for p in ph.pieces if p[0] == 'B' and p[5] is None)
    n = nA + nB
    def issue(t, which, throttle=None):
        a(f"s_mov_b32 s{S_T}, {t}\ns_mov_b32 s{S_LDS}, {ph.lds0 + (t % NS)*ph.stage}")
        set_stage_k(a, ph)
        emit_stage_loads(a, ph, which, throttle)
    a.c(f"--- producer {ph.name}: B prefill")
    for t in range(NS):
        issue(t, 'B', thr)
        if t == 0 and mid: mid()
    handoff()
    q = []
    def wait(t):
        last = max(i for i, x in enumerate(q) if x[0] == t)
        a(f"s_waitcnt vmcnt({min(63, sum(x[1] for x in q[last+1:]))})")
    for t in range(preA):
        issue(t, 'A'); q.append((t, nA))
    wait(0); a("s_barrier")
    nxtA = preA
    s = 0
    while True:
        for _ in range(2):
            if nxtA < NS:
                issue(nxtA, 'A'); q.append((nxtA, nA)); nxtA += 1
        if extras and nxtA >= NS:
            extras(); q.append((-1, nextra)); extras = None
        if s >= NS - 1 and nxtA >= NS: break
        wait(s + 1); a("s_barrier")
        issue(s + NS, 'AB'); q.append((s + NS, n))
        s += 1
    t0 = s + NS
    a(f"s_mov_b32 s{S_T}, {t0}\ns_mov_b32 s{S_LDS}, {ph.lds0 + (t0 % NS)*ph.stage}")
    first = True
    if finish:
        a(f"s_waitcnt vmcnt({min(63, (NS-2)*n)})\ns_barrier")
        set_stage_k(a, ph); emit_stage_loads(a, ph); next_slot(a, ph)
        a(f"s_add_u32 s{S_T}, s{S_T}, 1")
        finish()
    L = a.lab('ploop')
    a(f"{L}:")
    a(f"s_waitcnt vmcnt({min(63, (NS-2)*n)})\ns_barrier")
    set_stage_k(a, ph); emit_stage_loads(a, ph); next_slot(a, ph)
    if loop_hook: loop_hook()
    a(f"s_add_u32 s{S_T}, s{S_T}, 1\ns_cmp_lt_u32 s{S_T}, {S}\ns_cbranch_scc1 {L}")
    for s in range(S - NS, S - 1):
        left = (S - 1) - (s + 1)
        a(f"s_waitcnt vmcnt({min(63, left*n)})\ns_barrier")
    a("s_barrier")

def reads(a, ph, st, kb):
    out = []
    A = []
    for i, (areg, off) in enumerate(ph.afr):
        d = ph.va[st] + 4*i
        A.append(f"ds_read_b128 {vr(d,4)}, v{areg} offset:{off + kb*ph.a_kb}")
    B = []
    for i, (breg, off, half, kbs) in enumerate(ph.bfr):
        d = ph.vb[st] + 4*i
        B.append(f"ds_read_b64_tr_b16 {vr(d,2)}, v{breg} offset:{off + kb*kbs}")
        B.append(f"ds_read_b64_tr_b16 {vr(d+2,2)}, v{breg} offset:{off + kb*kbs + half}")
    return A + B

def mfmas(ph, st, first=False):
    out = []
    for (acc, ai, bi, swap) in ph.mm:
        A = vr(ph.va[st] + 4*ai, 4); B = vr(ph.vb[st] + 4*bi, 4)
        D = vr(ph.vacc + 4*acc, 4)
        C = "0" if first else D
        x, y = (B, A) if swap else (A, B)
        out.append(f"v_mfma_f32_16x16x32_bf16 {D}, {x}, {y}, {C}")
    return out

def interleave(a, M, R, lead=0, extra=None):
    R = list(R)
    per = max(1, math.ceil(len(R) / max(1, len(M) - lead - ph_tail(M, R))))
    for i, m in enumerate(M):
        a(m)
        if i >= lead:
            for _ in range(per):
                if R: a(R.pop(0))
    for r in R: a(r)

def ph_tail(M, R):
    return min(6, max(0, len(M) - len(R)))

def addr_update(a, ph):
    out = []
    out.append(f"s_add_u32 s{S_LDS}, s{S_LDS}, {ph.stage}")
    out.append(f"s_cmp_ge_u32 s{S_LDS}, {ph.NS*ph.stage}")
    out.append(f"s_cselect_b32 s{S_LDS}, 0, s{S_LDS}")
    out.append(f"s_cselect_b32 s{S_T0}, {(-(ph.NS-1)*ph.stage) & 0xffffffff:#x}, {ph.stage}" if False else f"s_cselect_b32 s{S_T0}, s{S_T1}, s{S_T2}")
    for cur in ph.addr_regs:
        out.append(f"v_add_u32 v{cur}, s{S_T0}, v{cur}")
    return out

def spread(a, M, F, start=0, end=None):
    end = len(M) if end is None else end
    n = max(1, end - start)
    F = list(F); k = 0
    for i, m in enumerate(M):
        a(m)
        if start <= i < end:
            want = ((i - start + 1) * len(F) + n - 1) // n
            while k < want: a(F[k]); k += 1
    while k < len(F): a(F[k]); k += 1

def consumer_gemm(a, ph, opt={}, after_first=None, final_bar=False, sbase=0):
    a.c(f"--- consumer {ph.name}")
    bar = "" if opt.get('nobar') else "s_barrier"
    tail = opt.get('tail', 6)
    if opt.get('prio'): a(f"s_setprio {opt['prio']}")
    a(f"s_mov_b32 s{S_LDS}, 0\ns_mov_b32 s{S_CNT}, {ph.S - 2}")
    a(f"s_mov_b32 s{S_T1}, {(-(ph.NS-1)*ph.stage) & 0xffffffff:#x}\ns_mov_b32 s{S_T2}, {ph.stage}")
    a("s_barrier")
    if opt.get('stamp'): a("s_memtime s[68:69]")
    stamp(a, sbase + 2)
    for r in reads(a, ph, 0, 0): a(r)
    if after_first: after_first()
    a("s_waitcnt lgkmcnt(0)")
    nm = len(ph.mm)
    upd = addr_update(a, ph)
    early = opt.get('early', False)
    def half_a(first):
        M = mfmas(ph, 0, first=first)
        R = reads(a, ph, 1, 1)
        if early:
            e = max(1, nm - tail - 4)
            spread(a, M[:e], R)
            spread(a, M[e:], upd, 0, max(1, len(M[e:]) - 1))
        else:
            spread(a, M, R, 0, max(1, nm - tail))
    half_a(True)
    L = a.lab('cloop')
    if opt.get('align'): a(f".p2align {opt['align']}")
    a(f"{L}:")
    pre = opt.get('pre', 0)
    a("s_waitcnt lgkmcnt(0)")
    M = mfmas(ph, 1)
    for m in M[:pre]: a(m)
    a(bar)
    F = ([] if early else upd) + reads(a, ph, 0, 0)
    spread(a, M[pre:], F, 0, max(1, nm - pre - tail))
    a(f"s_waitcnt lgkmcnt(0)")
    half_a(False)
    a(f"s_sub_u32 s{S_CNT}, s{S_CNT}, 1")
    a(f"s_cbranch_scc0 {L}")
    a("s_waitcnt lgkmcnt(0)")
    M = mfmas(ph, 1)
    for m in M[:pre]: a(m)
    if final_bar: a("s_barrier")
    for m in M[pre:]: a(m)

STAMP = {'on': False}
def stamp(a, i):
    if STAMP['on']:
        a(f"s_memrealtime s[92:93]\ns_waitcnt lgkmcnt(0)\nv_writelane_b32 v255, s92, {i}\ns_memtime s[92:93]\ns_waitcnt lgkmcnt(0)\nv_writelane_b32 v255, s92, {32+i}")
def stamp_flush(a, k, ws_tm):
    if STAMP['on']:
        srd(a, SRD_D, S_WS, 4 << 20, ws_tm)
        a(f"s_mov_b64 exec, -1\ns_lshl_b32 s{S_T0}, s2, 11\ns_lshl_b32 s{S_T1}, s{S_WAVE}, 8\ns_add_u32 s{S_T0}, s{S_T0}, s{S_T1}\ns_add_u32 s{S_T0}, s{S_T0}, {k*524288}")
        a(f"v_lshlrev_b32 v254, 2, v0\nbuffer_store_dword v255, v254, s[{SRD_D}:{SRD_D+3}], s{S_T0} offen")

def kernel_desc(name, vg=256, sg=102):
    return f""".p2align 6
.amdhsa_kernel {name}
  .amdhsa_next_free_vgpr {vg}
  .amdhsa_next_free_sgpr {sg}
  .amdhsa_accum_offset {(vg+3)//4*4}
  .amdhsa_group_segment_fixed_size 0
  .amdhsa_kernarg_size 88
  .amdhsa_user_sgpr_count 2
  .amdhsa_user_sgpr_kernarg_segment_ptr 1
  .amdhsa_system_sgpr_workgroup_id_x 1
  .amdhsa_float_denorm_mode_32 3
.end_amdhsa_kernel"""
```

```python
from gcore import *

WS_XN = 0
WS_O  = 4 << 20
WS_H  = 8 << 20
WS_G  = 12 << 20
WS_ST = 28 << 20
WS_CS = 29 << 20
WS_PX = 32 << 20
WS_FL = 48 << 20
WS_TM = 64 << 20

def map_8x4(a):
    a(f"s_and_b32 s{S_T0}, s2, 1\ns_lshl_b32 s{S_T0}, s{S_T0}, 3\ns_lshr_b32 s{S_T1}, s2, 3\ns_and_b32 s{S_T2}, s{S_T1}, 7\ns_add_u32 s{S_RB}, s{S_T0}, s{S_T2}")
    a(f"s_and_b32 s{S_T0}, s2, 7\ns_lshr_b32 s{S_T0}, s{S_T0}, 1\ns_lshl_b32 s{S_T0}, s{S_T0}, 2\ns_lshr_b32 s{S_T1}, s2, 6\ns_add_u32 s{S_CB}, s{S_T0}, s{S_T1}")
    a(f"s_add_u32 s{S_ROT}, s{S_RB}, s{S_CB}\ns_and_b32 s{S_ROT}, s{S_ROT}, 3")

def tr_lane_part(a, dst, t0, t1, pitch, jreg=None, j=0):
    a(f"v_lshrrev_b32 v{t0}, 2, v0")
    if pitch == 128:
        a(f"v_bfe_u32 v{t1}, v0, 3, 2")
    else:
        a(f"v_bfe_u32 v{t1}, v0, 4, 1")
    if jreg is not None: a(f"v_xor_b32 v{t1}, s{jreg}, v{t1}")
    else: a(f"v_xor_b32 v{t1}, {j}, v{t1}")
    a(f"v_lshlrev_b32 v{t1}, 5, v{t1}")
    a(f"v_lshlrev_b32 v{t0}, {int(math.log2(pitch))}, v{t0}")
    a(f"v_add_u32 v{dst}, v{t0}, v{t1}")
    a(f"v_and_b32 v{t0}, 3, v0\nv_lshlrev_b32 v{t0}, 3, v{t0}\nv_add_u32 v{dst}, v{dst}, v{t0}")

def dma_b_lane(a, dst, t0, t1, ldb, width):
    if width == 128:
        a(f"v_lshrrev_b32 v{t0}, 3, v0\nv_bfe_u32 v{t1}, v0, 4, 2\nv_lshlrev_b32 v{t1}, 1, v{t1}\nv_and_b32 v{dst}, 7, v0")
    else:
        a(f"v_lshrrev_b32 v{t0}, 2, v0\nv_bfe_u32 v{t1}, v0, 4, 1\nv_lshlrev_b32 v{t1}, 1, v{t1}\nv_and_b32 v{dst}, 3, v0")
    a(f"v_xor_b32 v{dst}, v{dst}, v{t1}\nv_lshlrev_b32 v{dst}, 4, v{dst}")
    a(f"v_mul_u32_u24 v{t0}, {ldb}, v{t0}\nv_add_u32 v{dst}, v{dst}, v{t0}")

S_LA, S_LB, S_LH = 57, 58, 59

def make_p3(lead=True, NS=3):
    ph = Phase(); ph.name = 'P3'; ph.S = 16; ph.NS = NS; ph.stage = 45056; ph.lds0 = 0; ph.lead = lead
    ph.ka_step = 2048; ph.kb_step = 64*7168; ph.aflags = ''; ph.bflags = ''
    ph.nmin = 11
    ph.pieces = []
    for i in range(2):
        ph.pieces.append(('A', 10+i, S_LA, i*2048, 0, None))
        ph.pieces.append(('A', 10+i, S_LA, None, 1024, None))
    for t in range(3):
        for i in range(2):
            ph.pieces.append(('B', 12 + t*2 + i, S_LB, 16384 + t*8192 + i*1024, 0, None))
    ph.pieces.append(('B', 18, S_LH, 40960, 0, None))
    ph.addr_regs = list(range(2, 10))
    ph.afr = [(2, 0), (2, 2048), (3, 0), (3, 2048)]
    ph.a_kb = 1024
    ph.bfr = [(4 + (c & 3), (c >> 2)*8192, 2048, 4096) for c in range(6)] + [(8, 0, 1024, 2048), (9, 0, 1024, 2048)]
    ph.va = [16, 32]; ph.vb = [48, 80]; ph.vacc = 112
    ph.mm = [(i*6 + c, i, c, True) for i in range(4) for c in range(6)] + [(24 + i*2 + c, i, 6 + c, True) for i in range(2) for c in range(2)]
    return ph

def p3_producer_setup(a, ph):
    srd(a, SRD_A, S_WS, 4 << 20, WS_H)
    srd(a, SRD_B, S_W1, 1024*3584*2)
    a(f"s_lshl_b32 s{S_LA}, s{S_W4}, 12\ns_lshl_b32 s{S_LB}, s{S_W4}, 11\ns_lshl_b32 s{S_LH}, s{S_W4}, 10")
    a(f"s_lshl_b32 s{S_T0}, s{S_RB}, 3\ns_lshl_b32 s{S_T1}, s{S_W4}, 1\ns_add_u32 s{S_T0}, s{S_T0}, s{S_T1}\ns_lshl_b32 s{S_T0}, s{S_T0}, 15")
    a(f"v_lshlrev_b32 v10, 4, v0\nv_add_u32 v10, s{S_T0}, v10\nv_add_u32 v11, 0x8000, v10")
    a(f"s_mul_i32 s{S_T0}, s{S_CB}, 448\ns_and_b32 s{S_T1}, s{S_CB}, 1\ns_lshl_b32 s{S_T2}, s{S_T1}, 6\ns_add_u32 s{S_T2}, s{S_T2}, s{S_T0}")
    a(f"s_cmp_eq_u32 s{S_T1}, 0\ns_cselect_b32 s{S_T1}, 384, 0\ns_add_u32 s{S_T1}, s{S_T1}, s{S_T0}")
    a(f"s_mul_i32 s{S_T0}, s{S_W4}, {16*7168}\ns_add_u32 s{S_T2}, s{S_T2}, s{S_T0}\ns_add_u32 s{S_T1}, s{S_T1}, s{S_T0}")
    dma_b_lane(a, 12, 20, 21, 7168, 128)
    a(f"v_add_u32 v12, s{S_T2}, v12")
    for t in range(3):
        for i in range(2):
            if t or i: a(f"v_add_u32 v{12+t*2+i}, {t*128 + i*8*7168}, v12")
    dma_b_lane(a, 18, 20, 21, 7168, 64)
    a(f"v_add_u32 v18, s{S_T1}, v18")

def p3_consumer_setup(a, ph):
    a(f"s_lshr_b32 s{S_T0}, s{S_W4}, 1\ns_and_b32 s{S_T1}, s{S_W4}, 1")
    a(f"s_lshl_b32 s{S_T2}, s{S_T0}, 13\ns_lshl_b32 s{S_T3}, s{S_T1}, 12\ns_add_u32 s{S_T3}, s{S_T3}, s{S_T2}")
    if ph.lds0: a(f"s_add_u32 s{S_T3}, s{S_T3}, {ph.lds0}")
    a(f"v_lshlrev_b32 v2, 4, v0\nv_add_u32 v2, s{S_T3}, v2\nv_xor_b32 v3, 0x1000, v2" if ph.lds0 % 8192 == 0 else "ERR")
    for k in range(4):
        a(f"s_lshl_b32 s{S_T2}, s{S_T1}, 1\ns_add_u32 s{S_T2}, s{S_T2}, {k}\ns_and_b32 s{S_T2}, s{S_T2}, 3")
        tr_lane_part(a, 4+k, 10, 11, 128, jreg=S_T2)
        a(f"s_mul_i32 s{S_T2}, s{S_T1}, {8192*(2 if k >= 2 else 1)}\ns_add_u32 s{S_T2}, s{S_T2}, {16384 + ph.lds0}\nv_add_u32 v{4+k}, s{S_T2}, v{4+k}")
    for j in range(2):
        tr_lane_part(a, 8+j, 10, 11, 64, j=j)
        a(f"v_add_u32 v{8+j}, {40960 + ph.lds0}, v{8+j}")

def xor16_32(a, v, t, op):
    a(f"v_mov_b32 v{t}, v{v}\ns_nop 1\nv_permlane16_swap_b32 v{t}, v{v}\ns_nop 0\n{op} v{v}, v{t}, v{v}")
    a(f"v_mov_b32 v{t}, v{v}\ns_nop 1\nv_permlane32_swap_b32 v{t}, v{v}\ns_nop 0\n{op} v{v}, v{t}, v{v}")

def xor16_32_multi(a, vs, ts, op):
    n = len(vs)
    for perm in ('v_permlane16_swap_b32', 'v_permlane32_swap_b32'):
        for v, t in zip(vs, ts): a(f"v_mov_b32 v{t}, v{v}")
        if n < 3: a(f"s_nop {2-n}")
        for v, t in zip(vs, ts): a(f"{perm} v{t}, v{v}")
        for v, t in zip(vs, ts): a(f"{op} v{v}, v{t}, v{v}")

def rbf(a, v):
    a(f"v_cvt_pk_bf16_f32 v{v}, v{v}, v{v}\nv_and_b32 v{v}, 0xffff0000, v{v}")

def ln_scale(a, vmean, vvar, t):
    rbf(a, vmean)
    a(f"v_max_f32 v{vvar}, 0, v{vvar}")
    rbf(a, vvar)
    a(f"v_add_f32 v{vvar}, 0x3727c5ac, v{vvar}")
    rbf(a, vvar)
    a(f"v_sqrt_f32 v{vvar}, v{vvar}\ns_nop 0")
    rbf(a, vvar)
    a(f"v_rcp_f32 v{vvar}, v{vvar}\ns_nop 0")

def tree_sum(a, regs, op="v_add_f32"):
    regs = list(regs)
    while len(regs) > 1:
        nxt = []
        for i in range(0, len(regs) - 1, 2):
            a(f"{op} v{regs[i]}, v{regs[i]}, v{regs[i+1]}"); nxt.append(regs[i])
        if len(regs) % 2: nxt.append(regs[-1])
        regs = nxt
    return regs[0]

def p0_ln(a, sf='', sid=2, lds0=0):
    srd(a, SRD_A, S_X, 2048*1024*2)
    srd(a, SRD_C, S_WS, 4 << 20, WS_XN)
    a(f"v_and_b32 v1, 7, v0\nv_lshlrev_b32 v2, 11, v1\nv_bfe_u32 v3, v0, 5, 1\nv_lshlrev_b32 v3, 6, v3\nv_add_u32 v2, v2, v3")
    a(f"v_bfe_u32 v4, v0, 3, 2\nv_lshlrev_b32 v3, 3, v4\nv_add_u32 v2, v2, v3\ns_lshl_b32 s{S_T0}, s{S_W4}, 9\nv_add_u32 v2, s{S_T0}, v2")
    a(f"s_lshl_b32 s{S_T1}, s{sid}, 14")
    for j in range(4):
        a(f"buffer_load_dwordx2 v[{16+4*j}:{17+4*j}], v2, s[{SRD_A}:{SRD_A+3}], s{S_T1} offen offset:{j*128}")
        a(f"buffer_load_dwordx2 v[{18+4*j}:{19+4*j}], v2, s[{SRD_A}:{SRD_A+3}], s{S_T1} offen offset:{j*128+32}")
    a(f"v_bfe_u32 v3, v0, 5, 1\nv_lshlrev_b32 v3, 10, v3\nv_lshlrev_b32 v4, 8, v4\nv_add_u32 v3, v3, v4\nv_lshlrev_b32 v4, 4, v1\nv_add_u32 v3, v3, v4")
    a(f"s_and_b32 s{S_T2}, s{sid}, 1\ns_lshl_b32 s{S_T2}, s{S_T2}, 7\ns_lshl_b32 s{S_T0}, s{S_W4}, 13\ns_add_u32 s{S_T2}, s{S_T2}, s{S_T0}\nv_add_u32 v3, s{S_T2}, v3")
    a(f"s_lshr_b32 s{S_T2}, s{sid}, 1\ns_lshl_b32 s{S_T2}, s{S_T2}, 15")
    a(f"v_lshlrev_b32 v5, 4, v1\nv_add_u32 v5, {lds0}, v5\ns_lshl_b32 s{S_T0}, s{S_W4}, 2\nv_add_u32 v6, s{S_T0}, v5")
    a("s_waitcnt vmcnt(0)")
    for k in range(16):
        a(f"v_lshlrev_b32 v{32+2*k}, 16, v{16+k}\nv_and_b32 v{33+2*k}, 0xffff0000, v{16+k}")
    for k in range(16): a(f"v_add_f32 v{64+k}, v{32+2*k}, v{33+2*k}")
    tree_sum(a, range(64, 80))
    def wg_reduce(off):
        a("s_nop 1\nv_add_f32_dpp v64, v64, v64 row_ror:8 row_mask:0xf bank_mask:0xf")
        xor16_32(a, 64, 65, "v_add_f32")
        a(f"ds_write_b32 v6, v64 offset:{off}\ns_waitcnt lgkmcnt(0)\ns_barrier\nds_read_b128 v[68:71], v5 offset:{off}\ns_waitcnt lgkmcnt(0)")
        a("v_add_f32 v68, v68, v69\nv_add_f32 v70, v70, v71\nv_add_f32 v68, v68, v70\nv_mul_f32 v68, 0x3a800000, v68")
    wg_reduce(0)
    a("v_mov_b32 v7, v68")
    for k in range(16):
        a(f"v_sub_f32 v80, v{32+2*k}, v7\nv_sub_f32 v81, v{33+2*k}, v7\nv_mul_f32 v{64+k}, v80, v80\nv_fmac_f32 v{64+k}, v81, v81")
    tree_sum(a, range(64, 80))
    wg_reduce(128)
    a("v_mov_b32 v8, v68")
    ln_scale(a, 7, 8, 9)
    for k in range(16):
        a(f"v_sub_f32 v80, v{32+2*k}, v7\nv_sub_f32 v81, v{33+2*k}, v7\nv_cvt_pk_bf16_f32 v82, v80, v81")
        a(f"v_lshlrev_b32 v80, 16, v82\nv_and_b32 v81, 0xffff0000, v82\nv_mul_f32 v80, v80, v8\nv_mul_f32 v81, v81, v8\nv_cvt_pk_bf16_f32 v{16+k}, v80, v81")
    for j in range(4):
        if j == 2: a(f"s_add_u32 s{S_T2}, s{S_T2}, 4096")
        a(f"buffer_store_dwordx4 v[{16+4*j}:{19+4*j}], v3, s[{SRD_C}:{SRD_C+3}], s{S_T2} offen offset:{(j&1)*2048} {sf}")

def p0_colsum(a, lds0, nbar_extra, sf=''):
    srd(a, SRD_B, S_W1, 1024*3584*2)
    srd(a, SRD_D, S_WS, 1 << 20, WS_CS)
    a("v_cmp_le_u32 vcc, 28, v0\nv_subrev_u32 v2, 28, v0\ns_nop 0\nv_cndmask_b32 v2, v0, v2, vcc\nv_cndmask_b32 v3, 0, 1, vcc")
    a(f"v_mul_u32_u24 v4, 7168, v3\nv_lshlrev_b32 v5, 4, v2\nv_add_u32 v4, v4, v5")
    a(f"s_lshr_b32 s{S_T0}, s2, 4\ns_lshl_b32 s{S_T0}, s{S_T0}, 6\ns_lshl_b32 s{S_T1}, s{S_W4}, 4\ns_add_u32 s{S_T0}, s{S_T0}, s{S_T1}\ns_mul_i32 s{S_T0}, s{S_T0}, 7168")
    a(f"s_and_b32 s{S_T1}, s2, 15\ns_mul_i32 s{S_T2}, s{S_T1}, 448\ns_add_u32 s{S_T0}, s{S_T0}, s{S_T2}")
    a("s_mov_b64 exec, 0x00ffffffffffffff" if False else "s_mov_b32 exec_hi, 0x00ffffff")
    for j in range(8):
        a(f"s_add_u32 s{S_T3}, s{S_T0}, {j*2*7168}\nbuffer_load_dwordx4 v[{16+4*j}:{19+4*j}], v4, s[{SRD_B}:{SRD_B+3}], s{S_T3} offen")
    a(f"s_lshl_b32 s{S_T3}, s{S_W4}, 1\nv_add_u32 v6, s{S_T3}, v3\nv_mul_u32_u24 v6, 896, v6\nv_lshlrev_b32 v5, 5, v2\nv_add_u32 v6, v6, v5")
    for j in range(8):
        a(f"s_waitcnt vmcnt({7-j})")
        for k in range(4):
            s = 16 + 4*j + k
            if j == 0:
                a(f"v_lshlrev_b32 v{48+2*k}, 16, v{s}\nv_and_b32 v{49+2*k}, 0xffff0000, v{s}")
            else:
                a(f"v_lshlrev_b32 v56, 16, v{s}\nv_and_b32 v57, 0xffff0000, v{s}\nv_add_f32 v{48+2*k}, v{48+2*k}, v56\nv_add_f32 v{49+2*k}, v{49+2*k}, v57")
    a(f"ds_write_b128 v6, v[48:51] offset:{lds0}\nds_write_b128 v6, v[52:55] offset:{lds0+16}")
    a("s_mov_b64 exec, -1\ns_waitcnt lgkmcnt(0)\ns_barrier")
    a(f"s_mul_i32 s{S_T3}, s{S_W4}, 224\nv_lshlrev_b32 v7, 2, v0\nv_add_u32 v7, s{S_T3}, v7")
    for k in range(8): a(f"ds_read_b32 v{16+k}, v7 offset:{lds0 + k*896}")
    a(f"s_lshr_b32 s{S_T0}, s2, 4\ns_mul_i32 s{S_T0}, s{S_T0}, {3584*4}\ns_mul_i32 s{S_T1}, s{S_T1}, 896\ns_add_u32 s{S_T0}, s{S_T0}, s{S_T1}")
    a("s_waitcnt lgkmcnt(0)")
    tree_sum(a, range(16, 24))
    a(f"s_mov_b32 exec_hi, 0x00ffffff\nbuffer_store_dword v16, v7, s[{SRD_D}:{SRD_D+3}], s{S_T0} offen {sf}\ns_mov_b64 exec, -1")
    for _ in range(nbar_extra): a("s_barrier")

def make_p1(lead=True):
    ph = Phase(); ph.name = 'P1'; ph.S = 16; ph.NS = 3; ph.stage = 43008; ph.lds0 = 0; ph.lead = lead
    ph.ka_step = 2048; ph.kb_step = 64*6144; ph.aflags = ''; ph.bflags = ''
    ph.nmin = 10
    ph.pieces = []
    for i in range(2):
        ph.pieces.append(('A', 10+i, S_LA, 2048 + i*2048, 0, None))
        ph.pieces.append(('A', 10+i, S_LA, None, 1024, None))
    ph.pieces.append(('A', 18, S_LH, 0, 0, 2))
    for t in range(3):
        for i in range(2):
            ph.pieces.append(('B', 12 + t*2 + i, S_LB, 18432 + t*8192 + i*1024, 0, None))
    ph.addr_regs = [2, 4, 5]
    ph.afr = [(2, i*2048) for i in range(5)]
    ph.a_kb = 1024
    ph.bfr = [(4 + c, t*8192, 2048, 4096) for t in range(3) for c in range(2)]
    ph.va = [16, 36]; ph.vb = [56, 80]; ph.vacc = 112
    mm = []
    for i in range(5):
        row = [(i*2 + c, i, 2 + c, True) for c in range(2)] + [(10 + i*2 + c, i, 4 + c, False) for c in range(2)]
        if i: row += [(20 + (i-1)*2 + c, i, c, True) for c in range(2)]
        mm += row if i % 2 == 0 else row[::-1]
    ph.mm = mm
    return ph

def a_frag_voff(a, rts_shift_or_mul, v, extra_sgpr=None):
    pass

def p1_producer_setup(a, ph):
    srd(a, SRD_A, S_WS, 4 << 20, WS_XN)
    srd(a, SRD_B, S_WQKV, 1024*3072*2)
    a(f"s_lshl_b32 s{S_LA}, s{S_W4}, 12\ns_lshl_b32 s{S_LB}, s{S_W4}, 11\ns_lshl_b32 s{S_LH}, s{S_W4}, 10")
    a(f"s_lshl_b32 s{S_T0}, s{S_RB}, 3\ns_lshl_b32 s{S_T1}, s{S_W4}, 1\ns_add_u32 s{S_T1}, s{S_T0}, s{S_T1}\ns_lshl_b32 s{S_T1}, s{S_T1}, 15")
    a(f"v_lshlrev_b32 v18, 4, v0\nv_add_u32 v10, s{S_T1}, v18\nv_add_u32 v11, 0x8000, v10")
    a(f"s_max_u32 s{S_T0}, s{S_T0}, 1\ns_sub_u32 s{S_T0}, s{S_T0}, 1\ns_lshl_b32 s{S_T0}, s{S_T0}, 15\ns_add_u32 s{S_T0}, s{S_T0}, s{S_LH}\nv_add_u32 v18, s{S_T0}, v18")
    a(f"s_lshl_b32 s{S_T2}, s{S_CB}, 7\ns_mul_i32 s{S_T0}, s{S_W4}, {16*6144}\ns_add_u32 s{S_T2}, s{S_T2}, s{S_T0}")
    dma_b_lane(a, 12, 20, 21, 6144, 128)
    a(f"v_add_u32 v12, s{S_T2}, v12")
    for t in range(3):
        for i in range(2):
            if t or i: a(f"v_add_u32 v{12+t*2+i}, {t*2048 + i*8*6144}, v12")

S_MASK = 64

def p1_consumer_setup(a, ph):
    a(f"s_lshr_b32 s{S_T0}, s{S_W4}, 1\ns_and_b32 s{S_T1}, s{S_W4}, 1")
    a(f"s_lshl_b32 s{S_T2}, s{S_T0}, 13\nv_lshlrev_b32 v2, 4, v0\nv_add_u32 v2, s{S_T2}, v2")
    if ph.lds0: a(f"v_add_u32 v2, {ph.lds0}, v2")
    for c in range(2):
        a(f"s_lshl_b32 s{S_T2}, s{S_T1}, 1\ns_add_u32 s{S_T2}, s{S_T2}, {c}")
        tr_lane_part(a, 4+c, 10, 11, 128, jreg=S_T2)
        a(f"v_add_u32 v{4+c}, {18432 + ph.lds0}, v{4+c}")
    a("v_and_b32 v10, 15, v0\nv_lshrrev_b32 v11, 4, v0\nv_lshlrev_b32 v11, 2, v11\nv_sub_u32 v10, v10, v11\nv_mov_b32 v12, 0xf149f2ca")
    for t in range(2):
        for r in range(4):
            a(f"v_add_u32 v11, {(16 if t == 0 else 0) - r}, v10\nv_and_b32 v11, 0xfffffff1, v11\nv_cmp_eq_u32 vcc, 0, v11\ns_nop 1\nv_cndmask_b32 v{224+4*t+r}, v12, 0, vcc")
    a(f"s_lshl_b32 s{S_T2}, s{S_RB}, 1\ns_add_u32 s{S_T2}, s{S_T2}, s{S_T0}\ns_cmp_eq_u32 s{S_T2}, 0\ns_cselect_b64 vcc, -1, 0")
    for r in range(4): a(f"v_cndmask_b32 v{232+r}, v{224+r}, v12, vcc")

def p1_epilogue(a, ph, sf=''):
    acc = lambda n: ph.vacc + 4*n
    srd(a, SRD_C, S_WS, 4 << 20, WS_O)
    a(f"s_lshr_b32 s{S_T0}, s{S_W4}, 1\ns_and_b32 s{S_T1}, s{S_W4}, 1\ns_lshl_b32 s{S_T2}, s{S_RB}, 1\ns_add_u32 s{S_T2}, s{S_T2}, s{S_T0}")
    a(f"s_lshl_b32 s{S_T2}, s{S_T2}, 17\ns_lshl_b32 s{S_T3}, s{S_CB}, 1\ns_add_u32 s{S_T3}, s{S_T3}, s{S_T1}\ns_lshl_b32 s{S_T3}, s{S_T3}, 10\ns_add_u32 s{S_T2}, s{S_T2}, s{S_T3}")
    a(f"v_lshlrev_b32 v2, 4, v0\ns_mov_b32 s82, 0x3e8293ee\ns_mov_b32 s83, 0x3e8293ee")
    P = lambda r: f"v[{r}:{r+1}]"
    KP, QP, VP = 16, 36, 52
    for i in range(5):
        for c in range(2):
            for h in range(2):
                a(f"v_cvt_pk_bf16_f32 v{KP+4*i+2*c+h}, v{acc(i*2+c)+2*h}, v{acc(i*2+c)+2*h+1}")
        if i:
            for c in range(2):
                for h in range(2):
                    a(f"v_cvt_pk_bf16_f32 v{QP+4*(i-1)+2*c+h}, v{acc(20+(i-1)*2+c)+2*h}, v{acc(20+(i-1)*2+c)+2*h+1}")
    SS = 72
    a("s_nop 1")
    for i in range(1, 5):
        for t in range(2):
            d = SS + 8*(i-1) + 4*t
            a(f"v_mfma_f32_16x16x32_bf16 v[{d}:{d+3}], v[{KP+4*(i-1+t)}:{KP+4*(i-1+t)+3}], v[{QP+4*(i-1)}:{QP+4*(i-1)+3}], v[{(232 if (i == 1 and t == 0) else 224 + 4*t)}:{(232 if (i == 1 and t == 0) else 224 + 4*t) + 3}]")
    for i in range(5):
        for c in range(2):
            for h in range(2):
                a(f"v_cvt_pk_bf16_f32 v{VP+10*c+2*i+h}, v{acc(10+i*2+c)+2*h}, v{acc(10+i*2+c)+2*h+1}")
    MX = [112, 114, 116, 118]; TT = [113, 115, 117, 119]
    for i in range(4):
        b = SS + 8*i
        a(f"v_max3_f32 v{MX[i]}, v{b}, v{b+1}, v{b+2}\nv_max3_f32 v{TT[i]}, v{b+3}, v{b+4}, v{b+5}")
    for i in range(4):
        b = SS + 8*i
        a(f"v_max3_f32 v{MX[i]}, v{MX[i]}, v{b+6}, v{b+7}")
    for i in range(4): a(f"v_max_f32 v{MX[i]}, v{MX[i]}, v{TT[i]}")
    xor16_32_multi(a, MX, TT, "v_max_f32")
    for i in range(4): a(f"v_mul_f32 v{MX[i]}, s82, v{MX[i]}")
    for k in range(0, 8, 2):
        for i in range(4): a(f"v_pk_fma_f32 {P(SS+8*i+k)}, {P(SS+8*i+k)}, s[82:83], {P(MX[i])} op_sel_hi:[1,1,0] neg_lo:[0,0,1] neg_hi:[0,0,1]")
    for i in range(4):
        for k in range(8): a(f"v_exp_f32 v{SS+8*i+k}, v{SS+8*i+k}")
    W = 136
    for k in range(2):
        for i in range(4): a(f"v_pk_add_f32 {P(W+4*i+2*k)}, {P(SS+8*i+4*k)}, {P(SS+8*i+4*k+2)}")
    for i in range(4): a(f"v_pk_add_f32 {P(W+4*i)}, {P(W+4*i)}, {P(W+4*i+2)}")
    for i in range(4): a(f"v_add_f32 v{MX[i]}, v{W+4*i}, v{W+4*i+1}")
    xor16_32_multi(a, MX, TT, "v_add_f32")
    for i in range(4): a(f"v_rcp_f32 v{MX[i]}, v{MX[i]}")
    PP = 120
    for k in range(0, 8, 2):
        for i in range(4): a(f"v_pk_mul_f32 {P(SS+8*i+k)}, {P(SS+8*i+k)}, {P(MX[i])} op_sel_hi:[1,0]")
    for i in range(4):
        for k in range(4): a(f"v_cvt_pk_bf16_f32 v{PP+4*i+k}, v{SS+8*i+2*k}, v{SS+8*i+2*k+1}")
    OO = 136
    a("s_nop 1")
    for i in range(4):
        for c in range(2):
            d = OO + 8*i + 4*c
            a(f"v_mfma_f32_16x16x32_bf16 v[{d}:{d+3}], v[{VP+10*c+2*i}:{VP+10*c+2*i+3}], v[{PP+4*i}:{PP+4*i+3}], 0")
    a("s_nop 1")
    for i in range(4):
        if i == 3: a("s_nop 1")
        for k in range(4): a(f"v_cvt_pk_bf16_f32 v{SS+4*i+k}, v{OO+8*i+2*k}, v{OO+8*i+2*k+1}")
        a(f"s_add_u32 s{S_T3}, s{S_T2}, {i*32768}\nbuffer_store_dwordx4 v[{SS+4*i}:{SS+4*i+3}], v2, s[{SRD_C}:{SRD_C+3}], s{S_T3} offen {sf}")

def map_4x8(a):
    a(f"s_and_b32 s{S_T0}, s2, 3\ns_lshl_b32 s{S_T0}, s{S_T0}, 2\ns_lshr_b32 s{S_T1}, s2, 3\ns_and_b32 s{S_T2}, s{S_T1}, 3\ns_add_u32 s{S_RB}, s{S_T0}, s{S_T2}")
    a(f"s_bfe_u32 s{S_T0}, s2, 0x10002\ns_lshl_b32 s{S_T0}, s{S_T0}, 3\ns_lshr_b32 s{S_T1}, s2, 5\ns_add_u32 s{S_CB}, s{S_T0}, s{S_T1}")
    a(f"s_add_u32 s{S_ROT}, s{S_RB}, s{S_CB}\ns_and_b32 s{S_ROT}, s{S_ROT}, 3")

def make_p2(lead=True):
    ph = Phase(); ph.name = 'P2'; ph.S = 16; ph.NS = 4; ph.stage = 24576; ph.lds0 = 0; ph.lead = lead
    ph.ka_step = 2048; ph.kb_step = 64*2048; ph.aflags = ''; ph.bflags = ''
    ph.nmin = 6
    ph.pieces = []
    for i in range(2):
        ph.pieces.append(('A', 10+i, S_LA, i*2048, 0, None))
        ph.pieces.append(('A', 10+i, S_LA, None, 1024, None))
    for i in range(2):
        ph.pieces.append(('B', 12 + i, S_LB, 16384 + i*1024, 0, None))
    ph.addr_regs = [2, 4, 5, 6, 7]
    ph.afr = [(2, 0), (2, 2048)]
    ph.a_kb = 1024
    ph.bfr = [(4 + j, 0, 2048, 4096) for j in range(4)]
    ph.va = [16, 24]; ph.vb = [32, 48]; ph.vacc = 64
    ph.mm = [(j, 0, j, True) for j in range(4)] + [(4 + j, 1, j, True) for j in range(3, -1, -1)]
    return ph

def p2_producer_setup(a, ph):
    srd(a, SRD_A, S_WS, 4 << 20, WS_O)
    srd(a, SRD_B, S_WO, 1024*1024*2)
    a(f"s_lshl_b32 s{S_LA}, s{S_W4}, 12\ns_lshl_b32 s{S_LB}, s{S_W4}, 11")
    a(f"s_lshl_b32 s{S_T0}, s{S_RB}, 3\ns_lshl_b32 s{S_T1}, s{S_W4}, 1\ns_add_u32 s{S_T1}, s{S_T0}, s{S_T1}\ns_lshl_b32 s{S_T1}, s{S_T1}, 15")
    a(f"v_lshlrev_b32 v10, 4, v0\nv_add_u32 v10, s{S_T1}, v10\nv_add_u32 v11, 0x8000, v10")
    a(f"s_lshl_b32 s{S_T2}, s{S_CB}, 7\ns_lshl_b32 s{S_T0}, s{S_W4}, 15\ns_add_u32 s{S_T2}, s{S_T2}, s{S_T0}")
    dma_b_lane(a, 12, 20, 21, 2048, 128)
    a(f"v_add_u32 v12, s{S_T2}, v12\nv_add_u32 v13, {8*2048}, v12")

P2_X = 96
def p2_consumer_setup(a, ph):
    srd(a, SRD_D, S_X, 2048*1024*2)
    a(f"v_and_b32 v8, 15, v0\nv_lshlrev_b32 v8, 11, v8\nv_lshrrev_b32 v9, 4, v0\nv_lshlrev_b32 v9, 3, v9\nv_add_u32 v8, v8, v9")
    a(f"s_lshl_b32 s{S_T0}, s{S_RB}, 18\ns_lshl_b32 s{S_T1}, s{S_W4}, 16\ns_add_u32 s{S_T0}, s{S_T0}, s{S_T1}\ns_lshl_b32 s{S_T1}, s{S_CB}, 7\ns_add_u32 s{S_T0}, s{S_T0}, s{S_T1}")
    a(f"s_add_u32 s{S_T1}, s{S_T0}, 32768")
    for i in range(2):
        for j in range(4):
            d = P2_X + 2*(i*4 + j)
            a(f"buffer_load_dwordx2 v[{d}:{d+1}], v8, s[{SRD_D}:{SRD_D+3}], s{S_T0+i} offen offset:{j*32}")
    a(f"s_lshl_b32 s{S_T2}, s{S_W4}, 12\nv_lshlrev_b32 v2, 4, v0\nv_add_u32 v2, s{S_T2}, v2")
    if ph.lds0: a(f"v_add_u32 v2, {ph.lds0}, v2")
    for j in range(4):
        tr_lane_part(a, 4+j, 10, 11, 128, j=j)
        a(f"v_add_u32 v{4+j}, {16384 + ph.lds0}, v{4+j}")

def p2_epilogue(a, ph, sf=''):
    acc = ph.vacc
    srd(a, SRD_C, S_WS, 4 << 20, WS_H)
    srd(a, SRD_D, S_WS, 1 << 20, WS_ST)
    a(f"s_lshl_b32 s{S_T0}, s{S_RB}, 3\ns_lshl_b32 s{S_T1}, s{S_W4}, 1\ns_add_u32 s{S_T0}, s{S_T0}, s{S_T1}")
    a(f"s_lshl_b32 s{S_T1}, s{S_T0}, 15\ns_lshl_b32 s{S_T2}, s{S_CB}, 11\ns_add_u32 s{S_T1}, s{S_T1}, s{S_T2}\ns_add_u32 s{S_T2}, s{S_T1}, 32768")
    a(f"s_lshl_b32 s{S_T0}, s{S_T0}, 11\ns_lshl_b32 s{S_T3}, s{S_CB}, 7\ns_add_u32 s{S_T0}, s{S_T0}, s{S_T3}")
    a(f"v_lshlrev_b32 v2, 4, v0\nv_lshlrev_b32 v3, 3, v0")
    P = lambda r: f"v[{r}:{r+1}]"
    a("s_waitcnt vmcnt(0)")
    for n in range(16):
        a(f"v_lshlrev_b32 v{112+2*n}, 16, v{P2_X+n}\nv_and_b32 v{113+2*n}, 0xffff0000, v{P2_X+n}")
    for n in range(16): a(f"v_pk_add_f32 {P(acc+2*n)}, {P(acc+2*n)}, {P(112+2*n)}")
    for i in range(2):
        for p in range(2):
            d = 20 + 8*i + 4*p
            for k in range(4):
                s = acc + 16*i + 8*p + 2*k
                a(f"v_cvt_pk_bf16_f32 v{d+k}, v{s}, v{s+1}")
            a(f"buffer_store_dwordx4 v[{d}:{d+3}], v2, s[{SRD_C}:{SRD_C+3}], s{S_T1+i} offen offset:{p*1024} {sf}")
    for k in range(4):
        for i in range(2): a(f"v_pk_add_f32 {P(112+8*i+2*k)}, {P(acc+16*i+4*k)}, {P(acc+16*i+4*k+2)}")
    for k in range(2):
        for i in range(2): a(f"v_pk_add_f32 {P(112+8*i+4*k)}, {P(112+8*i+4*k)}, {P(112+8*i+4*k+2)}")
    for i in range(2): a(f"v_pk_add_f32 {P(112+8*i)}, {P(112+8*i)}, {P(112+8*i+4)}")
    a("v_add_f32 v40, v112, v113\nv_add_f32 v48, v120, v121")
    xor16_32_multi(a, [40, 48], [41, 49], "v_add_f32")
    a("v_mul_f32 v42, 0x3c800000, v40\nv_mul_f32 v50, 0x3c800000, v48")
    for k in range(8):
        for i in range(2): a(f"v_pk_add_f32 {P(acc+16*i+2*k)}, {P(acc+16*i+2*k)}, {P(42+8*i)} op_sel_hi:[1,0] neg_lo:[0,1] neg_hi:[0,1]")
    for k in range(2):
        for i in range(2): a(f"v_pk_mul_f32 {P(112+8*i+2*k)}, {P(acc+16*i+2*k)}, {P(acc+16*i+2*k)}")
    for k in range(2, 8):
        for i in range(2): a(f"v_pk_fma_f32 {P(112+8*i+2*(k&1))}, {P(acc+16*i+2*k)}, {P(acc+16*i+2*k)}, {P(112+8*i+2*(k&1))}")
    for i in range(2): a(f"v_pk_add_f32 {P(112+8*i)}, {P(112+8*i)}, {P(112+8*i+2)}")
    a("v_add_f32 v41, v112, v113\nv_add_f32 v49, v120, v121")
    xor16_32_multi(a, [41, 49], [43, 51], "v_add_f32")
    a("s_mov_b64 exec, 0xffff")
    a(f"buffer_store_dwordx2 v[40:41], v3, s[{SRD_D}:{SRD_D+3}], s{S_T0} offen {sf}")
    a(f"buffer_store_dwordx2 v[48:49], v3, s[{SRD_D}:{SRD_D+3}], s{S_T0} offen offset:2048 {sf}")
    a("s_mov_b64 exec, -1")

P3_CONST = 135168
def p3_const_issue(a, lf=''):
    srd(a, SRD_C, S_WS, 2 << 20, WS_ST)
    srd(a, SRD_D, S_B1, 3584*2)
    Lc = a.lab('cols'); Le = a.lab('cend')
    a(f"s_cmp_ge_u32 s{S_W4}, 2\ns_cbranch_scc1 {Lc}")
    a(f"v_lshrrev_b32 v22, 4, v0\nv_lshlrev_b32 v22, 11, v22\nv_and_b32 v23, 15, v0\nv_lshlrev_b32 v23, 3, v23\nv_add_u32 v22, v22, v23")
    a(f"s_lshl_b32 s{S_T0}, s{S_RB}, 14\ns_lshl_b32 s{S_T1}, s{S_W4}, 13\ns_add_u32 s{S_T0}, s{S_T0}, s{S_T1}")
    for c in range(16):
        a(f"buffer_load_dwordx2 v[{32+2*c}:{33+2*c}], v22, s[{SRD_C}:{SRD_C+3}], s{S_T0} offen offset:{c*128} {lf}")
    a(f"s_branch {Le}\n{Lc}:")
    a(f"s_mul_i32 s{S_T0}, s{S_CB}, 224\ns_and_b32 s{S_T1}, s{S_CB}, 1\ns_lshl_b32 s{S_T2}, s{S_T1}, 5\ns_add_u32 s{S_T2}, s{S_T2}, s{S_T0}")
    a(f"s_cmp_eq_u32 s{S_T1}, 0\ns_cselect_b32 s{S_T1}, 0, 192\ns_sub_u32 s{S_T1}, s{S_T0}, s{S_T1}")
    a(f"s_and_b32 s{S_T0}, s{S_W4}, 1\ns_lshl_b32 s{S_T0}, s{S_T0}, 7\nv_lshlrev_b32 v23, 1, v0\nv_add_u32 v23, s{S_T0}, v23\nv_min_u32 v23, 222, v23")
    a(f"v_cmp_gt_u32 vcc, 192, v23\nv_mov_b32 v24, s{S_T1}\nv_mov_b32 v25, s{S_T2}\nv_cndmask_b32 v24, v24, v25, vcc\nv_add_u32 v24, v24, v23")
    a(f"v_lshlrev_b32 v22, 2, v24\nv_lshlrev_b32 v24, 1, v24")
    for c in range(16):
        a(f"s_mov_b32 s{S_T0}, {(1 << 20) + c*3584*4}\nbuffer_load_dwordx2 v[{32+2*c}:{33+2*c}], v22, s[{SRD_C}:{SRD_C+3}], s{S_T0} offen {lf}")
    a(f"buffer_load_dword v64, v24, s[{SRD_D}:{SRD_D+3}], 0 offen")
    a(f"{Le}:")

def p3_const_finish(a):
    Lc = a.lab('cols'); Le = a.lab('cend')
    a(f"s_cmp_ge_u32 s{S_W4}, 2\ns_cbranch_scc1 {Lc}")
    for c in range(8): a(f"v_add_f32 v{70+c}, v{32+4*c}, v{34+4*c}")
    tree_sum(a, range(70, 78))
    a("v_mul_f32 v70, 0x3a800000, v70")
    for c in range(16):
        a(f"v_fma_f32 v{32+2*c}, v{32+2*c}, 0x3c800000, -v70" if False else f"v_mul_f32 v{32+2*c}, 0x3c800000, v{32+2*c}\nv_sub_f32 v{32+2*c}, v{32+2*c}, v70")
    for c in range(16):
        a(f"v_mul_f32 v{32+2*c}, v{32+2*c}, v{32+2*c}\nv_mul_f32 v{32+2*c}, 0x42800000, v{32+2*c}\nv_add_f32 v{33+2*c}, v{33+2*c}, v{32+2*c}")
    tree_sum(a, range(33, 64, 2))
    a("v_mul_f32 v71, 0x3a800000, v33")
    ln_scale(a, 70, 71, 72)
    a(f"v_mul_f32 v73, v70, v71\nv_mov_b32 v72, v71\ns_lshl_b32 s{S_T0}, s{S_W4}, 9\nv_lshlrev_b32 v22, 3, v0\nv_add_u32 v22, s{S_T0}, v22\nv_add_u32 v22, {P3_CONST}, v22")
    a(f"ds_write_b64 v22, v[72:73]\ns_branch {Le}\n{Lc}:")
    tree_sum(a, range(32, 64, 2)); tree_sum(a, range(33, 64, 2))
    a(f"v_lshlrev_b32 v34, 16, v64\nv_and_b32 v35, 0xffff0000, v64\nv_lshlrev_b32 v23, 2, v23\nv_add_u32 v23, {P3_CONST + 1024}, v23")
    a(f"ds_write_b64 v23, v[32:33]\nds_write_b64 v23, v[34:35] offset:896")
    a(f"{Le}:\ns_waitcnt lgkmcnt(0)")

def p3_epilogue(a, ph, sf=''):
    acc = lambda n: ph.vacc + 4*n
    srd(a, SRD_C, S_WS, 16 << 20, WS_G)
    a(f"s_lshr_b32 s{S_T0}, s{S_W4}, 1\ns_and_b32 s{S_T1}, s{S_W4}, 1")
    a(f"s_lshl_b32 s{S_T2}, s{S_T0}, 9\ns_lshl_b32 s{S_T3}, s{S_T1}, 8\ns_add_u32 s{S_T2}, s{S_T2}, s{S_T3}\ns_add_u32 s{S_T2}, s{S_T2}, {P3_CONST}")
    a(f"v_and_b32 v2, 15, v0\nv_lshlrev_b32 v2, 3, v2\nv_add_u32 v2, s{S_T2}, v2\nv_xor_b32 v3, 0x100, v2")
    for i in range(4): a(f"ds_read_b64 v[{8+2*i}:{9+2*i}], v{2 + (i >> 1)} offset:{(i & 1)*128}")
    a(f"s_mul_i32 s{S_T2}, s{S_T1}, 384\ns_add_u32 s{S_T2}, s{S_T2}, {P3_CONST + 1024}\nv_and_b32 v5, 0x30, v0\nv_add_u32 v4, s{S_T2}, v5\nv_add_u32 v5, {P3_CONST + 1024 + 768}, v5")
    CS, BB = 16, 48
    for c in range(8):
        r, o = (4, c*64) if c < 6 else (5, (c-6)*64)
        a(f"ds_read_b128 v[{CS+4*c}:{CS+4*c+3}], v{r} offset:{o}\nds_read_b128 v[{BB+4*c}:{BB+4*c+3}], v{r} offset:{o+896}")
    a(f"s_lshl_b32 s{S_T2}, s{S_RB}, 3\ns_lshl_b32 s{S_T3}, s{S_T0}, 2\ns_add_u32 s{S_T2}, s{S_T2}, s{S_T3}\ns_lshl_b32 s{S_T3}, s{S_T1}, 1")
    for i in range(4):
        a(f"s_xor_b32 s{84+i}, s{S_T3}, {i}\ns_add_u32 s{84+i}, s{84+i}, s{S_T2}\ns_mul_i32 s{84+i}, s{84+i}, {112*1024}")
    a(f"s_mul_i32 s{S_T2}, s{S_CB}, 7\ns_and_b32 s{S_T3}, s{S_CB}, 1\ns_mul_i32 s88, s{S_T1}, 3\ns_add_u32 s88, s88, s{S_T2}\ns_add_u32 s88, s88, s{S_T3}\ns_lshl_b32 s88, s88, 10")
    a(f"s_cmp_eq_u32 s{S_T3}, 0\ns_cselect_b32 s89, 6, 0\ns_add_u32 s89, s89, s{S_T2}\ns_lshl_b32 s89, s89, 10")
    a(f"v_lshlrev_b32 v6, 4, v0\nv_add_u32 v7, s89, v6\nv_add_u32 v6, s88, v6")
    k2 = -2.0*0.7978845608028654*1.4426950408889634
    import struct
    f2h = lambda x: struct.unpack('<I', struct.pack('<f', x))[0]
    KK, ONE = 224, 226
    a(f"v_mov_b32 v{KK}, {f2h(k2*0.044715):#x}\nv_mov_b32 v{KK+1}, {f2h(k2):#x}\nv_mov_b32 v{ONE}, 1.0\nv_mov_b32 v{ONE+1}, 1.0")
    a("s_waitcnt lgkmcnt(0)")
    units = [(i, p) for p in range(3) for i in range(4)] + [(0, 3), (1, 3)]
    P = lambda r: f"v[{r}:{r+1}]"
    for n, (i, p) in enumerate(units):
        A = acc(i*6 + 2*p) if p < 3 else acc(24 + i*2)
        T = 80 + 16*(n & 1); U = T + 8
        R = 8 + 2*i
        for k in range(0, 8, 2): a(f"v_pk_fma_f32 {P(T+k)}, {P(R)}, {P(CS+8*p+k)}, {P(BB+8*p+k)} op_sel:[1,0,0] op_sel_hi:[1,1,1] neg_lo:[1,0,0] neg_hi:[1,0,0]")
        for k in range(0, 8, 2): a(f"v_pk_fma_f32 {P(A+k)}, {P(R)}, {P(A+k)}, {P(T+k)} op_sel_hi:[0,1,1]")
        for k in range(0, 8, 2): a(f"v_pk_mul_f32 {P(T+k)}, {P(A+k)}, {P(A+k)}")
        for k in range(0, 8, 2): a(f"v_pk_fma_f32 {P(T+k)}, {P(T+k)}, {P(KK)}, {P(KK)} op_sel:[0,0,1] op_sel_hi:[1,0,1]")
        for k in range(0, 8, 2): a(f"v_pk_mul_f32 {P(T+k)}, {P(T+k)}, {P(A+k)}")
        for k in range(8): a(f"v_exp_f32 v{T+k}, v{T+k}")
        for k in range(0, 8, 2): a(f"v_pk_add_f32 {P(T+k)}, {P(T+k)}, {P(ONE)}")
        for k in range(8): a(f"v_rcp_f32 v{T+k}, v{T+k}")
        for k in range(0, 8, 2): a(f"v_pk_mul_f32 {P(A+k)}, {P(A+k)}, {P(T+k)}")
        for k in range(4): a(f"v_cvt_pk_bf16_f32 v{U+k}, v{A+2*k}, v{A+2*k+1}")
        if p < 3: a(f"buffer_store_dwordx4 v[{U}:{U+3}], v6, s[{SRD_C}:{SRD_C+3}], s{84+i} offen offset:{p*1024} {sf}")
        else: a(f"buffer_store_dwordx4 v[{U}:{U+3}], v7, s[{SRD_C}:{SRD_C+3}], s{84+i} offen {sf}")

def map_p4(a):
    a(f"s_and_b32 s{S_T0}, s2, 3\ns_lshl_b32 s{S_T0}, s{S_T0}, 2\ns_lshr_b32 s{S_T1}, s2, 3\ns_and_b32 s{S_T2}, s{S_T1}, 3\ns_add_u32 s{S_RB}, s{S_T0}, s{S_T2}")
    a(f"s_bfe_u32 s{S_KH}, s2, 0x10002\ns_lshr_b32 s{S_CB}, s2, 5")
    a(f"s_add_u32 s{S_ROT}, s{S_RB}, s{S_CB}\ns_and_b32 s{S_ROT}, s{S_ROT}, 3")

def make_p4(lead=True):
    ph = Phase(); ph.name = 'P4'; ph.S = 28; ph.NS = 3; ph.stage = 32768; ph.lds0 = 0; ph.lead = lead
    ph.ka_step = 2048; ph.kb_step = 64*2048; ph.aflags = ''; ph.bflags = ''
    ph.nmin = 8
    ph.pieces = []
    for i in range(2):
        ph.pieces.append(('A', 10+i, S_LA, i*2048, 0, None))
        ph.pieces.append(('A', 10+i, S_LA, None, 1024, None))
    for t in range(2):
        for i in range(2):
            ph.pieces.append(('B', 12 + 2*t + i, S_LB, 16384 + t*8192 + i*1024, 0, None))
    ph.addr_regs = [2, 4, 5, 6, 7]
    ph.afr = [(2, i*2048) for i in range(4)]
    ph.a_kb = 1024
    ph.bfr = [(4 + c, 0, 2048, 4096) for c in range(4)]
    ph.va = [16, 32]; ph.vb = [48, 64]; ph.vacc = 112
    ph.mm = [(i*4 + c, i, c, True) for i in range(4) for c in (range(4) if i % 2 == 0 else range(3, -1, -1))]
    return ph

def p4_producer_setup(a, ph):
    srd(a, SRD_A, S_WS, 16 << 20, WS_G)
    srd(a, SRD_B, S_W2, 3584*1024*2)
    a(f"s_lshl_b32 s{S_LA}, s{S_W4}, 12\ns_lshl_b32 s{S_LB}, s{S_W4}, 11")
    a(f"s_lshl_b32 s{S_T0}, s{S_RB}, 3\ns_lshl_b32 s{S_T1}, s{S_W4}, 1\ns_add_u32 s{S_T1}, s{S_T0}, s{S_T1}\ns_mul_i32 s{S_T1}, s{S_T1}, {112*1024}")
    a(f"s_mul_i32 s{S_T0}, s{S_KH}, {56*1024}\ns_add_u32 s{S_T1}, s{S_T1}, s{S_T0}")
    a(f"v_lshlrev_b32 v10, 4, v0\nv_add_u32 v10, s{S_T1}, v10\nv_add_u32 v11, {112*1024}, v10")
    a(f"s_lshl_b32 s{S_T2}, s{S_CB}, 8\ns_lshl_b32 s{S_T0}, s{S_W4}, 15\ns_add_u32 s{S_T2}, s{S_T2}, s{S_T0}\ns_mul_i32 s{S_T0}, s{S_KH}, {1792*2048}\ns_add_u32 s{S_T2}, s{S_T2}, s{S_T0}")
    dma_b_lane(a, 12, 20, 21, 2048, 128)
    a(f"v_add_u32 v12, s{S_T2}, v12\nv_add_u32 v13, {8*2048}, v12\nv_add_u32 v14, 128, v12\nv_add_u32 v15, 128, v13")

P4_H = 80
def p4_res_loads(a, lf=''):
    a(f"s_lshl_b32 s84, s82, 15\ns_lshl_b32 s85, s83, 10\ns_add_u32 s84, s84, s85")
    for i in range(4):
        a(f"s_add_u32 s85, s84, {i*32768}\nbuffer_load_dwordx4 v[{P4_H+4*i}:{P4_H+4*i+3}], v3, s[{SRD_C}:{SRD_C+3}], s85 offen {lf}")

def p4_consumer_setup(a, ph, lf='', res=True):
    srd(a, SRD_C, S_WS, 4 << 20, WS_H)
    srd(a, SRD_D, S_B2, 1024*2)
    a(f"s_lshr_b32 s{S_T0}, s{S_W4}, 1\ns_and_b32 s{S_T1}, s{S_W4}, 1")
    a(f"s_lshl_b32 s83, s{S_CB}, 2\ns_lshl_b32 s{S_T2}, s{S_KH}, 1\ns_add_u32 s83, s83, s{S_T2}\ns_add_u32 s83, s83, s{S_T1}")
    a(f"s_lshl_b32 s82, s{S_RB}, 3\ns_lshl_b32 s{S_T2}, s{S_T0}, 2\ns_add_u32 s82, s82, s{S_T2}")
    a(f"v_lshlrev_b32 v3, 4, v0")
    if res: p4_res_loads(a, lf)
    a(f"v_lshrrev_b32 v8, 4, v0\nv_lshlrev_b32 v8, 3, v8\ns_lshl_b32 s{S_T3}, s83, 6")
    a(f"buffer_load_dwordx2 v[96:97], v8, s[{SRD_D}:{SRD_D+3}], s{S_T3} offen\nbuffer_load_dwordx2 v[98:99], v8, s[{SRD_D}:{SRD_D+3}], s{S_T3} offen offset:32")
    a(f"s_lshl_b32 s{S_T2}, s{S_T0}, 13\nv_add_u32 v2, s{S_T2}, v3")
    if ph.lds0: a(f"v_add_u32 v2, {ph.lds0}, v2")
    for c in range(2):
        a(f"s_lshl_b32 s{S_T2}, s{S_T1}, 1\ns_add_u32 s{S_T2}, s{S_T2}, {c}")
        tr_lane_part(a, 4+c, 10, 11, 128, jreg=S_T2)
        a(f"s_lshl_b32 s{S_T2}, s{S_KH}, 13\ns_add_u32 s{S_T2}, s{S_T2}, {16384 + ph.lds0}\nv_add_u32 v{4+c}, s{S_T2}, v{4+c}\nv_xor_b32 v{6+c}, 0x2000, v{4+c}")

def p4_epilogue(a, ph, fval='1', fbase=0):
    acc = lambda n: ph.vacc + 4*n
    srd(a, SRD_C, S_WS, 8 << 20, WS_PX)
    srd(a, SRD_D, S_WS, 1 << 20, WS_FL)
    srd(a, SRD_A, S_OUT, 2048*1024*2)
    a(f"s_lshl_b32 s{S_T0}, s{S_RB}, 3\ns_add_u32 s{S_T0}, s{S_T0}, s{S_CB}\ns_lshl_b32 s{S_T0}, s{S_T0}, 1\ns_add_u32 s{S_T0}, s{S_T0}, s{S_KH}")
    a(f"s_lshl_b32 s{S_T1}, s{S_T0}, 2\ns_add_u32 s{S_T1}, s{S_T1}, s{S_W4}")
    a(f"s_lshl_b32 s84, s{S_T1}, 13\ns_xor_b32 s85, s84, 0x8000")
    a(f"s_lshl_b32 s86, s{S_T1}, 7\ns_add_u32 s86, s86, {fbase}\ns_xor_b32 s87, s86, 0x200")
    for i in range(4):
        for c in range(2):
            n = i*2 + c
            if n == 4: a("s_add_u32 s84, s84, 4096")
            a(f"buffer_store_dwordx4 v[{acc(i*4+2+c)}:{acc(i*4+2+c)+3}], v3, s[{SRD_C}:{SRD_C+3}], s84 offen offset:{(n & 3)*1024} sc1")
    a("s_waitcnt vmcnt(8)")
    for h in range(4):
        a(f"v_lshlrev_b32 v{100+2*h}, 16, v{96+h}\nv_and_b32 v{101+2*h}, 0xffff0000, v{96+h}")
    for i in range(4):
        for h in range(4):
            d = acc(i*4) + 2*h
            a(f"v_lshlrev_b32 v16, 16, v{P4_H+4*i+h}\nv_and_b32 v17, 0xffff0000, v{P4_H+4*i+h}")
            a(f"v_add_f32 v16, v16, v{100+2*h}\nv_add_f32 v17, v17, v{101+2*h}\nv_add_f32 v{d}, v{d}, v16\nv_add_f32 v{d+1}, v{d+1}, v17")
    a(f"v_mov_b32 v18, 0\nv_mov_b32 v19, {fval}\ns_waitcnt vmcnt(0)\ns_mov_b64 exec, 1")
    a(f"buffer_store_dword v19, v18, s[{SRD_D}:{SRD_D+3}], s86 offen sc1")
    L = a.lab('poll')
    a(f"s_mov_b32 s88, 0\n{L}:\ns_add_u32 s88, s88, 1\ns_cmp_gt_u32 s88, 0x40000\ns_cbranch_scc1 {L}_x\nbuffer_load_dword v20, v18, s[{SRD_D}:{SRD_D+3}], s87 offen sc1\ns_waitcnt vmcnt(0)\nv_readfirstlane_b32 s{S_T2}, v20\ns_cmp_lg_u32 s{S_T2}, {fval}\ns_cbranch_scc1 {L}")
    a(f"{L}_x:\ns_mov_b64 exec, -1")
    RX = 24
    for n in range(8):
        if n == 4: a("s_add_u32 s85, s85, 4096")
        a(f"buffer_load_dwordx4 v[{RX+4*n}:{RX+4*n+3}], v3, s[{SRD_C}:{SRD_C+3}], s85 offen offset:{(n & 3)*1024} sc1")
    a("v_and_b32 v4, 15, v0\nv_lshlrev_b32 v4, 11, v4\nv_bfe_u32 v5, v0, 4, 1\nv_lshlrev_b32 v5, 5, v5\nv_add_u32 v4, v4, v5\nv_bfe_u32 v5, v0, 5, 1\nv_lshlrev_b32 v5, 4, v5\nv_add_u32 v4, v4, v5")
    a(f"s_lshl_b32 s{S_T2}, s82, 15\ns_lshl_b32 s{S_T3}, s83, 6\ns_add_u32 s{S_T2}, s{S_T2}, s{S_T3}")
    for i in range(4):
        a(f"s_waitcnt vmcnt({6 - 2*i + i})")
        d = acc(i*4)
        for k in range(8): a(f"v_add_f32 v{d+k}, v{d+k}, v{RX+8*i+k}")
        U = 64 + 4*i
        for k in range(4): a(f"v_cvt_pk_bf16_f32 v{U+k}, v{d+2*k}, v{d+2*k+1}")
        a(f"s_add_u32 s{S_T3}, s{S_T2}, {i*32768}\ns_nop 0\nv_permlane16_swap_b32 v{U}, v{U+2}\nv_permlane16_swap_b32 v{U+1}, v{U+3}")
        a(f"buffer_store_dwordx4 v[{U}:{U+3}], v4, s[{SRD_A}:{SRD_A+3}], s{S_T3} offen")


S_E = 62
S_FO = 63
SRD_F = 96
FL_E, FL_0, FL_1, FL_2, FL_3, FL_C, FL_X = 0, 0x1000, 0x2000, 0x3000, 0x4000, 0x5000, 0x10000

def flag_off(a, dst, base, srow, scol):
    a(f"s_lshl_b32 s{dst}, s{srow}, 7\ns_lshl_b32 s{S_T0}, s{scol}, 2\ns_add_u32 s{dst}, s{dst}, s{S_T0}\ns_add_u32 s{dst}, s{dst}, {base}")

def flag_set(a, soff, only_wave=4):
    L = a.lab('noflag')
    if only_wave is not None: a(f"s_cmp_lg_u32 s{S_WAVE}, {only_wave}\ns_cbranch_scc1 {L}")
    a(f"v_mov_b32 v28, 0\nv_mov_b32 v29, s{S_E}\ns_mov_b64 exec, 1\nbuffer_store_dword v29, v28, s[{SRD_F}:{SRD_F+3}], s{soff} offen sc1\ns_mov_b64 exec, -1")
    a(f"{L}:")

def poll(a, voff, soff, execmask):
    L = a.lab('poll')
    a(f"s_mov_b64 exec, {execmask:#x}\ns_mov_b32 s{S_T0}, 0\n{L}:")
    a(f"buffer_load_dword v31, v{voff}, s[{SRD_F}:{SRD_F+3}], s{soff} offen sc1\ns_add_u32 s{S_T0}, s{S_T0}, 1\ns_cmp_gt_u32 s{S_T0}, 0x20000\ns_cbranch_scc1 {L}_x")
    a(f"s_waitcnt vmcnt(0)\nv_cmp_ne_u32 vcc, s{S_E}, v31\ns_cbranch_vccnz {L}\n{L}_x:\ns_waitcnt vmcnt(0)\ns_mov_b64 exec, -1")

def colsum_wave(a, sk, scb, sf='sc1'):
    srd(a, SRD_C, S_W1, 1024*3584*2)
    srd(a, SRD_D, S_WS, 1 << 20, WS_CS)
    a(f"v_lshrrev_b32 v22, 3, v0\nv_mul_u32_u24 v22, 7168, v22\nv_and_b32 v23, 7, v0\nv_min_u32 v23, 6, v23\nv_lshlrev_b32 v24, 4, v23\nv_add_u32 v22, v22, v24")
    a(f"s_mul_i32 s{S_T0}, s{sk}, {64*7168}\ns_mul_i32 s{S_T1}, s{scb}, 448\ns_add_u32 s{S_T0}, s{S_T0}, s{S_T1}\ns_mul_i32 s{S_T1}, s{S_W4}, 112\ns_add_u32 s{S_T0}, s{S_T0}, s{S_T1}")
    for j in range(8):
        a(f"s_add_u32 s{S_T1}, s{S_T0}, {j*8*7168}\nbuffer_load_dwordx4 v[{32+4*j}:{35+4*j}], v22, s[{SRD_C}:{SRD_C+3}], s{S_T1} offen")
    a(f"s_mul_i32 s{S_T0}, s{sk}, {3584*4}\ns_mul_i32 s{S_T1}, s{scb}, 896\ns_add_u32 s{S_T0}, s{S_T0}, s{S_T1}\ns_mul_i32 s{S_T1}, s{S_W4}, 224\ns_add_u32 s{S_T0}, s{S_T0}, s{S_T1}")
    a("v_lshlrev_b32 v23, 5, v23")
    for j in range(8):
        a(f"s_waitcnt vmcnt({7-j})")
        for k in range(4):
            s = 32 + 4*j + k
            if j == 0: a(f"v_lshlrev_b32 v{64+2*k}, 16, v{s}\nv_and_b32 v{65+2*k}, 0xffff0000, v{s}")
            else: a(f"v_lshlrev_b32 v72, 16, v{s}\nv_and_b32 v73, 0xffff0000, v{s}\nv_pk_add_f32 v[{64+2*k}:{65+2*k}], v[{64+2*k}:{65+2*k}], v[72:73]")
    a("s_nop 1")
    for k in range(8): a(f"v_add_f32_dpp v{64+k}, v{64+k}, v{64+k} row_ror:8 row_mask:0xf bank_mask:0xf")
    xor16_32_multi(a, list(range(64, 72)), list(range(72, 80)), "v_add_f32")
    a(f"s_mov_b64 exec, 0x7f\nbuffer_store_dwordx4 v[64:67], v23, s[{SRD_D}:{SRD_D+3}], s{S_T0} offen {sf}\nbuffer_store_dwordx4 v[68:71], v23, s[{SRD_D}:{SRD_D+3}], s{S_T0} offen offset:16 {sf}\ns_mov_b64 exec, -1")

CNT_LDS = 160256
def publish(a, k, base, srow, scol):
    L = a.lab('nopub')
    flag_off(a, S_FO, base, srow, scol)
    a(f"v_mov_b32 v236, {CNT_LDS + 4*k}\nv_mov_b32 v237, 1\nv_mov_b32 v238, 0\nv_mov_b32 v239, s{S_E}\ns_mov_b64 exec, 1")
    a(f"s_waitcnt vmcnt(0)\nds_add_rtn_u32 v237, v236, v237\ns_waitcnt lgkmcnt(0)\nv_cmp_ne_u32 vcc, 3, v237\ns_cbranch_vccnz {L}")
    a(f"buffer_store_dword v239, v238, s[{SRD_F}:{SRD_F+3}], s{S_FO} offen sc1\n{L}:\ns_mov_b64 exec, -1")
```

```python
import sys
from phases import *
import hazard
STAMP['on'] = '--stamp' in sys.argv
O = dict(kv.split('=') for kv in sys.argv[1:] if '=' in kv)
NAME = 'sequential_preLN__sliding_local_dilated__dense_activation_gelu__prompt_kernel'
LDS = 163840
P0_LDS = 160000
OPT = dict(early=1, pre=4, tail=4)
p1, p2, p3, p4 = make_p1(), make_p2(), make_p3(), make_p4()
p2.NS = int(O.get('p2ns', 6))
for ph in (p1, p2, p3, p4): ph.aflags = 'sc1'
a = Asm()
if STAMP['on']: a("s_memrealtime s[94:95]")
prologue(a, 'L_done')
map_8x4(a)
a(f"s_lshl_b32 s61, s{S_RB}, 4\ns_add_u32 s61, s61, s{S_CB}")
a("s_waitcnt lgkmcnt(0)")
a(f"s_add_u32 s{SRD_F}, s{S_WS}, {WS_FL}\ns_addc_u32 s{SRD_F+1}, s{S_WS+1}, 0\ns_mov_b32 s{SRD_F+2}, {1 << 20}\ns_mov_b32 s{SRD_F+3}, 0x20000")
a(f"s_load_dword s{S_E}, s[{SRD_F}:{SRD_F+1}], 0")
if STAMP['on']: a("v_writelane_b32 v255, s94, 0")
a(f"s_cmp_ge_u32 s{S_WAVE}, 4\ns_cbranch_scc1 L_prod")
def drain():
    a("s_waitcnt vmcnt(0)\ns_barrier")
p0_ln(a, 'sc1', sid=61, lds0=P0_LDS)
a(f"s_add_u32 s{S_E}, s{S_E}, 1")
stamp(a, 1)
publish(a, 0, FL_0, S_RB, S_CB)
p1_consumer_setup(a, p1)
srd(a, SRD_D, S_DBG, 256)
a(f"s_cmp_lg_u32 s{S_WAVE}, 0\ns_cbranch_scc1 L_nocnt\nv_mov_b32 v8, 0\nv_mov_b32 v9, 1\ns_mov_b64 exec, 1\nbuffer_atomic_add v9, v8, s[{SRD_D}:{SRD_D+3}], 0 offen sc1\ns_mov_b64 exec, -1\nL_nocnt:")
consumer_gemm(a, p1, OPT, final_bar=True, sbase=0)
stamp(a, 3)
p1_epilogue(a, p1, 'sc1')
stamp(a, 4)
publish(a, 1, FL_1, S_RB, S_CB)
map_4x8(a)
stamp(a, 5)
p2_consumer_setup(a, p2)
consumer_gemm(a, p2, dict(early=0, pre=0, tail=0), final_bar=True, sbase=4)
stamp(a, 7)
p2_epilogue(a, p2, 'sc1')
stamp(a, 8)
publish(a, 2, FL_2, S_RB, S_CB)
map_8x4(a)
stamp(a, 9)
p3_consumer_setup(a, p3)
consumer_gemm(a, p3, OPT, final_bar=True, sbase=8)
stamp(a, 11)
p3_epilogue(a, p3, 'sc1')
stamp(a, 12)
publish(a, 3, FL_3, S_RB, S_CB)
map_p4(a)
stamp(a, 13)
p4_consumer_setup(a, p4, res=False)
consumer_gemm(a, p4, dict(early=0, pre=2, tail=2), after_first=lambda: p4_res_loads(a, 'sc1'), final_bar=True, sbase=12)
stamp(a, 15)
p4_epilogue(a, p4, fval=f"s{S_E}", fbase=FL_X)
stamp(a, 16)
if STAMP['on']: a("s_waitcnt vmcnt(0)")
stamp(a, 17)
stamp_flush(a, 0, WS_TM)
a("s_endpgm")
a("L_prod:")
a(f"v_mov_b32 v28, {CNT_LDS}\nv_mov_b32 v32, 0\nv_mov_b32 v33, 0\nv_mov_b32 v34, 0\nv_mov_b32 v35, 0\nds_write_b128 v28, v[32:35]")
p1_producer_setup(a, p1)
def h0mid():
    a(f"s_waitcnt lgkmcnt(0)\ns_add_u32 s{S_E}, s{S_E}, 1")
    a(f"s_max_u32 s{S_T1}, s{S_RB}, 1\ns_sub_u32 s{S_T1}, s{S_T1}, 1\ns_lshl_b32 s{S_T1}, s{S_T1}, 7\ns_sub_u32 s{S_T1}, s{S_T1}, 8\ns_lshl_b32 s{S_T2}, s{S_RB}, 7")
    a(f"v_cmp_gt_u32 vcc, 16, v0\nv_mov_b32 v26, s{S_T1}\nv_mov_b32 v27, s{S_T2}\nv_cndmask_b32 v26, v26, v27, vcc\nv_lshlrev_b32 v30, 2, v0\nv_add_u32 v26, v26, v30")
    a("s_barrier\ns_barrier")
def h0():
    a(f"s_mov_b32 s{S_FO}, {FL_0}")
    stamp(a, 1)
    poll(a, 26, S_FO, 0x3ffff)
    stamp(a, 2)
producer_fused(a, p1, h0, mid=h0mid)
stamp(a, 3)
a(f"s_mov_b32 s80, s{S_RB}\ns_mov_b32 s81, s{S_CB}")
map_4x8(a)
p2_producer_setup(a, p2)
def std_handoff(base, mask=0xffff, extra_off=None, pre=None, sb=0):
    def f():
        if pre: pre()
        stamp(a, sb+0)
        a(f"s_lshl_b32 s{S_FO}, s{S_RB}, 7\ns_add_u32 s{S_FO}, s{S_FO}, {base}")
        if extra_off: extra_off()
        stamp(a, sb+1)
        poll(a, 30, S_FO, mask)
        stamp(a, sb+2)
    return f
def colsum_job():
    colsum_wave(a, 80, 81)
    a("s_waitcnt vmcnt(0)")
    a(f"s_lshl_b32 s82, s81, 8\ns_lshl_b32 s{S_T0}, s80, 4\ns_add_u32 s82, s82, s{S_T0}\ns_lshl_b32 s{S_T0}, s{S_W4}, 2\ns_add_u32 s82, s82, s{S_T0}\ns_add_u32 s82, s82, {FL_C}")
    flag_set(a, 82, only_wave=None)
producer_fused(a, p2, std_handoff(FL_1, pre=colsum_job, sb=4), preA=3)
stamp(a, 7)
map_8x4(a)
p3_producer_setup(a, p3)
def cs_ready():
    a(f"s_lshl_b32 s82, s{S_CB}, 8\ns_add_u32 s82, s82, {FL_C}")
    poll(a, 30, 82, 0xffffffffffffffff)
class Hex(int):
    def __format__(self, spec): return "-1"
def cs_ready():
    a(f"s_lshl_b32 s82, s{S_CB}, 8\ns_add_u32 s82, s82, {FL_C}")
    poll(a, 30, 82, Hex(0))
producer_fused(a, p3, std_handoff(FL_2, pre=cs_ready, sb=8), extras=lambda: p3_const_issue(a, 'sc1'), nextra=16, finish=lambda: p3_const_finish(a))
stamp(a, 11)
map_p4(a)
p4_producer_setup(a, p4)
producer_fused(a, p4, std_handoff(FL_3, mask=0xff, extra_off=lambda: a(f"s_lshl_b32 s{S_T1}, s{S_KH}, 5\ns_add_u32 s{S_FO}, s{S_FO}, s{S_T1}"), sb=12))
stamp(a, 15)
a(f"s_cmp_lg_u32 s2, 0\ns_cbranch_scc1 L_pend\ns_cmp_lg_u32 s{S_WAVE}, 4\ns_cbranch_scc1 L_pend")
srd(a, SRD_D, S_DBG, 256)
a(f"v_mov_b32 v28, 0\ns_mov_b64 exec, 1\ns_mov_b32 s{S_T0}, 0\nL_cnt:\nbuffer_load_dword v31, v28, s[{SRD_D}:{SRD_D+3}], 0 offen sc1\ns_add_u32 s{S_T0}, s{S_T0}, 1\ns_cmp_gt_u32 s{S_T0}, 0x20000\ns_cbranch_scc1 L_cntx")
a(f"s_waitcnt vmcnt(0)\nv_cmp_gt_u32 vcc, 0x100, v31\ns_cbranch_vccnz L_cnt\nL_cntx:\nv_mov_b32 v29, s{S_E}\nbuffer_store_dword v29, v28, s[{SRD_F}:{SRD_F+3}], 0 offen sc1\ns_mov_b64 exec, -1")
a("L_pend:")
stamp_flush(a, 0, WS_TM)
a("L_done:\ns_endpgm")

ref = open('sequential_preLN__sliding_local_dilated__dense_activation_gelu__prompt.s.ref').read().split('\n')
hdr = [l for l in ref if l.startswith(';') and '@launch' not in l and 'Override' not in l and 'grid=ceil' not in l]
lst = '--list' in sys.argv
out = hdr + [f"; @launch " + (f"kernel={NAME} " if lst else "") + f"grid=(256,1,1) block=(512,1,1) lds={LDS}"]
out.append('.amdgcn_target "amdgcn-amd-amdhsa--gfx950"\n.text')
out.append(f".globl {NAME}\n.p2align 8\n.type {NAME},@function\n{NAME}:\n{a.text()}")
out.append('.section .rodata,"a"')
out.append(kernel_desc(NAME))
txt = '\n'.join(out) + '\n'
for x in hazard.check(txt): sys.stderr.write("HAZARD line %d [%s] -> line %d [%s]: need %d have %d\n" % x)
print(txt)
```

```python
import math

class Asm:
    def __init__(self):
        self.l = []; self.nlab = 0
    def __call__(self, s):
        for x in s.split('\n'):
            x = x.strip()
            if x: self.l.append(('' if x.endswith(':') else '    ') + x)
    def lab(self, base='L'):
        self.nlab += 1
        return f"{base}_{self.nlab}"
    def c(self, s): self.l.append('    ; ' + s)
    def text(self): return '\n'.join(self.l)

def vr(b, n=1): return f"v{b}" if n == 1 else f"v[{b}:{b+n-1}]"
def sr(b, n=1): return f"s{b}" if n == 1 else f"s[{b}:{b+n-1}]"

S_X, S_WQKV, S_WO, S_BX, S_W1, S_B1, S_W2, S_B2, S_OUT, S_DBG, S_WS = 4, 6, 8, 10, 12, 14, 16, 18, 20, 22, 24
S_WAVE = 26
S_W4 = 27
SRD_A, SRD_B, SRD_C, SRD_D = 28, 32, 36, 40
S_RB, S_CB, S_KH, S_ROT = 44, 45, 46, 47
S_T, S_KA, S_KB, S_LDS, S_CNT = 48, 49, 50, 51, 52
S_T0, S_T1, S_T2, S_T3 = 53, 54, 55, 56
S_TIME = 60
WS_BYTES = 268435456

def srd(a, dst, ptr, nbytes, off=0):
    if off:
        a(f"s_add_u32 s{dst}, s{ptr}, {off}\ns_addc_u32 s{dst+1}, s{ptr+1}, 0")
    else:
        a(f"s_mov_b32 s{dst}, s{ptr}\ns_mov_b32 s{dst+1}, s{ptr+1}")
    a(f"s_mov_b32 s{dst+2}, {nbytes}\ns_mov_b32 s{dst+3}, 0x20000")

def prologue(a, done):
    a(f"s_cmp_ge_u32 s2, 256\ns_cbranch_scc1 {done}")
    a("s_load_dwordx16 s[4:19], s[0:1], 0\ns_load_dwordx4 s[20:23], s[0:1], 64\ns_load_dwordx2 s[24:25], s[0:1], 80")
    a(f"v_lshrrev_b32 v1, 6, v0\nv_and_b32 v0, 63, v0\ns_nop 0\nv_readfirstlane_b32 s{S_WAVE}, v1")
    a(f"s_and_b32 s{S_W4}, s{S_WAVE}, 3")

def slice_of_t(a, S, lead):
    if not lead:
        a(f"s_mov_b32 s{S_T0}, s{S_T}")
        return
    a(f"s_sub_u32 s{S_T1}, s{S_T}, s{S_ROT}\ns_and_b32 s{S_T1}, s{S_T1}, 3")
    a(f"s_add_u32 s{S_T2}, s{S_T}, 1\ns_min_u32 s{S_T2}, s{S_T2}, {S-1}")
    a(f"s_cmp_eq_u32 s{S_T1}, 3\ns_cselect_b32 s{S_T0}, s{S_T2}, s{S_T}")
    a(f"s_max_u32 s{S_T2}, s{S_T}, 1\ns_sub_u32 s{S_T2}, s{S_T2}, 1")
    a(f"s_cmp_eq_u32 s{S_T1}, 0\ns_cselect_b32 s{S_T0}, s{S_T2}, s{S_T0}")

class Phase:
    pass

def emit_stage_loads(a, ph, which='AB', throttle=None):
    for (kind, voff, sldsw, ldsoff, imm, cond) in ph.pieces:
        if kind not in which: continue
        skip = None
        if cond is not None:
            skip = a.lab('skip')
            a(f"s_cmp_ge_u32 s{S_W4}, {cond}\ns_cbranch_scc1 {skip}")
        if ldsoff is not None:
            a(f"s_add_u32 s{S_T3}, s{S_LDS}, s{sldsw}\ns_add_u32 m0, s{S_T3}, {ldsoff}\ns_nop 0")
        if throttle is not None: a(f"s_waitcnt vmcnt({throttle})")
        srdn, sk = (SRD_A, S_KA) if kind == 'A' else (SRD_B, S_KB)
        fl = ph.aflags if kind == 'A' else ph.bflags
        a(f"buffer_load_dwordx4 v{voff}, s[{srdn}:{srdn+3}], s{sk} offen" + (f" offset:{imm}" if imm else "") + (" " + fl if fl else "") + " lds")
        if skip: a(f"{skip}:")

def set_stage_k(a, ph):
    slice_of_t(a, ph.S, ph.lead)
    a(f"s_mul_i32 s{S_KA}, s{S_T0}, {ph.ka_step}\ns_mul_i32 s{S_KB}, s{S_T0}, {ph.kb_step}")

def next_slot(a, ph):
    a(f"s_add_u32 s{S_LDS}, s{S_LDS}, {ph.stage}\ns_cmp_ge_u32 s{S_LDS}, {ph.lds0 + ph.NS*ph.stage}\ns_cselect_b32 s{S_LDS}, {ph.lds0}, s{S_LDS}")

def producer_gemm(a, ph, after_first=None, opt={}):
    n = ph.nmin
    bar = "" if opt.get('nobar') else "s_barrier"
    a.c(f"--- producer {ph.name}: prologue")
    a(f"s_mov_b32 s{S_T}, 0\ns_mov_b32 s{S_LDS}, {ph.lds0}")
    def stage():
        set_stage_k(a, ph)
        emit_stage_loads(a, ph)
        next_slot(a, ph)
        a(f"s_add_u32 s{S_T}, s{S_T}, 1")
    pre = ph.NS - 1
    for s in range(pre): stage()
    a(f"s_waitcnt vmcnt({min(63, (pre-1)*n)})\ns_barrier")
    stage()
    if after_first: after_first()
    L = a.lab('ploop')
    a(f"{L}:")
    a(f"s_waitcnt vmcnt({min(63, (ph.NS-2)*n)})\n{bar}")
    stage()
    a(f"s_cmp_lt_u32 s{S_T}, {ph.S}\ns_cbranch_scc1 {L}")
    for s in range(ph.S - ph.NS, ph.S - 1):
        left = (ph.S - 1) - (s + 1)
        a(f"s_waitcnt vmcnt({min(63, left*n)})\n{bar}")

def producer_fused(a, ph, handoff, extras=None, nextra=0, finish=None, preA=2, loop_hook=None, thr=6, mid=None):
    NS, S = ph.NS, ph.S
    nA = sum(1 for p in ph.pieces if p[0] == 'A' and p[5] is None)
    nB = sum(1 for p in ph.pieces if p[0] == 'B' and p[5] is None)
    n = nA + nB
    def issue(t, which, throttle=None):
        a(f"s_mov_b32 s{S_T}, {t}\ns_mov_b32 s{S_LDS}, {ph.lds0 + (t % NS)*ph.stage}")
        set_stage_k(a, ph)
        emit_stage_loads(a, ph, which, throttle)
    a.c(f"--- producer {ph.name}: B prefill")
    for t in range(NS):
        issue(t, 'B', thr)
        if t == 0 and mid: mid()
    handoff()
    q = []
    def wait(t):
        last = max(i for i, x in enumerate(q) if x[0] == t)
        a(f"s_waitcnt vmcnt({min(63, sum(x[1] for x in q[last+1:]))})")
    for t in range(preA):
        issue(t, 'A'); q.append((t, nA))
    wait(0); a("s_barrier")
    nxtA = preA
    s = 0
    while True:
        for _ in range(2):
            if nxtA < NS:
                issue(nxtA, 'A'); q.append((nxtA, nA)); nxtA += 1
        if extras and nxtA >= NS:
            extras(); q.append((-1, nextra)); extras = None
        if s >= NS - 1 and nxtA >= NS: break
        wait(s + 1); a("s_barrier")
        issue(s + NS, 'AB'); q.append((s + NS, n))
        s += 1
    t0 = s + NS
    a(f"s_mov_b32 s{S_T}, {t0}\ns_mov_b32 s{S_LDS}, {ph.lds0 + (t0 % NS)*ph.stage}")
    first = True
    if finish:
        a(f"s_waitcnt vmcnt({min(63, (NS-2)*n)})\ns_barrier")
        set_stage_k(a, ph); emit_stage_loads(a, ph); next_slot(a, ph)
        a(f"s_add_u32 s{S_T}, s{S_T}, 1")
        finish()
    L = a.lab('ploop')
    a(f"{L}:")
    a(f"s_waitcnt vmcnt({min(63, (NS-2)*n)})\ns_barrier")
    set_stage_k(a, ph); emit_stage_loads(a, ph); next_slot(a, ph)
    if loop_hook: loop_hook()
    a(f"s_add_u32 s{S_T}, s{S_T}, 1\ns_cmp_lt_u32 s{S_T}, {S}\ns_cbranch_scc1 {L}")
    for s in range(S - NS, S - 1):
        left = (S - 1) - (s + 1)
        a(f"s_waitcnt vmcnt({min(63, left*n)})\ns_barrier")
    a("s_barrier")

class Q:
    def __init__(self, a): self.a = a; self.q = []
    def push(self, tag, n): self.q.append((tag, n))
    def wait(self, tag):
        last = max(i for i, x in enumerate(self.q) if x[0] == tag)
        self.a(f"s_waitcnt vmcnt({min(63, sum(x[1] for x in self.q[last+1:]))})")

def producer_unrolled(a, ph, jobs, pre_first=None):
    NS, S = ph.NS, ph.S
    n = sum(1 for p in ph.pieces if p[5] is None)
    q = Q(a)
    def issue(t):
        a(f"s_mov_b32 s{S_T}, {t}\ns_mov_b32 s{S_LDS}, {ph.lds0 + (t % NS)*ph.stage}")
        set_stage_k(a, ph); emit_stage_loads(a, ph); q.push(t, n)
    for t in range(NS - 1): issue(t)
    if pre_first: pre_first()
    q.wait(0); a("s_barrier")
    issue(NS - 1)
    for f in jobs.get(-1, []): f(q)
    for s in range(S - 1):
        q.wait(s + 1); a("s_barrier")
        if s + NS < S: issue(s + NS)
        for f in jobs.get(s, []): f(q)
    a("s_barrier")

def reads(a, ph, st, kb):
    out = []
    A = []
    for i, e in enumerate(ph.afr):
        d = ph.va[st] + 4*i
        if len(e) == 3: A.append(f"ds_read_b128 {vr(d,4)}, v{e[kb]} offset:{e[2]}")
        else: A.append(f"ds_read_b128 {vr(d,4)}, v{e[0]} offset:{e[1] + kb*ph.a_kb}")
    B = []
    for i, (breg, off, half, kbs) in enumerate(ph.bfr):
        d = ph.vb[st] + 4*i
        B.append(f"ds_read_b64_tr_b16 {vr(d,2)}, v{breg} offset:{off + kb*kbs}")
        B.append(f"ds_read_b64_tr_b16 {vr(d+2,2)}, v{breg} offset:{off + kb*kbs + half}")
    return A + B

def mfmas(ph, st, first=False):
    out = []
    for (acc, ai, bi, swap) in ph.mm:
        A = vr(ph.va[st] + 4*ai, 4); B = vr(ph.vb[st] + 4*bi, 4)
        D = vr(ph.vacc + 4*acc, 4)
        C = "0" if first else D
        x, y = (B, A) if swap else (A, B)
        out.append(f"v_mfma_f32_16x16x32_bf16 {D}, {x}, {y}, {C}")
    return out

def interleave(a, M, R, lead=0, extra=None):
    R = list(R)
    per = max(1, math.ceil(len(R) / max(1, len(M) - lead - ph_tail(M, R))))
    for i, m in enumerate(M):
        a(m)
        if i >= lead:
            for _ in range(per):
                if R: a(R.pop(0))
    for r in R: a(r)

def ph_tail(M, R):
    return min(6, max(0, len(M) - len(R)))

def addr_update(a, ph):
    out = []
    out.append(f"s_add_u32 s{S_LDS}, s{S_LDS}, {ph.stage}")
    out.append(f"s_cmp_ge_u32 s{S_LDS}, {ph.NS*ph.stage}")
    out.append(f"s_cselect_b32 s{S_LDS}, 0, s{S_LDS}")
    out.append(f"s_cselect_b32 s{S_T0}, {(-(ph.NS-1)*ph.stage) & 0xffffffff:#x}, {ph.stage}" if False else f"s_cselect_b32 s{S_T0}, s{S_T1}, s{S_T2}")
    for cur in ph.addr_regs:
        out.append(f"v_add_u32 v{cur}, s{S_T0}, v{cur}")
    return out

def spread(a, M, F, start=0, end=None):
    end = len(M) if end is None else end
    n = max(1, end - start)
    F = list(F); k = 0
    for i, m in enumerate(M):
        a(m)
        if start <= i < end:
            want = ((i - start + 1) * len(F) + n - 1) // n
            while k < want: a(F[k]); k += 1
    while k < len(F): a(F[k]); k += 1

def consumer_gemm(a, ph, opt={}, after_first=None, final_bar=False, sbase=0):
    a.c(f"--- consumer {ph.name}")
    bar = "" if opt.get('nobar') else "s_barrier"
    tail = opt.get('tail', 6)
    if opt.get('prio'): a(f"s_setprio {opt['prio']}")
    a(f"s_mov_b32 s{S_LDS}, 0\ns_mov_b32 s{S_CNT}, {ph.S - 2}")
    a(f"s_mov_b32 s{S_T1}, {(-(ph.NS-1)*ph.stage) & 0xffffffff:#x}\ns_mov_b32 s{S_T2}, {ph.stage}")
    a("s_barrier")
    if opt.get('stamp'): a("s_memtime s[68:69]")
    stamp(a, sbase + 2)
    for r in reads(a, ph, 0, 0): a(r)
    if after_first: after_first()
    a("s_waitcnt lgkmcnt(0)")
    nm = len(ph.mm)
    upd = addr_update(a, ph)
    early = opt.get('early', False)
    def half_a(first):
        M = mfmas(ph, 0, first=first)
        R = reads(a, ph, 1, 1)
        if early:
            e = max(1, nm - tail - 4)
            spread(a, M[:e], R)
            spread(a, M[e:], upd, 0, max(1, len(M[e:]) - 1))
        else:
            spread(a, M, R, 0, max(1, nm - tail))
    half_a(True)
    L = a.lab('cloop')
    if opt.get('align'): a(f".p2align {opt['align']}")
    a(f"{L}:")
    pre = opt.get('pre', 0)
    a("s_waitcnt lgkmcnt(0)")
    M = mfmas(ph, 1)
    for m in M[:pre]: a(m)
    a(bar)
    F = ([] if early else upd) + reads(a, ph, 0, 0)
    spread(a, M[pre:], F, 0, max(1, nm - pre - tail))
    a(f"s_waitcnt lgkmcnt(0)")
    half_a(False)
    a(f"s_sub_u32 s{S_CNT}, s{S_CNT}, 1")
    a(f"s_cbranch_scc0 {L}")
    a("s_waitcnt lgkmcnt(0)")
    M = mfmas(ph, 1)
    for m in M[:pre]: a(m)
    if final_bar: a("s_barrier")
    for m in M[pre:]: a(m)

STAMP = {'on': False}
def stamp(a, i):
    if STAMP['on']:
        a(f"s_memrealtime s[92:93]\ns_waitcnt lgkmcnt(0)\nv_writelane_b32 v255, s92, {i}\ns_memtime s[92:93]\ns_waitcnt lgkmcnt(0)\nv_writelane_b32 v255, s92, {32+i}")
def stamp_flush(a, k, ws_tm):
    if STAMP['on']:
        srd(a, SRD_D, S_WS, 4 << 20, ws_tm)
        a(f"s_mov_b64 exec, -1\ns_lshl_b32 s{S_T0}, s2, 11\ns_lshl_b32 s{S_T1}, s{S_WAVE}, 8\ns_add_u32 s{S_T0}, s{S_T0}, s{S_T1}\ns_add_u32 s{S_T0}, s{S_T0}, {k*524288}")
        a(f"v_lshlrev_b32 v254, 2, v0\nbuffer_store_dword v255, v254, s[{SRD_D}:{SRD_D+3}], s{S_T0} offen")

def kernel_desc(name, vg=256, sg=102):
    return f""".p2align 6
.amdhsa_kernel {name}
  .amdhsa_next_free_vgpr {vg}
  .amdhsa_next_free_sgpr {sg}
  .amdhsa_accum_offset {(vg+3)//4*4}
  .amdhsa_group_segment_fixed_size 0
  .amdhsa_kernarg_size 88
  .amdhsa_user_sgpr_count 2
  .amdhsa_user_sgpr_kernarg_segment_ptr 1
  .amdhsa_system_sgpr_workgroup_id_x 1
  .amdhsa_float_denorm_mode_32 3
.end_amdhsa_kernel"""
```

```python
from gcore import *

WS_XN = 0
WS_O  = 4 << 20
WS_H  = 8 << 20
WS_G  = 12 << 20
WS_ST = 28 << 20
WS_CS = 29 << 20
WS_PX = 32 << 20
WS_FL = 48 << 20
WS_TM = 64 << 20

def map_8x4(a):
    a(f"s_and_b32 s{S_T0}, s2, 1\ns_lshl_b32 s{S_T0}, s{S_T0}, 3\ns_lshr_b32 s{S_T1}, s2, 3\ns_and_b32 s{S_T2}, s{S_T1}, 7\ns_add_u32 s{S_RB}, s{S_T0}, s{S_T2}")
    a(f"s_and_b32 s{S_T0}, s2, 7\ns_lshr_b32 s{S_T0}, s{S_T0}, 1\ns_lshl_b32 s{S_T0}, s{S_T0}, 2\ns_lshr_b32 s{S_T1}, s2, 6\ns_add_u32 s{S_CB}, s{S_T0}, s{S_T1}")
    a(f"s_add_u32 s{S_ROT}, s{S_RB}, s{S_CB}\ns_and_b32 s{S_ROT}, s{S_ROT}, 3")

def tr_lane_part(a, dst, t0, t1, pitch, jreg=None, j=0):
    a(f"v_lshrrev_b32 v{t0}, 2, v0")
    if pitch == 128:
        a(f"v_bfe_u32 v{t1}, v0, 3, 2")
    else:
        a(f"v_bfe_u32 v{t1}, v0, 4, 1")
    if jreg is not None: a(f"v_xor_b32 v{t1}, s{jreg}, v{t1}")
    else: a(f"v_xor_b32 v{t1}, {j}, v{t1}")
    a(f"v_lshlrev_b32 v{t1}, 5, v{t1}")
    a(f"v_lshlrev_b32 v{t0}, {int(math.log2(pitch))}, v{t0}")
    a(f"v_add_u32 v{dst}, v{t0}, v{t1}")
    a(f"v_and_b32 v{t0}, 3, v0\nv_lshlrev_b32 v{t0}, 3, v{t0}\nv_add_u32 v{dst}, v{dst}, v{t0}")

def dma_b_lane(a, dst, t0, t1, ldb, width):
    if width == 128:
        a(f"v_lshrrev_b32 v{t0}, 3, v0\nv_bfe_u32 v{t1}, v0, 4, 2\nv_lshlrev_b32 v{t1}, 1, v{t1}\nv_and_b32 v{dst}, 7, v0")
    else:
        a(f"v_lshrrev_b32 v{t0}, 2, v0\nv_bfe_u32 v{t1}, v0, 4, 1\nv_lshlrev_b32 v{t1}, 1, v{t1}\nv_and_b32 v{dst}, 3, v0")
    a(f"v_xor_b32 v{dst}, v{dst}, v{t1}\nv_lshlrev_b32 v{dst}, 4, v{dst}")
    a(f"v_mul_u32_u24 v{t0}, {ldb}, v{t0}\nv_add_u32 v{dst}, v{dst}, v{t0}")

S_LA, S_LB, S_LH = 57, 58, 59

def make_p3(lead=True, NS=3):
    ph = Phase(); ph.name = 'P3'; ph.S = 16; ph.NS = NS; ph.stage = 45056; ph.lds0 = 0; ph.lead = lead
    ph.ka_step = 2048; ph.kb_step = 64*7168; ph.aflags = ''; ph.bflags = ''
    ph.nmin = 11
    ph.pieces = []
    for i in range(2):
        ph.pieces.append(('A', 10+i, S_LA, i*2048, 0, None))
        ph.pieces.append(('A', 10+i, S_LA, None, 1024, None))
    for t in range(3):
        for i in range(2):
            ph.pieces.append(('B', 12 + t*2 + i, S_LB, 16384 + t*8192 + i*1024, 0, None))
    ph.pieces.append(('B', 18, S_LH, 40960, 0, None))
    ph.addr_regs = list(range(2, 10))
    ph.afr = [(2, 0), (2, 2048), (3, 0), (3, 2048)]
    ph.a_kb = 1024
    ph.bfr = [(4 + (c & 3), (c >> 2)*8192, 2048, 4096) for c in range(6)] + [(8, 0, 1024, 2048), (9, 0, 1024, 2048)]
    ph.va = [16, 32]; ph.vb = [48, 80]; ph.vacc = 112
    ph.mm = [(i*6 + c, i, c, True) for i in range(4) for c in range(6)] + [(24 + i*2 + c, i, 6 + c, True) for i in range(2) for c in range(2)]
    return ph

def p3_producer_setup(a, ph):
    srd(a, SRD_A, S_WS, 4 << 20, WS_H)
    srd(a, SRD_B, S_W1, 1024*3584*2)
    a(f"s_lshl_b32 s{S_LA}, s{S_W4}, 12\ns_lshl_b32 s{S_LB}, s{S_W4}, 11\ns_lshl_b32 s{S_LH}, s{S_W4}, 10")
    a(f"s_lshl_b32 s{S_T0}, s{S_RB}, 3\ns_lshl_b32 s{S_T1}, s{S_W4}, 1\ns_add_u32 s{S_T0}, s{S_T0}, s{S_T1}\ns_lshl_b32 s{S_T0}, s{S_T0}, 15")
    a(f"v_lshlrev_b32 v10, 4, v0\nv_add_u32 v10, s{S_T0}, v10\nv_add_u32 v11, 0x8000, v10")
    a(f"s_mul_i32 s{S_T0}, s{S_CB}, 448\ns_and_b32 s{S_T1}, s{S_CB}, 1\ns_lshl_b32 s{S_T2}, s{S_T1}, 6\ns_add_u32 s{S_T2}, s{S_T2}, s{S_T0}")
    a(f"s_cmp_eq_u32 s{S_T1}, 0\ns_cselect_b32 s{S_T1}, 384, 0\ns_add_u32 s{S_T1}, s{S_T1}, s{S_T0}")
    a(f"s_mul_i32 s{S_T0}, s{S_W4}, {16*7168}\ns_add_u32 s{S_T2}, s{S_T2}, s{S_T0}\ns_add_u32 s{S_T1}, s{S_T1}, s{S_T0}")
    dma_b_lane(a, 12, 20, 21, 7168, 128)
    a(f"v_add_u32 v12, s{S_T2}, v12")
    for t in range(3):
        for i in range(2):
            if t or i: a(f"v_add_u32 v{12+t*2+i}, {t*128 + i*8*7168}, v12")
    dma_b_lane(a, 18, 20, 21, 7168, 64)
    a(f"v_add_u32 v18, s{S_T1}, v18")

def p3_consumer_setup(a, ph):
    a(f"s_lshr_b32 s{S_T0}, s{S_W4}, 1\ns_and_b32 s{S_T1}, s{S_W4}, 1")
    a(f"s_lshl_b32 s{S_T2}, s{S_T0}, 13\ns_lshl_b32 s{S_T3}, s{S_T1}, 12\ns_add_u32 s{S_T3}, s{S_T3}, s{S_T2}")
    if ph.lds0: a(f"s_add_u32 s{S_T3}, s{S_T3}, {ph.lds0}")
    a(f"v_lshlrev_b32 v2, 4, v0\nv_add_u32 v2, s{S_T3}, v2\nv_xor_b32 v3, 0x1000, v2" if ph.lds0 % 8192 == 0 else "ERR")
    for k in range(4):
        a(f"s_lshl_b32 s{S_T2}, s{S_T1}, 1\ns_add_u32 s{S_T2}, s{S_T2}, {k}\ns_and_b32 s{S_T2}, s{S_T2}, 3")
        tr_lane_part(a, 4+k, 10, 11, 128, jreg=S_T2)
        a(f"s_mul_i32 s{S_T2}, s{S_T1}, {8192*(2 if k >= 2 else 1)}\ns_add_u32 s{S_T2}, s{S_T2}, {16384 + ph.lds0}\nv_add_u32 v{4+k}, s{S_T2}, v{4+k}")
    for j in range(2):
        tr_lane_part(a, 8+j, 10, 11, 64, j=j)
        a(f"v_add_u32 v{8+j}, {40960 + ph.lds0}, v{8+j}")

def xor16_32(a, v, t, op):
    a(f"v_mov_b32 v{t}, v{v}\ns_nop 1\nv_permlane16_swap_b32 v{t}, v{v}\ns_nop 0\n{op} v{v}, v{t}, v{v}")
    a(f"v_mov_b32 v{t}, v{v}\ns_nop 1\nv_permlane32_swap_b32 v{t}, v{v}\ns_nop 0\n{op} v{v}, v{t}, v{v}")

def xor16_32_multi(a, vs, ts, op):
    n = len(vs)
    for perm in ('v_permlane16_swap_b32', 'v_permlane32_swap_b32'):
        for v, t in zip(vs, ts): a(f"v_mov_b32 v{t}, v{v}")
        if n < 3: a(f"s_nop {2-n}")
        for v, t in zip(vs, ts): a(f"{perm} v{t}, v{v}")
        for v, t in zip(vs, ts): a(f"{op} v{v}, v{t}, v{v}")

def rbf(a, v):
    a(f"v_cvt_pk_bf16_f32 v{v}, v{v}, v{v}\nv_and_b32 v{v}, 0xffff0000, v{v}")

def ln_scale(a, vmean, vvar, t):
    rbf(a, vmean)
    a(f"v_max_f32 v{vvar}, 0, v{vvar}")
    rbf(a, vvar)
    a(f"v_add_f32 v{vvar}, 0x3727c5ac, v{vvar}")
    rbf(a, vvar)
    a(f"v_sqrt_f32 v{vvar}, v{vvar}\ns_nop 0")
    rbf(a, vvar)
    a(f"v_rcp_f32 v{vvar}, v{vvar}\ns_nop 0")

def tree_sum(a, regs, op="v_add_f32"):
    regs = list(regs)
    while len(regs) > 1:
        nxt = []
        for i in range(0, len(regs) - 1, 2):
            a(f"{op} v{regs[i]}, v{regs[i]}, v{regs[i+1]}"); nxt.append(regs[i])
        if len(regs) % 2: nxt.append(regs[-1])
        regs = nxt
    return regs[0]

def p0_ln(a, sf='', sid=2, lds0=0):
    srd(a, SRD_A, S_X, 2048*1024*2)
    srd(a, SRD_C, S_WS, 4 << 20, WS_XN)
    a(f"v_and_b32 v1, 7, v0\nv_lshlrev_b32 v2, 11, v1\nv_bfe_u32 v3, v0, 5, 1\nv_lshlrev_b32 v3, 6, v3\nv_add_u32 v2, v2, v3")
    a(f"v_bfe_u32 v4, v0, 3, 2\nv_lshlrev_b32 v3, 3, v4\nv_add_u32 v2, v2, v3\ns_lshl_b32 s{S_T0}, s{S_W4}, 9\nv_add_u32 v2, s{S_T0}, v2")
    a(f"s_lshl_b32 s{S_T1}, s{sid}, 14")
    for j in range(4):
        a(f"buffer_load_dwordx2 v[{16+4*j}:{17+4*j}], v2, s[{SRD_A}:{SRD_A+3}], s{S_T1} offen offset:{j*128}")
        a(f"buffer_load_dwordx2 v[{18+4*j}:{19+4*j}], v2, s[{SRD_A}:{SRD_A+3}], s{S_T1} offen offset:{j*128+32}")
    a(f"v_bfe_u32 v3, v0, 5, 1\nv_lshlrev_b32 v3, 10, v3\nv_lshlrev_b32 v4, 8, v4\nv_add_u32 v3, v3, v4\nv_lshlrev_b32 v4, 4, v1\nv_add_u32 v3, v3, v4")
    a(f"s_and_b32 s{S_T2}, s{sid}, 1\ns_lshl_b32 s{S_T2}, s{S_T2}, 7\ns_lshl_b32 s{S_T0}, s{S_W4}, 13\ns_add_u32 s{S_T2}, s{S_T2}, s{S_T0}\nv_add_u32 v3, s{S_T2}, v3")
    a(f"s_lshr_b32 s{S_T2}, s{sid}, 1\ns_lshl_b32 s{S_T2}, s{S_T2}, 15")
    a(f"v_lshlrev_b32 v5, 4, v1\nv_add_u32 v5, {lds0}, v5\ns_lshl_b32 s{S_T0}, s{S_W4}, 2\nv_add_u32 v6, s{S_T0}, v5")
    a("s_waitcnt vmcnt(0)")
    for k in range(16):
        a(f"v_lshlrev_b32 v{32+2*k}, 16, v{16+k}\nv_and_b32 v{33+2*k}, 0xffff0000, v{16+k}")
    for k in range(16): a(f"v_add_f32 v{64+k}, v{32+2*k}, v{33+2*k}")
    tree_sum(a, range(64, 80))
    def wg_reduce(off):
        a("s_nop 1\nv_add_f32_dpp v64, v64, v64 row_ror:8 row_mask:0xf bank_mask:0xf")
        xor16_32(a, 64, 65, "v_add_f32")
        a(f"ds_write_b32 v6, v64 offset:{off}\ns_waitcnt lgkmcnt(0)\ns_barrier\nds_read_b128 v[68:71], v5 offset:{off}\ns_waitcnt lgkmcnt(0)")
        a("v_add_f32 v68, v68, v69\nv_add_f32 v70, v70, v71\nv_add_f32 v68, v68, v70\nv_mul_f32 v68, 0x3a800000, v68")
    wg_reduce(0)
    a("v_mov_b32 v7, v68")
    for k in range(16):
        a(f"v_sub_f32 v80, v{32+2*k}, v7\nv_sub_f32 v81, v{33+2*k}, v7\nv_mul_f32 v{64+k}, v80, v80\nv_fmac_f32 v{64+k}, v81, v81")
    tree_sum(a, range(64, 80))
    wg_reduce(128)
    a("v_mov_b32 v8, v68")
    ln_scale(a, 7, 8, 9)
    for k in range(16):
        a(f"v_sub_f32 v80, v{32+2*k}, v7\nv_sub_f32 v81, v{33+2*k}, v7\nv_cvt_pk_bf16_f32 v82, v80, v81")
        a(f"v_lshlrev_b32 v80, 16, v82\nv_and_b32 v81, 0xffff0000, v82\nv_mul_f32 v80, v80, v8\nv_mul_f32 v81, v81, v8\nv_cvt_pk_bf16_f32 v{16+k}, v80, v81")
    for j in range(4):
        if j == 2: a(f"s_add_u32 s{S_T2}, s{S_T2}, 4096")
        a(f"buffer_store_dwordx4 v[{16+4*j}:{19+4*j}], v3, s[{SRD_C}:{SRD_C+3}], s{S_T2} offen offset:{(j&1)*2048} {sf}")

def p0_colsum(a, lds0, nbar_extra, sf=''):
    srd(a, SRD_B, S_W1, 1024*3584*2)
    srd(a, SRD_D, S_WS, 1 << 20, WS_CS)
    a("v_cmp_le_u32 vcc, 28, v0\nv_subrev_u32 v2, 28, v0\ns_nop 0\nv_cndmask_b32 v2, v0, v2, vcc\nv_cndmask_b32 v3, 0, 1, vcc")
    a(f"v_mul_u32_u24 v4, 7168, v3\nv_lshlrev_b32 v5, 4, v2\nv_add_u32 v4, v4, v5")
    a(f"s_lshr_b32 s{S_T0}, s2, 4\ns_lshl_b32 s{S_T0}, s{S_T0}, 6\ns_lshl_b32 s{S_T1}, s{S_W4}, 4\ns_add_u32 s{S_T0}, s{S_T0}, s{S_T1}\ns_mul_i32 s{S_T0}, s{S_T0}, 7168")
    a(f"s_and_b32 s{S_T1}, s2, 15\ns_mul_i32 s{S_T2}, s{S_T1}, 448\ns_add_u32 s{S_T0}, s{S_T0}, s{S_T2}")
    a("s_mov_b64 exec, 0x00ffffffffffffff" if False else "s_mov_b32 exec_hi, 0x00ffffff")
    for j in range(8):
        a(f"s_add_u32 s{S_T3}, s{S_T0}, {j*2*7168}\nbuffer_load_dwordx4 v[{16+4*j}:{19+4*j}], v4, s[{SRD_B}:{SRD_B+3}], s{S_T3} offen")
    a(f"s_lshl_b32 s{S_T3}, s{S_W4}, 1\nv_add_u32 v6, s{S_T3}, v3\nv_mul_u32_u24 v6, 896, v6\nv_lshlrev_b32 v5, 5, v2\nv_add_u32 v6, v6, v5")
    for j in range(8):
        a(f"s_waitcnt vmcnt({7-j})")
        for k in range(4):
            s = 16 + 4*j + k
            if j == 0:
                a(f"v_lshlrev_b32 v{48+2*k}, 16, v{s}\nv_and_b32 v{49+2*k}, 0xffff0000, v{s}")
            else:
                a(f"v_lshlrev_b32 v56, 16, v{s}\nv_and_b32 v57, 0xffff0000, v{s}\nv_add_f32 v{48+2*k}, v{48+2*k}, v56\nv_add_f32 v{49+2*k}, v{49+2*k}, v57")
    a(f"ds_write_b128 v6, v[48:51] offset:{lds0}\nds_write_b128 v6, v[52:55] offset:{lds0+16}")
    a("s_mov_b64 exec, -1\ns_waitcnt lgkmcnt(0)\ns_barrier")
    a(f"s_mul_i32 s{S_T3}, s{S_W4}, 224\nv_lshlrev_b32 v7, 2, v0\nv_add_u32 v7, s{S_T3}, v7")
    for k in range(8): a(f"ds_read_b32 v{16+k}, v7 offset:{lds0 + k*896}")
    a(f"s_lshr_b32 s{S_T0}, s2, 4\ns_mul_i32 s{S_T0}, s{S_T0}, {3584*4}\ns_mul_i32 s{S_T1}, s{S_T1}, 896\ns_add_u32 s{S_T0}, s{S_T0}, s{S_T1}")
    a("s_waitcnt lgkmcnt(0)")
    tree_sum(a, range(16, 24))
    a(f"s_mov_b32 exec_hi, 0x00ffffff\nbuffer_store_dword v16, v7, s[{SRD_D}:{SRD_D+3}], s{S_T0} offen {sf}\ns_mov_b64 exec, -1")
    for _ in range(nbar_extra): a("s_barrier")

def make_p1(lead=True):
    ph = Phase(); ph.name = 'P1'; ph.S = 16; ph.NS = 3; ph.stage = 43008; ph.lds0 = 0; ph.lead = lead
    ph.ka_step = 2048; ph.kb_step = 64*6144; ph.aflags = ''; ph.bflags = ''
    ph.nmin = 10
    ph.pieces = []
    for i in range(2):
        ph.pieces.append(('A', 10+i, S_LA, 2048 + i*2048, 0, None))
        ph.pieces.append(('A', 10+i, S_LA, None, 1024, None))
    ph.pieces.append(('A', 18, S_LH, 0, 0, 2))
    for t in range(3):
        for i in range(2):
            ph.pieces.append(('B', 12 + t*2 + i, S_LB, 18432 + t*8192 + i*1024, 0, None))
    ph.addr_regs = [2, 4, 5]
    ph.afr = [(2, i*2048) for i in range(5)]
    ph.a_kb = 1024
    ph.bfr = [(4 + c, t*8192, 2048, 4096) for t in range(3) for c in range(2)]
    ph.va = [16, 36]; ph.vb = [56, 80]; ph.vacc = 112
    mm = []
    for i in range(5):
        row = [(i*2 + c, i, 2 + c, True) for c in range(2)] + [(10 + i*2 + c, i, 4 + c, False) for c in range(2)]
        if i: row += [(20 + (i-1)*2 + c, i, c, True) for c in range(2)]
        mm += row if i % 2 == 0 else row[::-1]
    ph.mm = mm
    return ph

def a_frag_voff(a, rts_shift_or_mul, v, extra_sgpr=None):
    pass

def p1_producer_setup(a, ph):
    srd(a, SRD_A, S_WS, 4 << 20, WS_XN)
    srd(a, SRD_B, S_WQKV, 1024*3072*2)
    a(f"s_lshl_b32 s{S_LA}, s{S_W4}, 12\ns_lshl_b32 s{S_LB}, s{S_W4}, 11\ns_lshl_b32 s{S_LH}, s{S_W4}, 10")
    a(f"s_lshl_b32 s{S_T0}, s{S_RB}, 3\ns_lshl_b32 s{S_T1}, s{S_W4}, 1\ns_add_u32 s{S_T1}, s{S_T0}, s{S_T1}\ns_lshl_b32 s{S_T1}, s{S_T1}, 15")
    a(f"v_lshlrev_b32 v18, 4, v0\nv_add_u32 v10, s{S_T1}, v18\nv_add_u32 v11, 0x8000, v10")
    a(f"s_max_u32 s{S_T0}, s{S_T0}, 1\ns_sub_u32 s{S_T0}, s{S_T0}, 1\ns_lshl_b32 s{S_T0}, s{S_T0}, 15\ns_add_u32 s{S_T0}, s{S_T0}, s{S_LH}\nv_add_u32 v18, s{S_T0}, v18")
    a(f"s_lshl_b32 s{S_T2}, s{S_CB}, 7\ns_mul_i32 s{S_T0}, s{S_W4}, {16*6144}\ns_add_u32 s{S_T2}, s{S_T2}, s{S_T0}")
    dma_b_lane(a, 12, 20, 21, 6144, 128)
    a(f"v_add_u32 v12, s{S_T2}, v12")
    for t in range(3):
        for i in range(2):
            if t or i: a(f"v_add_u32 v{12+t*2+i}, {t*2048 + i*8*6144}, v12")

S_MASK = 64

def p1_consumer_setup(a, ph):
    a(f"s_lshr_b32 s{S_T0}, s{S_W4}, 1\ns_and_b32 s{S_T1}, s{S_W4}, 1")
    a(f"s_lshl_b32 s{S_T2}, s{S_T0}, 13\nv_lshlrev_b32 v2, 4, v0\nv_add_u32 v2, s{S_T2}, v2")
    if ph.lds0: a(f"v_add_u32 v2, {ph.lds0}, v2")
    for c in range(2):
        a(f"s_lshl_b32 s{S_T2}, s{S_T1}, 1\ns_add_u32 s{S_T2}, s{S_T2}, {c}")
        tr_lane_part(a, 4+c, 10, 11, 128, jreg=S_T2)
        a(f"v_add_u32 v{4+c}, {18432 + ph.lds0}, v{4+c}")
    a("v_and_b32 v10, 15, v0\nv_lshrrev_b32 v11, 4, v0\nv_lshlrev_b32 v11, 2, v11\nv_sub_u32 v10, v10, v11\nv_mov_b32 v12, 0xf149f2ca")
    for t in range(2):
        for r in range(4):
            a(f"v_add_u32 v11, {(16 if t == 0 else 0) - r}, v10\nv_and_b32 v11, 0xfffffff1, v11\nv_cmp_eq_u32 vcc, 0, v11\ns_nop 1\nv_cndmask_b32 v{224+4*t+r}, v12, 0, vcc")
    a(f"s_lshl_b32 s{S_T2}, s{S_RB}, 1\ns_add_u32 s{S_T2}, s{S_T2}, s{S_T0}\ns_cmp_eq_u32 s{S_T2}, 0\ns_cselect_b64 vcc, -1, 0")
    for r in range(4): a(f"v_cndmask_b32 v{232+r}, v{224+r}, v12, vcc")

def p1_epilogue(a, ph, sf='', fold=False):
    acc = lambda n: ph.vacc + 4*n
    srd(a, SRD_C, S_WS, 4 << 20, WS_O)
    a(f"s_lshr_b32 s{S_T0}, s{S_W4}, 1\ns_and_b32 s{S_T1}, s{S_W4}, 1\ns_lshl_b32 s{S_T2}, s{S_RB}, 1\ns_add_u32 s{S_T2}, s{S_T2}, s{S_T0}")
    a(f"s_lshl_b32 s{S_T2}, s{S_T2}, 17\ns_lshl_b32 s{S_T3}, s{S_CB}, 1\ns_add_u32 s{S_T3}, s{S_T3}, s{S_T1}\ns_lshl_b32 s{S_T3}, s{S_T3}, 10\ns_add_u32 s{S_T2}, s{S_T2}, s{S_T3}")
    a(f"v_lshlrev_b32 v2, 4, v0\ns_mov_b32 s82, 0x3e8293ee\ns_mov_b32 s83, 0x3e8293ee")
    P = lambda r: f"v[{r}:{r+1}]"
    KP, QP, VP = 16, 36, 52
    for i in range(5):
        for c in range(2):
            for h in range(2):
                a(f"v_cvt_pk_bf16_f32 v{KP+4*i+2*c+h}, v{acc(i*2+c)+2*h}, v{acc(i*2+c)+2*h+1}")
        if i:
            for c in range(2):
                for h in range(2):
                    a(f"v_cvt_pk_bf16_f32 v{QP+4*(i-1)+2*c+h}, v{acc(20+(i-1)*2+c)+2*h}, v{acc(20+(i-1)*2+c)+2*h+1}")
    SS = 72
    a("s_nop 1")
    for i in range(1, 5):
        for t in range(2):
            d = SS + 8*(i-1) + 4*t
            a(f"v_mfma_f32_16x16x32_bf16 v[{d}:{d+3}], v[{KP+4*(i-1+t)}:{KP+4*(i-1+t)+3}], v[{QP+4*(i-1)}:{QP+4*(i-1)+3}], v[{(232 if (i == 1 and t == 0) else 224 + 4*t)}:{(232 if (i == 1 and t == 0) else 224 + 4*t) + 3}]")
    for i in range(5):
        for c in range(2):
            for h in range(2):
                a(f"v_cvt_pk_bf16_f32 v{VP+10*c+2*i+h}, v{acc(10+i*2+c)+2*h}, v{acc(10+i*2+c)+2*h+1}")
    MX = [112, 114, 116, 118]; TT = [113, 115, 117, 119]
    for i in range(4):
        b = SS + 8*i
        a(f"v_max3_f32 v{MX[i]}, v{b}, v{b+1}, v{b+2}\nv_max3_f32 v{TT[i]}, v{b+3}, v{b+4}, v{b+5}")
    for i in range(4):
        b = SS + 8*i
        a(f"v_max3_f32 v{MX[i]}, v{MX[i]}, v{b+6}, v{b+7}")
    for i in range(4): a(f"v_max_f32 v{MX[i]}, v{MX[i]}, v{TT[i]}")
    xor16_32_multi(a, MX, TT, "v_max_f32")
    if fold:
        for i in range(4): a(f"v_mul_f32 v{MX[i]}, v{240+i}, v{MX[i]}")
        for k in range(0, 8, 2):
            for i in range(4): a(f"v_pk_fma_f32 {P(SS+8*i+k)}, {P(SS+8*i+k)}, {P(240 + (i & 2))}, {P(MX[i])} op_sel:[0,{i & 1},0] op_sel_hi:[1,{i & 1},0] neg_lo:[0,0,1] neg_hi:[0,0,1]")
    else:
        for i in range(4): a(f"v_mul_f32 v{MX[i]}, s82, v{MX[i]}")
        for k in range(0, 8, 2):
            for i in range(4): a(f"v_pk_fma_f32 {P(SS+8*i+k)}, {P(SS+8*i+k)}, s[82:83], {P(MX[i])} op_sel_hi:[1,1,0] neg_lo:[0,0,1] neg_hi:[0,0,1]")
    for i in range(4):
        for k in range(8): a(f"v_exp_f32 v{SS+8*i+k}, v{SS+8*i+k}")
    W = 136
    for k in range(2):
        for i in range(4): a(f"v_pk_add_f32 {P(W+4*i+2*k)}, {P(SS+8*i+4*k)}, {P(SS+8*i+4*k+2)}")
    for i in range(4): a(f"v_pk_add_f32 {P(W+4*i)}, {P(W+4*i)}, {P(W+4*i+2)}")
    for i in range(4): a(f"v_add_f32 v{MX[i]}, v{W+4*i}, v{W+4*i+1}")
    xor16_32_multi(a, MX, TT, "v_add_f32")
    for i in range(4): a(f"v_rcp_f32 v{MX[i]}, v{MX[i]}")
    PP = 120
    for k in range(0, 8, 2):
        for i in range(4): a(f"v_pk_mul_f32 {P(SS+8*i+k)}, {P(SS+8*i+k)}, {P(MX[i])} op_sel_hi:[1,0]")
    for i in range(4):
        for k in range(4): a(f"v_cvt_pk_bf16_f32 v{PP+4*i+k}, v{SS+8*i+2*k}, v{SS+8*i+2*k+1}")
    OO = 136
    a("s_nop 1")
    for i in range(4):
        for c in range(2):
            d = OO + 8*i + 4*c
            a(f"v_mfma_f32_16x16x32_bf16 v[{d}:{d+3}], v[{VP+10*c+2*i}:{VP+10*c+2*i+3}], v[{PP+4*i}:{PP+4*i+3}], 0")
    a("s_nop 1")
    for i in range(4):
        if i == 3: a("s_nop 1")
        for k in range(4): a(f"v_cvt_pk_bf16_f32 v{SS+4*i+k}, v{OO+8*i+2*k}, v{OO+8*i+2*k+1}")
        a(f"s_add_u32 s{S_T3}, s{S_T2}, {i*32768}\nbuffer_store_dwordx4 v[{SS+4*i}:{SS+4*i+3}], v2, s[{SRD_C}:{SRD_C+3}], s{S_T3} offen {sf}")

def map_4x8(a):
    a(f"s_and_b32 s{S_T0}, s2, 3\ns_lshl_b32 s{S_T0}, s{S_T0}, 2\ns_lshr_b32 s{S_T1}, s2, 3\ns_and_b32 s{S_T2}, s{S_T1}, 3\ns_add_u32 s{S_RB}, s{S_T0}, s{S_T2}")
    a(f"s_bfe_u32 s{S_T0}, s2, 0x10002\ns_lshl_b32 s{S_T0}, s{S_T0}, 3\ns_lshr_b32 s{S_T1}, s2, 5\ns_add_u32 s{S_CB}, s{S_T0}, s{S_T1}")
    a(f"s_add_u32 s{S_ROT}, s{S_RB}, s{S_CB}\ns_and_b32 s{S_ROT}, s{S_ROT}, 3")

def make_p2(lead=True):
    ph = Phase(); ph.name = 'P2'; ph.S = 16; ph.NS = 4; ph.stage = 24576; ph.lds0 = 0; ph.lead = lead
    ph.ka_step = 2048; ph.kb_step = 64*2048; ph.aflags = ''; ph.bflags = ''
    ph.nmin = 6
    ph.pieces = []
    for i in range(2):
        ph.pieces.append(('A', 10+i, S_LA, i*2048, 0, None))
        ph.pieces.append(('A', 10+i, S_LA, None, 1024, None))
    for i in range(2):
        ph.pieces.append(('B', 12 + i, S_LB, 16384 + i*1024, 0, None))
    ph.addr_regs = [2, 4, 5, 6, 7]
    ph.afr = [(2, 0), (2, 2048)]
    ph.a_kb = 1024
    ph.bfr = [(4 + j, 0, 2048, 4096) for j in range(4)]
    ph.va = [16, 24]; ph.vb = [32, 48]; ph.vacc = 64
    ph.mm = [(j, 0, j, True) for j in range(4)] + [(4 + j, 1, j, True) for j in range(3, -1, -1)]
    return ph

def p2_producer_setup(a, ph):
    srd(a, SRD_A, S_WS, 4 << 20, WS_O)
    srd(a, SRD_B, S_WO, 1024*1024*2)
    a(f"s_lshl_b32 s{S_LA}, s{S_W4}, 12\ns_lshl_b32 s{S_LB}, s{S_W4}, 11")
    a(f"s_lshl_b32 s{S_T0}, s{S_RB}, 3\ns_lshl_b32 s{S_T1}, s{S_W4}, 1\ns_add_u32 s{S_T1}, s{S_T0}, s{S_T1}\ns_lshl_b32 s{S_T1}, s{S_T1}, 15")
    a(f"v_lshlrev_b32 v10, 4, v0\nv_add_u32 v10, s{S_T1}, v10\nv_add_u32 v11, 0x8000, v10")
    a(f"s_lshl_b32 s{S_T2}, s{S_CB}, 7\ns_lshl_b32 s{S_T0}, s{S_W4}, 15\ns_add_u32 s{S_T2}, s{S_T2}, s{S_T0}")
    dma_b_lane(a, 12, 20, 21, 2048, 128)
    a(f"v_add_u32 v12, s{S_T2}, v12\nv_add_u32 v13, {8*2048}, v12")

P2_X = 96
def p2_consumer_setup(a, ph):
    srd(a, SRD_D, S_X, 2048*1024*2)
    a(f"v_and_b32 v8, 15, v0\nv_lshlrev_b32 v8, 11, v8\nv_lshrrev_b32 v9, 4, v0\nv_lshlrev_b32 v9, 3, v9\nv_add_u32 v8, v8, v9")
    a(f"s_lshl_b32 s{S_T0}, s{S_RB}, 18\ns_lshl_b32 s{S_T1}, s{S_W4}, 16\ns_add_u32 s{S_T0}, s{S_T0}, s{S_T1}\ns_lshl_b32 s{S_T1}, s{S_CB}, 7\ns_add_u32 s{S_T0}, s{S_T0}, s{S_T1}")
    a(f"s_add_u32 s{S_T1}, s{S_T0}, 32768")
    for i in range(2):
        for j in range(4):
            d = P2_X + 2*(i*4 + j)
            a(f"buffer_load_dwordx2 v[{d}:{d+1}], v8, s[{SRD_D}:{SRD_D+3}], s{S_T0+i} offen offset:{j*32}")
    a(f"s_lshl_b32 s{S_T2}, s{S_W4}, 12\nv_lshlrev_b32 v2, 4, v0\nv_add_u32 v2, s{S_T2}, v2")
    if ph.lds0: a(f"v_add_u32 v2, {ph.lds0}, v2")
    for j in range(4):
        tr_lane_part(a, 4+j, 10, 11, 128, j=j)
        a(f"v_add_u32 v{4+j}, {16384 + ph.lds0}, v{4+j}")

def p2_epilogue(a, ph, sf=''):
    acc = ph.vacc
    srd(a, SRD_C, S_WS, 4 << 20, WS_H)
    srd(a, SRD_D, S_WS, 1 << 20, WS_ST)
    a(f"s_lshl_b32 s{S_T0}, s{S_RB}, 3\ns_lshl_b32 s{S_T1}, s{S_W4}, 1\ns_add_u32 s{S_T0}, s{S_T0}, s{S_T1}")
    a(f"s_lshl_b32 s{S_T1}, s{S_T0}, 15\ns_lshl_b32 s{S_T2}, s{S_CB}, 11\ns_add_u32 s{S_T1}, s{S_T1}, s{S_T2}\ns_add_u32 s{S_T2}, s{S_T1}, 32768")
    a(f"s_lshl_b32 s{S_T0}, s{S_T0}, 11\ns_lshl_b32 s{S_T3}, s{S_CB}, 7\ns_add_u32 s{S_T0}, s{S_T0}, s{S_T3}")
    a(f"v_lshlrev_b32 v2, 4, v0\nv_lshlrev_b32 v3, 3, v0")
    P = lambda r: f"v[{r}:{r+1}]"
    a("s_waitcnt vmcnt(0)")
    for n in range(16):
        a(f"v_lshlrev_b32 v{112+2*n}, 16, v{P2_X+n}\nv_and_b32 v{113+2*n}, 0xffff0000, v{P2_X+n}")
    for n in range(16): a(f"v_pk_add_f32 {P(acc+2*n)}, {P(acc+2*n)}, {P(112+2*n)}")
    for i in range(2):
        for p in range(2):
            d = 20 + 8*i + 4*p
            for k in range(4):
                s = acc + 16*i + 8*p + 2*k
                a(f"v_cvt_pk_bf16_f32 v{d+k}, v{s}, v{s+1}")
            a(f"buffer_store_dwordx4 v[{d}:{d+3}], v2, s[{SRD_C}:{SRD_C+3}], s{S_T1+i} offen offset:{p*1024} {sf}")
    for k in range(4):
        for i in range(2): a(f"v_pk_add_f32 {P(112+8*i+2*k)}, {P(acc+16*i+4*k)}, {P(acc+16*i+4*k+2)}")
    for k in range(2):
        for i in range(2): a(f"v_pk_add_f32 {P(112+8*i+4*k)}, {P(112+8*i+4*k)}, {P(112+8*i+4*k+2)}")
    for i in range(2): a(f"v_pk_add_f32 {P(112+8*i)}, {P(112+8*i)}, {P(112+8*i+4)}")
    a("v_add_f32 v40, v112, v113\nv_add_f32 v48, v120, v121")
    xor16_32_multi(a, [40, 48], [41, 49], "v_add_f32")
    a("v_mul_f32 v42, 0x3c800000, v40\nv_mul_f32 v50, 0x3c800000, v48")
    for k in range(8):
        for i in range(2): a(f"v_pk_add_f32 {P(acc+16*i+2*k)}, {P(acc+16*i+2*k)}, {P(42+8*i)} op_sel_hi:[1,0] neg_lo:[0,1] neg_hi:[0,1]")
    for k in range(2):
        for i in range(2): a(f"v_pk_mul_f32 {P(112+8*i+2*k)}, {P(acc+16*i+2*k)}, {P(acc+16*i+2*k)}")
    for k in range(2, 8):
        for i in range(2): a(f"v_pk_fma_f32 {P(112+8*i+2*(k&1))}, {P(acc+16*i+2*k)}, {P(acc+16*i+2*k)}, {P(112+8*i+2*(k&1))}")
    for i in range(2): a(f"v_pk_add_f32 {P(112+8*i)}, {P(112+8*i)}, {P(112+8*i+2)}")
    a("v_add_f32 v41, v112, v113\nv_add_f32 v49, v120, v121")
    xor16_32_multi(a, [41, 49], [43, 51], "v_add_f32")
    a("s_mov_b64 exec, 0xffff")
    a(f"buffer_store_dwordx2 v[40:41], v3, s[{SRD_D}:{SRD_D+3}], s{S_T0} offen {sf}")
    a(f"buffer_store_dwordx2 v[48:49], v3, s[{SRD_D}:{SRD_D+3}], s{S_T0} offen offset:2048 {sf}")
    a("s_mov_b64 exec, -1")

P3_CONST = 135168
def p3_const_issue(a, lf=''):
    srd(a, SRD_C, S_WS, 2 << 20, WS_ST)
    srd(a, SRD_D, S_B1, 3584*2)
    Lc = a.lab('cols'); Le = a.lab('cend')
    a(f"s_cmp_ge_u32 s{S_W4}, 2\ns_cbranch_scc1 {Lc}")
    a(f"v_lshrrev_b32 v22, 4, v0\nv_lshlrev_b32 v22, 11, v22\nv_and_b32 v23, 15, v0\nv_lshlrev_b32 v23, 3, v23\nv_add_u32 v22, v22, v23")
    a(f"s_lshl_b32 s{S_T0}, s{S_RB}, 14\ns_lshl_b32 s{S_T1}, s{S_W4}, 13\ns_add_u32 s{S_T0}, s{S_T0}, s{S_T1}")
    for c in range(16):
        a(f"buffer_load_dwordx2 v[{32+2*c}:{33+2*c}], v22, s[{SRD_C}:{SRD_C+3}], s{S_T0} offen offset:{c*128} {lf}")
    a(f"s_branch {Le}\n{Lc}:")
    a(f"s_mul_i32 s{S_T0}, s{S_CB}, 224\ns_and_b32 s{S_T1}, s{S_CB}, 1\ns_lshl_b32 s{S_T2}, s{S_T1}, 5\ns_add_u32 s{S_T2}, s{S_T2}, s{S_T0}")
    a(f"s_cmp_eq_u32 s{S_T1}, 0\ns_cselect_b32 s{S_T1}, 0, 192\ns_sub_u32 s{S_T1}, s{S_T0}, s{S_T1}")
    a(f"s_and_b32 s{S_T0}, s{S_W4}, 1\ns_lshl_b32 s{S_T0}, s{S_T0}, 7\nv_lshlrev_b32 v23, 1, v0\nv_add_u32 v23, s{S_T0}, v23\nv_min_u32 v23, 222, v23")
    a(f"v_cmp_gt_u32 vcc, 192, v23\nv_mov_b32 v24, s{S_T1}\nv_mov_b32 v25, s{S_T2}\nv_cndmask_b32 v24, v24, v25, vcc\nv_add_u32 v24, v24, v23")
    a(f"v_lshlrev_b32 v22, 2, v24\nv_lshlrev_b32 v24, 1, v24")
    for c in range(16):
        a(f"s_mov_b32 s{S_T0}, {(1 << 20) + c*3584*4}\nbuffer_load_dwordx2 v[{32+2*c}:{33+2*c}], v22, s[{SRD_C}:{SRD_C+3}], s{S_T0} offen {lf}")
    a(f"buffer_load_dword v64, v24, s[{SRD_D}:{SRD_D+3}], 0 offen")
    a(f"{Le}:")

def p3_const_finish(a):
    Lc = a.lab('cols'); Le = a.lab('cend')
    a(f"s_cmp_ge_u32 s{S_W4}, 2\ns_cbranch_scc1 {Lc}")
    for c in range(8): a(f"v_add_f32 v{70+c}, v{32+4*c}, v{34+4*c}")
    tree_sum(a, range(70, 78))
    a("v_mul_f32 v70, 0x3a800000, v70")
    for c in range(16):
        a(f"v_fma_f32 v{32+2*c}, v{32+2*c}, 0x3c800000, -v70" if False else f"v_mul_f32 v{32+2*c}, 0x3c800000, v{32+2*c}\nv_sub_f32 v{32+2*c}, v{32+2*c}, v70")
    for c in range(16):
        a(f"v_mul_f32 v{32+2*c}, v{32+2*c}, v{32+2*c}\nv_mul_f32 v{32+2*c}, 0x42800000, v{32+2*c}\nv_add_f32 v{33+2*c}, v{33+2*c}, v{32+2*c}")
    tree_sum(a, range(33, 64, 2))
    a("v_mul_f32 v71, 0x3a800000, v33")
    ln_scale(a, 70, 71, 72)
    a(f"v_mul_f32 v73, v70, v71\nv_mov_b32 v72, v71\ns_lshl_b32 s{S_T0}, s{S_W4}, 9\nv_lshlrev_b32 v22, 3, v0\nv_add_u32 v22, s{S_T0}, v22\nv_add_u32 v22, {P3_CONST}, v22")
    a(f"ds_write_b64 v22, v[72:73]\ns_branch {Le}\n{Lc}:")
    tree_sum(a, range(32, 64, 2)); tree_sum(a, range(33, 64, 2))
    a(f"v_lshlrev_b32 v34, 16, v64\nv_and_b32 v35, 0xffff0000, v64\nv_lshlrev_b32 v23, 2, v23\nv_add_u32 v23, {P3_CONST + 1024}, v23")
    a(f"ds_write_b64 v23, v[32:33]\nds_write_b64 v23, v[34:35] offset:896")
    a(f"{Le}:\ns_waitcnt lgkmcnt(0)")

def p3_epilogue(a, ph, sf=''):
    acc = lambda n: ph.vacc + 4*n
    srd(a, SRD_C, S_WS, 16 << 20, WS_G)
    a(f"s_lshr_b32 s{S_T0}, s{S_W4}, 1\ns_and_b32 s{S_T1}, s{S_W4}, 1")
    a(f"s_lshl_b32 s{S_T2}, s{S_T0}, 9\ns_lshl_b32 s{S_T3}, s{S_T1}, 8\ns_add_u32 s{S_T2}, s{S_T2}, s{S_T3}\ns_add_u32 s{S_T2}, s{S_T2}, {P3_CONST}")
    a(f"v_and_b32 v2, 15, v0\nv_lshlrev_b32 v2, 3, v2\nv_add_u32 v2, s{S_T2}, v2\nv_xor_b32 v3, 0x100, v2")
    for i in range(4): a(f"ds_read_b64 v[{8+2*i}:{9+2*i}], v{2 + (i >> 1)} offset:{(i & 1)*128}")
    a(f"s_mul_i32 s{S_T2}, s{S_T1}, 384\ns_add_u32 s{S_T2}, s{S_T2}, {P3_CONST + 1024}\nv_and_b32 v5, 0x30, v0\nv_add_u32 v4, s{S_T2}, v5\nv_add_u32 v5, {P3_CONST + 1024 + 768}, v5")
    CS, BB = 16, 48
    for c in range(8):
        r, o = (4, c*64) if c < 6 else (5, (c-6)*64)
        a(f"ds_read_b128 v[{CS+4*c}:{CS+4*c+3}], v{r} offset:{o}\nds_read_b128 v[{BB+4*c}:{BB+4*c+3}], v{r} offset:{o+896}")
    a(f"s_lshl_b32 s{S_T2}, s{S_RB}, 3\ns_lshl_b32 s{S_T3}, s{S_T0}, 2\ns_add_u32 s{S_T2}, s{S_T2}, s{S_T3}\ns_lshl_b32 s{S_T3}, s{S_T1}, 1")
    for i in range(4):
        a(f"s_xor_b32 s{84+i}, s{S_T3}, {i}\ns_add_u32 s{84+i}, s{84+i}, s{S_T2}\ns_mul_i32 s{84+i}, s{84+i}, {112*1024}")
    a(f"s_mul_i32 s{S_T2}, s{S_CB}, 7\ns_and_b32 s{S_T3}, s{S_CB}, 1\ns_mul_i32 s88, s{S_T1}, 3\ns_add_u32 s88, s88, s{S_T2}\ns_add_u32 s88, s88, s{S_T3}\ns_lshl_b32 s88, s88, 10")
    a(f"s_cmp_eq_u32 s{S_T3}, 0\ns_cselect_b32 s89, 6, 0\ns_add_u32 s89, s89, s{S_T2}\ns_lshl_b32 s89, s89, 10")
    a(f"v_lshlrev_b32 v6, 4, v0\nv_add_u32 v7, s89, v6\nv_add_u32 v6, s88, v6")
    k2 = -2.0*0.7978845608028654*1.4426950408889634
    import struct
    f2h = lambda x: struct.unpack('<I', struct.pack('<f', x))[0]
    KK, ONE = 224, 226
    a(f"v_mov_b32 v{KK}, {f2h(k2*0.044715):#x}\nv_mov_b32 v{KK+1}, {f2h(k2):#x}\nv_mov_b32 v{ONE}, 1.0\nv_mov_b32 v{ONE+1}, 1.0")
    a("s_waitcnt lgkmcnt(0)")
    units = [(i, p) for p in range(3) for i in range(4)] + [(0, 3), (1, 3)]
    P = lambda r: f"v[{r}:{r+1}]"
    for n, (i, p) in enumerate(units):
        A = acc(i*6 + 2*p) if p < 3 else acc(24 + i*2)
        T = 80 + 16*(n & 1); U = T + 8
        R = 8 + 2*i
        for k in range(0, 8, 2): a(f"v_pk_fma_f32 {P(T+k)}, {P(R)}, {P(CS+8*p+k)}, {P(BB+8*p+k)} op_sel:[1,0,0] op_sel_hi:[1,1,1] neg_lo:[1,0,0] neg_hi:[1,0,0]")
        for k in range(0, 8, 2): a(f"v_pk_fma_f32 {P(A+k)}, {P(R)}, {P(A+k)}, {P(T+k)} op_sel_hi:[0,1,1]")
        for k in range(0, 8, 2): a(f"v_pk_mul_f32 {P(T+k)}, {P(A+k)}, {P(A+k)}")
        for k in range(0, 8, 2): a(f"v_pk_fma_f32 {P(T+k)}, {P(T+k)}, {P(KK)}, {P(KK)} op_sel:[0,0,1] op_sel_hi:[1,0,1]")
        for k in range(0, 8, 2): a(f"v_pk_mul_f32 {P(T+k)}, {P(T+k)}, {P(A+k)}")
        for k in range(8): a(f"v_exp_f32 v{T+k}, v{T+k}")
        for k in range(0, 8, 2): a(f"v_pk_add_f32 {P(T+k)}, {P(T+k)}, {P(ONE)}")
        for k in range(8): a(f"v_rcp_f32 v{T+k}, v{T+k}")
        for k in range(0, 8, 2): a(f"v_pk_mul_f32 {P(A+k)}, {P(A+k)}, {P(T+k)}")
        for k in range(4): a(f"v_cvt_pk_bf16_f32 v{U+k}, v{A+2*k}, v{A+2*k+1}")
        if p < 3: a(f"buffer_store_dwordx4 v[{U}:{U+3}], v6, s[{SRD_C}:{SRD_C+3}], s{84+i} offen offset:{p*1024} {sf}")
        else: a(f"buffer_store_dwordx4 v[{U}:{U+3}], v7, s[{SRD_C}:{SRD_C+3}], s{84+i} offen {sf}")

def map_p4(a):
    a(f"s_and_b32 s{S_T0}, s2, 3\ns_lshl_b32 s{S_T0}, s{S_T0}, 2\ns_lshr_b32 s{S_T1}, s2, 3\ns_and_b32 s{S_T2}, s{S_T1}, 3\ns_add_u32 s{S_RB}, s{S_T0}, s{S_T2}")
    a(f"s_bfe_u32 s{S_KH}, s2, 0x10002\ns_lshr_b32 s{S_CB}, s2, 5")
    a(f"s_add_u32 s{S_ROT}, s{S_RB}, s{S_CB}\ns_and_b32 s{S_ROT}, s{S_ROT}, 3")

def make_p4(lead=True):
    ph = Phase(); ph.name = 'P4'; ph.S = 28; ph.NS = 3; ph.stage = 32768; ph.lds0 = 0; ph.lead = lead
    ph.ka_step = 2048; ph.kb_step = 64*2048; ph.aflags = ''; ph.bflags = ''
    ph.nmin = 8
    ph.pieces = []
    for i in range(2):
        ph.pieces.append(('A', 10+i, S_LA, i*2048, 0, None))
        ph.pieces.append(('A', 10+i, S_LA, None, 1024, None))
    for t in range(2):
        for i in range(2):
            ph.pieces.append(('B', 12 + 2*t + i, S_LB, 16384 + t*8192 + i*1024, 0, None))
    ph.addr_regs = [2, 4, 5, 6, 7]
    ph.afr = [(2, i*2048) for i in range(4)]
    ph.a_kb = 1024
    ph.bfr = [(4 + c, 0, 2048, 4096) for c in range(4)]
    ph.va = [16, 32]; ph.vb = [48, 64]; ph.vacc = 112
    ph.mm = [(i*4 + c, i, c, True) for i in range(4) for c in (range(4) if i % 2 == 0 else range(3, -1, -1))]
    return ph

def p4_producer_setup(a, ph):
    srd(a, SRD_A, S_WS, 16 << 20, WS_G)
    srd(a, SRD_B, S_W2, 3584*1024*2)
    a(f"s_lshl_b32 s{S_LA}, s{S_W4}, 12\ns_lshl_b32 s{S_LB}, s{S_W4}, 11")
    a(f"s_lshl_b32 s{S_T0}, s{S_RB}, 3\ns_lshl_b32 s{S_T1}, s{S_W4}, 1\ns_add_u32 s{S_T1}, s{S_T0}, s{S_T1}\ns_mul_i32 s{S_T1}, s{S_T1}, {112*1024}")
    a(f"s_mul_i32 s{S_T0}, s{S_KH}, {56*1024}\ns_add_u32 s{S_T1}, s{S_T1}, s{S_T0}")
    a(f"v_lshlrev_b32 v10, 4, v0\nv_add_u32 v10, s{S_T1}, v10\nv_add_u32 v11, {112*1024}, v10")
    a(f"s_lshl_b32 s{S_T2}, s{S_CB}, 8\ns_lshl_b32 s{S_T0}, s{S_W4}, 15\ns_add_u32 s{S_T2}, s{S_T2}, s{S_T0}\ns_mul_i32 s{S_T0}, s{S_KH}, {1792*2048}\ns_add_u32 s{S_T2}, s{S_T2}, s{S_T0}")
    dma_b_lane(a, 12, 20, 21, 2048, 128)
    a(f"v_add_u32 v12, s{S_T2}, v12\nv_add_u32 v13, {8*2048}, v12\nv_add_u32 v14, 128, v12\nv_add_u32 v15, 128, v13")

P4_H = 80
def p4_res_loads(a, lf=''):
    a(f"s_lshl_b32 s84, s82, 15\ns_lshl_b32 s85, s83, 10\ns_add_u32 s84, s84, s85")
    for i in range(4):
        a(f"s_add_u32 s85, s84, {i*32768}\nbuffer_load_dwordx4 v[{P4_H+4*i}:{P4_H+4*i+3}], v3, s[{SRD_C}:{SRD_C+3}], s85 offen {lf}")

def p4_consumer_setup(a, ph, lf='', res=True):
    srd(a, SRD_C, S_WS, 4 << 20, WS_H)
    srd(a, SRD_D, S_B2, 1024*2)
    a(f"s_lshr_b32 s{S_T0}, s{S_W4}, 1\ns_and_b32 s{S_T1}, s{S_W4}, 1")
    a(f"s_lshl_b32 s83, s{S_CB}, 2\ns_lshl_b32 s{S_T2}, s{S_KH}, 1\ns_add_u32 s83, s83, s{S_T2}\ns_add_u32 s83, s83, s{S_T1}")
    a(f"s_lshl_b32 s82, s{S_RB}, 3\ns_lshl_b32 s{S_T2}, s{S_T0}, 2\ns_add_u32 s82, s82, s{S_T2}")
    a(f"v_lshlrev_b32 v3, 4, v0")
    if res: p4_res_loads(a, lf)
    a(f"v_lshrrev_b32 v8, 4, v0\nv_lshlrev_b32 v8, 3, v8\ns_lshl_b32 s{S_T3}, s83, 6")
    a(f"buffer_load_dwordx2 v[96:97], v8, s[{SRD_D}:{SRD_D+3}], s{S_T3} offen\nbuffer_load_dwordx2 v[98:99], v8, s[{SRD_D}:{SRD_D+3}], s{S_T3} offen offset:32")
    a(f"s_lshl_b32 s{S_T2}, s{S_T0}, 13\nv_add_u32 v2, s{S_T2}, v3")
    if ph.lds0: a(f"v_add_u32 v2, {ph.lds0}, v2")
    for c in range(2):
        a(f"s_lshl_b32 s{S_T2}, s{S_T1}, 1\ns_add_u32 s{S_T2}, s{S_T2}, {c}")
        tr_lane_part(a, 4+c, 10, 11, 128, jreg=S_T2)
        a(f"s_lshl_b32 s{S_T2}, s{S_KH}, 13\ns_add_u32 s{S_T2}, s{S_T2}, {16384 + ph.lds0}\nv_add_u32 v{4+c}, s{S_T2}, v{4+c}\nv_xor_b32 v{6+c}, 0x2000, v{4+c}")

def p4_epilogue(a, ph, fval='1', fbase=0):
    acc = lambda n: ph.vacc + 4*n
    srd(a, SRD_C, S_WS, 8 << 20, WS_PX)
    srd(a, SRD_D, S_WS, 1 << 20, WS_FL)
    srd(a, SRD_A, S_OUT, 2048*1024*2)
    a(f"s_lshl_b32 s{S_T0}, s{S_RB}, 3\ns_add_u32 s{S_T0}, s{S_T0}, s{S_CB}\ns_lshl_b32 s{S_T0}, s{S_T0}, 1\ns_add_u32 s{S_T0}, s{S_T0}, s{S_KH}")
    a(f"s_lshl_b32 s{S_T1}, s{S_T0}, 2\ns_add_u32 s{S_T1}, s{S_T1}, s{S_W4}")
    a(f"s_lshl_b32 s84, s{S_T1}, 13\ns_xor_b32 s85, s84, 0x8000")
    a(f"s_lshl_b32 s86, s{S_T1}, 7\ns_add_u32 s86, s86, {fbase}\ns_xor_b32 s87, s86, 0x200")
    for i in range(4):
        for c in range(2):
            n = i*2 + c
            if n == 4: a("s_add_u32 s84, s84, 4096")
            a(f"buffer_store_dwordx4 v[{acc(i*4+2+c)}:{acc(i*4+2+c)+3}], v3, s[{SRD_C}:{SRD_C+3}], s84 offen offset:{(n & 3)*1024} sc1")
    a("s_waitcnt vmcnt(8)")
    for h in range(4):
        a(f"v_lshlrev_b32 v{100+2*h}, 16, v{96+h}\nv_and_b32 v{101+2*h}, 0xffff0000, v{96+h}")
    for i in range(4):
        for h in range(4):
            d = acc(i*4) + 2*h
            a(f"v_lshlrev_b32 v16, 16, v{P4_H+4*i+h}\nv_and_b32 v17, 0xffff0000, v{P4_H+4*i+h}")
            a(f"v_add_f32 v16, v16, v{100+2*h}\nv_add_f32 v17, v17, v{101+2*h}\nv_add_f32 v{d}, v{d}, v16\nv_add_f32 v{d+1}, v{d+1}, v17")
    a(f"v_mov_b32 v18, 0\nv_mov_b32 v19, {fval}\ns_waitcnt vmcnt(0)\ns_mov_b64 exec, 1")
    a(f"buffer_store_dword v19, v18, s[{SRD_D}:{SRD_D+3}], s86 offen sc1")
    L = a.lab('poll')
    a(f"s_mov_b32 s88, 0\n{L}:\ns_add_u32 s88, s88, 1\ns_cmp_gt_u32 s88, 0x40000\ns_cbranch_scc1 {L}_x\nbuffer_load_dword v20, v18, s[{SRD_D}:{SRD_D+3}], s87 offen sc1\ns_waitcnt vmcnt(0)\nv_readfirstlane_b32 s{S_T2}, v20\ns_cmp_lg_u32 s{S_T2}, {fval}\ns_cbranch_scc1 {L}")
    a(f"{L}_x:\ns_mov_b64 exec, -1")
    RX = 24
    for n in range(8):
        if n == 4: a("s_add_u32 s85, s85, 4096")
        a(f"buffer_load_dwordx4 v[{RX+4*n}:{RX+4*n+3}], v3, s[{SRD_C}:{SRD_C+3}], s85 offen offset:{(n & 3)*1024} sc1")
    a("v_and_b32 v4, 15, v0\nv_lshlrev_b32 v4, 11, v4\nv_bfe_u32 v5, v0, 4, 1\nv_lshlrev_b32 v5, 5, v5\nv_add_u32 v4, v4, v5\nv_bfe_u32 v5, v0, 5, 1\nv_lshlrev_b32 v5, 4, v5\nv_add_u32 v4, v4, v5")
    a(f"s_lshl_b32 s{S_T2}, s82, 15\ns_lshl_b32 s{S_T3}, s83, 6\ns_add_u32 s{S_T2}, s{S_T2}, s{S_T3}")
    for i in range(4):
        a(f"s_waitcnt vmcnt({6 - 2*i + i})")
        d = acc(i*4)
        for k in range(8): a(f"v_add_f32 v{d+k}, v{d+k}, v{RX+8*i+k}")
        U = 64 + 4*i
        for k in range(4): a(f"v_cvt_pk_bf16_f32 v{U+k}, v{d+2*k}, v{d+2*k+1}")
        a(f"s_add_u32 s{S_T3}, s{S_T2}, {i*32768}\ns_nop 0\nv_permlane16_swap_b32 v{U}, v{U+2}\nv_permlane16_swap_b32 v{U+1}, v{U+3}")
        a(f"buffer_store_dwordx4 v[{U}:{U+3}], v4, s[{SRD_A}:{SRD_A+3}], s{S_T3} offen")


S_E = 62
S_FO = 63
SRD_F = 96
FL_E, FL_0, FL_1, FL_2, FL_3, FL_C, FL_X = 0, 0x1000, 0x2000, 0x3000, 0x4000, 0x5000, 0x10000

def flag_off(a, dst, base, srow, scol):
    a(f"s_lshl_b32 s{dst}, s{srow}, 7\ns_lshl_b32 s{S_T0}, s{scol}, 2\ns_add_u32 s{dst}, s{dst}, s{S_T0}\ns_add_u32 s{dst}, s{dst}, {base}")

def flag_set(a, soff, only_wave=4):
    L = a.lab('noflag')
    if only_wave is not None: a(f"s_cmp_lg_u32 s{S_WAVE}, {only_wave}\ns_cbranch_scc1 {L}")
    a(f"v_mov_b32 v28, 0\nv_mov_b32 v29, s{S_E}\ns_mov_b64 exec, 1\nbuffer_store_dword v29, v28, s[{SRD_F}:{SRD_F+3}], s{soff} offen sc1\ns_mov_b64 exec, -1")
    a(f"{L}:")

def poll(a, voff, soff, execmask):
    L = a.lab('poll')
    a(f"s_mov_b64 exec, {execmask:#x}\ns_mov_b32 s{S_T0}, 0\n{L}:")
    a(f"buffer_load_dword v31, v{voff}, s[{SRD_F}:{SRD_F+3}], s{soff} offen sc1\ns_add_u32 s{S_T0}, s{S_T0}, 1\ns_cmp_gt_u32 s{S_T0}, 0x20000\ns_cbranch_scc1 {L}_x")
    a(f"s_waitcnt vmcnt(0)\nv_cmp_ne_u32 vcc, s{S_E}, v31\ns_cbranch_vccnz {L}\n{L}_x:\ns_waitcnt vmcnt(0)\ns_mov_b64 exec, -1")

def colsum_wave(a, sk, scb, sf='sc1'):
    srd(a, SRD_C, S_W1, 1024*3584*2)
    srd(a, SRD_D, S_WS, 1 << 20, WS_CS)
    a(f"v_lshrrev_b32 v22, 3, v0\nv_mul_u32_u24 v22, 7168, v22\nv_and_b32 v23, 7, v0\nv_min_u32 v23, 6, v23\nv_lshlrev_b32 v24, 4, v23\nv_add_u32 v22, v22, v24")
    a(f"s_mul_i32 s{S_T0}, s{sk}, {64*7168}\ns_mul_i32 s{S_T1}, s{scb}, 448\ns_add_u32 s{S_T0}, s{S_T0}, s{S_T1}\ns_mul_i32 s{S_T1}, s{S_W4}, 112\ns_add_u32 s{S_T0}, s{S_T0}, s{S_T1}")
    for j in range(8):
        a(f"s_add_u32 s{S_T1}, s{S_T0}, {j*8*7168}\nbuffer_load_dwordx4 v[{32+4*j}:{35+4*j}], v22, s[{SRD_C}:{SRD_C+3}], s{S_T1} offen")
    a(f"s_mul_i32 s{S_T0}, s{sk}, {3584*4}\ns_mul_i32 s{S_T1}, s{scb}, 896\ns_add_u32 s{S_T0}, s{S_T0}, s{S_T1}\ns_mul_i32 s{S_T1}, s{S_W4}, 224\ns_add_u32 s{S_T0}, s{S_T0}, s{S_T1}")
    a("v_lshlrev_b32 v23, 5, v23")
    for j in range(8):
        a(f"s_waitcnt vmcnt({7-j})")
        for k in range(4):
            s = 32 + 4*j + k
            if j == 0: a(f"v_lshlrev_b32 v{64+2*k}, 16, v{s}\nv_and_b32 v{65+2*k}, 0xffff0000, v{s}")
            else: a(f"v_lshlrev_b32 v72, 16, v{s}\nv_and_b32 v73, 0xffff0000, v{s}\nv_pk_add_f32 v[{64+2*k}:{65+2*k}], v[{64+2*k}:{65+2*k}], v[72:73]")
    a("s_nop 1")
    for k in range(8): a(f"v_add_f32_dpp v{64+k}, v{64+k}, v{64+k} row_ror:8 row_mask:0xf bank_mask:0xf")
    xor16_32_multi(a, list(range(64, 72)), list(range(72, 80)), "v_add_f32")
    a(f"s_mov_b64 exec, 0x7f\nbuffer_store_dwordx4 v[64:67], v23, s[{SRD_D}:{SRD_D+3}], s{S_T0} offen {sf}\nbuffer_store_dwordx4 v[68:71], v23, s[{SRD_D}:{SRD_D+3}], s{S_T0} offen offset:16 {sf}\ns_mov_b64 exec, -1")

CNT_LDS = 160256
def publish(a, k, base, srow, scol):
    L = a.lab('nopub')
    flag_off(a, S_FO, base, srow, scol)
    a(f"v_mov_b32 v236, {CNT_LDS + 4*k}\nv_mov_b32 v237, 1\nv_mov_b32 v238, 0\nv_mov_b32 v239, s{S_E}\ns_mov_b64 exec, 1")
    a(f"s_waitcnt vmcnt(0)\nds_add_rtn_u32 v237, v236, v237\ns_waitcnt lgkmcnt(0)\nv_cmp_ne_u32 vcc, 3, v237\ns_cbranch_vccnz {L}")
    a(f"buffer_store_dword v239, v238, s[{SRD_F}:{SRD_F+3}], s{S_FO} offen sc1\n{L}:\ns_mov_b64 exec, -1")

S_PF = 78
def pf_setup(a, ptr, share, span):
    a(f"s_lshl_b32 s{S_T0}, s2, 2\ns_add_u32 s{S_T0}, s{S_T0}, s{S_W4}\ns_mul_i32 s{S_T0}, s{S_T0}, {share}\ns_min_u32 s{S_T0}, s{S_T0}, {1024*share - span}\ns_add_u32 s{S_PF}, s{ptr}, s{S_T0}\ns_addc_u32 s{S_PF+1}, s{ptr+1}, 0")
def pf_step(a, n):
    a(f"s_waitcnt lgkmcnt({15 - n})")
    for i in range(n): a(f"s_load_dword s64, s[{S_PF}:{S_PF+1}], {i*64}")
    a(f"s_add_u32 s{S_PF}, s{S_PF}, {n*64}\ns_addc_u32 s{S_PF+1}, s{S_PF+1}, 0")
def pf_code(a, nbytes, per):
    L = a.lab('pc')
    a(f"s_getpc_b64 s[{S_PF}:{S_PF+1}]\n{L}:\ns_sub_u32 s{S_PF}, s{S_PF}, {L}-KSTART\ns_subb_u32 s{S_PF+1}, s{S_PF+1}, 0")
    a(f"s_lshr_b32 s{S_T0}, s2, 3\ns_lshl_b32 s{S_T0}, s{S_T0}, 2\ns_add_u32 s{S_T0}, s{S_T0}, s{S_W4}\ns_lshl_b32 s{S_T0}, s{S_T0}, 6")
    for i in range(per):
        a(f"s_add_u32 s{S_T1}, s{S_T0}, {i*8192}\ns_min_u32 s{S_T1}, s{S_T1}, KEND-KSTART-4\ns_load_dword s{64+i}, s[{S_PF}:{S_PF+1}], s{S_T1}")

WS_GR = 30 << 20
WS_CQ = 31 << 20
FL_Q = 0x7000
P1C = 148480

def make_p1x(lead=True):
    ph = make_p1(lead)
    ph.ka_step = 128
    ph.pieces = []
    for i in range(4):
        ph.pieces.append(('A', 6 + i, S_LA, 2048 + i*1024, 0, None))
    ph.pieces.append(('A', 18, S_LH, 0, 0, 2))
    for t in range(3):
        for i in range(2):
            ph.pieces.append(('B', 12 + t*2 + i, S_LB, 18432 + t*8192 + i*1024, 0, None))
    ph.addr_regs = [2, 3, 4, 5]
    ph.afr = [(2, 3, i*2048) for i in range(5)]
    ph.bfr = [(4 + c, t*8192, 512, 4096) for t in range(3) for c in range(2)]
    return ph

def p1x_producer_setup(a, ph):
    srd(a, SRD_A, S_X, 2048*1024*2)
    srd(a, SRD_B, S_WQKV, 1024*3072*2)
    a(f"s_lshl_b32 s{S_LA}, s{S_W4}, 12\ns_lshl_b32 s{S_LB}, s{S_W4}, 11\ns_lshl_b32 s{S_LH}, s{S_W4}, 10")
    a("v_lshrrev_b32 v20, 3, v0\nv_lshlrev_b32 v20, 11, v20\nv_lshrrev_b32 v21, 4, v0\nv_and_b32 v22, 7, v0\nv_xor_b32 v21, v21, v22\nv_lshlrev_b32 v21, 4, v21\nv_add_u32 v20, v20, v21")
    a(f"s_lshl_b32 s{S_T0}, s{S_RB}, 18\ns_lshl_b32 s{S_T1}, s{S_W4}, 16\ns_add_u32 s{S_T1}, s{S_T1}, s{S_T0}")
    a(f"v_add_u32 v6, s{S_T1}, v20\nv_xor_b32 v21, 64, v20\nv_add_u32 v7, s{S_T1}, v21\nv_add_u32 v7, 0x4000, v7\nv_add_u32 v8, 0x8000, v6\nv_add_u32 v9, 0x8000, v7")
    a(f"s_max_u32 s{S_T0}, s{S_T0}, 0x8000\ns_sub_u32 s{S_T0}, s{S_T0}, 0x8000\ns_lshl_b32 s{S_T1}, s{S_W4}, 14\ns_add_u32 s{S_T0}, s{S_T0}, s{S_T1}")
    a(f"s_lshl_b32 s{S_T1}, s{S_W4}, 6\ns_and_b32 s{S_T1}, s{S_T1}, 64\nv_xor_b32 v18, s{S_T1}, v20\nv_add_u32 v18, s{S_T0}, v18")
    a(f"s_lshl_b32 s{S_T2}, s{S_CB}, 7\ns_mul_i32 s{S_T0}, s{S_W4}, {16*6144}\ns_add_u32 s{S_T2}, s{S_T2}, s{S_T0}")
    a("v_lshrrev_b32 v20, 3, v0\nv_mul_u32_u24 v20, 6144, v20\nv_bfe_u32 v21, v0, 4, 1\nv_lshlrev_b32 v21, 1, v21\nv_xor_b32 v21, v21, v22\nv_lshlrev_b32 v21, 4, v21")
    a(f"v_add_u32 v12, v20, v21\nv_add_u32 v12, s{S_T2}, v12\nv_xor_b32 v21, 64, v21\nv_add_u32 v13, v20, v21\nv_add_u32 v13, s{S_T2}, v13\nv_add_u32 v13, {8*6144}, v13")
    for t in range(1, 3):
        for i in range(2): a(f"v_add_u32 v{12+t*2+i}, {t*2048}, v{12+i}")

def p1x_consumer_setup(a, ph):
    a(f"s_lshr_b32 s{S_T0}, s{S_W4}, 1\ns_and_b32 s{S_T1}, s{S_W4}, 1")
    a(f"s_lshl_b32 s{S_T2}, s{S_T0}, 13\nv_and_b32 v10, 15, v0\nv_lshrrev_b32 v11, 1, v10\nv_lshrrev_b32 v2, 4, v0\nv_xor_b32 v2, v2, v11\nv_lshlrev_b32 v2, 4, v2")
    a(f"v_lshlrev_b32 v10, 7, v10\nv_add_u32 v2, v2, v10\nv_add_u32 v2, s{S_T2}, v2\nv_xor_b32 v3, 64, v2")
    a("v_lshrrev_b32 v10, 4, v0\nv_lshlrev_b32 v10, 10, v10\nv_bfe_u32 v11, v0, 2, 2\nv_lshlrev_b32 v11, 7, v11\nv_add_u32 v10, v10, v11")
    a(f"v_and_b32 v11, 3, v0\nv_lshlrev_b32 v11, 3, v11\nv_add_u32 v10, v10, v11\nv_add_u32 v10, 18432, v10\nv_bfe_u32 v11, v0, 3, 2")
    for c in range(2):
        a(f"s_lshl_b32 s{S_T2}, s{S_T1}, 1\ns_add_u32 s{S_T2}, s{S_T2}, {c}\nv_xor_b32 v{4+c}, s{S_T2}, v11\nv_lshlrev_b32 v{4+c}, 5, v{4+c}\nv_add_u32 v{4+c}, v{4+c}, v10")
    a("v_and_b32 v10, 15, v0\nv_lshrrev_b32 v11, 4, v0\nv_lshlrev_b32 v11, 2, v11\nv_sub_u32 v10, v10, v11\nv_mov_b32 v12, 0xf149f2ca")
    for t in range(2):
        for r in range(4):
            a(f"v_add_u32 v11, {(16 if t == 0 else 0) - r}, v10\nv_and_b32 v11, 0xfffffff1, v11\nv_cmp_eq_u32 vcc, 0, v11\ns_nop 1\nv_cndmask_b32 v{224+4*t+r}, v12, 0, vcc")
    a(f"s_lshl_b32 s{S_T2}, s{S_RB}, 1\ns_add_u32 s{S_T2}, s{S_T2}, s{S_T0}\ns_cmp_eq_u32 s{S_T2}, 0\ns_cselect_b64 vcc, -1, 0")
    for r in range(4): a(f"v_cndmask_b32 v{232+r}, v{224+r}, v12, vcc")

def wave_sum(a, vs, ts):
    def gap():
        if len(vs) < 3: a(f"s_nop {2 - len(vs)}")
    for m in ("quad_perm:[1,0,3,2]", "quad_perm:[2,3,0,1]", "row_half_mirror", "row_mirror"):
        gap()
        for v in vs: a(f"v_add_f32_dpp v{v}, v{v}, v{v} {m} row_mask:0xf bank_mask:0xf")
    xor16_32_multi(a, vs, ts, "v_add_f32")

def row_stats_issue(a, sid):
    srd(a, SRD_A, S_X, 2048*1024*2)
    a(f"v_lshlrev_b32 v1, 4, v0\ns_lshl_b32 s{S_T0}, s{sid}, 14\ns_lshl_b32 s{S_T1}, s{S_W4}, 12\ns_add_u32 s{S_T0}, s{S_T0}, s{S_T1}")
    for j in range(4): a(f"buffer_load_dwordx4 v[{16+4*j}:{19+4*j}], v1, s[{SRD_A}:{SRD_A+3}], s{S_T0} offen offset:{j*1024}")

def row_stats_finish(a, sid):
    P = lambda r: f"v[{r}:{r+1}]"
    srd(a, SRD_C, S_WS, 16384, WS_GR)
    a(f"s_lshl_b32 s{S_T0}, s{sid}, 6\ns_lshl_b32 s{S_T1}, s{S_W4}, 4\ns_add_u32 s{S_T0}, s{S_T0}, s{S_T1}\nv_mov_b32 v1, 0")
    a("s_waitcnt vmcnt(0)")
    for k in range(16): a(f"v_lshlrev_b32 v{32+2*k}, 16, v{16+k}\nv_and_b32 v{33+2*k}, 0xffff0000, v{16+k}")
    def psum(dst, src):
        for k in range(4):
            for r in range(2): a(f"v_pk_add_f32 {P(dst+8*r+2*k)}, {P(src+16*r+4*k)}, {P(src+16*r+4*k+2)}")
        for k in range(2):
            for r in range(2): a(f"v_pk_add_f32 {P(dst+8*r+4*k)}, {P(dst+8*r+4*k)}, {P(dst+8*r+4*k+2)}")
        for r in range(2): a(f"v_pk_add_f32 {P(dst+8*r)}, {P(dst+8*r)}, {P(dst+8*r+4)}")
        for r in range(2): a(f"v_add_f32 v{dst+8*r}, v{dst+8*r}, v{dst+8*r+1}")
        wave_sum(a, [dst, dst+8], [dst+1, dst+9])
        for r in range(2): a(f"v_mul_f32 v{dst+8*r}, 0x3a800000, v{dst+8*r}")
    psum(64, 32)
    for k in range(8):
        for r in range(2): a(f"v_pk_add_f32 {P(32+16*r+2*k)}, {P(32+16*r+2*k)}, {P(64+8*r)} op_sel_hi:[1,0] neg_lo:[0,1] neg_hi:[0,1]")
    for k in range(16): a(f"v_pk_mul_f32 {P(32+2*k)}, {P(32+2*k)}, {P(32+2*k)}")
    psum(80, 32)
    a("v_cvt_pk_bf16_f32 v80, v80, v88\nv_and_b32 v81, 0xffff0000, v80\nv_lshlrev_b32 v80, 16, v80")
    a("v_add_f32 v80, 0x3727c5ac, v80\nv_add_f32 v81, 0x3727c5ac, v81\nv_cvt_pk_bf16_f32 v80, v80, v81\nv_and_b32 v81, 0xffff0000, v80\nv_lshlrev_b32 v80, 16, v80")
    a("v_sqrt_f32 v80, v80\nv_sqrt_f32 v81, v81\ns_nop 0")
    a(f"v_cvt_pk_bf16_f32 v84, v64, v80\nv_cvt_pk_bf16_f32 v86, v72, v81\nv_mov_b32 v85, s{S_E}\nv_mov_b32 v87, s{S_E}")
    a(f"s_mov_b64 exec, 1\nbuffer_store_dwordx4 v[84:87], v1, s[{SRD_C}:{SRD_C+3}], s{S_T0} offen sc1\ns_mov_b64 exec, -1")

def colsum_reduce(a, src, q, tag):
    q.wait(tag)
    for j in range(8):
        for k in range(4):
            s = src + 4*j + k
            if j == 0: a(f"v_lshlrev_b32 v{64+2*k}, 16, v{s}\nv_and_b32 v{65+2*k}, 0xffff0000, v{s}")
            else: a(f"v_lshlrev_b32 v{72+2*(k&1)}, 16, v{s}\nv_and_b32 v{73+2*(k&1)}, 0xffff0000, v{s}\nv_pk_add_f32 v[{64+2*k}:{65+2*k}], v[{64+2*k}:{65+2*k}], v[{72+2*(k&1)}:{73+2*(k&1)}]")
    a("s_nop 1")
    for k in range(8): a(f"v_add_f32_dpp v{64+k}, v{64+k}, v{64+k} row_ror:8 row_mask:0xf bank_mask:0xf")
    xor16_32_multi(a, list(range(64, 72)), list(range(72, 80)), "v_add_f32")

def skip_w3(a):
    L = a.lab('w3')
    a(f"s_cmp_eq_u32 s{S_W4}, 3\ns_cbranch_scc1 {L}")
    return L

def jq_issue(a, q):
    a(f"v_lshrrev_b32 v22, 3, v0\nv_mul_u32_u24 v22, 6144, v22\nv_and_b32 v23, 7, v0\nv_lshlrev_b32 v24, 4, v23\nv_add_u32 v22, v22, v24\nv_lshlrev_b32 v23, 5, v23")
    L = skip_w3(a)
    a(f"s_mul_i32 s{S_T0}, s{S_RB}, {64*6144}\ns_lshl_b32 s{S_T1}, s{S_CB}, 7\ns_add_u32 s{S_T0}, s{S_T0}, s{S_T1}\ns_add_u32 s{S_T0}, s{S_T0}, s{S_LB}")
    for j in range(8):
        a(f"s_add_u32 s{S_T1}, s{S_T0}, {j*8*6144}\nbuffer_load_dwordx4 v[{32+4*j}:{35+4*j}], v22, s[{SRD_B}:{SRD_B+3}], s{S_T1} offen")
    a(f"{L}:")
    q.push('jq', 0)
def jq_process(a, q):
    L = skip_w3(a)
    colsum_reduce(a, 32, q, 'jq')
    srd(a, SRD_D, S_WS, 1 << 20, WS_CQ)
    a(f"s_mul_i32 s{S_T0}, s{S_RB}, {3072*4}\ns_lshl_b32 s{S_T1}, s{S_CB}, 8\ns_add_u32 s{S_T0}, s{S_T0}, s{S_T1}\ns_add_u32 s{S_T0}, s{S_T0}, s{S_LA}")
    a(f"s_mov_b64 exec, 0xff\nbuffer_store_dwordx4 v[64:67], v23, s[{SRD_D}:{SRD_D+3}], s{S_T0} offen sc1\nbuffer_store_dwordx4 v[68:71], v23, s[{SRD_D}:{SRD_D+3}], s{S_T0} offen offset:16 sc1\ns_mov_b64 exec, -1")
    a(f"{L}:")
    q.push('jqs', 0)
def jq_flag(a, q):
    L = skip_w3(a)
    q.wait('jqs')
    a(f"s_lshl_b32 s82, s{S_CB}, 8\ns_lshl_b32 s{S_T0}, s{S_RB}, 4\ns_add_u32 s82, s82, s{S_T0}\ns_lshl_b32 s{S_T0}, s{S_W4}, 2\ns_add_u32 s82, s82, s{S_T0}\ns_add_u32 s82, s82, {FL_Q}")
    flag_set(a, 82, only_wave=None)
    a(f"{L}:")

def jg_loads(a):
    Lr = a.lab('rows'); Le = a.lab('gend')
    a(f"s_cmp_eq_u32 s{S_W4}, 3\ns_cbranch_scc1 {Lr}")
    srd(a, SRD_D, S_WS, 1 << 20, WS_CQ)
    a(f"v_and_b32 v22, 15, v0\nv_lshlrev_b32 v22, 4, v22\ns_lshl_b32 s82, s{S_CB}, 8\ns_lshl_b32 s{S_T0}, s{S_W4}, 2\ns_add_u32 s82, s82, s{S_T0}\ns_add_u32 s82, s82, {FL_Q}")
    a(f"buffer_load_dword v48, v22, s[{SRD_F}:{SRD_F+3}], s82 offen sc1")
    a(f"s_lshl_b32 s{S_T0}, s{S_CB}, 8\ns_add_u32 s{S_T0}, s{S_T0}, s{S_LA}")
    for k in range(16):
        a(f"s_add_u32 s{S_T1}, s{S_T0}, {k*3072*4}\nbuffer_load_dword v{32+k}, v30, s[{SRD_D}:{SRD_D+3}], s{S_T1} offen sc1")
    a(f"s_branch {Le}\n{Lr}:")
    srd(a, SRD_D, S_WS, 16384, WS_GR)
    a(f"s_lshl_b32 s{S_T0}, s{S_RB}, 7\ns_sub_u32 s{S_T0}, s{S_T0}, 16")
    a(f"v_add_u32 v22, s{S_T0}, v0\nv_add_u32 v23, 16, v22\nv_cmp_gt_i32 vcc, 0, v22\nv_add_u32 v24, 128, v0\nv_min_u32 v24, 143, v24\nv_cndmask_b32 v23, v22, v23, vcc")
    a(f"v_add_u32 v24, s{S_T0}, v24\nv_lshlrev_b32 v23, 3, v23\nv_add_u32 v22, 64, v22\nv_lshlrev_b32 v22, 3, v22\nv_lshlrev_b32 v24, 3, v24")
    a(f"buffer_load_dwordx2 v[32:33], v23, s[{SRD_D}:{SRD_D+3}], 0 offen sc1\nbuffer_load_dwordx2 v[34:35], v22, s[{SRD_D}:{SRD_D+3}], 0 offen sc1\nbuffer_load_dwordx2 v[36:37], v24, s[{SRD_D}:{SRD_D+3}], 0 offen sc1")
    a(f"{Le}:")
def jg_issue(a, q):
    jg_loads(a); q.push('jg', 3)
def jg_process(a, q):
    q.wait('jg')
    Lc = a.lab('gchk'); Lr = a.lab('grows'); Lok = a.lab('gok'); Le = a.lab('gdone'); Lt = a.lab('gretry')
    a(f"s_mov_b32 s83, 0\n{Lc}:\ns_cmp_eq_u32 s{S_W4}, 3\ns_cbranch_scc1 {Lr}")
    a(f"v_cmp_ne_u32 vcc, s{S_E}, v48\ns_cbranch_vccnz {Lt}")
    tree_sum(a, range(32, 48))
    a(f"s_lshl_b32 s{S_T0}, s{S_W4}, 8\ns_add_u32 s{S_T0}, s{S_T0}, {P1C}\nv_add_u32 v22, s{S_T0}, v30\nds_write_b32 v22, v32\ns_branch {Le}")
    a(f"{Lt}:\ns_add_u32 s83, s83, 1\ns_cmp_gt_u32 s83, 0x8000\ns_cbranch_scc1 {Le}")
    jg_loads(a)
    a(f"s_waitcnt vmcnt(0)\ns_branch {Lc}")
    a(f"{Lr}:\nv_cmp_ne_u32 vcc, s{S_E}, v33\ns_cbranch_vccnz {Lt}\nv_cmp_ne_u32 vcc, s{S_E}, v35\ns_cbranch_vccnz {Lt}\nv_cmp_ne_u32 vcc, s{S_E}, v37\ns_cbranch_vccnz {Lt}")
    for j in range(3):
        a(f"v_and_b32 v{40+2*j}, 0xffff0000, v{32+2*j}\nv_lshlrev_b32 v{41+2*j}, 16, v{32+2*j}")
    for j in range(3): a(f"v_rcp_f32 v{40+2*j}, v{40+2*j}")
    a(f"v_add_u32 v24, 128, v0\nv_min_u32 v24, 143, v24\nv_lshlrev_b32 v25, 2, v24\nv_lshlrev_b32 v24, 3, v24\nv_lshlrev_b32 v23, 3, v0")
    a(f"v_add_u32 v22, {P1C}, v30\nv_add_u32 v23, {P1C}, v23\nv_add_u32 v24, {P1C}, v24\nv_add_u32 v25, {P1C}, v25")
    a("ds_write_b64 v23, v[40:41] offset:768\nds_write_b64 v23, v[42:43] offset:1280\nds_write_b64 v24, v[44:45] offset:768")
    a("ds_write_b32 v22, v41 offset:1920\nds_write_b32 v22, v43 offset:2176\nds_write_b32 v25, v45 offset:1920")
    a("ds_write_b32 v22, v40 offset:2496\nds_write_b32 v22, v42 offset:2752\nds_write_b32 v25, v44 offset:2496")
    a(f"{Le}:\ns_waitcnt lgkmcnt(0)")

def p1x_fold(a, ph):
    acc = lambda n: ph.vacc + 4*n
    P = lambda r: f"v[{r}:{r+1}]"
    a(f"s_lshr_b32 s{S_T0}, s{S_W4}, 1\ns_and_b32 s{S_T1}, s{S_W4}, 1")
    a(f"s_lshl_b32 s{S_T2}, s{S_T0}, 9\ns_add_u32 s{S_T2}, s{S_T2}, {P1C + 768}\nv_and_b32 v6, 15, v0\nv_lshlrev_b32 v7, 3, v6\nv_add_u32 v7, s{S_T2}, v7")
    a(f"s_lshl_b32 s{S_T2}, s{S_T0}, 8\ns_add_u32 s{S_T2}, s{S_T2}, {P1C + 1920}\nv_and_b32 v8, 0x30, v0\nv_add_u32 v9, s{S_T2}, v8")
    a(f"s_lshl_b32 s{S_T2}, s{S_T1}, 7\ns_add_u32 s{S_T2}, s{S_T2}, {P1C}\nv_add_u32 v8, s{S_T2}, v8\nv_lshlrev_b32 v6, 2, v6\nv_add_u32 v6, s{S_T2}, v6")
    RM, CQ, CK, CV, MV, RV = 16, 28, 36, 44, 48, 68
    for i in range(5): a(f"ds_read_b64 {P(RM+2*i)}, v7 offset:{i*128}")
    for c in range(2): a(f"ds_read_b128 v[{CK+4*c}:{CK+4*c+3}], v8 offset:{256 + c*64}")
    for c in range(2): a(f"ds_read_b128 v[{CQ+4*c}:{CQ+4*c+3}], v8 offset:{c*64}")
    for c in range(2): a(f"ds_read_b32 v{CV+2*c}, v6 offset:{512 + c*64}")
    for i in range(5): a(f"ds_read_b128 v[{MV+4*i}:{MV+4*i+3}], v9 offset:{i*64}")
    a("s_waitcnt lgkmcnt(7)")
    for i in range(5): a(f"ds_read_b128 v[{RV+4*i}:{RV+4*i+3}], v9 offset:{576 + i*64}")
    for i in range(5):
        for c in range(2):
            for h in (0, 2): a(f"v_pk_fma_f32 {P(acc(i*2+c)+h)}, {P(RM+2*i)}, {P(CK+4*c+h)}, {P(acc(i*2+c)+h)} op_sel:[1,0,0] op_sel_hi:[1,1,1] neg_lo:[1,0,0] neg_hi:[1,0,0]")
    for i in range(1, 5):
        for c in range(2):
            for h in (0, 2): a(f"v_pk_fma_f32 {P(acc(20+(i-1)*2+c)+h)}, {P(RM+2*i)}, {P(CQ+4*c+h)}, {P(acc(20+(i-1)*2+c)+h)} op_sel:[1,0,0] op_sel_hi:[1,1,1] neg_lo:[1,0,0] neg_hi:[1,0,0]")
        a(f"v_mul_f32 v{239+i}, 0x3e8293ee, v{RM+2*i}")
    for i in range(5):
        for c in range(2):
            for h in (0, 2): a(f"v_pk_mul_f32 {P(acc(i*2+c)+h)}, {P(acc(i*2+c)+h)}, {P(RM+2*i)} op_sel_hi:[1,0]")
    a("s_waitcnt lgkmcnt(0)")
    for i in range(5):
        for c in range(2):
            for h in (0, 2): a(f"v_pk_fma_f32 {P(acc(10+i*2+c)+h)}, {P(MV+4*i+h)}, {P(CV+2*c)}, {P(acc(10+i*2+c)+h)} op_sel_hi:[1,0,1] neg_lo:[1,0,0] neg_hi:[1,0,0]")
    for i in range(5):
        for c in range(2):
            for h in (0, 2): a(f"v_pk_mul_f32 {P(acc(10+i*2+c)+h)}, {P(acc(10+i*2+c)+h)}, {P(RV+4*i+h)}")

def pf_chunk_setup(a, sk, scb):
    a(f"s_lshl_b32 s{S_T0}, s{sk}, 6\ns_lshl_b32 s{S_T1}, s{S_W4}, 4\ns_add_u32 s{S_T0}, s{S_T0}, s{S_T1}\ns_mul_i32 s{S_T0}, s{S_T0}, 7168\ns_mul_i32 s{S_T1}, s{scb}, 448\ns_add_u32 s{S_T0}, s{S_T0}, s{S_T1}")
    a(f"s_add_u32 s{S_PF}, s{S_W1}, s{S_T0}\ns_addc_u32 s{S_PF+1}, s{S_W1+1}, 0")
def pf_chunk_step(a, extra):
    a(f"s_waitcnt lgkmcnt({15 - 7 - extra})")
    for i in range(7): a(f"s_load_dword s64, s[{S_PF}:{S_PF+1}], {i*64}")
    for i in range(extra): a(f"s_load_dword s64, s[76:77], {i*64}")
    a(f"s_add_u32 s{S_PF}, s{S_PF}, 7168\ns_addc_u32 s{S_PF+1}, s{S_PF+1}, 0")
    if extra: a(f"s_add_u32 s76, s76, {extra*64}\ns_addc_u32 s77, s77, 0")
```

```python
import sys
from phases import *
import hazard
STAMP['on'] = '--stamp' in sys.argv
O = dict(kv.split('=') for kv in sys.argv[1:] if '=' in kv)
NAME = 'sequential_preLN__sliding_local_dilated__dense_activation_gelu__prompt_kernel'
LDS = 163840
P0_LDS = 160000
OPT = dict(early=1, pre=4, tail=4)
p1, p2, p3, p4 = make_p1x(), make_p2(), make_p3(), make_p4()
p2.NS = int(O.get('p2ns', 6))
for ph in (p2, p3, p4): ph.aflags = 'sc1'
a = Asm()
a('KSTART:')
if STAMP['on']: a("s_memrealtime s[94:95]")
prologue(a, 'L_done')
map_8x4(a)
a(f"s_lshl_b32 s61, s{S_RB}, 4\ns_add_u32 s61, s61, s{S_CB}")
a("s_waitcnt lgkmcnt(0)")
a(f"s_add_u32 s{SRD_F}, s{S_WS}, {WS_FL}\ns_addc_u32 s{SRD_F+1}, s{S_WS+1}, 0\ns_mov_b32 s{SRD_F+2}, {1 << 20}\ns_mov_b32 s{SRD_F+3}, 0x20000")
a(f"s_load_dword s{S_E}, s[{SRD_F}:{SRD_F+1}], 0")
if STAMP['on']: a("v_writelane_b32 v255, s94, 0")
a(f"s_cmp_ge_u32 s{S_WAVE}, 4\ns_cbranch_scc1 L_prod")
def drain():
    a("s_waitcnt vmcnt(0)\ns_barrier")
row_stats_issue(a, 61)
p1x_consumer_setup(a, p1)
a(f"s_waitcnt lgkmcnt(0)\ns_add_u32 s{S_E}, s{S_E}, 1")
row_stats_finish(a, 61)
stamp(a, 1)
def count_in():
    srd(a, SRD_D, S_DBG, 256)
    a(f"s_cmp_lg_u32 s{S_WAVE}, 0\ns_cbranch_scc1 L_nocnt\nv_mov_b32 v8, 0\nv_mov_b32 v9, 1\ns_mov_b64 exec, 1\nbuffer_atomic_add v9, v8, s[{SRD_D}:{SRD_D+3}], 0 offen sc1\ns_mov_b64 exec, -1\nL_nocnt:")
consumer_gemm(a, p1, OPT, after_first=count_in, final_bar=True, sbase=0)
stamp(a, 3)
p1x_fold(a, p1)
p1_epilogue(a, p1, 'sc1', fold=True)
stamp(a, 4)
publish(a, 1, FL_1, S_RB, S_CB)
map_4x8(a)
stamp(a, 5)
p2_consumer_setup(a, p2)
consumer_gemm(a, p2, dict(early=0, pre=0, tail=0), final_bar=True, sbase=4)
stamp(a, 7)
p2_epilogue(a, p2, 'sc1')
stamp(a, 8)
publish(a, 2, FL_2, S_RB, S_CB)
map_8x4(a)
stamp(a, 9)
p3_consumer_setup(a, p3)
consumer_gemm(a, p3, OPT, final_bar=True, sbase=8)
stamp(a, 11)
p3_epilogue(a, p3, 'sc1')
stamp(a, 12)
publish(a, 3, FL_3, S_RB, S_CB)
map_p4(a)
stamp(a, 13)
p4_consumer_setup(a, p4, res=False)
consumer_gemm(a, p4, dict(early=0, pre=2, tail=2), after_first=lambda: p4_res_loads(a, 'sc1'), final_bar=True, sbase=12)
stamp(a, 15)
p4_epilogue(a, p4, fval=f"s{S_E}", fbase=FL_X)
stamp(a, 16)
if STAMP['on']: a("s_waitcnt vmcnt(0)")
stamp(a, 17)
stamp_flush(a, 0, WS_TM)
a("s_endpgm")
a("L_prod:")
if int(O.get('pfcode', 0)): pf_code(a, 0, 5)
a(f"v_mov_b32 v28, {CNT_LDS}\nv_mov_b32 v32, 0\nv_mov_b32 v33, 0\nv_mov_b32 v34, 0\nv_mov_b32 v35, 0\nds_write_b128 v28, v[32:35]")
p1x_producer_setup(a, p1)
PF = int(O.get('pf', 1))
def pre_first():
    a(f"v_lshlrev_b32 v30, 2, v0\ns_waitcnt lgkmcnt(0)\ns_add_u32 s{S_E}, s{S_E}, 1")
    if PF:
        pf_setup(a, S_WO, 2048, 2048)
        a(f"s_mov_b32 s76, s{S_PF}\ns_mov_b32 s77, s{S_PF+1}")
        pf_chunk_setup(a, S_RB, S_CB)
    stamp(a, 1)
JQ = int(O.get('jq', 0)); JG = int(O.get('jg', 9))
jobs = {}
def add(s, f): jobs.setdefault(s, []).append(f)
if not int(O.get('nojq', 0)): add(JQ, lambda q: jq_issue(a, q)); add(JQ+2, lambda q: jq_process(a, q)); add(JQ+4, lambda q: jq_flag(a, q))
if not int(O.get('nojg', 0)): add(JG, lambda q: jg_issue(a, q)); add(JG+2, lambda q: jg_process(a, q))
if PF:
    for s in range(-1, 15):
        if s != JG + 1: add(s, lambda q: pf_chunk_step(a, 2))
if int(O.get('p1loop', 0)):
    pre_first()
    producer_gemm(a, p1)
    a("s_barrier")
else:
    if int(O.get('pstamp', 0)):
        for s in range(-1, 14): add(s, lambda q, s=s: stamp(a, 17 + s))
    producer_unrolled(a, p1, jobs, pre_first)
if PF: pf_chunk_step(a, 2)
stamp(a, 3)
a(f"s_mov_b32 s80, s{S_RB}\ns_mov_b32 s81, s{S_CB}")
map_4x8(a)
p2_producer_setup(a, p2)
def std_handoff(base, mask=0xffff, extra_off=None, pre=None, sb=0):
    def f():
        if pre: pre()
        stamp(a, sb+0)
        a(f"s_lshl_b32 s{S_FO}, s{S_RB}, 7\ns_add_u32 s{S_FO}, s{S_FO}, {base}")
        if extra_off: extra_off()
        stamp(a, sb+1)
        poll(a, 30, S_FO, mask)
        stamp(a, sb+2)
    return f
def colsum_job():
    if PF:
        pf_setup(a, S_W2, 7168, 7168); pf_step(a, 8)
    colsum_wave(a, 80, 81)
    a("s_waitcnt vmcnt(0)")
    a(f"s_lshl_b32 s82, s81, 8\ns_lshl_b32 s{S_T0}, s80, 4\ns_add_u32 s82, s82, s{S_T0}\ns_lshl_b32 s{S_T0}, s{S_W4}, 2\ns_add_u32 s82, s82, s{S_T0}\ns_add_u32 s82, s82, {FL_C}")
    flag_set(a, 82, only_wave=None)
producer_fused(a, p2, std_handoff(FL_1, pre=colsum_job, sb=4), preA=3)
stamp(a, 7)
map_8x4(a)
p3_producer_setup(a, p3)
def cs_ready():
    a(f"s_lshl_b32 s82, s{S_CB}, 8\ns_add_u32 s82, s82, {FL_C}")
    poll(a, 30, 82, 0xffffffffffffffff)
class Hex(int):
    def __format__(self, spec): return "-1"
def cs_ready():
    if PF: pf_step(a, 15)
    a(f"s_lshl_b32 s82, s{S_CB}, 8\ns_add_u32 s82, s82, {FL_C}")
    poll(a, 30, 82, Hex(0))
producer_fused(a, p3, std_handoff(FL_2, pre=cs_ready, sb=8), extras=lambda: p3_const_issue(a, 'sc1'), nextra=16, finish=lambda: (p3_const_finish(a), PF and pf_step(a, 9)), loop_hook=lambda: PF and pf_step(a, 8))
stamp(a, 11)
map_p4(a)
p4_producer_setup(a, p4)
producer_fused(a, p4, std_handoff(FL_3, mask=0xff, extra_off=lambda: a(f"s_lshl_b32 s{S_T1}, s{S_KH}, 5\ns_add_u32 s{S_FO}, s{S_FO}, s{S_T1}"), sb=12))
stamp(a, 15)
a(f"s_cmp_lg_u32 s2, 0\ns_cbranch_scc1 L_pend\ns_cmp_lg_u32 s{S_WAVE}, 4\ns_cbranch_scc1 L_pend")
srd(a, SRD_D, S_DBG, 256)
a(f"v_mov_b32 v28, 0\ns_mov_b64 exec, 1\ns_mov_b32 s{S_T0}, 0\nL_cnt:\nbuffer_load_dword v31, v28, s[{SRD_D}:{SRD_D+3}], 0 offen sc1\ns_add_u32 s{S_T0}, s{S_T0}, 1\ns_cmp_gt_u32 s{S_T0}, 0x20000\ns_cbranch_scc1 L_cntx")
a(f"s_waitcnt vmcnt(0)\nv_cmp_gt_u32 vcc, 0x100, v31\ns_cbranch_vccnz L_cnt\nL_cntx:\nv_mov_b32 v29, s{S_E}\nbuffer_store_dword v29, v28, s[{SRD_F}:{SRD_F+3}], 0 offen sc1\ns_mov_b64 exec, -1")
a("L_pend:")
stamp_flush(a, 0, WS_TM)
a("L_done:\ns_endpgm\nKEND:")

ref = open('sequential_preLN__sliding_local_dilated__dense_activation_gelu__prompt.s.ref').read().split('\n')
hdr = [l for l in ref if l.startswith(';') and '@launch' not in l and 'Override' not in l and 'grid=ceil' not in l]
lst = '--list' in sys.argv
out = hdr + [f"; @launch " + (f"kernel={NAME} " if lst else "") + f"grid=(256,1,1) block=(512,1,1) lds={LDS}"]
out.append('.amdgcn_target "amdgcn-amd-amdhsa--gfx950"\n.text')
out.append(f".globl {NAME}\n.p2align 8\n.type {NAME},@function\n{NAME}:\n{a.text()}")
out.append('.section .rodata,"a"')
out.append(kernel_desc(NAME))
txt = '\n'.join(out) + '\n'
for x in hazard.check(txt): sys.stderr.write("HAZARD line %d [%s] -> line %d [%s]: need %d have %d\n" % x)
print(txt)
```

```python
import math

class Asm:
    def __init__(self):
        self.l = []; self.nlab = 0
    def __call__(self, s):
        for x in s.split('\n'):
            x = x.strip()
            if x: self.l.append(('' if x.endswith(':') else '    ') + x)
    def lab(self, base='L'):
        self.nlab += 1
        return f"{base}_{self.nlab}"
    def c(self, s): self.l.append('    ; ' + s)
    def text(self): return '\n'.join(self.l)

def vr(b, n=1): return f"v{b}" if n == 1 else f"v[{b}:{b+n-1}]"
def sr(b, n=1): return f"s{b}" if n == 1 else f"s[{b}:{b+n-1}]"

S_X, S_WQKV, S_WO, S_BX, S_W1, S_B1, S_W2, S_B2, S_OUT, S_DBG, S_WS = 4, 6, 8, 10, 12, 14, 16, 18, 20, 22, 24
S_WAVE = 26
S_W4 = 27
SRD_A, SRD_B, SRD_C, SRD_D = 28, 32, 36, 40
S_RB, S_CB, S_KH, S_ROT = 44, 45, 46, 47
S_T, S_KA, S_KB, S_LDS, S_CNT = 48, 49, 50, 51, 52
S_T0, S_T1, S_T2, S_T3 = 53, 54, 55, 56
S_TIME = 60
WS_BYTES = 268435456

def srd(a, dst, ptr, nbytes, off=0):
    if off:
        a(f"s_add_u32 s{dst}, s{ptr}, {off}\ns_addc_u32 s{dst+1}, s{ptr+1}, 0")
    else:
        a(f"s_mov_b32 s{dst}, s{ptr}\ns_mov_b32 s{dst+1}, s{ptr+1}")
    a(f"s_mov_b32 s{dst+2}, {nbytes}\ns_mov_b32 s{dst+3}, 0x20000")

def prologue(a, done):
    a(f"s_cmp_ge_u32 s2, 256\ns_cbranch_scc1 {done}")
    a("s_load_dwordx16 s[4:19], s[0:1], 0\ns_load_dwordx4 s[20:23], s[0:1], 64\ns_load_dwordx2 s[24:25], s[0:1], 80")
    a(f"v_lshrrev_b32 v1, 6, v0\nv_and_b32 v0, 63, v0\ns_nop 0\nv_readfirstlane_b32 s{S_WAVE}, v1")
    a(f"s_and_b32 s{S_W4}, s{S_WAVE}, 3")

def slice_of_t(a, S, lead):
    if not lead:
        a(f"s_mov_b32 s{S_T0}, s{S_T}")
        return
    a(f"s_sub_u32 s{S_T1}, s{S_T}, s{S_ROT}\ns_and_b32 s{S_T1}, s{S_T1}, 3")
    a(f"s_add_u32 s{S_T2}, s{S_T}, 1\ns_min_u32 s{S_T2}, s{S_T2}, {S-1}")
    a(f"s_cmp_eq_u32 s{S_T1}, 3\ns_cselect_b32 s{S_T0}, s{S_T2}, s{S_T}")
    a(f"s_max_u32 s{S_T2}, s{S_T}, 1\ns_sub_u32 s{S_T2}, s{S_T2}, 1")
    a(f"s_cmp_eq_u32 s{S_T1}, 0\ns_cselect_b32 s{S_T0}, s{S_T2}, s{S_T0}")

class Phase:
    pass

def emit_stage_loads(a, ph, which='AB', throttle=None, fill=None):
    fill = list(fill or []); npc = len([p for p in ph.pieces if p[0] in which]); per = -(-len(fill) // npc)
    for (kind, voff, sldsw, ldsoff, imm, cond) in ph.pieces:
        if kind not in which: continue
        skip = None
        if cond is not None:
            skip = a.lab('skip')
            a(f"s_cmp_ge_u32 s{S_W4}, {cond}\ns_cbranch_scc1 {skip}")
        if ldsoff is not None:
            a(f"s_add_u32 s{S_T3}, s{S_LDS}, s{sldsw}\ns_add_u32 m0, s{S_T3}, {ldsoff}\ns_nop 0")
        if throttle is not None: a(f"s_waitcnt vmcnt({throttle})")
        srdn, sk = (SRD_A, S_KA) if kind == 'A' else (SRD_B, S_KB)
        fl = ph.aflags if kind == 'A' else ph.bflags
        a(f"buffer_load_dwordx4 v{voff}, s[{srdn}:{srdn+3}], s{sk} offen" + (f" offset:{imm}" if imm else "") + (" " + fl if fl else "") + " lds")
        if skip: a(f"{skip}:")
        for x in fill[:per]: a(x)
        fill = fill[per:]

def set_stage_k(a, ph):
    slice_of_t(a, ph.S, ph.lead)
    a(f"s_mul_i32 s{S_KA}, s{S_T0}, {ph.ka_step}\ns_mul_i32 s{S_KB}, s{S_T0}, {ph.kb_step}")

def next_slot(a, ph):
    a(f"s_add_u32 s{S_LDS}, s{S_LDS}, {ph.stage}\ns_cmp_ge_u32 s{S_LDS}, {ph.lds0 + ph.NS*ph.stage}\ns_cselect_b32 s{S_LDS}, {ph.lds0}, s{S_LDS}")

def producer_gemm(a, ph, after_first=None, opt={}):
    n = ph.nmin
    bar = "" if opt.get('nobar') else "s_barrier"
    a.c(f"--- producer {ph.name}: prologue")
    a(f"s_mov_b32 s{S_T}, 0\ns_mov_b32 s{S_LDS}, {ph.lds0}")
    def stage():
        set_stage_k(a, ph)
        emit_stage_loads(a, ph)
        next_slot(a, ph)
        a(f"s_add_u32 s{S_T}, s{S_T}, 1")
    pre = ph.NS - 1
    for s in range(pre): stage()
    a(f"s_waitcnt vmcnt({min(63, (pre-1)*n)})\ns_barrier")
    stage()
    if after_first: after_first()
    L = a.lab('ploop')
    a(f"{L}:")
    a(f"s_waitcnt vmcnt({min(63, (ph.NS-2)*n)})\n{bar}")
    stage()
    a(f"s_cmp_lt_u32 s{S_T}, {ph.S}\ns_cbranch_scc1 {L}")
    for s in range(ph.S - ph.NS, ph.S - 1):
        left = (ph.S - 1) - (s + 1)
        a(f"s_waitcnt vmcnt({min(63, left*n)})\n{bar}")

def producer_fused(a, ph, handoff, extras=None, nextra=0, finish=None, preA=2, loop_hook=None, thr=6, mid=None, tail=None):
    NS, S = ph.NS, ph.S
    nA = sum(1 for p in ph.pieces if p[0] == 'A' and p[5] is None)
    nB = sum(1 for p in ph.pieces if p[0] == 'B' and p[5] is None)
    n = nA + nB
    def issue(t, which, throttle=None):
        a(f"s_mov_b32 s{S_T}, {t}\ns_mov_b32 s{S_LDS}, {ph.lds0 + (t % NS)*ph.stage}")
        set_stage_k(a, ph)
        emit_stage_loads(a, ph, which, throttle)
    a.c(f"--- producer {ph.name}: B prefill")
    for t in range(NS):
        issue(t, 'B', thr)
        if t == 0 and mid: mid()
    handoff()
    q = []
    def wait(t):
        last = max(i for i, x in enumerate(q) if x[0] == t)
        a(f"s_waitcnt vmcnt({min(63, sum(x[1] for x in q[last+1:]))})")
    for t in range(preA):
        issue(t, 'A'); q.append((t, nA))
    wait(0); a("s_barrier")
    nxtA = preA
    s = 0
    while True:
        for _ in range(2):
            if nxtA < NS:
                issue(nxtA, 'A'); q.append((nxtA, nA)); nxtA += 1
        if extras and nxtA >= NS:
            extras(); q.append((-1, nextra)); extras = None
        if s >= NS - 1 and nxtA >= NS: break
        wait(s + 1); a("s_barrier")
        issue(s + NS, 'AB'); q.append((s + NS, n))
        if loop_hook: loop_hook()
        s += 1
    t0 = s + NS
    a(f"s_mov_b32 s{S_T}, {t0}\ns_mov_b32 s{S_LDS}, {ph.lds0 + (t0 % NS)*ph.stage}")
    first = True
    if finish:
        a(f"s_waitcnt vmcnt({min(63, (NS-2)*n)})\ns_barrier")
        set_stage_k(a, ph); emit_stage_loads(a, ph); next_slot(a, ph)
        a(f"s_add_u32 s{S_T}, s{S_T}, 1")
        finish()
    L = a.lab('ploop')
    a(f"{L}:")
    a(f"s_waitcnt vmcnt({min(63, (NS-2)*n)})\ns_barrier")
    set_stage_k(a, ph); emit_stage_loads(a, ph); next_slot(a, ph)
    if loop_hook: loop_hook()
    a(f"s_add_u32 s{S_T}, s{S_T}, 1\ns_cmp_lt_u32 s{S_T}, {S}\ns_cbranch_scc1 {L}")
    ex = 0
    if tail: ex = tail[0]()
    for s in range(S - NS, S - 1):
        left = (S - 1) - (s + 1)
        a(f"s_waitcnt vmcnt({min(63, left*n + ex)})\ns_barrier")
        k = s - (S - NS) + 1
        if tail and k < len(tail) and tail[k]: ex += tail[k]() or 0
    a("s_barrier")

class Q:
    def __init__(self, a): self.a = a; self.q = []
    def push(self, tag, n): self.q.append((tag, n))
    def wait(self, tag):
        last = max(i for i, x in enumerate(self.q) if x[0] == tag)
        self.a(f"s_waitcnt vmcnt({min(63, sum(x[1] for x in self.q[last+1:]))})")

def producer_unrolled(a, ph, jobs, pre_first=None, fills={}):
    NS, S = ph.NS, ph.S
    n = sum(1 for p in ph.pieces if p[5] is None)
    q = Q(a)
    def issue(t, fill=None):
        a(f"s_mov_b32 s{S_T}, {t}\ns_mov_b32 s{S_LDS}, {ph.lds0 + (t % NS)*ph.stage}")
        set_stage_k(a, ph); emit_stage_loads(a, ph, fill=fill); q.push(t, n)
    for t in range(NS - 1): issue(t)
    if pre_first: pre_first()
    q.wait(0); a("s_barrier")
    issue(NS - 1)
    for f in jobs.get(-1, []): f(q)
    for s in range(S - 1):
        q.wait(s + 1); a("s_barrier")
        if s + NS < S: issue(s + NS, fills.get(s))
        else:
            for x in fills.get(s, []): a(x)
        for f in jobs.get(s, []): f(q)
    a("s_barrier")

def reads(a, ph, st, kb):
    out = []
    A = []
    for i, e in enumerate(ph.afr):
        d = ph.va[st] + 4*i
        if len(e) == 3: A.append(f"ds_read_b128 {vr(d,4)}, v{e[kb]} offset:{e[2]}")
        else: A.append(f"ds_read_b128 {vr(d,4)}, v{e[0]} offset:{e[1] + kb*ph.a_kb}")
    B = []
    for i, (breg, off, half, kbs) in enumerate(ph.bfr):
        d = ph.vb[st] + 4*i
        B.append(f"ds_read_b64_tr_b16 {vr(d,2)}, v{breg} offset:{off + kb*kbs}")
        B.append(f"ds_read_b64_tr_b16 {vr(d+2,2)}, v{breg} offset:{off + kb*kbs + half}")
    return A + B

def mfmas(ph, st, first=False):
    out = []
    for (acc, ai, bi, swap) in ph.mm:
        A = vr(ph.va[st] + 4*ai, 4); B = vr(ph.vb[st] + 4*bi, 4)
        D = vr(ph.vacc + 4*acc, 4)
        C = "0" if first else D
        x, y = (B, A) if swap else (A, B)
        out.append(f"v_mfma_f32_16x16x32_bf16 {D}, {x}, {y}, {C}")
    return out

def interleave(a, M, R, lead=0, extra=None):
    R = list(R)
    per = max(1, math.ceil(len(R) / max(1, len(M) - lead - ph_tail(M, R))))
    for i, m in enumerate(M):
        a(m)
        if i >= lead:
            for _ in range(per):
                if R: a(R.pop(0))
    for r in R: a(r)

def ph_tail(M, R):
    return min(6, max(0, len(M) - len(R)))

def addr_update(a, ph):
    out = []
    out.append(f"s_add_u32 s{S_LDS}, s{S_LDS}, {ph.stage}")
    out.append(f"s_cmp_ge_u32 s{S_LDS}, {ph.NS*ph.stage}")
    out.append(f"s_cselect_b32 s{S_LDS}, 0, s{S_LDS}")
    out.append(f"s_cselect_b32 s{S_T0}, {(-(ph.NS-1)*ph.stage) & 0xffffffff:#x}, {ph.stage}" if False else f"s_cselect_b32 s{S_T0}, s{S_T1}, s{S_T2}")
    for cur in ph.addr_regs:
        out.append(f"v_add_u32 v{cur}, s{S_T0}, v{cur}")
    return out

def spread(a, M, F, start=0, end=None):
    end = len(M) if end is None else end
    n = max(1, end - start)
    F = list(F); k = 0
    for i, m in enumerate(M):
        a(m)
        if start <= i < end:
            want = ((i - start + 1) * len(F) + n - 1) // n
            while k < want: a(F[k]); k += 1
    while k < len(F): a(F[k]); k += 1

def merge(A, B):
    out = []; i = j = 0
    while i < len(A) or j < len(B):
        if j >= len(B) or (i < len(A) and i*len(B) <= j*len(A)): out.append(A[i]); i += 1
        else: out.append(B[j]); j += 1
    return out

def consumer_gemm(a, ph, opt={}, after_first=None, final_bar=False, sbase=0):
    a.c(f"--- consumer {ph.name}")
    bar = "" if opt.get('nobar') else "s_barrier"
    tail = opt.get('tail', 6)
    if opt.get('prio'): a(f"s_setprio {opt['prio']}")
    a(f"s_mov_b32 s{S_LDS}, 0\ns_mov_b32 s{S_CNT}, {ph.S - 2}")
    a(f"s_mov_b32 s{S_T1}, {(-(ph.NS-1)*ph.stage) & 0xffffffff:#x}\ns_mov_b32 s{S_T2}, {ph.stage}")
    a("s_barrier")
    if opt.get('stamp'): a("s_memtime s[68:69]")
    stamp(a, sbase + 2)
    for r in reads(a, ph, 0, 0): a(r)
    if after_first: after_first()
    a("s_waitcnt lgkmcnt(0)")
    nm = len(ph.mm)
    xf = opt.get('xf') or (lambda st: [])
    upd = addr_update(a, ph)
    early = opt.get('early', False)
    def half_a(first):
        M = mfmas(ph, 0, first=first)
        R = merge(reads(a, ph, 1, 1), xf(0))
        if early:
            e = max(1, nm - tail - 4)
            spread(a, M[:e], R)
            spread(a, M[e:], upd, 0, max(1, len(M[e:]) - 1))
        else:
            spread(a, M, R, 0, max(1, nm - tail))
    half_a(True)
    L = a.lab('cloop')
    if opt.get('align'): a(f".p2align {opt['align']}")
    a(f"{L}:")
    pre = opt.get('pre', 0)
    a("s_waitcnt lgkmcnt(0)")
    M = mfmas(ph, 1)
    for m in M[:pre]: a(m)
    a(bar)
    F = merge(([] if early else upd) + reads(a, ph, 0, 0), xf(1))
    spread(a, M[pre:], F, 0, max(1, nm - pre - tail))
    a(f"s_waitcnt lgkmcnt(0)")
    half_a(False)
    a(f"s_sub_u32 s{S_CNT}, s{S_CNT}, 1")
    a(f"s_cbranch_scc0 {L}")
    a("s_waitcnt lgkmcnt(0)")
    M = mfmas(ph, 1)
    for m in M[:pre]: a(m)
    if final_bar: a("s_barrier")
    spread(a, M[pre:], xf(1))

STAMP = {'on': False}
def stamp(a, i):
    if STAMP['on']:
        a(f"s_memrealtime s[92:93]\ns_waitcnt lgkmcnt(0)\nv_writelane_b32 v255, s92, {i}\ns_memtime s[92:93]\ns_waitcnt lgkmcnt(0)\nv_writelane_b32 v255, s92, {32+i}")
def stamp_flush(a, k, ws_tm):
    if STAMP['on']:
        srd(a, SRD_D, S_WS, 4 << 20, ws_tm)
        a(f"s_mov_b64 exec, -1\ns_lshl_b32 s{S_T0}, s2, 11\ns_lshl_b32 s{S_T1}, s{S_WAVE}, 8\ns_add_u32 s{S_T0}, s{S_T0}, s{S_T1}\ns_add_u32 s{S_T0}, s{S_T0}, {k*524288}")
        a(f"v_lshlrev_b32 v254, 2, v0\nbuffer_store_dword v255, v254, s[{SRD_D}:{SRD_D+3}], s{S_T0} offen")

def kernel_desc(name, vg=256, sg=102):
    return f""".p2align 6
.amdhsa_kernel {name}
  .amdhsa_next_free_vgpr {vg}
  .amdhsa_next_free_sgpr {sg}
  .amdhsa_accum_offset {(vg+3)//4*4}
  .amdhsa_group_segment_fixed_size 0
  .amdhsa_kernarg_size 88
  .amdhsa_user_sgpr_count 2
  .amdhsa_user_sgpr_kernarg_segment_ptr 1
  .amdhsa_system_sgpr_workgroup_id_x 1
  .amdhsa_float_denorm_mode_32 3
.end_amdhsa_kernel"""
```

```python
from gcore import *

import os
WS_BASE = int(os.environ.get('WSB', 0)) << 20
WS_XN = WS_BASE + 0
WS_O  = WS_BASE + (4 << 20)
WS_H  = WS_BASE + (8 << 20)
WS_G  = WS_BASE + (12 << 20)
WS_ST = WS_BASE + (28 << 20)
WS_CS = WS_BASE + (29 << 20)
WS_PX = WS_BASE + (32 << 20)
WS_FL = WS_BASE + (48 << 20)
WS_TM = 64 << 20

def map_8x4(a):
    a(f"s_and_b32 s{S_T0}, s2, 1\ns_lshl_b32 s{S_T0}, s{S_T0}, 3\ns_lshr_b32 s{S_T1}, s2, 3\ns_and_b32 s{S_T2}, s{S_T1}, 7\ns_add_u32 s{S_RB}, s{S_T0}, s{S_T2}")
    a(f"s_and_b32 s{S_T0}, s2, 7\ns_lshr_b32 s{S_T0}, s{S_T0}, 1\ns_lshl_b32 s{S_T0}, s{S_T0}, 2\ns_lshr_b32 s{S_T1}, s2, 6\ns_add_u32 s{S_CB}, s{S_T0}, s{S_T1}")
    a(f"s_add_u32 s{S_ROT}, s{S_RB}, s{S_CB}\ns_and_b32 s{S_ROT}, s{S_ROT}, 3")

def tr_lane_part(a, dst, t0, t1, pitch, jreg=None, j=0):
    a(f"v_lshrrev_b32 v{t0}, 2, v0")
    if pitch == 128:
        a(f"v_bfe_u32 v{t1}, v0, 3, 2")
    else:
        a(f"v_bfe_u32 v{t1}, v0, 4, 1")
    if jreg is not None: a(f"v_xor_b32 v{t1}, s{jreg}, v{t1}")
    else: a(f"v_xor_b32 v{t1}, {j}, v{t1}")
    a(f"v_lshlrev_b32 v{t1}, 5, v{t1}")
    a(f"v_lshlrev_b32 v{t0}, {int(math.log2(pitch))}, v{t0}")
    a(f"v_add_u32 v{dst}, v{t0}, v{t1}")
    a(f"v_and_b32 v{t0}, 3, v0\nv_lshlrev_b32 v{t0}, 3, v{t0}\nv_add_u32 v{dst}, v{dst}, v{t0}")

def dma_b_lane(a, dst, t0, t1, ldb, width):
    if width == 128:
        a(f"v_lshrrev_b32 v{t0}, 3, v0\nv_bfe_u32 v{t1}, v0, 4, 2\nv_lshlrev_b32 v{t1}, 1, v{t1}\nv_and_b32 v{dst}, 7, v0")
    else:
        a(f"v_lshrrev_b32 v{t0}, 2, v0\nv_bfe_u32 v{t1}, v0, 4, 1\nv_lshlrev_b32 v{t1}, 1, v{t1}\nv_and_b32 v{dst}, 3, v0")
    a(f"v_xor_b32 v{dst}, v{dst}, v{t1}\nv_lshlrev_b32 v{dst}, 4, v{dst}")
    a(f"v_mul_u32_u24 v{t0}, {ldb}, v{t0}\nv_add_u32 v{dst}, v{dst}, v{t0}")

S_LA, S_LB, S_LH = 57, 58, 59

def make_p3(lead=True, NS=3):
    ph = Phase(); ph.name = 'P3'; ph.S = 16; ph.NS = NS; ph.stage = 45056; ph.lds0 = 0; ph.lead = lead
    ph.ka_step = 2048; ph.kb_step = 64*7168; ph.aflags = ''; ph.bflags = ''
    ph.nmin = 11
    ph.pieces = []
    for i in range(2):
        ph.pieces.append(('A', 10+i, S_LA, i*2048, 0, None))
        ph.pieces.append(('A', 10+i, S_LA, None, 1024, None))
    for t in range(3):
        for i in range(2):
            ph.pieces.append(('B', 12 + t*2 + i, S_LB, 16384 + t*8192 + i*1024, 0, None))
    ph.pieces.append(('B', 18, S_LH, 40960, 0, None))
    ph.addr_regs = list(range(2, 10))
    ph.afr = [(2, 0), (2, 2048), (3, 0), (3, 2048)]
    ph.a_kb = 1024
    ph.bfr = [(4 + (c & 3), (c >> 2)*8192, 2048, 4096) for c in range(6)] + [(8, 0, 1024, 2048), (9, 0, 1024, 2048)]
    ph.va = [16, 32]; ph.vb = [48, 80]; ph.vacc = 112
    ph.mm = [(i*6 + c, i, c, True) for i in range(4) for c in range(6)] + [(24 + i*2 + c, i, 6 + c, True) for i in range(2) for c in range(2)]
    return ph

def p3_producer_setup(a, ph):
    srd(a, SRD_A, S_WS, 4 << 20, WS_H)
    srd(a, SRD_B, S_W1, 1024*3584*2)
    a(f"s_lshl_b32 s{S_LA}, s{S_W4}, 12\ns_lshl_b32 s{S_LB}, s{S_W4}, 11\ns_lshl_b32 s{S_LH}, s{S_W4}, 10")
    a(f"s_lshl_b32 s{S_T0}, s{S_RB}, 3\ns_lshl_b32 s{S_T1}, s{S_W4}, 1\ns_add_u32 s{S_T0}, s{S_T0}, s{S_T1}\ns_lshl_b32 s{S_T0}, s{S_T0}, 15")
    a(f"v_lshlrev_b32 v10, 4, v0\nv_add_u32 v10, s{S_T0}, v10\nv_add_u32 v11, 0x8000, v10")
    a(f"s_mul_i32 s{S_T0}, s{S_CB}, 448\ns_and_b32 s{S_T1}, s{S_CB}, 1\ns_lshl_b32 s{S_T2}, s{S_T1}, 6\ns_add_u32 s{S_T2}, s{S_T2}, s{S_T0}")
    a(f"s_cmp_eq_u32 s{S_T1}, 0\ns_cselect_b32 s{S_T1}, 384, 0\ns_add_u32 s{S_T1}, s{S_T1}, s{S_T0}")
    a(f"s_mul_i32 s{S_T0}, s{S_W4}, {16*7168}\ns_add_u32 s{S_T2}, s{S_T2}, s{S_T0}\ns_add_u32 s{S_T1}, s{S_T1}, s{S_T0}")
    dma_b_lane(a, 12, 20, 21, 7168, 128)
    a(f"v_add_u32 v12, s{S_T2}, v12")
    for t in range(3):
        for i in range(2):
            if t or i: a(f"v_add_u32 v{12+t*2+i}, {t*128 + i*8*7168}, v12")
    dma_b_lane(a, 18, 20, 21, 7168, 64)
    a(f"v_add_u32 v18, s{S_T1}, v18")

def p3_consumer_setup(a, ph):
    a(f"s_lshr_b32 s{S_T0}, s{S_W4}, 1\ns_and_b32 s{S_T1}, s{S_W4}, 1")
    a(f"s_lshl_b32 s{S_T2}, s{S_T0}, 13\ns_lshl_b32 s{S_T3}, s{S_T1}, 12\ns_add_u32 s{S_T3}, s{S_T3}, s{S_T2}")
    if ph.lds0: a(f"s_add_u32 s{S_T3}, s{S_T3}, {ph.lds0}")
    a(f"v_lshlrev_b32 v2, 4, v0\nv_add_u32 v2, s{S_T3}, v2\nv_xor_b32 v3, 0x1000, v2" if ph.lds0 % 8192 == 0 else "ERR")
    for k in range(4):
        a(f"s_lshl_b32 s{S_T2}, s{S_T1}, 1\ns_add_u32 s{S_T2}, s{S_T2}, {k}\ns_and_b32 s{S_T2}, s{S_T2}, 3")
        tr_lane_part(a, 4+k, 10, 11, 128, jreg=S_T2)
        a(f"s_mul_i32 s{S_T2}, s{S_T1}, {8192*(2 if k >= 2 else 1)}\ns_add_u32 s{S_T2}, s{S_T2}, {16384 + ph.lds0}\nv_add_u32 v{4+k}, s{S_T2}, v{4+k}")
    for j in range(2):
        tr_lane_part(a, 8+j, 10, 11, 64, j=j)
        a(f"v_add_u32 v{8+j}, {40960 + ph.lds0}, v{8+j}")

def xor16_32(a, v, t, op):
    a(f"v_mov_b32 v{t}, v{v}\ns_nop 1\nv_permlane16_swap_b32 v{t}, v{v}\ns_nop 0\n{op} v{v}, v{t}, v{v}")
    a(f"v_mov_b32 v{t}, v{v}\ns_nop 1\nv_permlane32_swap_b32 v{t}, v{v}\ns_nop 0\n{op} v{v}, v{t}, v{v}")

def xor16_32_multi(a, vs, ts, op):
    n = len(vs)
    for perm in ('v_permlane16_swap_b32', 'v_permlane32_swap_b32'):
        for v, t in zip(vs, ts): a(f"v_mov_b32 v{t}, v{v}")
        if n < 3: a(f"s_nop {2-n}")
        for v, t in zip(vs, ts): a(f"{perm} v{t}, v{v}")
        for v, t in zip(vs, ts): a(f"{op} v{v}, v{t}, v{v}")

def rbf(a, v):
    a(f"v_cvt_pk_bf16_f32 v{v}, v{v}, v{v}\nv_and_b32 v{v}, 0xffff0000, v{v}")

def ln_scale(a, vmean, vvar, t):
    rbf(a, vmean)
    a(f"v_max_f32 v{vvar}, 0, v{vvar}")
    rbf(a, vvar)
    a(f"v_add_f32 v{vvar}, 0x3727c5ac, v{vvar}")
    rbf(a, vvar)
    a(f"v_sqrt_f32 v{vvar}, v{vvar}\ns_nop 0")
    rbf(a, vvar)
    a(f"v_rcp_f32 v{vvar}, v{vvar}\ns_nop 0")

def tree_sum(a, regs, op="v_add_f32"):
    regs = list(regs)
    while len(regs) > 1:
        nxt = []
        for i in range(0, len(regs) - 1, 2):
            a(f"{op} v{regs[i]}, v{regs[i]}, v{regs[i+1]}"); nxt.append(regs[i])
        if len(regs) % 2: nxt.append(regs[-1])
        regs = nxt
    return regs[0]

def p0_ln(a, sf='', sid=2, lds0=0):
    srd(a, SRD_A, S_X, 2048*1024*2)
    srd(a, SRD_C, S_WS, 4 << 20, WS_XN)
    a(f"v_and_b32 v1, 7, v0\nv_lshlrev_b32 v2, 11, v1\nv_bfe_u32 v3, v0, 5, 1\nv_lshlrev_b32 v3, 6, v3\nv_add_u32 v2, v2, v3")
    a(f"v_bfe_u32 v4, v0, 3, 2\nv_lshlrev_b32 v3, 3, v4\nv_add_u32 v2, v2, v3\ns_lshl_b32 s{S_T0}, s{S_W4}, 9\nv_add_u32 v2, s{S_T0}, v2")
    a(f"s_lshl_b32 s{S_T1}, s{sid}, 14")
    for j in range(4):
        a(f"buffer_load_dwordx2 v[{16+4*j}:{17+4*j}], v2, s[{SRD_A}:{SRD_A+3}], s{S_T1} offen offset:{j*128}")
        a(f"buffer_load_dwordx2 v[{18+4*j}:{19+4*j}], v2, s[{SRD_A}:{SRD_A+3}], s{S_T1} offen offset:{j*128+32}")
    a(f"v_bfe_u32 v3, v0, 5, 1\nv_lshlrev_b32 v3, 10, v3\nv_lshlrev_b32 v4, 8, v4\nv_add_u32 v3, v3, v4\nv_lshlrev_b32 v4, 4, v1\nv_add_u32 v3, v3, v4")
    a(f"s_and_b32 s{S_T2}, s{sid}, 1\ns_lshl_b32 s{S_T2}, s{S_T2}, 7\ns_lshl_b32 s{S_T0}, s{S_W4}, 13\ns_add_u32 s{S_T2}, s{S_T2}, s{S_T0}\nv_add_u32 v3, s{S_T2}, v3")
    a(f"s_lshr_b32 s{S_T2}, s{sid}, 1\ns_lshl_b32 s{S_T2}, s{S_T2}, 15")
    a(f"v_lshlrev_b32 v5, 4, v1\nv_add_u32 v5, {lds0}, v5\ns_lshl_b32 s{S_T0}, s{S_W4}, 2\nv_add_u32 v6, s{S_T0}, v5")
    a("s_waitcnt vmcnt(0)")
    for k in range(16):
        a(f"v_lshlrev_b32 v{32+2*k}, 16, v{16+k}\nv_and_b32 v{33+2*k}, 0xffff0000, v{16+k}")
    for k in range(16): a(f"v_add_f32 v{64+k}, v{32+2*k}, v{33+2*k}")
    tree_sum(a, range(64, 80))
    def wg_reduce(off):
        a("s_nop 1\nv_add_f32_dpp v64, v64, v64 row_ror:8 row_mask:0xf bank_mask:0xf")
        xor16_32(a, 64, 65, "v_add_f32")
        a(f"ds_write_b32 v6, v64 offset:{off}\ns_waitcnt lgkmcnt(0)\ns_barrier\nds_read_b128 v[68:71], v5 offset:{off}\ns_waitcnt lgkmcnt(0)")
        a("v_add_f32 v68, v68, v69\nv_add_f32 v70, v70, v71\nv_add_f32 v68, v68, v70\nv_mul_f32 v68, 0x3a800000, v68")
    wg_reduce(0)
    a("v_mov_b32 v7, v68")
    for k in range(16):
        a(f"v_sub_f32 v80, v{32+2*k}, v7\nv_sub_f32 v81, v{33+2*k}, v7\nv_mul_f32 v{64+k}, v80, v80\nv_fmac_f32 v{64+k}, v81, v81")
    tree_sum(a, range(64, 80))
    wg_reduce(128)
    a("v_mov_b32 v8, v68")
    ln_scale(a, 7, 8, 9)
    for k in range(16):
        a(f"v_sub_f32 v80, v{32+2*k}, v7\nv_sub_f32 v81, v{33+2*k}, v7\nv_cvt_pk_bf16_f32 v82, v80, v81")
        a(f"v_lshlrev_b32 v80, 16, v82\nv_and_b32 v81, 0xffff0000, v82\nv_mul_f32 v80, v80, v8\nv_mul_f32 v81, v81, v8\nv_cvt_pk_bf16_f32 v{16+k}, v80, v81")
    for j in range(4):
        if j == 2: a(f"s_add_u32 s{S_T2}, s{S_T2}, 4096")
        a(f"buffer_store_dwordx4 v[{16+4*j}:{19+4*j}], v3, s[{SRD_C}:{SRD_C+3}], s{S_T2} offen offset:{(j&1)*2048} {sf}")

def p0_colsum(a, lds0, nbar_extra, sf=''):
    srd(a, SRD_B, S_W1, 1024*3584*2)
    srd(a, SRD_D, S_WS, 1 << 20, WS_CS)
    a("v_cmp_le_u32 vcc, 28, v0\nv_subrev_u32 v2, 28, v0\ns_nop 0\nv_cndmask_b32 v2, v0, v2, vcc\nv_cndmask_b32 v3, 0, 1, vcc")
    a(f"v_mul_u32_u24 v4, 7168, v3\nv_lshlrev_b32 v5, 4, v2\nv_add_u32 v4, v4, v5")
    a(f"s_lshr_b32 s{S_T0}, s2, 4\ns_lshl_b32 s{S_T0}, s{S_T0}, 6\ns_lshl_b32 s{S_T1}, s{S_W4}, 4\ns_add_u32 s{S_T0}, s{S_T0}, s{S_T1}\ns_mul_i32 s{S_T0}, s{S_T0}, 7168")
    a(f"s_and_b32 s{S_T1}, s2, 15\ns_mul_i32 s{S_T2}, s{S_T1}, 448\ns_add_u32 s{S_T0}, s{S_T0}, s{S_T2}")
    a("s_mov_b64 exec, 0x00ffffffffffffff" if False else "s_mov_b32 exec_hi, 0x00ffffff")
    for j in range(8):
        a(f"s_add_u32 s{S_T3}, s{S_T0}, {j*2*7168}\nbuffer_load_dwordx4 v[{16+4*j}:{19+4*j}], v4, s[{SRD_B}:{SRD_B+3}], s{S_T3} offen")
    a(f"s_lshl_b32 s{S_T3}, s{S_W4}, 1\nv_add_u32 v6, s{S_T3}, v3\nv_mul_u32_u24 v6, 896, v6\nv_lshlrev_b32 v5, 5, v2\nv_add_u32 v6, v6, v5")
    for j in range(8):
        a(f"s_waitcnt vmcnt({7-j})")
        for k in range(4):
            s = 16 + 4*j + k
            if j == 0:
                a(f"v_lshlrev_b32 v{48+2*k}, 16, v{s}\nv_and_b32 v{49+2*k}, 0xffff0000, v{s}")
            else:
                a(f"v_lshlrev_b32 v56, 16, v{s}\nv_and_b32 v57, 0xffff0000, v{s}\nv_add_f32 v{48+2*k}, v{48+2*k}, v56\nv_add_f32 v{49+2*k}, v{49+2*k}, v57")
    a(f"ds_write_b128 v6, v[48:51] offset:{lds0}\nds_write_b128 v6, v[52:55] offset:{lds0+16}")
    a("s_mov_b64 exec, -1\ns_waitcnt lgkmcnt(0)\ns_barrier")
    a(f"s_mul_i32 s{S_T3}, s{S_W4}, 224\nv_lshlrev_b32 v7, 2, v0\nv_add_u32 v7, s{S_T3}, v7")
    for k in range(8): a(f"ds_read_b32 v{16+k}, v7 offset:{lds0 + k*896}")
    a(f"s_lshr_b32 s{S_T0}, s2, 4\ns_mul_i32 s{S_T0}, s{S_T0}, {3584*4}\ns_mul_i32 s{S_T1}, s{S_T1}, 896\ns_add_u32 s{S_T0}, s{S_T0}, s{S_T1}")
    a("s_waitcnt lgkmcnt(0)")
    tree_sum(a, range(16, 24))
    a(f"s_mov_b32 exec_hi, 0x00ffffff\nbuffer_store_dword v16, v7, s[{SRD_D}:{SRD_D+3}], s{S_T0} offen {sf}\ns_mov_b64 exec, -1")
    for _ in range(nbar_extra): a("s_barrier")

def make_p1(lead=True):
    ph = Phase(); ph.name = 'P1'; ph.S = 16; ph.NS = 3; ph.stage = 43008; ph.lds0 = 0; ph.lead = lead
    ph.ka_step = 2048; ph.kb_step = 64*6144; ph.aflags = ''; ph.bflags = ''
    ph.nmin = 10
    ph.pieces = []
    for i in range(2):
        ph.pieces.append(('A', 10+i, S_LA, 2048 + i*2048, 0, None))
        ph.pieces.append(('A', 10+i, S_LA, None, 1024, None))
    ph.pieces.append(('A', 18, S_LH, 0, 0, 2))
    for t in range(3):
        for i in range(2):
            ph.pieces.append(('B', 12 + t*2 + i, S_LB, 18432 + t*8192 + i*1024, 0, None))
    ph.addr_regs = [2, 4, 5]
    ph.afr = [(2, i*2048) for i in range(5)]
    ph.a_kb = 1024
    ph.bfr = [(4 + c, t*8192, 2048, 4096) for t in range(3) for c in range(2)]
    ph.va = [16, 36]; ph.vb = [56, 80]; ph.vacc = 112
    mm = []
    for i in range(5):
        row = [(i*2 + c, i, 2 + c, True) for c in range(2)] + [(10 + i*2 + c, i, 4 + c, False) for c in range(2)]
        if i: row += [(20 + (i-1)*2 + c, i, c, True) for c in range(2)]
        mm += row if i % 2 == 0 else row[::-1]
    ph.mm = mm
    return ph

def a_frag_voff(a, rts_shift_or_mul, v, extra_sgpr=None):
    pass

def p1_producer_setup(a, ph):
    srd(a, SRD_A, S_WS, 4 << 20, WS_XN)
    srd(a, SRD_B, S_WQKV, 1024*3072*2)
    a(f"s_lshl_b32 s{S_LA}, s{S_W4}, 12\ns_lshl_b32 s{S_LB}, s{S_W4}, 11\ns_lshl_b32 s{S_LH}, s{S_W4}, 10")
    a(f"s_lshl_b32 s{S_T0}, s{S_RB}, 3\ns_lshl_b32 s{S_T1}, s{S_W4}, 1\ns_add_u32 s{S_T1}, s{S_T0}, s{S_T1}\ns_lshl_b32 s{S_T1}, s{S_T1}, 15")
    a(f"v_lshlrev_b32 v18, 4, v0\nv_add_u32 v10, s{S_T1}, v18\nv_add_u32 v11, 0x8000, v10")
    a(f"s_max_u32 s{S_T0}, s{S_T0}, 1\ns_sub_u32 s{S_T0}, s{S_T0}, 1\ns_lshl_b32 s{S_T0}, s{S_T0}, 15\ns_add_u32 s{S_T0}, s{S_T0}, s{S_LH}\nv_add_u32 v18, s{S_T0}, v18")
    a(f"s_lshl_b32 s{S_T2}, s{S_CB}, 7\ns_mul_i32 s{S_T0}, s{S_W4}, {16*6144}\ns_add_u32 s{S_T2}, s{S_T2}, s{S_T0}")
    dma_b_lane(a, 12, 20, 21, 6144, 128)
    a(f"v_add_u32 v12, s{S_T2}, v12")
    for t in range(3):
        for i in range(2):
            if t or i: a(f"v_add_u32 v{12+t*2+i}, {t*2048 + i*8*6144}, v12")

S_MASK = 64

def p1_consumer_setup(a, ph):
    a(f"s_lshr_b32 s{S_T0}, s{S_W4}, 1\ns_and_b32 s{S_T1}, s{S_W4}, 1")
    a(f"s_lshl_b32 s{S_T2}, s{S_T0}, 13\nv_lshlrev_b32 v2, 4, v0\nv_add_u32 v2, s{S_T2}, v2")
    if ph.lds0: a(f"v_add_u32 v2, {ph.lds0}, v2")
    for c in range(2):
        a(f"s_lshl_b32 s{S_T2}, s{S_T1}, 1\ns_add_u32 s{S_T2}, s{S_T2}, {c}")
        tr_lane_part(a, 4+c, 10, 11, 128, jreg=S_T2)
        a(f"v_add_u32 v{4+c}, {18432 + ph.lds0}, v{4+c}")
    a("v_and_b32 v10, 15, v0\nv_lshrrev_b32 v11, 4, v0\nv_lshlrev_b32 v11, 2, v11\nv_sub_u32 v10, v10, v11\nv_mov_b32 v12, 0xf149f2ca")
    for t in range(2):
        for r in range(4):
            a(f"v_add_u32 v11, {(16 if t == 0 else 0) - r}, v10\nv_and_b32 v11, 0xfffffff1, v11\nv_cmp_eq_u32 vcc, 0, v11\ns_nop 1\nv_cndmask_b32 v{224+4*t+r}, v12, 0, vcc")
    a(f"s_lshl_b32 s{S_T2}, s{S_RB}, 1\ns_add_u32 s{S_T2}, s{S_T2}, s{S_T0}\ns_cmp_eq_u32 s{S_T2}, 0\ns_cselect_b64 vcc, -1, 0")
    for r in range(4): a(f"v_cndmask_b32 v{232+r}, v{224+r}, v12, vcc")

def p1_epilogue(a, ph, sf='', fold=False):
    acc = lambda n: ph.vacc + 4*n
    srd(a, SRD_C, S_WS, 4 << 20, WS_O)
    a(f"s_lshr_b32 s{S_T0}, s{S_W4}, 1\ns_and_b32 s{S_T1}, s{S_W4}, 1\ns_lshl_b32 s{S_T2}, s{S_RB}, 1\ns_add_u32 s{S_T2}, s{S_T2}, s{S_T0}")
    a(f"s_lshl_b32 s{S_T2}, s{S_T2}, 17\ns_lshl_b32 s{S_T3}, s{S_CB}, 1\ns_add_u32 s{S_T3}, s{S_T3}, s{S_T1}\ns_lshl_b32 s{S_T3}, s{S_T3}, 10\ns_add_u32 s{S_T2}, s{S_T2}, s{S_T3}")
    a(f"v_lshlrev_b32 v2, 4, v0\ns_mov_b32 s82, 0x3e8293ee\ns_mov_b32 s83, 0x3e8293ee")
    P = lambda r: f"v[{r}:{r+1}]"
    KP, QP, VP = 16, 36, 52
    for i in range(5):
        for c in range(2):
            for h in range(2):
                a(f"v_cvt_pk_bf16_f32 v{KP+4*i+2*c+h}, v{acc(i*2+c)+2*h}, v{acc(i*2+c)+2*h+1}")
        if i:
            for c in range(2):
                for h in range(2):
                    a(f"v_cvt_pk_bf16_f32 v{QP+4*(i-1)+2*c+h}, v{acc(20+(i-1)*2+c)+2*h}, v{acc(20+(i-1)*2+c)+2*h+1}")
    SS = 72
    a("s_nop 1")
    for i in range(1, 5):
        for t in range(2):
            d = SS + 8*(i-1) + 4*t
            a(f"v_mfma_f32_16x16x32_bf16 v[{d}:{d+3}], v[{KP+4*(i-1+t)}:{KP+4*(i-1+t)+3}], v[{QP+4*(i-1)}:{QP+4*(i-1)+3}], v[{(232 if (i == 1 and t == 0) else 224 + 4*t)}:{(232 if (i == 1 and t == 0) else 224 + 4*t) + 3}]")
    for i in range(5):
        for c in range(2):
            for h in range(2):
                a(f"v_cvt_pk_bf16_f32 v{VP+10*c+2*i+h}, v{acc(10+i*2+c)+2*h}, v{acc(10+i*2+c)+2*h+1}")
    MX = [112, 114, 116, 118]; TT = [113, 115, 117, 119]
    for i in range(4):
        b = SS + 8*i
        a(f"v_max3_f32 v{MX[i]}, v{b}, v{b+1}, v{b+2}\nv_max3_f32 v{TT[i]}, v{b+3}, v{b+4}, v{b+5}")
    for i in range(4):
        b = SS + 8*i
        a(f"v_max3_f32 v{MX[i]}, v{MX[i]}, v{b+6}, v{b+7}")
    for i in range(4): a(f"v_max_f32 v{MX[i]}, v{MX[i]}, v{TT[i]}")
    xor16_32_multi(a, MX, TT, "v_max_f32")
    if fold:
        for i in range(4): a(f"v_mul_f32 v{MX[i]}, v{240+i}, v{MX[i]}")
        for k in range(0, 8, 2):
            for i in range(4): a(f"v_pk_fma_f32 {P(SS+8*i+k)}, {P(SS+8*i+k)}, {P(240 + (i & 2))}, {P(MX[i])} op_sel:[0,{i & 1},0] op_sel_hi:[1,{i & 1},0] neg_lo:[0,0,1] neg_hi:[0,0,1]")
    else:
        for i in range(4): a(f"v_mul_f32 v{MX[i]}, s82, v{MX[i]}")
        for k in range(0, 8, 2):
            for i in range(4): a(f"v_pk_fma_f32 {P(SS+8*i+k)}, {P(SS+8*i+k)}, s[82:83], {P(MX[i])} op_sel_hi:[1,1,0] neg_lo:[0,0,1] neg_hi:[0,0,1]")
    for i in range(4):
        for k in range(8): a(f"v_exp_f32 v{SS+8*i+k}, v{SS+8*i+k}")
    W = 136
    for k in range(2):
        for i in range(4): a(f"v_pk_add_f32 {P(W+4*i+2*k)}, {P(SS+8*i+4*k)}, {P(SS+8*i+4*k+2)}")
    for i in range(4): a(f"v_pk_add_f32 {P(W+4*i)}, {P(W+4*i)}, {P(W+4*i+2)}")
    for i in range(4): a(f"v_add_f32 v{MX[i]}, v{W+4*i}, v{W+4*i+1}")
    xor16_32_multi(a, MX, TT, "v_add_f32")
    for i in range(4): a(f"v_rcp_f32 v{MX[i]}, v{MX[i]}")
    PP = 120
    for k in range(0, 8, 2):
        for i in range(4): a(f"v_pk_mul_f32 {P(SS+8*i+k)}, {P(SS+8*i+k)}, {P(MX[i])} op_sel_hi:[1,0]")
    for i in range(4):
        for k in range(4): a(f"v_cvt_pk_bf16_f32 v{PP+4*i+k}, v{SS+8*i+2*k}, v{SS+8*i+2*k+1}")
    OO = 136
    a("s_nop 1")
    for i in range(4):
        for c in range(2):
            d = OO + 8*i + 4*c
            a(f"v_mfma_f32_16x16x32_bf16 v[{d}:{d+3}], v[{VP+10*c+2*i}:{VP+10*c+2*i+3}], v[{PP+4*i}:{PP+4*i+3}], 0")
    a("s_nop 1")
    for i in range(4):
        if i == 3: a("s_nop 1")
        for k in range(4): a(f"v_cvt_pk_bf16_f32 v{SS+4*i+k}, v{OO+8*i+2*k}, v{OO+8*i+2*k+1}")
        a(f"s_add_u32 s{S_T3}, s{S_T2}, {i*32768}\nbuffer_store_dwordx4 v[{SS+4*i}:{SS+4*i+3}], v2, s[{SRD_C}:{SRD_C+3}], s{S_T3} offen {sf}")

def map_4x8(a):
    a(f"s_and_b32 s{S_T0}, s2, 3\ns_lshl_b32 s{S_T0}, s{S_T0}, 2\ns_lshr_b32 s{S_T1}, s2, 3\ns_and_b32 s{S_T2}, s{S_T1}, 3\ns_add_u32 s{S_RB}, s{S_T0}, s{S_T2}")
    a(f"s_bfe_u32 s{S_T0}, s2, 0x10002\ns_lshl_b32 s{S_T0}, s{S_T0}, 3\ns_lshr_b32 s{S_T1}, s2, 5\ns_add_u32 s{S_CB}, s{S_T0}, s{S_T1}")
    a(f"s_add_u32 s{S_ROT}, s{S_RB}, s{S_CB}\ns_and_b32 s{S_ROT}, s{S_ROT}, 3")

def make_p2(lead=True):
    ph = Phase(); ph.name = 'P2'; ph.S = 16; ph.NS = 4; ph.stage = 24576; ph.lds0 = 0; ph.lead = lead
    ph.ka_step = 2048; ph.kb_step = 64*2048; ph.aflags = ''; ph.bflags = ''
    ph.nmin = 6
    ph.pieces = []
    for i in range(2):
        ph.pieces.append(('A', 10+i, S_LA, i*2048, 0, None))
        ph.pieces.append(('A', 10+i, S_LA, None, 1024, None))
    for i in range(2):
        ph.pieces.append(('B', 12 + i, S_LB, 16384 + i*1024, 0, None))
    ph.addr_regs = [2, 4, 5, 6, 7]
    ph.afr = [(2, 0), (2, 2048)]
    ph.a_kb = 1024
    ph.bfr = [(4 + j, 0, 2048, 4096) for j in range(4)]
    ph.va = [16, 24]; ph.vb = [32, 48]; ph.vacc = 64
    ph.mm = [(j, 0, j, True) for j in range(4)] + [(4 + j, 1, j, True) for j in range(3, -1, -1)]
    return ph

def p2_producer_setup(a, ph):
    srd(a, SRD_A, S_WS, 4 << 20, WS_O)
    srd(a, SRD_B, S_WO, 1024*1024*2)
    a(f"s_lshl_b32 s{S_LA}, s{S_W4}, 12\ns_lshl_b32 s{S_LB}, s{S_W4}, 11")
    a(f"s_lshl_b32 s{S_T0}, s{S_RB}, 3\ns_lshl_b32 s{S_T1}, s{S_W4}, 1\ns_add_u32 s{S_T1}, s{S_T0}, s{S_T1}\ns_lshl_b32 s{S_T1}, s{S_T1}, 15")
    a(f"v_lshlrev_b32 v10, 4, v0\nv_add_u32 v10, s{S_T1}, v10\nv_add_u32 v11, 0x8000, v10")
    a(f"s_lshl_b32 s{S_T2}, s{S_CB}, 7\ns_lshl_b32 s{S_T0}, s{S_W4}, 15\ns_add_u32 s{S_T2}, s{S_T2}, s{S_T0}")
    dma_b_lane(a, 12, 20, 21, 2048, 128)
    a(f"v_add_u32 v12, s{S_T2}, v12\nv_add_u32 v13, {8*2048}, v12")

P2_X = 96
def p2_consumer_setup(a, ph):
    srd(a, SRD_D, S_X, 2048*1024*2)
    a(f"v_and_b32 v8, 15, v0\nv_lshlrev_b32 v8, 11, v8\nv_lshrrev_b32 v9, 4, v0\nv_lshlrev_b32 v9, 3, v9\nv_add_u32 v8, v8, v9")
    a(f"s_lshl_b32 s{S_T0}, s{S_RB}, 18\ns_lshl_b32 s{S_T1}, s{S_W4}, 16\ns_add_u32 s{S_T0}, s{S_T0}, s{S_T1}\ns_lshl_b32 s{S_T1}, s{S_CB}, 7\ns_add_u32 s{S_T0}, s{S_T0}, s{S_T1}")
    a(f"s_add_u32 s{S_T1}, s{S_T0}, 32768")
    for i in range(2):
        for j in range(4):
            d = P2_X + 2*(i*4 + j)
            a(f"buffer_load_dwordx2 v[{d}:{d+1}], v8, s[{SRD_D}:{SRD_D+3}], s{S_T0+i} offen offset:{j*32}")
    a(f"s_lshl_b32 s{S_T2}, s{S_W4}, 12\nv_lshlrev_b32 v2, 4, v0\nv_add_u32 v2, s{S_T2}, v2")
    if ph.lds0: a(f"v_add_u32 v2, {ph.lds0}, v2")
    for j in range(4):
        tr_lane_part(a, 4+j, 10, 11, 128, j=j)
        a(f"v_add_u32 v{4+j}, {16384 + ph.lds0}, v{4+j}")

def p2_epilogue(a, ph, sf=''):
    acc = ph.vacc
    srd(a, SRD_C, S_WS, 4 << 20, WS_H)
    srd(a, SRD_D, S_WS, 1 << 20, WS_ST)
    a(f"s_lshl_b32 s{S_T0}, s{S_RB}, 3\ns_lshl_b32 s{S_T1}, s{S_W4}, 1\ns_add_u32 s{S_T0}, s{S_T0}, s{S_T1}")
    a(f"s_lshl_b32 s{S_T1}, s{S_T0}, 15\ns_lshl_b32 s{S_T2}, s{S_CB}, 11\ns_add_u32 s{S_T1}, s{S_T1}, s{S_T2}\ns_add_u32 s{S_T2}, s{S_T1}, 32768")
    a(f"s_lshl_b32 s{S_T0}, s{S_T0}, 11\ns_lshl_b32 s{S_T3}, s{S_CB}, 7\ns_add_u32 s{S_T0}, s{S_T0}, s{S_T3}")
    a(f"v_lshlrev_b32 v2, 4, v0\nv_lshlrev_b32 v3, 3, v0")
    P = lambda r: f"v[{r}:{r+1}]"
    a("s_waitcnt vmcnt(0)")
    for n in range(16):
        a(f"v_lshlrev_b32 v{112+2*n}, 16, v{P2_X+n}\nv_and_b32 v{113+2*n}, 0xffff0000, v{P2_X+n}")
    for n in range(16): a(f"v_pk_add_f32 {P(acc+2*n)}, {P(acc+2*n)}, {P(112+2*n)}")
    for i in range(2):
        for p in range(2):
            d = 20 + 8*i + 4*p
            for k in range(4):
                s = acc + 16*i + 8*p + 2*k
                a(f"v_cvt_pk_bf16_f32 v{d+k}, v{s}, v{s+1}")
            a(f"buffer_store_dwordx4 v[{d}:{d+3}], v2, s[{SRD_C}:{SRD_C+3}], s{S_T1+i} offen offset:{p*1024} {sf}")
    for k in range(4):
        for i in range(2): a(f"v_pk_add_f32 {P(112+8*i+2*k)}, {P(acc+16*i+4*k)}, {P(acc+16*i+4*k+2)}")
    for k in range(2):
        for i in range(2): a(f"v_pk_add_f32 {P(112+8*i+4*k)}, {P(112+8*i+4*k)}, {P(112+8*i+4*k+2)}")
    for i in range(2): a(f"v_pk_add_f32 {P(112+8*i)}, {P(112+8*i)}, {P(112+8*i+4)}")
    a("v_add_f32 v40, v112, v113\nv_add_f32 v48, v120, v121")
    xor16_32_multi(a, [40, 48], [41, 49], "v_add_f32")
    a("v_mul_f32 v42, 0x3c800000, v40\nv_mul_f32 v50, 0x3c800000, v48")
    for k in range(8):
        for i in range(2): a(f"v_pk_add_f32 {P(acc+16*i+2*k)}, {P(acc+16*i+2*k)}, {P(42+8*i)} op_sel_hi:[1,0] neg_lo:[0,1] neg_hi:[0,1]")
    for k in range(2):
        for i in range(2): a(f"v_pk_mul_f32 {P(112+8*i+2*k)}, {P(acc+16*i+2*k)}, {P(acc+16*i+2*k)}")
    for k in range(2, 8):
        for i in range(2): a(f"v_pk_fma_f32 {P(112+8*i+2*(k&1))}, {P(acc+16*i+2*k)}, {P(acc+16*i+2*k)}, {P(112+8*i+2*(k&1))}")
    for i in range(2): a(f"v_pk_add_f32 {P(112+8*i)}, {P(112+8*i)}, {P(112+8*i+2)}")
    a("v_add_f32 v41, v112, v113\nv_add_f32 v49, v120, v121")
    xor16_32_multi(a, [41, 49], [43, 51], "v_add_f32")
    a("s_mov_b64 exec, 0xffff")
    a(f"buffer_store_dwordx2 v[40:41], v3, s[{SRD_D}:{SRD_D+3}], s{S_T0} offen {sf}")
    a(f"buffer_store_dwordx2 v[48:49], v3, s[{SRD_D}:{SRD_D+3}], s{S_T0} offen offset:2048 {sf}")
    a("s_mov_b64 exec, -1")

P3_CONST = 135168
def p3_const_issue(a, lf=''):
    srd(a, SRD_C, S_WS, 2 << 20, WS_ST)
    srd(a, SRD_D, S_B1, 3584*2)
    Lc = a.lab('cols'); Le = a.lab('cend')
    a(f"s_cmp_ge_u32 s{S_W4}, 2\ns_cbranch_scc1 {Lc}")
    a(f"v_lshrrev_b32 v22, 4, v0\nv_lshlrev_b32 v22, 11, v22\nv_and_b32 v23, 15, v0\nv_lshlrev_b32 v23, 3, v23\nv_add_u32 v22, v22, v23")
    a(f"s_lshl_b32 s{S_T0}, s{S_RB}, 14\ns_lshl_b32 s{S_T1}, s{S_W4}, 13\ns_add_u32 s{S_T0}, s{S_T0}, s{S_T1}")
    for c in range(16):
        a(f"buffer_load_dwordx2 v[{32+2*c}:{33+2*c}], v22, s[{SRD_C}:{SRD_C+3}], s{S_T0} offen offset:{c*128} {lf}")
    a(f"s_branch {Le}\n{Lc}:")
    a(f"s_mul_i32 s{S_T0}, s{S_CB}, 224\ns_and_b32 s{S_T1}, s{S_CB}, 1\ns_lshl_b32 s{S_T2}, s{S_T1}, 5\ns_add_u32 s{S_T2}, s{S_T2}, s{S_T0}")
    a(f"s_cmp_eq_u32 s{S_T1}, 0\ns_cselect_b32 s{S_T1}, 0, 192\ns_sub_u32 s{S_T1}, s{S_T0}, s{S_T1}")
    a(f"s_and_b32 s{S_T0}, s{S_W4}, 1\ns_lshl_b32 s{S_T0}, s{S_T0}, 7\nv_lshlrev_b32 v23, 1, v0\nv_add_u32 v23, s{S_T0}, v23\nv_min_u32 v23, 222, v23")
    a(f"v_cmp_gt_u32 vcc, 192, v23\nv_mov_b32 v24, s{S_T1}\nv_mov_b32 v25, s{S_T2}\nv_cndmask_b32 v24, v24, v25, vcc\nv_add_u32 v24, v24, v23")
    a(f"v_lshlrev_b32 v22, 2, v24\nv_lshlrev_b32 v24, 1, v24")
    for c in range(16):
        a(f"s_mov_b32 s{S_T0}, {(1 << 20) + c*3584*4}\nbuffer_load_dwordx2 v[{32+2*c}:{33+2*c}], v22, s[{SRD_C}:{SRD_C+3}], s{S_T0} offen {lf}")
    a(f"buffer_load_dword v64, v24, s[{SRD_D}:{SRD_D+3}], 0 offen")
    a(f"{Le}:")

def p3_const_finish(a):
    Lc = a.lab('cols'); Le = a.lab('cend')
    a(f"s_cmp_ge_u32 s{S_W4}, 2\ns_cbranch_scc1 {Lc}")
    for c in range(8): a(f"v_add_f32 v{70+c}, v{32+4*c}, v{34+4*c}")
    tree_sum(a, range(70, 78))
    a("v_mul_f32 v70, 0x3a800000, v70")
    for c in range(16):
        a(f"v_fma_f32 v{32+2*c}, v{32+2*c}, 0x3c800000, -v70" if False else f"v_mul_f32 v{32+2*c}, 0x3c800000, v{32+2*c}\nv_sub_f32 v{32+2*c}, v{32+2*c}, v70")
    for c in range(16):
        a(f"v_mul_f32 v{32+2*c}, v{32+2*c}, v{32+2*c}\nv_mul_f32 v{32+2*c}, 0x42800000, v{32+2*c}\nv_add_f32 v{33+2*c}, v{33+2*c}, v{32+2*c}")
    tree_sum(a, range(33, 64, 2))
    a("v_mul_f32 v71, 0x3a800000, v33")
    ln_scale(a, 70, 71, 72)
    a(f"v_mul_f32 v73, v70, v71\nv_mov_b32 v72, v71\ns_lshl_b32 s{S_T0}, s{S_W4}, 9\nv_lshlrev_b32 v22, 3, v0\nv_add_u32 v22, s{S_T0}, v22\nv_add_u32 v22, {P3_CONST}, v22")
    a(f"ds_write_b64 v22, v[72:73]\ns_branch {Le}\n{Lc}:")
    tree_sum(a, range(32, 64, 2)); tree_sum(a, range(33, 64, 2))
    a(f"v_lshlrev_b32 v34, 16, v64\nv_and_b32 v35, 0xffff0000, v64\nv_lshlrev_b32 v23, 2, v23\nv_add_u32 v23, {P3_CONST + 1024}, v23")
    a(f"ds_write_b64 v23, v[32:33]\nds_write_b64 v23, v[34:35] offset:896")
    a(f"{Le}:\ns_waitcnt lgkmcnt(0)")

def p3_epilogue(a, ph, sf=''):
    acc = lambda n: ph.vacc + 4*n
    srd(a, SRD_C, S_WS, 16 << 20, WS_G)
    a(f"s_lshr_b32 s{S_T0}, s{S_W4}, 1\ns_and_b32 s{S_T1}, s{S_W4}, 1")
    a(f"s_lshl_b32 s{S_T2}, s{S_T0}, 9\ns_lshl_b32 s{S_T3}, s{S_T1}, 8\ns_add_u32 s{S_T2}, s{S_T2}, s{S_T3}\ns_add_u32 s{S_T2}, s{S_T2}, {P3_CONST}")
    a(f"v_and_b32 v2, 15, v0\nv_lshlrev_b32 v2, 3, v2\nv_add_u32 v2, s{S_T2}, v2\nv_xor_b32 v3, 0x100, v2")
    for i in range(4): a(f"ds_read_b64 v[{8+2*i}:{9+2*i}], v{2 + (i >> 1)} offset:{(i & 1)*128}")
    a(f"s_mul_i32 s{S_T2}, s{S_T1}, 384\ns_add_u32 s{S_T2}, s{S_T2}, {P3_CONST + 1024}\nv_and_b32 v5, 0x30, v0\nv_add_u32 v4, s{S_T2}, v5\nv_add_u32 v5, {P3_CONST + 1024 + 768}, v5")
    CS, BB = 16, 48
    for c in range(8):
        r, o = (4, c*64) if c < 6 else (5, (c-6)*64)
        a(f"ds_read_b128 v[{CS+4*c}:{CS+4*c+3}], v{r} offset:{o}\nds_read_b128 v[{BB+4*c}:{BB+4*c+3}], v{r} offset:{o+896}")
    a(f"s_lshl_b32 s{S_T2}, s{S_RB}, 3\ns_lshl_b32 s{S_T3}, s{S_T0}, 2\ns_add_u32 s{S_T2}, s{S_T2}, s{S_T3}\ns_lshl_b32 s{S_T3}, s{S_T1}, 1")
    for i in range(4):
        a(f"s_xor_b32 s{84+i}, s{S_T3}, {i}\ns_add_u32 s{84+i}, s{84+i}, s{S_T2}\ns_mul_i32 s{84+i}, s{84+i}, {112*1024}")
    a(f"s_mul_i32 s{S_T2}, s{S_CB}, 7\ns_and_b32 s{S_T3}, s{S_CB}, 1\ns_mul_i32 s88, s{S_T1}, 3\ns_add_u32 s88, s88, s{S_T2}\ns_add_u32 s88, s88, s{S_T3}\ns_lshl_b32 s88, s88, 10")
    a(f"s_cmp_eq_u32 s{S_T3}, 0\ns_cselect_b32 s89, 6, 0\ns_add_u32 s89, s89, s{S_T2}\ns_lshl_b32 s89, s89, 10")
    a(f"v_lshlrev_b32 v6, 4, v0\nv_add_u32 v7, s89, v6\nv_add_u32 v6, s88, v6")
    k2 = -2.0*0.7978845608028654*1.4426950408889634
    import struct
    f2h = lambda x: struct.unpack('<I', struct.pack('<f', x))[0]
    KK, ONE = 224, 226
    a(f"v_mov_b32 v{KK}, {f2h(k2*0.044715):#x}\nv_mov_b32 v{KK+1}, {f2h(k2):#x}\nv_mov_b32 v{ONE}, 1.0\nv_mov_b32 v{ONE+1}, 1.0")
    a("s_waitcnt lgkmcnt(0)")
    units = [(i, p) for p in range(3) for i in range(4)] + [(0, 3), (1, 3)]
    P = lambda r: f"v[{r}:{r+1}]"
    for n, (i, p) in enumerate(units):
        A = acc(i*6 + 2*p) if p < 3 else acc(24 + i*2)
        T = 80 + 16*(n & 1); U = T + 8
        R = 8 + 2*i
        for k in range(0, 8, 2): a(f"v_pk_fma_f32 {P(T+k)}, {P(R)}, {P(CS+8*p+k)}, {P(BB+8*p+k)} op_sel:[1,0,0] op_sel_hi:[1,1,1] neg_lo:[1,0,0] neg_hi:[1,0,0]")
        for k in range(0, 8, 2): a(f"v_pk_fma_f32 {P(A+k)}, {P(R)}, {P(A+k)}, {P(T+k)} op_sel_hi:[0,1,1]")
        for k in range(0, 8, 2): a(f"v_pk_mul_f32 {P(T+k)}, {P(A+k)}, {P(A+k)}")
        for k in range(0, 8, 2): a(f"v_pk_fma_f32 {P(T+k)}, {P(T+k)}, {P(KK)}, {P(KK)} op_sel:[0,0,1] op_sel_hi:[1,0,1]")
        for k in range(0, 8, 2): a(f"v_pk_mul_f32 {P(T+k)}, {P(T+k)}, {P(A+k)}")
        for k in range(8): a(f"v_exp_f32 v{T+k}, v{T+k}")
        for k in range(0, 8, 2): a(f"v_pk_add_f32 {P(T+k)}, {P(T+k)}, {P(ONE)}")
        for k in range(8): a(f"v_rcp_f32 v{T+k}, v{T+k}")
        for k in range(0, 8, 2): a(f"v_pk_mul_f32 {P(A+k)}, {P(A+k)}, {P(T+k)}")
        for k in range(4): a(f"v_cvt_pk_bf16_f32 v{U+k}, v{A+2*k}, v{A+2*k+1}")
        if p < 3: a(f"buffer_store_dwordx4 v[{U}:{U+3}], v6, s[{SRD_C}:{SRD_C+3}], s{84+i} offen offset:{p*1024} {sf}")
        else: a(f"buffer_store_dwordx4 v[{U}:{U+3}], v7, s[{SRD_C}:{SRD_C+3}], s{84+i} offen {sf}")

def map_p4(a):
    a(f"s_and_b32 s{S_T0}, s2, 3\ns_lshl_b32 s{S_T0}, s{S_T0}, 2\ns_lshr_b32 s{S_T1}, s2, 3\ns_and_b32 s{S_T2}, s{S_T1}, 3\ns_add_u32 s{S_RB}, s{S_T0}, s{S_T2}")
    a(f"s_bfe_u32 s{S_KH}, s2, 0x10002\ns_lshr_b32 s{S_CB}, s2, 5")
    a(f"s_add_u32 s{S_ROT}, s{S_RB}, s{S_CB}\ns_and_b32 s{S_ROT}, s{S_ROT}, 3")

def make_p4(lead=True):
    ph = Phase(); ph.name = 'P4'; ph.S = 28; ph.NS = 3; ph.stage = 32768; ph.lds0 = 0; ph.lead = lead
    ph.ka_step = 2048; ph.kb_step = 64*2048; ph.aflags = ''; ph.bflags = ''
    ph.nmin = 8
    ph.pieces = []
    for i in range(2):
        ph.pieces.append(('A', 10+i, S_LA, i*2048, 0, None))
        ph.pieces.append(('A', 10+i, S_LA, None, 1024, None))
    for t in range(2):
        for i in range(2):
            ph.pieces.append(('B', 12 + 2*t + i, S_LB, 16384 + t*8192 + i*1024, 0, None))
    ph.addr_regs = [2, 4, 5, 6, 7]
    ph.afr = [(2, i*2048) for i in range(4)]
    ph.a_kb = 1024
    ph.bfr = [(4 + c, 0, 2048, 4096) for c in range(4)]
    ph.va = [16, 32]; ph.vb = [48, 64]; ph.vacc = 112
    ph.mm = [(i*4 + c, i, c, True) for i in range(4) for c in (range(4) if i % 2 == 0 else range(3, -1, -1))]
    return ph

def p4_producer_setup(a, ph):
    srd(a, SRD_A, S_WS, 16 << 20, WS_G)
    srd(a, SRD_B, S_W2, 3584*1024*2)
    a(f"s_lshl_b32 s{S_LA}, s{S_W4}, 12\ns_lshl_b32 s{S_LB}, s{S_W4}, 11")
    a(f"s_lshl_b32 s{S_T0}, s{S_RB}, 3\ns_lshl_b32 s{S_T1}, s{S_W4}, 1\ns_add_u32 s{S_T1}, s{S_T0}, s{S_T1}\ns_mul_i32 s{S_T1}, s{S_T1}, {112*1024}")
    a(f"s_mul_i32 s{S_T0}, s{S_KH}, {56*1024}\ns_add_u32 s{S_T1}, s{S_T1}, s{S_T0}")
    a(f"v_lshlrev_b32 v10, 4, v0\nv_add_u32 v10, s{S_T1}, v10\nv_add_u32 v11, {112*1024}, v10")
    a(f"s_lshl_b32 s{S_T2}, s{S_CB}, 8\ns_lshl_b32 s{S_T0}, s{S_W4}, 15\ns_add_u32 s{S_T2}, s{S_T2}, s{S_T0}\ns_mul_i32 s{S_T0}, s{S_KH}, {1792*2048}\ns_add_u32 s{S_T2}, s{S_T2}, s{S_T0}")
    dma_b_lane(a, 12, 20, 21, 2048, 128)
    a(f"v_add_u32 v12, s{S_T2}, v12\nv_add_u32 v13, {8*2048}, v12\nv_add_u32 v14, 128, v12\nv_add_u32 v15, 128, v13")

P4_H = 80
def p4_res_loads(a, lf=''):
    a(f"s_lshl_b32 s84, s82, 15\ns_lshl_b32 s85, s83, 10\ns_add_u32 s84, s84, s85")
    for i in range(4):
        a(f"s_add_u32 s85, s84, {i*32768}\nbuffer_load_dwordx4 v[{P4_H+4*i}:{P4_H+4*i+3}], v3, s[{SRD_C}:{SRD_C+3}], s85 offen {lf}")

def p4_consumer_setup(a, ph, lf='', res=True):
    srd(a, SRD_C, S_WS, 4 << 20, WS_H)
    srd(a, SRD_D, S_B2, 1024*2)
    a(f"s_lshr_b32 s{S_T0}, s{S_W4}, 1\ns_and_b32 s{S_T1}, s{S_W4}, 1")
    a(f"s_lshl_b32 s83, s{S_CB}, 2\ns_lshl_b32 s{S_T2}, s{S_KH}, 1\ns_add_u32 s83, s83, s{S_T2}\ns_add_u32 s83, s83, s{S_T1}")
    a(f"s_lshl_b32 s82, s{S_RB}, 3\ns_lshl_b32 s{S_T2}, s{S_T0}, 2\ns_add_u32 s82, s82, s{S_T2}")
    a(f"v_lshlrev_b32 v3, 4, v0")
    if res: p4_res_loads(a, lf)
    a(f"v_lshrrev_b32 v8, 4, v0\nv_lshlrev_b32 v8, 3, v8\ns_lshl_b32 s{S_T3}, s83, 6")
    a(f"buffer_load_dwordx2 v[96:97], v8, s[{SRD_D}:{SRD_D+3}], s{S_T3} offen\nbuffer_load_dwordx2 v[98:99], v8, s[{SRD_D}:{SRD_D+3}], s{S_T3} offen offset:32")
    a(f"s_lshl_b32 s{S_T2}, s{S_T0}, 13\nv_add_u32 v2, s{S_T2}, v3")
    if ph.lds0: a(f"v_add_u32 v2, {ph.lds0}, v2")
    for c in range(2):
        a(f"s_lshl_b32 s{S_T2}, s{S_T1}, 1\ns_add_u32 s{S_T2}, s{S_T2}, {c}")
        tr_lane_part(a, 4+c, 10, 11, 128, jreg=S_T2)
        a(f"s_lshl_b32 s{S_T2}, s{S_KH}, 13\ns_add_u32 s{S_T2}, s{S_T2}, {16384 + ph.lds0}\nv_add_u32 v{4+c}, s{S_T2}, v{4+c}\nv_xor_b32 v{6+c}, 0x2000, v{4+c}")

def p4_epilogue(a, ph, fval='1', fbase=0):
    acc = lambda n: ph.vacc + 4*n
    srd(a, SRD_C, S_WS, 8 << 20, WS_PX)
    srd(a, SRD_D, S_WS, 1 << 20, WS_FL)
    srd(a, SRD_A, S_OUT, 2048*1024*2)
    a(f"s_lshl_b32 s{S_T0}, s{S_RB}, 3\ns_add_u32 s{S_T0}, s{S_T0}, s{S_CB}\ns_lshl_b32 s{S_T0}, s{S_T0}, 1\ns_add_u32 s{S_T0}, s{S_T0}, s{S_KH}")
    a(f"s_lshl_b32 s{S_T1}, s{S_T0}, 2\ns_add_u32 s{S_T1}, s{S_T1}, s{S_W4}")
    a(f"s_lshl_b32 s84, s{S_T1}, 13\ns_xor_b32 s85, s84, 0x8000")
    a(f"s_lshl_b32 s86, s{S_T1}, 7\ns_add_u32 s86, s86, {fbase}\ns_xor_b32 s87, s86, 0x200")
    for i in range(4):
        for c in range(2):
            n = i*2 + c
            if n == 4: a("s_add_u32 s84, s84, 4096")
            a(f"buffer_store_dwordx4 v[{acc(i*4+2+c)}:{acc(i*4+2+c)+3}], v3, s[{SRD_C}:{SRD_C+3}], s84 offen offset:{(n & 3)*1024} sc1")
    a("s_waitcnt vmcnt(8)")
    for h in range(4):
        a(f"v_lshlrev_b32 v{100+2*h}, 16, v{96+h}\nv_and_b32 v{101+2*h}, 0xffff0000, v{96+h}")
    for i in range(4):
        for h in range(4):
            d = acc(i*4) + 2*h
            a(f"v_lshlrev_b32 v16, 16, v{P4_H+4*i+h}\nv_and_b32 v17, 0xffff0000, v{P4_H+4*i+h}")
            a(f"v_add_f32 v16, v16, v{100+2*h}\nv_add_f32 v17, v17, v{101+2*h}\nv_add_f32 v{d}, v{d}, v16\nv_add_f32 v{d+1}, v{d+1}, v17")
    a(f"v_mov_b32 v18, 0\nv_mov_b32 v19, {fval}\ns_waitcnt vmcnt(0)\ns_mov_b64 exec, 1")
    a(f"buffer_store_dword v19, v18, s[{SRD_D}:{SRD_D+3}], s86 offen sc1")
    L = a.lab('poll')
    a(f"s_mov_b32 s88, 0\n{L}:\ns_add_u32 s88, s88, 1\ns_cmp_gt_u32 s88, 0x40000\ns_cbranch_scc1 {L}_x\nbuffer_load_dword v20, v18, s[{SRD_D}:{SRD_D+3}], s87 offen sc1\ns_waitcnt vmcnt(0)\nv_readfirstlane_b32 s{S_T2}, v20\ns_cmp_lg_u32 s{S_T2}, {fval}\ns_cbranch_scc1 {L}")
    a(f"{L}_x:\ns_mov_b64 exec, -1")
    RX = 24
    for n in range(8):
        if n == 4: a("s_add_u32 s85, s85, 4096")
        a(f"buffer_load_dwordx4 v[{RX+4*n}:{RX+4*n+3}], v3, s[{SRD_C}:{SRD_C+3}], s85 offen offset:{(n & 3)*1024} sc1")
    a("v_and_b32 v4, 15, v0\nv_lshlrev_b32 v4, 11, v4\nv_bfe_u32 v5, v0, 4, 1\nv_lshlrev_b32 v5, 5, v5\nv_add_u32 v4, v4, v5\nv_bfe_u32 v5, v0, 5, 1\nv_lshlrev_b32 v5, 4, v5\nv_add_u32 v4, v4, v5")
    a(f"s_lshl_b32 s{S_T2}, s82, 15\ns_lshl_b32 s{S_T3}, s83, 6\ns_add_u32 s{S_T2}, s{S_T2}, s{S_T3}")
    for i in range(4):
        a(f"s_waitcnt vmcnt({6 - 2*i + i})")
        d = acc(i*4)
        for k in range(8): a(f"v_add_f32 v{d+k}, v{d+k}, v{RX+8*i+k}")
        U = 64 + 4*i
        for k in range(4): a(f"v_cvt_pk_bf16_f32 v{U+k}, v{d+2*k}, v{d+2*k+1}")
        a(f"s_add_u32 s{S_T3}, s{S_T2}, {i*32768}\ns_nop 0\nv_permlane16_swap_b32 v{U}, v{U+2}\nv_permlane16_swap_b32 v{U+1}, v{U+3}")
        a(f"buffer_store_dwordx4 v[{U}:{U+3}], v4, s[{SRD_A}:{SRD_A+3}], s{S_T3} offen")


S_E = 62
S_FO = 63
SRD_F = 96
FL_E, FL_0, FL_1, FL_2, FL_3, FL_C, FL_X = 0, 0x1000, 0x2000, 0x3000, 0x4000, 0x5000, 0x10000

def flag_off(a, dst, base, srow, scol):
    a(f"s_lshl_b32 s{dst}, s{srow}, 7\ns_lshl_b32 s{S_T0}, s{scol}, 2\ns_add_u32 s{dst}, s{dst}, s{S_T0}\ns_add_u32 s{dst}, s{dst}, {base}")

def flag_set(a, soff, only_wave=4):
    L = a.lab('noflag')
    if only_wave is not None: a(f"s_cmp_lg_u32 s{S_WAVE}, {only_wave}\ns_cbranch_scc1 {L}")
    a(f"v_mov_b32 v28, 0\nv_mov_b32 v29, s{S_E}\ns_mov_b64 exec, 1\nbuffer_store_dword v29, v28, s[{SRD_F}:{SRD_F+3}], s{soff} offen sc1\ns_mov_b64 exec, -1")
    a(f"{L}:")

def poll(a, voff, soff, execmask, hook=None):
    L = a.lab('poll')
    a(f"s_mov_b64 exec, {execmask:#x}\ns_mov_b32 s{S_T0}, 0\n{L}:")
    a(f"buffer_load_dword v31, v{voff}, s[{SRD_F}:{SRD_F+3}], s{soff} offen sc1\ns_add_u32 s{S_T0}, s{S_T0}, 1\ns_cmp_gt_u32 s{S_T0}, 0x20000\ns_cbranch_scc1 {L}_x")
    if hook: hook()
    a(f"s_waitcnt vmcnt(0)\nv_cmp_ne_u32 vcc, s{S_E}, v31\ns_cbranch_vccnz {L}\n{L}_x:\ns_waitcnt vmcnt(0)\ns_mov_b64 exec, -1")

def colsum_wave(a, sk, scb, sf='sc1'):
    srd(a, SRD_C, S_W1, 1024*3584*2)
    srd(a, SRD_D, S_WS, 1 << 20, WS_CS)
    a(f"v_lshrrev_b32 v22, 3, v0\nv_mul_u32_u24 v22, 7168, v22\nv_and_b32 v23, 7, v0\nv_min_u32 v23, 6, v23\nv_lshlrev_b32 v24, 4, v23\nv_add_u32 v22, v22, v24")
    a(f"s_mul_i32 s{S_T0}, s{sk}, {64*7168}\ns_mul_i32 s{S_T1}, s{scb}, 448\ns_add_u32 s{S_T0}, s{S_T0}, s{S_T1}\ns_mul_i32 s{S_T1}, s{S_W4}, 112\ns_add_u32 s{S_T0}, s{S_T0}, s{S_T1}")
    for j in range(8):
        a(f"s_add_u32 s{S_T1}, s{S_T0}, {j*8*7168}\nbuffer_load_dwordx4 v[{32+4*j}:{35+4*j}], v22, s[{SRD_C}:{SRD_C+3}], s{S_T1} offen")
    a(f"s_mul_i32 s{S_T0}, s{sk}, {3584*4}\ns_mul_i32 s{S_T1}, s{scb}, 896\ns_add_u32 s{S_T0}, s{S_T0}, s{S_T1}\ns_mul_i32 s{S_T1}, s{S_W4}, 224\ns_add_u32 s{S_T0}, s{S_T0}, s{S_T1}")
    cs_store_voff(a, 23, 23)
    for j in range(8):
        a(f"s_waitcnt vmcnt({7-j})")
        for x in cs_acc(32, j): a(x)
    for x in cs_fold(): a(x)
    a(f"s_mov_b32 exec_lo, 0x007f007f\ns_mov_b32 exec_hi, 0x007f007f\nbuffer_store_dwordx2 v[64:65], v23, s[{SRD_D}:{SRD_D+3}], s{S_T0} offen {sf}\ns_mov_b64 exec, -1")

CNT_LDS = 160256
def publish(a, k, base, srow, scol):
    L = a.lab('nopub')
    flag_off(a, S_FO, base, srow, scol)
    a(f"v_mov_b32 v236, {CNT_LDS + 4*k}\nv_mov_b32 v237, 1\nv_mov_b32 v238, 0\nv_mov_b32 v239, s{S_E}\ns_mov_b64 exec, 1")
    a(f"s_waitcnt vmcnt(0)\nds_add_rtn_u32 v237, v236, v237\ns_waitcnt lgkmcnt(0)\nv_cmp_ne_u32 vcc, 3, v237\ns_cbranch_vccnz {L}")
    a(f"buffer_store_dword v239, v238, s[{SRD_F}:{SRD_F+3}], s{S_FO} offen sc1\n{L}:\ns_mov_b64 exec, -1")

S_PF = 78
def pf_setup(a, ptr, share, span):
    a(f"s_lshl_b32 s{S_T0}, s2, 2\ns_add_u32 s{S_T0}, s{S_T0}, s{S_W4}\ns_mul_i32 s{S_T0}, s{S_T0}, {share}\ns_min_u32 s{S_T0}, s{S_T0}, {1024*share - span}\ns_add_u32 s{S_PF}, s{ptr}, s{S_T0}\ns_addc_u32 s{S_PF+1}, s{ptr+1}, 0")
def pf_step(a, n):
    a(f"s_waitcnt lgkmcnt({15 - n})")
    for i in range(n): a(f"s_load_dword s64, s[{S_PF}:{S_PF+1}], {i*64}")
    a(f"s_add_u32 s{S_PF}, s{S_PF}, {n*64}\ns_addc_u32 s{S_PF+1}, s{S_PF+1}, 0")
def pf_code(a, nbytes, per):
    L = a.lab('pc')
    a(f"s_getpc_b64 s[{S_PF}:{S_PF+1}]\n{L}:\ns_sub_u32 s{S_PF}, s{S_PF}, {L}-KSTART\ns_subb_u32 s{S_PF+1}, s{S_PF+1}, 0")
    a(f"s_lshr_b32 s{S_T0}, s2, 3\ns_lshl_b32 s{S_T0}, s{S_T0}, 2\ns_add_u32 s{S_T0}, s{S_T0}, s{S_W4}\ns_lshl_b32 s{S_T0}, s{S_T0}, 6")
    for i in range(per):
        a(f"s_add_u32 s{S_T1}, s{S_T0}, {i*8192}\ns_min_u32 s{S_T1}, s{S_T1}, KEND-KSTART-4\ns_load_dword s{64+i}, s[{S_PF}:{S_PF+1}], s{S_T1}")

WS_GR = WS_BASE + (30 << 20)
WS_CQ = WS_BASE + (31 << 20)
FL_Q = 0x7000
P1C = 153600

def make_p1x(lead=True):
    ph = make_p1(lead)
    ph.ka_step = 128
    ph.pieces = []
    for i in range(4):
        ph.pieces.append(('A', 6 + i, S_LA, 2048 + i*1024, 0, None))
    ph.pieces.append(('A', 18, S_LH, 0, 0, 2))
    for t in range(3):
        for i in range(2):
            ph.pieces.append(('B', 12 + t*2 + i, S_LB, 18432 + t*8192 + i*1024, 0, None))
    ph.addr_regs = [2, 3, 4, 5]
    ph.afr = [(2, 3, i*2048) for i in range(5)]
    ph.bfr = [(4 + c, t*8192, 512, 4096) for t in range(3) for c in range(2)]
    return ph

def p1x_producer_setup(a, ph):
    srd(a, SRD_A, S_X, 2048*1024*2)
    srd(a, SRD_B, S_WQKV, 1024*3072*2)
    a(f"s_lshl_b32 s{S_LA}, s{S_W4}, 12\ns_lshl_b32 s{S_LB}, s{S_W4}, 11\ns_lshl_b32 s{S_LH}, s{S_W4}, 10")
    a("v_lshrrev_b32 v20, 3, v0\nv_lshlrev_b32 v20, 11, v20\nv_lshrrev_b32 v21, 4, v0\nv_and_b32 v22, 7, v0\nv_xor_b32 v21, v21, v22\nv_lshlrev_b32 v21, 4, v21\nv_add_u32 v20, v20, v21")
    a(f"s_lshl_b32 s{S_T0}, s{S_RB}, 18\ns_lshl_b32 s{S_T1}, s{S_W4}, 16\ns_add_u32 s{S_T1}, s{S_T1}, s{S_T0}")
    a(f"v_add_u32 v6, s{S_T1}, v20\nv_xor_b32 v21, 64, v20\nv_add_u32 v7, s{S_T1}, v21\nv_add_u32 v7, 0x4000, v7\nv_add_u32 v8, 0x8000, v6\nv_add_u32 v9, 0x8000, v7")
    a(f"s_max_u32 s{S_T0}, s{S_T0}, 0x8000\ns_sub_u32 s{S_T0}, s{S_T0}, 0x8000\ns_lshl_b32 s{S_T1}, s{S_W4}, 14\ns_add_u32 s{S_T0}, s{S_T0}, s{S_T1}")
    a(f"s_lshl_b32 s{S_T1}, s{S_W4}, 6\ns_and_b32 s{S_T1}, s{S_T1}, 64\nv_xor_b32 v18, s{S_T1}, v20\nv_add_u32 v18, s{S_T0}, v18")
    a(f"s_lshl_b32 s{S_T2}, s{S_CB}, 7\ns_mul_i32 s{S_T0}, s{S_W4}, {16*6144}\ns_add_u32 s{S_T2}, s{S_T2}, s{S_T0}")
    a("v_lshrrev_b32 v20, 3, v0\nv_mul_u32_u24 v20, 6144, v20\nv_bfe_u32 v21, v0, 4, 1\nv_lshlrev_b32 v21, 1, v21\nv_xor_b32 v21, v21, v22\nv_lshlrev_b32 v21, 4, v21")
    a(f"v_add_u32 v12, v20, v21\nv_add_u32 v12, s{S_T2}, v12\nv_xor_b32 v21, 64, v21\nv_add_u32 v13, v20, v21\nv_add_u32 v13, s{S_T2}, v13\nv_add_u32 v13, {8*6144}, v13")
    for t in range(1, 3):
        for i in range(2): a(f"v_add_u32 v{12+t*2+i}, {t*2048}, v{12+i}")

def p1x_consumer_setup(a, ph):
    a(f"s_lshr_b32 s{S_T0}, s{S_W4}, 1\ns_and_b32 s{S_T1}, s{S_W4}, 1")
    a(f"s_lshl_b32 s{S_T2}, s{S_T0}, 13\nv_and_b32 v10, 15, v0\nv_lshrrev_b32 v11, 1, v10\nv_lshrrev_b32 v2, 4, v0\nv_xor_b32 v2, v2, v11\nv_lshlrev_b32 v2, 4, v2")
    a(f"v_lshlrev_b32 v10, 7, v10\nv_add_u32 v2, v2, v10\nv_add_u32 v2, s{S_T2}, v2\nv_xor_b32 v3, 64, v2")
    a("v_lshrrev_b32 v10, 4, v0\nv_lshlrev_b32 v10, 10, v10\nv_bfe_u32 v11, v0, 2, 2\nv_lshlrev_b32 v11, 7, v11\nv_add_u32 v10, v10, v11")
    a(f"v_and_b32 v11, 3, v0\nv_lshlrev_b32 v11, 3, v11\nv_add_u32 v10, v10, v11\nv_add_u32 v10, 18432, v10\nv_bfe_u32 v11, v0, 3, 2")
    for c in range(2):
        a(f"s_lshl_b32 s{S_T2}, s{S_T1}, 1\ns_add_u32 s{S_T2}, s{S_T2}, {c}\nv_xor_b32 v{4+c}, s{S_T2}, v11\nv_lshlrev_b32 v{4+c}, 5, v{4+c}\nv_add_u32 v{4+c}, v{4+c}, v10")
    a("v_and_b32 v10, 15, v0\nv_lshrrev_b32 v11, 4, v0\nv_lshlrev_b32 v11, 2, v11\nv_sub_u32 v10, v10, v11\nv_mov_b32 v12, 0xf149f2ca")
    for t in range(2):
        for r in range(4):
            a(f"v_add_u32 v11, {(16 if t == 0 else 0) - r}, v10\nv_and_b32 v11, 0xfffffff1, v11\nv_cmp_eq_u32 vcc, 0, v11\ns_nop 1\nv_cndmask_b32 v{224+4*t+r}, v12, 0, vcc")
    a(f"s_lshl_b32 s{S_T2}, s{S_RB}, 1\ns_add_u32 s{S_T2}, s{S_T2}, s{S_T0}\ns_cmp_eq_u32 s{S_T2}, 0\ns_cselect_b64 vcc, -1, 0")
    for r in range(4): a(f"v_cndmask_b32 v{232+r}, v{224+r}, v12, vcc")

def wave_sum(a, vs, ts):
    def gap():
        if len(vs) < 3: a(f"s_nop {2 - len(vs)}")
    for m in ("quad_perm:[1,0,3,2]", "quad_perm:[2,3,0,1]", "row_half_mirror", "row_mirror"):
        gap()
        for v in vs: a(f"v_add_f32_dpp v{v}, v{v}, v{v} {m} row_mask:0xf bank_mask:0xf")
    xor16_32_multi(a, vs, ts, "v_add_f32")

def row_stats_issue(a, sid):
    srd(a, SRD_A, S_X, 2048*1024*2)
    a(f"v_lshlrev_b32 v1, 4, v0\ns_lshl_b32 s{S_T0}, s{sid}, 14\ns_lshl_b32 s{S_T1}, s{S_W4}, 12\ns_add_u32 s{S_T0}, s{S_T0}, s{S_T1}")
    for j in range(4): a(f"buffer_load_dwordx4 v[{16+4*j}:{19+4*j}], v1, s[{SRD_A}:{SRD_A+3}], s{S_T0} offen offset:{j*1024}")

def row_stats_finish(a, sid):
    P = lambda r: f"v[{r}:{r+1}]"
    srd(a, SRD_C, S_WS, 16384, WS_GR)
    a(f"s_lshl_b32 s{S_T0}, s{sid}, 6\ns_lshl_b32 s{S_T1}, s{S_W4}, 4\ns_add_u32 s{S_T0}, s{S_T0}, s{S_T1}\nv_mov_b32 v1, 0")
    a("s_waitcnt vmcnt(0)")
    for k in range(16): a(f"v_lshlrev_b32 v{32+2*k}, 16, v{16+k}\nv_and_b32 v{33+2*k}, 0xffff0000, v{16+k}")
    def psum(dst, src):
        for k in range(4):
            for r in range(2): a(f"v_pk_add_f32 {P(dst+8*r+2*k)}, {P(src+16*r+4*k)}, {P(src+16*r+4*k+2)}")
        for k in range(2):
            for r in range(2): a(f"v_pk_add_f32 {P(dst+8*r+4*k)}, {P(dst+8*r+4*k)}, {P(dst+8*r+4*k+2)}")
        for r in range(2): a(f"v_pk_add_f32 {P(dst+8*r)}, {P(dst+8*r)}, {P(dst+8*r+4)}")
        for r in range(2): a(f"v_add_f32 v{dst+8*r}, v{dst+8*r}, v{dst+8*r+1}")
        wave_sum(a, [dst, dst+8], [dst+1, dst+9])
        for r in range(2): a(f"v_mul_f32 v{dst+8*r}, 0x3a800000, v{dst+8*r}")
    psum(64, 32)
    for k in range(8):
        for r in range(2): a(f"v_pk_add_f32 {P(32+16*r+2*k)}, {P(32+16*r+2*k)}, {P(64+8*r)} op_sel_hi:[1,0] neg_lo:[0,1] neg_hi:[0,1]")
    for k in range(16): a(f"v_pk_mul_f32 {P(32+2*k)}, {P(32+2*k)}, {P(32+2*k)}")
    psum(80, 32)
    a("v_cvt_pk_bf16_f32 v80, v80, v88\nv_and_b32 v81, 0xffff0000, v80\nv_lshlrev_b32 v80, 16, v80")
    a("v_add_f32 v80, 0x3727c5ac, v80\nv_add_f32 v81, 0x3727c5ac, v81\nv_cvt_pk_bf16_f32 v80, v80, v81\nv_and_b32 v81, 0xffff0000, v80\nv_lshlrev_b32 v80, 16, v80")
    a("v_sqrt_f32 v80, v80\nv_sqrt_f32 v81, v81\ns_nop 0")
    a(f"v_cvt_pk_bf16_f32 v84, v64, v80\nv_cvt_pk_bf16_f32 v86, v72, v81\nv_mov_b32 v85, s{S_E}\nv_mov_b32 v87, s{S_E}")
    a(f"s_mov_b64 exec, 1\nbuffer_store_dwordx4 v[84:87], v1, s[{SRD_C}:{SRD_C+3}], s{S_T0} offen sc1\ns_mov_b64 exec, -1")

def cs_acc(src, j):
    out = []
    for k in range(4):
        s = src + 4*j + k
        if j == 0: out += [f"v_lshlrev_b32 v{64+2*k}, 16, v{s}", f"v_and_b32 v{65+2*k}, 0xffff0000, v{s}"]
        else: out += [f"v_lshlrev_b32 v{72+2*k}, 16, v{s}", f"v_and_b32 v{73+2*k}, 0xffff0000, v{s}"]
    if j:
        for k in range(4): out.append(f"v_pk_add_f32 v[{64+2*k}:{65+2*k}], v[{64+2*k}:{65+2*k}], v[{72+2*k}:{73+2*k}]")
    return out
def cs_fold():
    out = ["s_nop 1"]
    out += [f"v_permlane32_swap_b32 v{64+k}, v{68+k}" for k in range(4)]
    out += [f"v_add_f32 v{64+k}, v{64+k}, v{68+k}" for k in (2, 3, 0, 1)]
    out += ["s_nop 1", "v_permlane16_swap_b32 v64, v66", "v_permlane16_swap_b32 v65, v67", "v_add_f32 v64, v64, v66", "v_add_f32 v65, v65, v67", "s_nop 1"]
    out += [f"v_add_f32_dpp v{64+k}, v{64+k}, v{64+k} row_ror:8 row_mask:0xf bank_mask:0xf" for k in range(2)]
    return out
def cs_store_voff(a, dst, chunk):
    a(f"v_lshlrev_b32 v{dst}, 5, v{chunk}\nv_lshrrev_b32 v25, 4, v0\nv_lshlrev_b32 v25, 3, v25\nv_add_u32 v{dst}, v{dst}, v25")

def skip_w3(a):
    L = a.lab('w3')
    a(f"s_cmp_eq_u32 s{S_W4}, 3\ns_cbranch_scc1 {L}")
    return L

def jq_setup(a):
    a(f"v_lshrrev_b32 v22, 3, v0\nv_mul_u32_u24 v22, 6144, v22\nv_and_b32 v23, 7, v0\nv_lshlrev_b32 v24, 4, v23\nv_add_u32 v22, v22, v24")
    cs_store_voff(a, 23, 23)
    a(f"s_mul_i32 s84, s{S_RB}, {64*6144}\ns_lshl_b32 s{S_T1}, s{S_CB}, 7\ns_add_u32 s84, s84, s{S_T1}\ns_add_u32 s84, s84, s{S_LB}")
    for k in range(32, 64): a(f"v_mov_b32 v{k}, 0")
def jq_issue(a, q, js):
    L = skip_w3(a)
    for j in js:
        a(f"s_add_u32 s{S_T1}, s84, {j*8*6144}\nbuffer_load_dwordx4 v[{32+4*j}:{35+4*j}], v22, s[{SRD_B}:{SRD_B+3}], s{S_T1} offen")
    a(f"{L}:")
def jq_store(a, q):
    L = skip_w3(a)
    srd(a, SRD_D, S_WS, 1 << 20, WS_CQ)
    a(f"s_mul_i32 s{S_T0}, s{S_RB}, {3072*4}\ns_lshl_b32 s{S_T1}, s{S_CB}, 8\ns_add_u32 s{S_T0}, s{S_T0}, s{S_T1}\ns_add_u32 s{S_T0}, s{S_T0}, s{S_LA}")
    a(f"s_mov_b32 exec_lo, 0x00ff00ff\ns_mov_b32 exec_hi, 0x00ff00ff\nbuffer_store_dwordx2 v[64:65], v23, s[{SRD_D}:{SRD_D+3}], s{S_T0} offen sc1\ns_mov_b64 exec, -1")
    a(f"{L}:")
    q.push('jqs', 0)
def jq_flag(a, q):
    L = skip_w3(a)
    q.wait('jqs')
    a(f"s_lshl_b32 s82, s{S_CB}, 8\ns_lshl_b32 s{S_T0}, s{S_RB}, 4\ns_add_u32 s82, s82, s{S_T0}\ns_lshl_b32 s{S_T0}, s{S_W4}, 2\ns_add_u32 s82, s82, s{S_T0}\ns_add_u32 s82, s82, {FL_Q}")
    flag_set(a, 82, only_wave=None)
    a(f"{L}:")

def jg_loads(a):
    Lr = a.lab('rows'); Le = a.lab('gend')
    a(f"s_cmp_eq_u32 s{S_W4}, 3\ns_cbranch_scc1 {Lr}")
    srd(a, SRD_D, S_WS, 1 << 20, WS_CQ)
    a(f"v_and_b32 v22, 15, v0\nv_lshlrev_b32 v22, 4, v22\ns_lshl_b32 s82, s{S_CB}, 8\ns_lshl_b32 s{S_T0}, s{S_W4}, 2\ns_add_u32 s82, s82, s{S_T0}\ns_add_u32 s82, s82, {FL_Q}")
    a(f"buffer_load_dword v48, v22, s[{SRD_F}:{SRD_F+3}], s82 offen sc1")
    a(f"v_lshrrev_b32 v23, 4, v0\nv_mul_u32_u24 v23, {3072*4}, v23\nv_add_u32 v23, v23, v22\ns_lshl_b32 s{S_T0}, s{S_CB}, 8\ns_add_u32 s{S_T0}, s{S_T0}, s{S_LA}")
    for k in range(4):
        a(f"s_add_u32 s{S_T1}, s{S_T0}, {k*4*3072*4}\nbuffer_load_dwordx4 v[{32+4*k}:{35+4*k}], v23, s[{SRD_D}:{SRD_D+3}], s{S_T1} offen sc1")
    a(f"s_branch {Le}\n{Lr}:")
    srd(a, SRD_D, S_WS, 16384, WS_GR)
    a(f"s_lshl_b32 s{S_T0}, s{S_RB}, 7\ns_sub_u32 s{S_T0}, s{S_T0}, 16")
    a(f"v_add_u32 v22, s{S_T0}, v0\nv_add_u32 v23, 16, v22\nv_cmp_gt_i32 vcc, 0, v22\nv_add_u32 v24, 128, v0\nv_min_u32 v24, 143, v24\nv_cndmask_b32 v23, v22, v23, vcc")
    a(f"v_add_u32 v24, s{S_T0}, v24\nv_lshlrev_b32 v23, 3, v23\nv_add_u32 v22, 64, v22\nv_lshlrev_b32 v22, 3, v22\nv_lshlrev_b32 v24, 3, v24")
    a(f"buffer_load_dwordx2 v[32:33], v23, s[{SRD_D}:{SRD_D+3}], 0 offen sc1\nbuffer_load_dwordx2 v[34:35], v22, s[{SRD_D}:{SRD_D+3}], 0 offen sc1\nbuffer_load_dwordx2 v[36:37], v24, s[{SRD_D}:{SRD_D+3}], 0 offen sc1")
    a(f"{Le}:")
def fold4(a, b):
    P = lambda r: f"v[{r}:{r+1}]"
    for h in (0, 2): a(f"v_pk_add_f32 {P(b+h)}, {P(b+h)}, {P(b+4+h)}\nv_pk_add_f32 {P(b+8+h)}, {P(b+8+h)}, {P(b+12+h)}")
    for h in (0, 2): a(f"v_pk_add_f32 {P(b+h)}, {P(b+h)}, {P(b+8+h)}")
    a(f"s_nop 1\nv_permlane32_swap_b32 v{b}, v{b+2}\nv_permlane32_swap_b32 v{b+1}, v{b+3}\nv_add_f32 v{b}, v{b}, v{b+2}\nv_add_f32 v{b+1}, v{b+1}, v{b+3}")
    a(f"s_nop 1\nv_permlane16_swap_b32 v{b}, v{b+1}\nv_add_f32 v{b}, v{b}, v{b+1}")

def jg_issue(a, q):
    jg_loads(a); q.push('jg', 3)
def jg_process(a, q):
    q.wait('jg')
    Lc = a.lab('gchk'); Lr = a.lab('grows'); Lok = a.lab('gok'); Le = a.lab('gdone'); Lt = a.lab('gretry')
    a(f"s_mov_b32 s83, 0\n{Lc}:\ns_cmp_eq_u32 s{S_W4}, 3\ns_cbranch_scc1 {Lr}")
    a(f"v_cmp_ne_u32 vcc, s{S_E}, v48\ns_cbranch_vccnz {Lt}")
    fold4(a, 32)
    a(f"v_bfe_u32 v23, v0, 4, 1\nv_lshrrev_b32 v24, 5, v0\nv_lshl_add_u32 v23, v24, 1, v23\nv_lshl_add_u32 v22, v23, 2, v22")
    a(f"s_lshl_b32 s{S_T0}, s{S_W4}, 8\ns_add_u32 s{S_T0}, s{S_T0}, {P1C}\nv_add_u32 v22, s{S_T0}, v22\nds_write_b32 v22, v32\ns_branch {Le}")
    a(f"{Lt}:\ns_add_u32 s83, s83, 1\ns_cmp_gt_u32 s83, 0x8000\ns_cbranch_scc1 {Le}")
    jg_loads(a)
    a(f"s_waitcnt vmcnt(0)\ns_branch {Lc}")
    a(f"{Lr}:\nv_cmp_ne_u32 vcc, s{S_E}, v33\ns_cbranch_vccnz {Lt}\nv_cmp_ne_u32 vcc, s{S_E}, v35\ns_cbranch_vccnz {Lt}\nv_cmp_ne_u32 vcc, s{S_E}, v37\ns_cbranch_vccnz {Lt}")
    for j in range(3):
        a(f"v_and_b32 v{40+2*j}, 0xffff0000, v{32+2*j}\nv_lshlrev_b32 v{41+2*j}, 16, v{32+2*j}")
    for j in range(3): a(f"v_rcp_f32 v{40+2*j}, v{40+2*j}")
    a(f"v_add_u32 v24, 128, v0\nv_min_u32 v24, 143, v24\nv_lshlrev_b32 v25, 2, v24\nv_lshlrev_b32 v24, 3, v24\nv_lshlrev_b32 v23, 3, v0")
    a(f"v_add_u32 v22, {P1C}, v30\nv_add_u32 v23, {P1C}, v23\nv_add_u32 v24, {P1C}, v24\nv_add_u32 v25, {P1C}, v25")
    a("ds_write_b64 v23, v[40:41] offset:768\nds_write_b64 v23, v[42:43] offset:1280\nds_write_b64 v24, v[44:45] offset:768")
    a("ds_write_b32 v22, v41 offset:1920\nds_write_b32 v22, v43 offset:2176\nds_write_b32 v25, v45 offset:1920")
    a("ds_write_b32 v22, v40 offset:2496\nds_write_b32 v22, v42 offset:2752\nds_write_b32 v25, v44 offset:2496")
    a(f"{Le}:\ns_waitcnt lgkmcnt(0)")

def p1x_fold(a, ph):
    acc = lambda n: ph.vacc + 4*n
    P = lambda r: f"v[{r}:{r+1}]"
    a(f"s_lshr_b32 s{S_T0}, s{S_W4}, 1\ns_and_b32 s{S_T1}, s{S_W4}, 1")
    a(f"s_lshl_b32 s{S_T2}, s{S_T0}, 9\ns_add_u32 s{S_T2}, s{S_T2}, {P1C + 768}\nv_and_b32 v6, 15, v0\nv_lshlrev_b32 v7, 3, v6\nv_add_u32 v7, s{S_T2}, v7")
    a(f"s_lshl_b32 s{S_T2}, s{S_T0}, 8\ns_add_u32 s{S_T2}, s{S_T2}, {P1C + 1920}\nv_and_b32 v8, 0x30, v0\nv_add_u32 v9, s{S_T2}, v8")
    a(f"s_lshl_b32 s{S_T2}, s{S_T1}, 7\ns_add_u32 s{S_T2}, s{S_T2}, {P1C}\nv_add_u32 v8, s{S_T2}, v8\nv_lshlrev_b32 v6, 2, v6\nv_add_u32 v6, s{S_T2}, v6")
    RM, CQ, CK, CV, MV, RV = 16, 28, 36, 44, 48, 68
    for i in range(5): a(f"ds_read_b64 {P(RM+2*i)}, v7 offset:{i*128}")
    for c in range(2): a(f"ds_read_b128 v[{CK+4*c}:{CK+4*c+3}], v8 offset:{256 + c*64}")
    for c in range(2): a(f"ds_read_b128 v[{CQ+4*c}:{CQ+4*c+3}], v8 offset:{c*64}")
    for c in range(2): a(f"ds_read_b32 v{CV+2*c}, v6 offset:{512 + c*64}")
    for i in range(5): a(f"ds_read_b128 v[{MV+4*i}:{MV+4*i+3}], v9 offset:{i*64}")
    a("s_waitcnt lgkmcnt(7)")
    for i in range(5): a(f"ds_read_b128 v[{RV+4*i}:{RV+4*i+3}], v9 offset:{576 + i*64}")
    for i in range(5):
        for c in range(2):
            for h in (0, 2): a(f"v_pk_fma_f32 {P(acc(i*2+c)+h)}, {P(RM+2*i)}, {P(CK+4*c+h)}, {P(acc(i*2+c)+h)} op_sel:[1,0,0] op_sel_hi:[1,1,1] neg_lo:[1,0,0] neg_hi:[1,0,0]")
    for i in range(1, 5):
        for c in range(2):
            for h in (0, 2): a(f"v_pk_fma_f32 {P(acc(20+(i-1)*2+c)+h)}, {P(RM+2*i)}, {P(CQ+4*c+h)}, {P(acc(20+(i-1)*2+c)+h)} op_sel:[1,0,0] op_sel_hi:[1,1,1] neg_lo:[1,0,0] neg_hi:[1,0,0]")
        a(f"v_mul_f32 v{239+i}, 0x3e8293ee, v{RM+2*i}")
    for i in range(5):
        for c in range(2):
            for h in (0, 2): a(f"v_pk_mul_f32 {P(acc(i*2+c)+h)}, {P(acc(i*2+c)+h)}, {P(RM+2*i)} op_sel_hi:[1,0]")
    a("s_waitcnt lgkmcnt(0)")
    for i in range(5):
        for c in range(2):
            for h in (0, 2): a(f"v_pk_fma_f32 {P(acc(10+i*2+c)+h)}, {P(MV+4*i+h)}, {P(CV+2*c)}, {P(acc(10+i*2+c)+h)} op_sel_hi:[1,0,1] neg_lo:[1,0,0] neg_hi:[1,0,0]")
    for i in range(5):
        for c in range(2):
            for h in (0, 2): a(f"v_pk_mul_f32 {P(acc(10+i*2+c)+h)}, {P(acc(10+i*2+c)+h)}, {P(RV+4*i+h)}")

def pf_chunk_setup(a, sk, scb):
    a(f"s_lshl_b32 s{S_T0}, s{sk}, 6\ns_lshl_b32 s{S_T1}, s{S_W4}, 4\ns_add_u32 s{S_T0}, s{S_T0}, s{S_T1}\ns_mul_i32 s{S_T0}, s{S_T0}, 7168\ns_mul_i32 s{S_T1}, s{scb}, 448\ns_add_u32 s{S_T0}, s{S_T0}, s{S_T1}")
    a(f"s_add_u32 s{S_PF}, s{S_W1}, s{S_T0}\ns_addc_u32 s{S_PF+1}, s{S_W1+1}, 0")
def pf_chunk_step(a, extra):
    a(f"s_waitcnt lgkmcnt({15 - 7 - extra})")
    for i in range(7): a(f"s_load_dword s64, s[{S_PF}:{S_PF+1}], {i*64}")
    for i in range(extra): a(f"s_load_dword s64, s[76:77], {i*64}")
    a(f"s_add_u32 s{S_PF}, s{S_PF}, 7168\ns_addc_u32 s{S_PF+1}, s{S_PF+1}, 0")
    if extra: a(f"s_add_u32 s76, s76, {extra*64}\ns_addc_u32 s77, s77, 0")

def p3c_issue(a):
    srd(a, SRD_C, S_WS, 2 << 20, WS_ST)
    srd(a, SRD_D, S_B1, 3584*2)
    a(f"v_lshlrev_b32 v22, 4, v0\ns_lshl_b32 s{S_T0}, s{S_RB}, 14\ns_add_u32 s{S_T0}, s{S_T0}, s{S_LA}")
    for j in range(4): a(f"buffer_load_dwordx4 v[{32+4*j}:{35+4*j}], v22, s[{SRD_C}:{SRD_C+3}], s{S_T0} offen offset:{j*1024} sc1")
    a(f"s_mul_i32 s{S_T0}, s{S_CB}, 224\ns_and_b32 s{S_T1}, s{S_CB}, 1\ns_lshl_b32 s{S_T2}, s{S_T1}, 5\ns_add_u32 s{S_T2}, s{S_T2}, s{S_T0}")
    a(f"s_cmp_eq_u32 s{S_T1}, 0\ns_cselect_b32 s{S_T1}, 0, 192\ns_sub_u32 s{S_T1}, s{S_T0}, s{S_T1}")
    a(f"s_mul_i32 s{S_T0}, s{S_W4}, 14\nv_and_b32 v23, 15, v0\nv_min_u32 v23, 13, v23\nv_add_u32 v23, s{S_T0}, v23\nv_lshlrev_b32 v23, 2, v23")
    a(f"v_cmp_gt_u32 vcc, 192, v23\nv_mov_b32 v24, s{S_T1}\nv_mov_b32 v25, s{S_T2}\nv_cndmask_b32 v24, v24, v25, vcc\nv_add_u32 v24, v24, v23")
    a(f"v_lshrrev_b32 v25, 4, v0\nv_mul_u32_u24 v26, {3584*4}, v25\nv_lshl_add_u32 v26, v24, 2, v26")
    for k in range(4): a(f"s_mov_b32 s{S_T0}, {(1 << 20) + k*4*3584*4}\nbuffer_load_dwordx4 v[{48+4*k}:{51+4*k}], v26, s[{SRD_C}:{SRD_C+3}], s{S_T0} offen sc1")
    a("v_bfe_u32 v25, v0, 4, 1\nv_lshrrev_b32 v26, 5, v0\nv_lshl_add_u32 v25, v26, 1, v25\nv_add_u32 v23, v23, v25\nv_add_u32 v24, v24, v25\nv_lshlrev_b32 v24, 1, v24")
    a(f"buffer_load_ushort v64, v24, s[{SRD_D}:{SRD_D+3}], 0 offen")
    return 9
def allsum3(a, vs, ts):
    for v in vs: a(f"v_add_f32_dpp v{v}, v{v}, v{v} row_ror:8 row_mask:0xf bank_mask:0xf")
    xor16_32_multi(a, vs, ts, "v_add_f32")
def p3c_finish(a, part):
    M = [70, 71, 72, 73]
    V = [80, 81, 82, 83]
    if part == 1: return p3c_finish2(a, M, V)
    a("s_waitcnt vmcnt(0)")
    for t in range(2):
        for r in range(2): a(f"v_add_f32 v{M[2*t+r]}, v{32+8*t+2*r}, v{36+8*t+2*r}")
    fold4(a, 48)
    allsum3(a, M, [74, 75, 76, 77])
    for m in M: a(f"v_mul_f32 v{m}, 0x3a800000, v{m}")
def p3c_finish2(a, M, V):
    a("s_mov_b32 s84, 0x3c800000\ns_mov_b32 s85, 0x42800000")
    for t in range(2):
        for j in range(2):
            for r in range(2): a(f"v_fma_f32 v{32+8*t+4*j+2*r}, v{32+8*t+4*j+2*r}, s84, -v{M[2*t+r]}")
    for t in range(2):
        for j in range(2):
            for r in range(2): a(f"v_mul_f32 v{32+8*t+4*j+2*r}, v{32+8*t+4*j+2*r}, v{32+8*t+4*j+2*r}")
    for t in range(2):
        for j in range(2):
            for r in range(2): a(f"v_fma_f32 v{33+8*t+4*j+2*r}, v{32+8*t+4*j+2*r}, s85, v{33+8*t+4*j+2*r}")
    for t in range(2):
        for r in range(2): a(f"v_add_f32 v{V[2*t+r]}, v{33+8*t+2*r}, v{37+8*t+2*r}")
    a(f"v_lshlrev_b32 v49, 16, v64\nv_lshlrev_b32 v23, 2, v23\nv_add_u32 v23, {P3_CONST + 1024}, v23\nds_write_b32 v23, v48\nds_write_b32 v23, v49 offset:896")
    allsum3(a, V, [74, 75, 76, 77])
    a("v_and_b32 v22, 16, v0\nv_cmp_ne_u32 vcc, 0, v22\nv_and_b32 v22, 32, v0\nv_cmp_ne_u32 s[86:87], 0, v22\ns_nop 0")
    a("v_cndmask_b32 v70, v70, v71, vcc\nv_cndmask_b32 v72, v72, v73, vcc\nv_cndmask_b32 v80, v80, v81, vcc\nv_cndmask_b32 v82, v82, v83, vcc")
    a("v_cndmask_b32 v70, v70, v72, s[86:87]\nv_cndmask_b32 v71, v80, v82, s[86:87]\nv_mul_f32 v71, 0x3a800000, v71")
    ln_scale(a, 70, 71, 72)
    a(f"v_and_b32 v22, 7, v0\nv_lshlrev_b32 v22, 1, v22\nv_bfe_u32 v24, v0, 4, 1\nv_add_u32 v22, v22, v24\nv_lshrrev_b32 v24, 5, v0\nv_lshl_add_u32 v22, v24, 4, v22")
    a(f"s_lshl_b32 s{S_T0}, s{S_W4}, 8\ns_add_u32 s{S_T0}, s{S_T0}, {P3_CONST}\nv_lshlrev_b32 v22, 3, v22\nv_add_u32 v22, s{S_T0}, v22")
    a("v_mul_f32 v73, v70, v71\nv_mov_b32 v72, v71\nds_write_b64 v22, v[72:73]\ns_waitcnt lgkmcnt(0)")

PFN = 37
def pfe_setup(a):
    a(f"s_lshl_b32 s{S_T0}, s2, 2\ns_add_u32 s{S_T0}, s{S_T0}, s{S_W4}\ns_lshl_b32 s{S_T1}, s{S_T0}, 11\ns_min_u32 s{S_T1}, s{S_T1}, {(2 << 20) - 5*448}\ns_mul_i32 s{S_T0}, s{S_T0}, 7168")
    a(f"s_add_u32 s{S_PF}, s{S_WO}, s{S_T1}\ns_addc_u32 s{S_PF+1}, s{S_WO+1}, 0")
    a(f"s_add_u32 s70, s{S_W1}, s{S_T0}\ns_addc_u32 s71, s{S_W1+1}, 0\ns_add_u32 s72, s{S_W2}, s{S_T0}\ns_addc_u32 s73, s{S_W2+1}, 0\ns_mov_b32 s75, 0")
def pfe_try(a, n=2):
    L = a.lab('pfs'); T = a.lab('pft')
    if n > 1: a(f"s_mov_b32 s76, {n}\n{T}:")
    a(f"s_getreg_b32 s74, hwreg(HW_REG_IB_STS, 8, 4)\ns_cmp_gt_u32 s74, 8\ns_cbranch_scc1 {L}\ns_cmp_ge_u32 s75, {PFN}\ns_cbranch_scc1 {L}")
    for i in range(7): a(f"s_load_dword s64, s[{S_PF}:{S_PF+1}], {i*64}")
    a(f"s_add_u32 s{S_PF}, s{S_PF}, 448\ns_addc_u32 s{S_PF+1}, s{S_PF+1}, 0\ns_add_u32 s75, s75, 1")
    a(f"s_cmp_eq_u32 s75, 5\ns_cselect_b64 s[{S_PF}:{S_PF+1}], s[70:71], s[{S_PF}:{S_PF+1}]\ns_cmp_eq_u32 s75, 21\ns_cselect_b64 s[{S_PF}:{S_PF+1}], s[72:73], s[{S_PF}:{S_PF+1}]")
    if n > 1: a(f"s_sub_u32 s76, s76, 1\ns_cmp_lg_u32 s76, 0\ns_cbranch_scc1 {T}")
    a(f"{L}:")

JQ_LDS = 129024
def jm_setup(a):
    a("v_lshrrev_b32 v20, 4, v0\nv_lshlrev_b32 v21, 10, v20\nv_bfe_u32 v22, v0, 2, 2\nv_lshlrev_b32 v22, 7, v22\nv_add_u32 v21, v21, v22")
    a(f"v_and_b32 v22, 3, v0\nv_lshlrev_b32 v22, 3, v22\nv_add_u32 v21, v21, v22\nv_bfe_u32 v22, v0, 3, 2\nv_xor_b32 v22, s{S_W4}, v22\nv_lshlrev_b32 v22, 5, v22")
    a(f"v_add_u32 v40, v21, v22\nv_add_u32 v40, {JQ_LDS}, v40")
    for k in range(4): a(f"v_mov_b32 v{44+k}, 0x3f803f80")
    a("v_lshlrev_b32 v41, 12, v20\nv_and_b32 v22, 15, v0\nv_lshl_add_u32 v41, v22, 2, v41\nv_cmp_eq_u32 s[86:87], 1, v20\nv_cmp_eq_u32 s[88:89], 2, v20")
    a(f"v_lshlrev_b32 v22, 4, v22\nv_mul_u32_u24 v42, {3072*4}, v20\nv_add_u32 v42, v42, v22")
    a(f"v_bfe_u32 v23, v0, 4, 1\nv_lshrrev_b32 v24, 5, v0\nv_lshl_add_u32 v23, v24, 1, v23\nv_lshl_add_u32 v43, v23, 2, v22\ns_lshl_b32 s{S_T0}, s{S_W4}, 8\ns_add_u32 s{S_T0}, s{S_T0}, {P1C}\nv_add_u32 v43, s{S_T0}, v43")
    a(f"s_lshl_b32 s{S_T0}, s{S_RB}, 7\ns_sub_u32 s{S_T0}, s{S_T0}, 16")
    a(f"v_add_u32 v22, s{S_T0}, v0\nv_add_u32 v23, 16, v22\nv_cmp_gt_i32 vcc, 0, v22\nv_add_u32 v24, 128, v0\nv_min_u32 v24, 143, v24\nv_cndmask_b32 v23, v22, v23, vcc")
    a(f"v_lshlrev_b32 v49, 3, v23\nv_add_u32 v22, 64, v22\nv_lshlrev_b32 v50, 3, v22\nv_add_u32 v22, s{S_T0}, v24\nv_lshlrev_b32 v51, 3, v22")
    a(f"v_mov_b32 v22, {P1C}\nv_lshl_add_u32 v52, v0, 2, v22\nv_lshl_add_u32 v53, v0, 3, v22\nv_lshl_add_u32 v54, v24, 3, v22\nv_lshl_add_u32 v55, v24, 2, v22")
    a(f"s_mul_i32 s84, s{S_RB}, {3072*4}\ns_lshl_b32 s91, s{S_CB}, 8\ns_add_u32 s84, s84, s91\ns_lshl_b32 s{S_T0}, s{S_W4}, 6\ns_add_u32 s84, s84, s{S_T0}")
    a(f"s_add_u32 s90, s91, {FL_Q}\ns_lshl_b32 s82, s{S_RB}, 4\ns_lshl_b32 s{S_T0}, s{S_W4}, 2\ns_add_u32 s82, s82, s{S_T0}\ns_add_u32 s82, s82, s90\ns_add_u32 s91, s91, s{S_LA}")
    srd(a, SRD_D, S_WS, 1 << 20, WS_CQ)
    srd(a, SRD_C, S_WS, 16384, WS_GR)
def jm_issue(a, ph, q):
    a(f"s_mul_i32 s{S_KB}, s{S_RB}, {ph.kb_step}\ns_mov_b32 s{S_LDS}, {JQ_LDS - 18432}")
    emit_stage_loads(a, ph, 'B'); q.push('jm', 6)
def jm_process(a, q):
    for t in range(3):
        for kb in range(2):
            d = 56 + 8*t + 4*kb
            a(f"ds_read_b64_tr_b16 v[{d}:{d+1}], v40 offset:{t*8192 + kb*4096}\nds_read_b64_tr_b16 v[{d+2}:{d+3}], v40 offset:{t*8192 + kb*4096 + 512}")
    a("s_waitcnt lgkmcnt(0)")
    for kb in range(2):
        for t in range(3):
            d = 56 + 8*t + 4*kb
            a(f"v_mfma_f32_16x16x32_bf16 v[{80+4*t}:{83+4*t}], v[44:47], v[{d}:{d+3}], " + ("0" if kb == 0 else f"v[{80+4*t}:{83+4*t}]"))
    a("s_nop 7\nv_cndmask_b32 v80, v80, v84, s[86:87]\nv_cndmask_b32 v80, v80, v88, s[88:89]")
    a(f"s_mov_b32 exec_hi, 0xffff\nbuffer_store_dword v80, v41, s[{SRD_D}:{SRD_D+3}], s84 offen sc1\ns_mov_b64 exec, -1")
    q.push('jms', 1)
def jm_flag(a, q):
    q.wait('jms')
    flag_set(a, 82, only_wave=None); q.push('jmf', 1)
def jg2_loads(a):
    Lr = a.lab('rows'); Le = a.lab('gend')
    a(f"s_cmp_eq_u32 s{S_W4}, 3\ns_cbranch_scc1 {Lr}")
    a(f"buffer_load_dword v48, v30, s[{SRD_F}:{SRD_F+3}], s90 offen sc1")
    for k in range(4):
        a(f"s_add_u32 s{S_T1}, s91, {k*4*3072*4}\nbuffer_load_dwordx4 v[{56+4*k}:{59+4*k}], v42, s[{SRD_D}:{SRD_D+3}], s{S_T1} offen sc1")
    a(f"s_branch {Le}\n{Lr}:")
    for j in range(3): a(f"buffer_load_dwordx2 v[{56+2*j}:{57+2*j}], v{49+j}, s[{SRD_C}:{SRD_C+3}], 0 offen sc1")
    a(f"{Le}:")
def jg2_issue(a, q):
    jg2_loads(a); q.push('jg', 3)
def jg2_process(a, q):
    q.wait('jg')
    Lc = a.lab('gchk'); Lr = a.lab('grows'); Le = a.lab('gdone'); Lt = a.lab('gretry')
    a(f"s_mov_b32 s83, 0\n{Lc}:\ns_cmp_eq_u32 s{S_W4}, 3\ns_cbranch_scc1 {Lr}")
    a(f"v_cmp_ne_u32 vcc, s{S_E}, v48\ns_cbranch_vccnz {Lt}")
    fold4(a, 56)
    a(f"ds_write_b32 v43, v56\ns_branch {Le}")
    a(f"{Lt}:\ns_add_u32 s83, s83, 1\ns_cmp_gt_u32 s83, 0x8000\ns_cbranch_scc1 {Le}")
    jg2_loads(a)
    a(f"s_waitcnt vmcnt(0)\ns_branch {Lc}")
    a(f"{Lr}:\nv_cmp_ne_u32 vcc, s{S_E}, v57\ns_cbranch_vccnz {Lt}\nv_cmp_ne_u32 vcc, s{S_E}, v59\ns_cbranch_vccnz {Lt}\nv_cmp_ne_u32 vcc, s{S_E}, v61\ns_cbranch_vccnz {Lt}")
    for j in range(3): a(f"v_and_b32 v{64+2*j}, 0xffff0000, v{56+2*j}")
    for j in range(3): a(f"v_rcp_f32 v{64+2*j}, v{64+2*j}")
    for j in range(3): a(f"v_lshlrev_b32 v{65+2*j}, 16, v{56+2*j}")
    a("ds_write_b64 v53, v[64:65] offset:768\nds_write_b64 v53, v[66:67] offset:1280\nds_write_b64 v54, v[68:69] offset:768")
    a("ds_write_b32 v52, v65 offset:1920\nds_write_b32 v52, v67 offset:2176\nds_write_b32 v55, v69 offset:1920")
    a("ds_write_b32 v52, v64 offset:2496\nds_write_b32 v52, v66 offset:2752\nds_write_b32 v55, v68 offset:2496")
    a(f"{Le}:\ns_waitcnt lgkmcnt(0)")
```

```python
import sys
from phases import *
import hazard
STAMP['on'] = '--stamp' in sys.argv
O = dict(kv.split('=') for kv in sys.argv[1:] if '=' in kv)
NAME = 'sequential_preLN__sliding_local_dilated__dense_activation_gelu__prompt_kernel'
LDS = 163840
P0_LDS = 160000
OPT = dict(early=1, pre=4, tail=4)
p1, p2, p3, p4 = make_p1x(), make_p2(), make_p3(), make_p4()
p2.NS = int(O.get('p2ns', 6))
for ph in (p2, p3, p4): ph.aflags = 'sc1'
a = Asm()
a('KSTART:')
if STAMP['on']: a("s_memrealtime s[94:95]")
prologue(a, 'L_done')
map_8x4(a)
a(f"s_lshl_b32 s61, s{S_RB}, 4\ns_add_u32 s61, s61, s{S_CB}")
a("s_waitcnt lgkmcnt(0)")
a(f"s_add_u32 s{SRD_F}, s{S_WS}, {WS_FL}\ns_addc_u32 s{SRD_F+1}, s{S_WS+1}, 0\ns_mov_b32 s{SRD_F+2}, {1 << 20}\ns_mov_b32 s{SRD_F+3}, 0x20000")
a(f"s_load_dword s{S_E}, s[{SRD_F}:{SRD_F+1}], 0")
if STAMP['on']: a("v_writelane_b32 v255, s94, 0")
a(f"s_cmp_ge_u32 s{S_WAVE}, 4\ns_cbranch_scc1 L_prod")
def drain():
    a("s_waitcnt vmcnt(0)\ns_barrier")
row_stats_issue(a, 61)
p1x_consumer_setup(a, p1)
a(f"s_waitcnt lgkmcnt(0)\ns_add_u32 s{S_E}, s{S_E}, 1")
row_stats_finish(a, 61)
stamp(a, 1)
consumer_gemm(a, p1, OPT, final_bar=True, sbase=0)
stamp(a, 3)
p1x_fold(a, p1)
p1_epilogue(a, p1, 'sc1', fold=True)
stamp(a, 4)
publish(a, 1, FL_1, S_RB, S_CB)
map_4x8(a)
stamp(a, 5)
p2_consumer_setup(a, p2)
consumer_gemm(a, p2, dict(early=0, pre=0, tail=0), final_bar=True, sbase=4)
stamp(a, 7)
p2_epilogue(a, p2, 'sc1')
stamp(a, 8)
publish(a, 2, FL_2, S_RB, S_CB)
map_8x4(a)
stamp(a, 9)
p3_consumer_setup(a, p3)
consumer_gemm(a, p3, OPT, final_bar=True, sbase=8)
a('s_barrier')
stamp(a, 11)
p3_epilogue(a, p3, 'sc1')
stamp(a, 12)
publish(a, 3, FL_3, S_RB, S_CB)
map_p4(a)
stamp(a, 13)
p4_consumer_setup(a, p4, res=False)
consumer_gemm(a, p4, dict(early=0, pre=2, tail=2), after_first=lambda: p4_res_loads(a, 'sc1'), final_bar=True, sbase=12)
stamp(a, 15)
p4_epilogue(a, p4, fval=f"s{S_E}", fbase=FL_X)
stamp(a, 16)
if STAMP['on']: a("s_waitcnt vmcnt(0)")
stamp(a, 17)
stamp_flush(a, 0, WS_TM)
a("s_endpgm")
a("L_prod:")
if int(O.get('prio', 0)): a(f"s_setprio {O.get('prio', 0)}")
if int(O.get('pfcode', 0)): pf_code(a, 0, 5)
a(f"v_mov_b32 v28, {CNT_LDS}\nv_mov_b32 v32, 0\nv_mov_b32 v33, 0\nv_mov_b32 v34, 0\nv_mov_b32 v35, 0\nds_write_b128 v28, v[32:35]")
p1x_producer_setup(a, p1)
PF = int(O.get('pf', 1)); NT = int(O.get('nt', 2))
def pre_first():
    a(f"v_lshlrev_b32 v30, 2, v0\ns_waitcnt lgkmcnt(0)\ns_add_u32 s{S_E}, s{S_E}, 1")
    if PF: pfe_setup(a)
    jm_setup(a)
    stamp(a, 1)
JQ = int(O.get('jq', 3)); JG = int(O.get('jg', 13))
jobs = {}; fills = {}
def add(s, f): jobs.setdefault(s, []).append(f)
if not int(O.get('nojq', 0)):
    add(JQ, lambda q: jm_issue(a, p1, q)); add(JQ+3, lambda q: jm_process(a, q)); add(JQ+4, lambda q: jm_flag(a, q))
if not int(O.get('nojg', 0)):
    add(JG, lambda q: jg2_issue(a, q)); add(min(JG+2, 14), lambda q: jg2_process(a, q))
if PF:
    for s in range(-1, 15):
        if s < 13 and s != JQ+2: add(s, lambda q: pfe_try(a, NT))
if int(O.get('p1loop', 0)):
    pre_first()
    producer_gemm(a, p1)
    a("s_barrier")
else:
    if int(O.get('pstamp', 0)):
        for s in range(0, 15): add(s, lambda q, s=s: stamp(a, 16 + s))
    producer_unrolled(a, p1, jobs, pre_first, fills)
if PF: pfe_try(a, NT)
if STAMP['on'] and PF: a('v_writelane_b32 v255, s75, 24')
stamp(a, 3)
a(f"s_mov_b32 s80, s{S_RB}\ns_mov_b32 s81, s{S_CB}")
map_4x8(a)
p2_producer_setup(a, p2)
def std_handoff(base, mask=0xffff, extra_off=None, pre=None, sb=0):
    def f():
        if pre: pre()
        stamp(a, sb+0)
        a(f"s_lshl_b32 s{S_FO}, s{S_RB}, 7\ns_add_u32 s{S_FO}, s{S_FO}, {base}")
        if extra_off: extra_off()
        stamp(a, sb+1)
        poll(a, 30, S_FO, mask, hook=(lambda: pfe_try(a, NT)) if PF and sb < 12 else None)
        stamp(a, sb+2)
    return f
def colsum_job():
    if PF: pfe_try(a, NT)
    colsum_wave(a, 80, 81)
    a("s_waitcnt vmcnt(0)")
    a(f"s_lshl_b32 s82, s81, 8\ns_lshl_b32 s{S_T0}, s80, 4\ns_add_u32 s82, s82, s{S_T0}\ns_lshl_b32 s{S_T0}, s{S_W4}, 2\ns_add_u32 s82, s82, s{S_T0}\ns_add_u32 s82, s82, {FL_C}")
    flag_set(a, 82, only_wave=None)
producer_fused(a, p2, std_handoff(FL_1, pre=colsum_job, sb=4), preA=3, loop_hook=lambda: PF and pfe_try(a, NT))
if STAMP['on'] and PF: a('v_writelane_b32 v255, s75, 25')
stamp(a, 7)
map_8x4(a)
p3_producer_setup(a, p3)
def cs_ready():
    a(f"s_lshl_b32 s82, s{S_CB}, 8\ns_add_u32 s82, s82, {FL_C}")
    poll(a, 30, 82, 0xffffffffffffffff)
class Hex(int):
    def __format__(self, spec): return "-1"
def cs_ready():
    if PF: pfe_try(a, NT)
    a(f"s_lshl_b32 s82, s{S_CB}, 8\ns_add_u32 s82, s82, {FL_C}")
    poll(a, 30, 82, Hex(0))
producer_fused(a, p3, std_handoff(FL_2, pre=cs_ready, sb=8), loop_hook=lambda: PF and pfe_try(a, NT), tail=([lambda: p3c_issue(a), None, lambda: p3c_finish(a)] if int(O.get('p3t', 1)) == 0 else [lambda: 0, lambda: p3c_issue(a), lambda: p3c_finish(a, 0)]))
p3c_finish(a, 1)
a('s_barrier')
if STAMP['on'] and PF: a('v_writelane_b32 v255, s75, 26')
stamp(a, 11)
map_p4(a)
p4_producer_setup(a, p4)
producer_fused(a, p4, std_handoff(FL_3, mask=0xff, extra_off=lambda: a(f"s_lshl_b32 s{S_T1}, s{S_KH}, 5\ns_add_u32 s{S_FO}, s{S_FO}, s{S_T1}"), sb=12))
stamp(a, 15)
a(f"s_cmp_lg_u32 s2, 0\ns_cbranch_scc1 L_pend\ns_cmp_lg_u32 s{S_WAVE}, 4\ns_cbranch_scc1 L_pend")
a(f"v_mov_b32 v28, 0\nv_mov_b32 v29, s{S_E}\ns_mov_b64 exec, 1\nbuffer_store_dword v29, v28, s[{SRD_F}:{SRD_F+3}], 0 offen sc1\ns_mov_b64 exec, -1")
a("L_pend:")
stamp_flush(a, 0, WS_TM)
a("L_done:\ns_endpgm\nKEND:")

ref = open('sequential_preLN__sliding_local_dilated__dense_activation_gelu__prompt.s.ref').read().split('\n')
hdr = [l for l in ref if l.startswith(';') and '@launch' not in l and 'Override' not in l and 'grid=ceil' not in l]
lst = '--list' in sys.argv
out = hdr + [f"; @launch " + (f"kernel={NAME} " if lst else "") + f"grid=(256,1,1) block=(512,1,1) lds={LDS}"]
out.append('.amdgcn_target "amdgcn-amd-amdhsa--gfx950"\n.text')
out.append(f".globl {NAME}\n.p2align 8\n.type {NAME},@function\n{NAME}:\n{a.text()}")
out.append('.section .rodata,"a"')
out.append(kernel_desc(NAME))
txt = '\n'.join(out) + '\n'
for x in hazard.check(txt): sys.stderr.write("HAZARD line %d [%s] -> line %d [%s]: need %d have %d\n" % x)
print(txt)
```

```python
import sys
from phases import *
import hazard
STAMP['on'] = '--stamp' in sys.argv
O = dict(kv.split('=') for kv in sys.argv[1:] if '=' in kv)
NAME = 'sequential_preLN__sliding_local_dilated__dense_activation_gelu__prompt_kernel'
LDS = 163840
P0_LDS = 160000
OPT = dict(early=1, pre=4, tail=4)
p1, p2, p3, p4 = make_p1x(), make_p2(), make_p3(), make_p4()
p2.NS = int(O.get('p2ns', 6))
for ph in (p2, p3, p4): ph.aflags = 'sc1'
a = Asm()
a('KSTART:')
if STAMP['on']: a("s_memrealtime s[94:95]")
prologue(a, 'L_done')
map_8x4(a)
a(f"s_lshl_b32 s61, s{S_RB}, 4\ns_add_u32 s61, s61, s{S_CB}")
a("s_waitcnt lgkmcnt(0)")
a(f"s_add_u32 s{SRD_F}, s{S_WS}, {WS_FL}\ns_addc_u32 s{SRD_F+1}, s{S_WS+1}, 0\ns_mov_b32 s{SRD_F+2}, {1 << 20}\ns_mov_b32 s{SRD_F+3}, 0x20000")
a(f"s_load_dword s{S_E}, s[{SRD_F}:{SRD_F+1}], 0")
if STAMP['on']: a("v_writelane_b32 v255, s94, 0")
a(f"s_cmp_ge_u32 s{S_WAVE}, 4\ns_cbranch_scc1 L_prod")
def drain():
    a("s_waitcnt vmcnt(0)\ns_barrier")
if 'probe' in O:
    ptr, off0, n = [int(x) for x in O['probe'].split(':')]
    a(f"s_lshl_b32 s{S_T0}, s2, 14\ns_lshl_b32 s{S_T1}, s{S_W4}, 12\ns_add_u32 s{S_T0}, s{S_T0}, s{S_T1}\ns_add_u32 s{S_T0}, s{S_T0}, {off0}\ns_add_u32 s66, s{ptr}, s{S_T0}\ns_addc_u32 s67, s{ptr+1}, 0\ns_mov_b32 s68, 0")
    for i in range(n):
        a(f"s_load_dword s65, s[66:67], s68\ns_waitcnt lgkmcnt(0)\ns_and_b32 s65, s65, 0\ns_add_u32 s68, s68, s65\ns_add_u32 s68, s68, 128")
row_stats_issue(a, 61)
p1x_consumer_setup(a, p1)
a(f"s_waitcnt lgkmcnt(0)\ns_add_u32 s{S_E}, s{S_E}, 1")
row_stats_finish(a, 61)
stamp(a, 1)
consumer_gemm(a, p1, OPT, final_bar=True, sbase=0)
stamp(a, 3)
p1x_fold(a, p1)
p1_epilogue(a, p1, 'sc1', fold=True)
stamp(a, 4)
publish(a, 1, FL_1, S_RB, S_CB)
map_4x8(a)
stamp(a, 5)
p2_consumer_setup(a, p2)
consumer_gemm(a, p2, dict(early=0, pre=0, tail=0), final_bar=True, sbase=4)
stamp(a, 7)
p2_epilogue(a, p2, 'sc1')
stamp(a, 8)
publish(a, 2, FL_2, S_RB, S_CB)
map_8x4(a)
stamp(a, 9)
p3_consumer_setup(a, p3)
consumer_gemm(a, p3, OPT, final_bar=True, sbase=8)
a('s_barrier')
stamp(a, 11)
p3_epilogue(a, p3, 'sc1')
stamp(a, 12)
publish(a, 3, FL_3, S_RB, S_CB)
map_p4(a)
stamp(a, 13)
p4_consumer_setup(a, p4, res=False)
consumer_gemm(a, p4, dict(early=0, pre=2, tail=2), after_first=lambda: p4_res_loads(a, 'sc1'), final_bar=True, sbase=12)
stamp(a, 15)
p4_epilogue(a, p4, fval=f"s{S_E}", fbase=FL_X)
stamp(a, 16)
if STAMP['on']: a("s_waitcnt vmcnt(0)")
stamp(a, 17)
stamp_flush(a, 0, WS_TM)
a("s_endpgm")
a("L_prod:")
if int(O.get('prio', 0)): a(f"s_setprio {O.get('prio', 0)}")
if int(O.get('pfcode', 0)): pf_code(a, 0, 5)
a(f"v_mov_b32 v28, {CNT_LDS}\nv_mov_b32 v32, 0\nv_mov_b32 v33, 0\nv_mov_b32 v34, 0\nv_mov_b32 v35, 0\nds_write_b128 v28, v[32:35]")
p1x_producer_setup(a, p1)
PF = int(O.get('pf', 1)); NT = int(O.get('nt', 2))
def pre_first():
    a(f"v_lshlrev_b32 v30, 2, v0\ns_waitcnt lgkmcnt(0)\ns_add_u32 s{S_E}, s{S_E}, 1")
    if PF: pfe_setup(a)
    jm_setup(a)
    stamp(a, 1)
JQ = int(O.get('jq', 3)); JG = int(O.get('jg', 13))
jobs = {}; fills = {}
def add(s, f): jobs.setdefault(s, []).append(f)
if not int(O.get('nojq', 0)):
    add(JQ, lambda q: jm_issue(a, p1, q)); add(JQ+3, lambda q: jm_process(a, q)); add(JQ+4, lambda q: jm_flag(a, q))
if not int(O.get('nojg', 0)):
    add(JG, lambda q: jg2_issue(a, q)); add(min(JG+2, 14), lambda q: jg2_process(a, q))
if PF:
    for s in range(-1, 15):
        if s < 13 and s != JQ+2: add(s, lambda q: pfe_try(a, NT))
if int(O.get('p1loop', 0)):
    pre_first()
    producer_gemm(a, p1)
    a("s_barrier")
else:
    if int(O.get('pstamp', 0)):
        for s in range(0, 15): add(s, lambda q, s=s: stamp(a, 16 + s))
    producer_unrolled(a, p1, jobs, pre_first, fills)
if PF: pfe_try(a, NT)
if STAMP['on'] and PF: a('v_writelane_b32 v255, s75, 24')
stamp(a, 3)
a(f"s_mov_b32 s80, s{S_RB}\ns_mov_b32 s81, s{S_CB}")
map_4x8(a)
p2_producer_setup(a, p2)
def std_handoff(base, mask=0xffff, extra_off=None, pre=None, sb=0):
    def f():
        if pre: pre()
        stamp(a, sb+0)
        a(f"s_lshl_b32 s{S_FO}, s{S_RB}, 7\ns_add_u32 s{S_FO}, s{S_FO}, {base}")
        if extra_off: extra_off()
        stamp(a, sb+1)
        poll(a, 30, S_FO, mask, hook=(lambda: pfe_try(a, NT)) if PF and sb < 12 else None)
        stamp(a, sb+2)
    return f
def colsum_job():
    if PF: pfe_try(a, NT)
    colsum_wave(a, 80, 81)
    a("s_waitcnt vmcnt(0)")
    a(f"s_lshl_b32 s82, s81, 8\ns_lshl_b32 s{S_T0}, s80, 4\ns_add_u32 s82, s82, s{S_T0}\ns_lshl_b32 s{S_T0}, s{S_W4}, 2\ns_add_u32 s82, s82, s{S_T0}\ns_add_u32 s82, s82, {FL_C}")
    flag_set(a, 82, only_wave=None)
producer_fused(a, p2, std_handoff(FL_1, pre=colsum_job, sb=4), preA=3, loop_hook=lambda: PF and pfe_try(a, NT))
if STAMP['on'] and PF: a('v_writelane_b32 v255, s75, 25')
stamp(a, 7)
map_8x4(a)
p3_producer_setup(a, p3)
def cs_ready():
    a(f"s_lshl_b32 s82, s{S_CB}, 8\ns_add_u32 s82, s82, {FL_C}")
    poll(a, 30, 82, 0xffffffffffffffff)
class Hex(int):
    def __format__(self, spec): return "-1"
def cs_ready():
    if PF: pfe_try(a, NT)
    a(f"s_lshl_b32 s82, s{S_CB}, 8\ns_add_u32 s82, s82, {FL_C}")
    poll(a, 30, 82, Hex(0))
producer_fused(a, p3, std_handoff(FL_2, pre=cs_ready, sb=8), loop_hook=lambda: PF and pfe_try(a, NT), tail=([lambda: p3c_issue(a), None, lambda: p3c_finish(a)] if int(O.get('p3t', 1)) == 0 else [lambda: 0, lambda: p3c_issue(a), lambda: p3c_finish(a, 0)]))
p3c_finish(a, 1)
a('s_barrier')
if STAMP['on'] and PF: a('v_writelane_b32 v255, s75, 26')
stamp(a, 11)
map_p4(a)
p4_producer_setup(a, p4)
producer_fused(a, p4, std_handoff(FL_3, mask=0xff, extra_off=lambda: a(f"s_lshl_b32 s{S_T1}, s{S_KH}, 5\ns_add_u32 s{S_FO}, s{S_FO}, s{S_T1}"), sb=12))
stamp(a, 15)
a(f"s_cmp_lg_u32 s2, 0\ns_cbranch_scc1 L_pend\ns_cmp_lg_u32 s{S_WAVE}, 4\ns_cbranch_scc1 L_pend")
a(f"v_mov_b32 v28, 0\nv_mov_b32 v29, s{S_E}\ns_mov_b64 exec, 1\nbuffer_store_dword v29, v28, s[{SRD_F}:{SRD_F+3}], 0 offen sc1\ns_mov_b64 exec, -1")
a("L_pend:")
stamp_flush(a, 0, WS_TM)
a("L_done:\ns_endpgm\nKEND:")

ref = open('sequential_preLN__sliding_local_dilated__dense_activation_gelu__prompt.s.ref').read().split('\n')
hdr = [l for l in ref if l.startswith(';') and '@launch' not in l and 'Override' not in l and 'grid=ceil' not in l]
lst = '--list' in sys.argv
out = hdr + [f"; @launch " + (f"kernel={NAME} " if lst else "") + f"grid=(256,1,1) block=(512,1,1) lds={LDS}"]
out.append('.amdgcn_target "amdgcn-amd-amdhsa--gfx950"\n.text')
out.append(f".globl {NAME}\n.p2align 8\n.type {NAME},@function\n{NAME}:\n{a.text()}")
out.append('.section .rodata,"a"')
out.append(kernel_desc(NAME))
txt = '\n'.join(out) + '\n'
for x in hazard.check(txt): sys.stderr.write("HAZARD line %d [%s] -> line %d [%s]: need %d have %d\n" % x)
print(txt)
```

```python
import math

class Asm:
    def __init__(self):
        self.l = []; self.nlab = 0
    def __call__(self, s):
        for x in s.split('\n'):
            x = x.strip()
            if x: self.l.append(('' if x.endswith(':') else '    ') + x)
    def lab(self, base='L'):
        self.nlab += 1
        return f"{base}_{self.nlab}"
    def c(self, s): self.l.append('    ; ' + s)
    def text(self): return '\n'.join(self.l)

def vr(b, n=1): return f"v{b}" if n == 1 else f"v[{b}:{b+n-1}]"
def sr(b, n=1): return f"s{b}" if n == 1 else f"s[{b}:{b+n-1}]"

S_X, S_WQKV, S_WO, S_BX, S_W1, S_B1, S_W2, S_B2, S_OUT, S_DBG, S_WS = 4, 6, 8, 10, 12, 14, 16, 18, 20, 22, 24
S_WAVE = 26
S_W4 = 27
SRD_A, SRD_B, SRD_C, SRD_D = 28, 32, 36, 40
S_RB, S_CB, S_KH, S_ROT = 44, 45, 46, 47
S_T, S_KA, S_KB, S_LDS, S_CNT = 48, 49, 50, 51, 52
S_T0, S_T1, S_T2, S_T3 = 53, 54, 55, 56
S_TIME = 60
WS_BYTES = 268435456

def srd(a, dst, ptr, nbytes, off=0):
    if off:
        a(f"s_add_u32 s{dst}, s{ptr}, {off}\ns_addc_u32 s{dst+1}, s{ptr+1}, 0")
    else:
        a(f"s_mov_b32 s{dst}, s{ptr}\ns_mov_b32 s{dst+1}, s{ptr+1}")
    a(f"s_mov_b32 s{dst+2}, {nbytes}\ns_mov_b32 s{dst+3}, 0x20000")

def prologue(a, done):
    a(f"s_cmp_ge_u32 s2, 256\ns_cbranch_scc1 {done}")
    a("s_load_dwordx16 s[4:19], s[0:1], 0\ns_load_dwordx4 s[20:23], s[0:1], 64\ns_load_dwordx2 s[24:25], s[0:1], 80")
    a(f"v_lshrrev_b32 v1, 6, v0\nv_and_b32 v0, 63, v0\ns_nop 0\nv_readfirstlane_b32 s{S_WAVE}, v1")
    a(f"s_and_b32 s{S_W4}, s{S_WAVE}, 3")

S_SEQ = 100
def lead_seq(S, G, D, r, rot=0):
    out = [None]*S
    for s in range(S):
        if s % G == r:
            p = max(0, s - D)
            while out[p] is not None: p += 1
            out[p] = s
    it = iter([s for s in range(S) if s % G != r])
    for t in range(S):
        if out[t] is None: out[t] = next(it)
    return [(x + rot) % S for x in out]
def seq_setup(a, ph):
    nrot = 2 if getattr(ph, 'rot2', False) else 1
    for k in range(4*nrot):
        q = lead_seq(ph.S, 4, ph.lead, k & 3, (k >> 2)*(ph.S//2))
        if getattr(ph, 'base', None): q = [ph.base[x] for x in q]
        v = 0
        for t, x in enumerate(q):
            if ph.S <= 16: v |= x << (4*t)
            else:
                assert 0 <= x - t + 1 <= 3
                v |= (x - t + 1) << (2*t)
        if k == 0: a(f"s_mov_b32 s{S_SEQ}, {v & 0xffffffff:#x}\ns_mov_b32 s{S_SEQ+1}, {v >> 32:#x}")
        else: a(f"s_cmp_eq_u32 s{S_ROT}, {k}\ns_cselect_b32 s{S_SEQ}, {v & 0xffffffff:#x}, s{S_SEQ}\ns_cselect_b32 s{S_SEQ+1}, {v >> 32:#x}, s{S_SEQ+1}")
S_XR = 65
S_SL = 66
def slice_of_t(a, S, lead):
    if S <= 16:
        a(f"s_lshl_b32 s{S_T0}, s{S_T}, 2\ns_lshr_b64 s[{S_T1}:{S_T1+1}], s[{S_SEQ}:{S_SEQ+1}], s{S_T0}\ns_add_u32 s{S_T0}, s{S_T1}, s{S_XR}\ns_and_b32 s{S_T0}, s{S_T0}, 15")
    else:
        a(f"s_lshl_b32 s{S_T0}, s{S_T}, 1\ns_lshr_b64 s[{S_T1}:{S_T1+1}], s[{S_SEQ}:{S_SEQ+1}], s{S_T0}\ns_and_b32 s{S_T0}, s{S_T1}, 3\ns_add_u32 s{S_T0}, s{S_T0}, s{S_T}\ns_add_u32 s{S_T0}, s{S_T0}, s{S_XR}")
        a(f"s_sub_u32 s{S_T1}, s{S_T0}, {S}\ns_min_u32 s{S_T0}, s{S_T0}, s{S_T1}")

class Phase:
    pass

def emit_stage_loads(a, ph, which='AB', throttle=None, fill=None):
    fill = list(fill or []); npc = len([p for p in ph.pieces if p[0] in which]); per = -(-len(fill) // npc)
    for (kind, voff, sldsw, ldsoff, imm, cond) in ph.pieces:
        if kind not in which: continue
        skip = None
        if cond is not None:
            skip = a.lab('skip')
            a(f"s_cmp_ge_u32 s{S_W4}, {cond}\ns_cbranch_scc1 {skip}")
        if ldsoff is not None:
            a(f"s_add_u32 s{S_T3}, s{S_LDS}, s{sldsw}\ns_add_u32 m0, s{S_T3}, {ldsoff}\ns_nop 0")
        if throttle is not None: a(f"s_waitcnt vmcnt({throttle})")
        srdn, sk = (SRD_A, S_KA) if kind == 'A' else (SRD_B, S_KB)
        fl = ph.aflags if kind == 'A' else ph.bflags
        a(f"buffer_load_dwordx4 v{voff}, s[{srdn}:{srdn+3}], s{sk} offen" + (f" offset:{imm}" if imm else "") + (" " + fl if fl else "") + " lds")
        if skip: a(f"{skip}:")
        for x in fill[:per]: a(x)
        fill = fill[per:]

def set_stage_k(a, ph, need=None):
    slice_of_t(a, ph.S, ph.lead)
    if need: need()
    a(f"s_mul_i32 s{S_KA}, s{S_T0}, {ph.ka_step}\ns_mul_i32 s{S_KB}, s{S_T0}, {ph.kb_step}")

def next_slot(a, ph):
    a(f"s_add_u32 s{S_LDS}, s{S_LDS}, {ph.stage}\ns_cmp_ge_u32 s{S_LDS}, {ph.lds0 + ph.NS*ph.stage}\ns_cselect_b32 s{S_LDS}, {ph.lds0}, s{S_LDS}")

def producer_gemm(a, ph, after_first=None, opt={}):
    seq_setup(a, ph)
    n = ph.nmin
    bar = "" if opt.get('nobar') else "s_barrier"
    a.c(f"--- producer {ph.name}: prologue")
    a(f"s_mov_b32 s{S_T}, 0\ns_mov_b32 s{S_LDS}, {ph.lds0}")
    def stage():
        set_stage_k(a, ph)
        emit_stage_loads(a, ph)
        next_slot(a, ph)
        a(f"s_add_u32 s{S_T}, s{S_T}, 1")
    pre = ph.NS - 1
    for s in range(pre): stage()
    a(f"s_waitcnt vmcnt({min(63, (pre-1)*n)})\ns_barrier")
    stage()
    if after_first: after_first()
    L = a.lab('ploop')
    a(f"{L}:")
    a(f"s_waitcnt vmcnt({min(63, (ph.NS-2)*n)})\n{bar}")
    stage()
    a(f"s_cmp_lt_u32 s{S_T}, {ph.S}\ns_cbranch_scc1 {L}")
    for s in range(ph.S - ph.NS, ph.S - 1):
        left = (ph.S - 1) - (s + 1)
        a(f"s_waitcnt vmcnt({min(63, left*n)})\n{bar}")

def producer_fused(a, ph, handoff, extras=None, nextra=0, finish=None, preA=2, loop_hook=None, thr=6, mid=None, tail=None, peel_hook=None, need=None, PB=None, late=None, first_hook=None, post_seq=None):
    seq_setup(a, ph)
    if post_seq: post_seq()
    NS, S = ph.NS, ph.S
    nA = sum(1 for p in ph.pieces if p[0] == 'A' and p[5] is None)
    nB = sum(1 for p in ph.pieces if p[0] == 'B' and p[5] is None)
    n = nA + nB
    def issue(t, which, throttle=None):
        a(f"s_mov_b32 s{S_T}, {t}\ns_mov_b32 s{S_LDS}, {ph.lds0 + (t % NS)*ph.stage}")
        set_stage_k(a, ph, need if 'A' in which else None)
        emit_stage_loads(a, ph, which, throttle)
    a.c(f"--- producer {ph.name}: B prefill")
    PB = NS if PB is None else PB
    late = PB if late is None else late
    for t in range(PB):
        if t == late: mid()
        issue(t, 'B', thr)
    if late >= PB and mid: mid()
    rest = lambda t: ('A', nA) if t < PB else ('AB', n)
    handoff()
    q = []
    def wait(t):
        last = max(i for i, x in enumerate(q) if x[0] == t)
        a(f"s_waitcnt vmcnt({min(63, sum(x[1] for x in q[last+1:]))})")
    for t in range(preA):
        issue(t, rest(t)[0]); q.append((t, rest(t)[1]))
    wait(0); a("s_barrier")
    nxtA = preA
    s = 0
    while True:
        for _ in range(2):
            if nxtA < NS:
                issue(nxtA, rest(nxtA)[0]); q.append((nxtA, rest(nxtA)[1])); nxtA += 1
        if s == 0 and first_hook: first_hook()
        if extras and nxtA >= NS:
            extras(); q.append((-1, nextra)); extras = None
        if s >= NS - 1 and nxtA >= NS: break
        wait(s + 1); a("s_barrier")
        issue(s + NS, 'AB'); q.append((s + NS, n))
        if peel_hook: peel_hook()
        s += 1
    t0 = s + NS
    a(f"s_mov_b32 s{S_T}, {t0}\ns_mov_b32 s{S_LDS}, {ph.lds0 + (t0 % NS)*ph.stage}")
    first = True
    if finish:
        a(f"s_waitcnt vmcnt({min(63, (NS-2)*n)})\ns_barrier")
        set_stage_k(a, ph); emit_stage_loads(a, ph); next_slot(a, ph)
        a(f"s_add_u32 s{S_T}, s{S_T}, 1")
        finish()
    L = a.lab('ploop')
    a(f"{L}:")
    a(f"s_waitcnt vmcnt({min(63, (NS-2)*n)})\ns_barrier")
    set_stage_k(a, ph, need); emit_stage_loads(a, ph); next_slot(a, ph)
    if loop_hook: loop_hook()
    a(f"s_add_u32 s{S_T}, s{S_T}, 1\ns_cmp_lt_u32 s{S_T}, {S}\ns_cbranch_scc1 {L}")
    ex = 0
    if tail: ex = tail[0]()
    for s in range(S - NS, S - 1):
        left = (S - 1) - (s + 1)
        a(f"s_waitcnt vmcnt({min(63, left*n + ex)})\ns_barrier")
        k = s - (S - NS) + 1
        if tail and k < len(tail) and tail[k]: ex += tail[k]() or 0
    a("s_barrier")

class Q:
    def __init__(self, a): self.a = a; self.q = []
    def push(self, tag, n): self.q.append((tag, n))
    def wait(self, tag):
        last = max(i for i, x in enumerate(self.q) if x[0] == tag)
        self.a(f"s_waitcnt vmcnt({min(63, sum(x[1] for x in self.q[last+1:]))})")

def producer_unrolled(a, ph, jobs, pre_first=None, fills={}):
    seq_setup(a, ph)
    NS, S = ph.NS, ph.S
    n = sum(1 for p in ph.pieces if p[5] is None)
    q = Q(a)
    def issue(t, fill=None):
        a(f"s_mov_b32 s{S_T}, {t}\ns_mov_b32 s{S_LDS}, {ph.lds0 + (t % NS)*ph.stage}")
        set_stage_k(a, ph); emit_stage_loads(a, ph, fill=fill); q.push(t, n)
    for t in range(NS - 1): issue(t)
    if pre_first: pre_first()
    q.wait(0); a("s_barrier")
    issue(NS - 1)
    for f in jobs.get(-1, []): f(q)
    for s in range(S - 1):
        q.wait(s + 1); a("s_barrier")
        if s + NS < S: issue(s + NS, fills.get(s))
        else:
            for x in fills.get(s, []): a(x)
        for f in jobs.get(s, []): f(q)
    a("s_barrier")

def cond_jobs(a, jobs):
    for t, f in sorted(jobs.items()):
        L = a.lab('nj')
        a(f"s_cmp_lg_u32 s{S_T}, {t}\ns_cbranch_scc1 {L}")
        f()
        a(f"{L}:")

def producer_first(a, ph, pre_first, loop_hook, tail, peel_hook=None, early1=True):
    NS, S = ph.NS, ph.S
    n = sum(1 for p in ph.pieces if p[5] is None)
    a(f"s_mov_b32 s{S_T}, 0\ns_mov_b32 s{S_LDS}, {ph.lds0}")
    def stage():
        set_stage_k(a, ph); emit_stage_loads(a, ph); next_slot(a, ph)
    stage(); a(f"s_add_u32 s{S_T}, s{S_T}, 1")
    pre_first()
    if early1:
        stage(); a(f"s_add_u32 s{S_T}, s{S_T}, 1")
        a(f"s_waitcnt vmcnt({n})\ns_barrier")
    else:
        a(f"s_waitcnt vmcnt(0)\ns_barrier")
        stage(); a(f"s_add_u32 s{S_T}, s{S_T}, 1")
    stage()
    if peel_hook: peel_hook()
    a(f"s_add_u32 s{S_T}, s{S_T}, 1")
    L = a.lab('ploop')
    a(f"{L}:\ns_waitcnt vmcnt({(NS-2)*n})\ns_barrier")
    stage()
    loop_hook()
    a(f"s_add_u32 s{S_T}, s{S_T}, 1\ns_cmp_lt_u32 s{S_T}, {S}\ns_cbranch_scc1 {L}")
    ex = 0
    for s in range(S - NS, S - 1):
        left = (S - 1) - (s + 1)
        a(f"s_waitcnt vmcnt({min(63, left*n + ex)})\ns_barrier")
        k = s - (S - NS) + 1
        if k < len(tail) and tail[k]: ex += tail[k]() or 0
    a("s_barrier")

def reads(a, ph, st, kb):
    out = []
    A = []
    for i, e in enumerate(ph.afr):
        d = ph.va[st] + 4*i
        if len(e) == 3: A.append(f"ds_read_b128 {vr(d,4)}, v{e[kb]} offset:{e[2]}")
        else: A.append(f"ds_read_b128 {vr(d,4)}, v{e[0]} offset:{e[1] + kb*ph.a_kb}")
    B = []
    for i, (breg, off, half, kbs) in enumerate(ph.bfr):
        d = ph.vb[st] + 4*i
        B.append(f"ds_read_b64_tr_b16 {vr(d,2)}, v{breg} offset:{off + kb*kbs}")
        B.append(f"ds_read_b64_tr_b16 {vr(d+2,2)}, v{breg} offset:{off + kb*kbs + half}")
    return A + B

def mfmas(ph, st, first=False):
    out = []
    for (acc, ai, bi, swap) in ph.mm:
        A = vr(ph.va[st] + 4*ai, 4); B = vr(ph.vb[st] + 4*bi, 4)
        D = vr(ph.vacc + 4*acc, 4)
        C = "0" if first else D
        x, y = (B, A) if swap else (A, B)
        out.append(f"v_mfma_f32_16x16x32_bf16 {D}, {x}, {y}, {C}")
    return out

def interleave(a, M, R, lead=0, extra=None):
    R = list(R)
    per = max(1, math.ceil(len(R) / max(1, len(M) - lead - ph_tail(M, R))))
    for i, m in enumerate(M):
        a(m)
        if i >= lead:
            for _ in range(per):
                if R: a(R.pop(0))
    for r in R: a(r)

def ph_tail(M, R):
    return min(6, max(0, len(M) - len(R)))

def addr_update(a, ph):
    out = []
    out.append(f"s_add_u32 s{S_LDS}, s{S_LDS}, {ph.stage}")
    out.append(f"s_cmp_ge_u32 s{S_LDS}, {ph.NS*ph.stage}")
    out.append(f"s_cselect_b32 s{S_LDS}, 0, s{S_LDS}")
    out.append(f"s_cselect_b32 s{S_T0}, {(-(ph.NS-1)*ph.stage) & 0xffffffff:#x}, {ph.stage}" if False else f"s_cselect_b32 s{S_T0}, s{S_T1}, s{S_T2}")
    for cur in ph.addr_regs:
        out.append(f"v_add_u32 v{cur}, s{S_T0}, v{cur}")
    return out

def spread(a, M, F, start=0, end=None):
    end = len(M) if end is None else end
    n = max(1, end - start)
    F = list(F); k = 0
    for i, m in enumerate(M):
        a(m)
        if start <= i < end:
            want = ((i - start + 1) * len(F) + n - 1) // n
            while k < want: a(F[k]); k += 1
    while k < len(F): a(F[k]); k += 1

def merge(A, B):
    out = []; i = j = 0
    while i < len(A) or j < len(B):
        if j >= len(B) or (i < len(A) and i*len(B) <= j*len(A)): out.append(A[i]); i += 1
        else: out.append(B[j]); j += 1
    return out

def consumer_gemm(a, ph, opt={}, after_first=None, final_bar=False, sbase=0, after_half=None):
    a.c(f"--- consumer {ph.name}")
    bar = "" if opt.get('nobar') else "s_barrier"
    tail = opt.get('tail', 6)
    if opt.get('prio'): a(f"s_setprio {opt['prio']}")
    a(f"s_mov_b32 s{S_LDS}, 0\ns_mov_b32 s{S_CNT}, {ph.S - 2}")
    a(f"s_mov_b32 s{S_T1}, {(-(ph.NS-1)*ph.stage) & 0xffffffff:#x}\ns_mov_b32 s{S_T2}, {ph.stage}")
    a("s_barrier")
    if opt.get('stamp'): a("s_memtime s[68:69]")
    stamp(a, sbase + 2)
    for r in reads(a, ph, 0, 0): a(r)
    if after_first: after_first()
    a("s_waitcnt lgkmcnt(0)")
    nm = len(ph.mm)
    xf = opt.get('xf') or (lambda st: [])
    upd = addr_update(a, ph)
    early = opt.get('early', False)
    def half_a(first):
        M = mfmas(ph, 0, first=first)
        R = merge(reads(a, ph, 1, 1), xf(0))
        if early:
            e = max(1, nm - tail - 4)
            spread(a, M[:e], R)
            spread(a, M[e:], upd, 0, max(1, len(M[e:]) - 1))
        else:
            spread(a, M, R, 0, max(1, nm - tail))
    half_a(True)
    if after_half: after_half()
    L = a.lab('cloop')
    if opt.get('align'): a(f".p2align {opt['align']}")
    a(f"{L}:")
    pre = opt.get('pre', 0)
    a("s_waitcnt lgkmcnt(0)")
    M = mfmas(ph, 1)
    for m in M[:pre]: a(m)
    a(bar)
    F = merge(([] if early else upd) + reads(a, ph, 0, 0), xf(1))
    spread(a, M[pre:], F, 0, max(1, nm - pre - tail))
    a(f"s_waitcnt lgkmcnt(0)")
    half_a(False)
    a(f"s_sub_u32 s{S_CNT}, s{S_CNT}, 1")
    a(f"s_cbranch_scc0 {L}")
    a("s_waitcnt lgkmcnt(0)")
    M = mfmas(ph, 1)
    for m in M[:pre]: a(m)
    if final_bar: a("s_barrier")
    spread(a, M[pre:], xf(1))

STAMP = {'on': False}
def stamp(a, i, prod=False):
    if STAMP['on'] and not (prod and STAMP.get('noprod')):
        a(f"s_memrealtime s[92:93]\ns_waitcnt lgkmcnt(0)\nv_writelane_b32 v255, s92, {i}\ns_memtime s[92:93]\ns_waitcnt lgkmcnt(0)\nv_writelane_b32 v255, s92, {32+i}")
def stamp_flush(a, k, ws_tm):
    if STAMP['on']:
        srd(a, SRD_D, S_WS, 4 << 20, ws_tm)
        a(f"s_mov_b64 exec, -1\ns_lshl_b32 s{S_T0}, s2, 11\ns_lshl_b32 s{S_T1}, s{S_WAVE}, 8\ns_add_u32 s{S_T0}, s{S_T0}, s{S_T1}\ns_add_u32 s{S_T0}, s{S_T0}, {k*524288}")
        a(f"v_lshlrev_b32 v254, 2, v0\nbuffer_store_dword v255, v254, s[{SRD_D}:{SRD_D+3}], s{S_T0} offen")

def kernel_desc(name, vg=256, sg=102):
    return f""".p2align 6
.amdhsa_kernel {name}
  .amdhsa_next_free_vgpr {vg}
  .amdhsa_next_free_sgpr {sg}
  .amdhsa_accum_offset {(vg+3)//4*4}
  .amdhsa_group_segment_fixed_size 0
  .amdhsa_kernarg_size 88
  .amdhsa_user_sgpr_count 2
  .amdhsa_user_sgpr_kernarg_segment_ptr 1
  .amdhsa_system_sgpr_workgroup_id_x 1
  .amdhsa_float_denorm_mode_32 3
.end_amdhsa_kernel"""
```

```python
from gcore import *

import os
WS_BASE = int(os.environ.get('WSB', 0)) << 20
WS_XN = WS_BASE + 0
WS_O  = WS_BASE + (4 << 20)
WS_H  = WS_BASE + (8 << 20)
WS_G  = WS_BASE + (12 << 20)
WS_ST = WS_BASE + (28 << 20)
WS_CS = WS_BASE + (29 << 20)
WS_PX = WS_BASE + (32 << 20)
WS_FL = WS_BASE + (48 << 20)
WS_TM = 64 << 20

def map_8x4(a):
    a(f"s_and_b32 s{S_T0}, s2, 1\ns_lshl_b32 s{S_T0}, s{S_T0}, 3\ns_lshr_b32 s{S_T1}, s2, 3\ns_and_b32 s{S_T2}, s{S_T1}, 7\ns_add_u32 s{S_RB}, s{S_T0}, s{S_T2}")
    a(f"s_and_b32 s{S_T0}, s2, 7\ns_lshr_b32 s{S_T0}, s{S_T0}, 1\ns_lshl_b32 s{S_T0}, s{S_T0}, 2\ns_lshr_b32 s{S_T1}, s2, 6\ns_add_u32 s{S_CB}, s{S_T0}, s{S_T1}")
    a(f"s_add_u32 s{S_ROT}, s{S_RB}, s{S_CB}\ns_and_b32 s{S_ROT}, s{S_ROT}, 3")

def tr_lane_part(a, dst, t0, t1, pitch, jreg=None, j=0):
    a(f"v_lshrrev_b32 v{t0}, 2, v0")
    if pitch == 128:
        a(f"v_bfe_u32 v{t1}, v0, 3, 2")
    else:
        a(f"v_bfe_u32 v{t1}, v0, 4, 1")
    if jreg is not None: a(f"v_xor_b32 v{t1}, s{jreg}, v{t1}")
    else: a(f"v_xor_b32 v{t1}, {j}, v{t1}")
    a(f"v_lshlrev_b32 v{t1}, 5, v{t1}")
    a(f"v_lshlrev_b32 v{t0}, {int(math.log2(pitch))}, v{t0}")
    a(f"v_add_u32 v{dst}, v{t0}, v{t1}")
    a(f"v_and_b32 v{t0}, 3, v0\nv_lshlrev_b32 v{t0}, 3, v{t0}\nv_add_u32 v{dst}, v{dst}, v{t0}")

def dma_b_lane(a, dst, t0, t1, ldb, width):
    if width == 128:
        a(f"v_lshrrev_b32 v{t0}, 3, v0\nv_bfe_u32 v{t1}, v0, 4, 2\nv_lshlrev_b32 v{t1}, 1, v{t1}\nv_and_b32 v{dst}, 7, v0")
    else:
        a(f"v_lshrrev_b32 v{t0}, 2, v0\nv_bfe_u32 v{t1}, v0, 4, 1\nv_lshlrev_b32 v{t1}, 1, v{t1}\nv_and_b32 v{dst}, 3, v0")
    a(f"v_xor_b32 v{dst}, v{dst}, v{t1}\nv_lshlrev_b32 v{dst}, 4, v{dst}")
    a(f"v_mul_u32_u24 v{t0}, {ldb}, v{t0}\nv_add_u32 v{dst}, v{dst}, v{t0}")

S_LA, S_LB, S_LH = 57, 58, 59

def make_p3(lead=True, NS=3):
    ph = Phase(); ph.name = 'P3'; ph.S = 16; ph.NS = NS; ph.stage = 45056; ph.lds0 = 0; ph.lead = lead
    ph.ka_step = 2048; ph.kb_step = 64*7168; ph.aflags = ''; ph.bflags = ''
    ph.nmin = 11
    ph.pieces = []
    for i in range(2):
        ph.pieces.append(('A', 10+i, S_LA, i*2048, 0, None))
        ph.pieces.append(('A', 10+i, S_LA, None, 1024, None))
    for t in range(3):
        for i in range(2):
            ph.pieces.append(('B', 12 + t*2 + i, S_LB, 16384 + t*8192 + i*1024, 0, None))
    ph.pieces.append(('B', 18, S_LH, 40960, 0, None))
    ph.addr_regs = list(range(2, 10))
    ph.afr = [(2, 0), (2, 2048), (3, 0), (3, 2048)]
    ph.a_kb = 1024
    ph.bfr = [(4 + (c & 3), (c >> 2)*8192, 2048, 4096) for c in range(6)] + [(8, 0, 1024, 2048), (9, 0, 1024, 2048)]
    ph.va = [16, 32]; ph.vb = [48, 80]; ph.vacc = 112
    ph.mm = [(i*6 + c, i, c, True) for i in range(4) for c in range(6)] + [(24 + i*2 + c, i, 6 + c, True) for i in range(2) for c in range(2)]
    return ph

def p3_producer_setup(a, ph):
    srd(a, SRD_A, S_WS, 4 << 20, WS_H)
    srd(a, SRD_B, S_W1, 1024*3584*2)
    a(f"s_lshl_b32 s{S_LA}, s{S_W4}, 12\ns_lshl_b32 s{S_LB}, s{S_W4}, 11\ns_lshl_b32 s{S_LH}, s{S_W4}, 10")
    a(f"s_lshl_b32 s{S_T0}, s{S_RB}, 3\ns_lshl_b32 s{S_T1}, s{S_W4}, 1\ns_add_u32 s{S_T0}, s{S_T0}, s{S_T1}\ns_lshl_b32 s{S_T0}, s{S_T0}, 15")
    a(f"v_lshlrev_b32 v10, 4, v0\nv_add_u32 v10, s{S_T0}, v10\nv_add_u32 v11, 0x8000, v10")
    a(f"s_mul_i32 s{S_T0}, s{S_CB}, 448\ns_and_b32 s{S_T1}, s{S_CB}, 1\ns_lshl_b32 s{S_T2}, s{S_T1}, 6\ns_add_u32 s{S_T2}, s{S_T2}, s{S_T0}")
    a(f"s_cmp_eq_u32 s{S_T1}, 0\ns_cselect_b32 s{S_T1}, 384, 0\ns_add_u32 s{S_T1}, s{S_T1}, s{S_T0}")
    a(f"s_mul_i32 s{S_T0}, s{S_W4}, {16*7168}\ns_add_u32 s{S_T2}, s{S_T2}, s{S_T0}\ns_add_u32 s{S_T1}, s{S_T1}, s{S_T0}")
    dma_b_lane(a, 12, 20, 21, 7168, 128)
    a(f"v_add_u32 v12, s{S_T2}, v12")
    for t in range(3):
        for i in range(2):
            if t or i: a(f"v_add_u32 v{12+t*2+i}, {t*128 + i*8*7168}, v12")
    dma_b_lane(a, 18, 20, 21, 7168, 64)
    a(f"v_add_u32 v18, s{S_T1}, v18")

def p3_consumer_setup(a, ph):
    a(f"s_lshr_b32 s{S_T0}, s{S_W4}, 1\ns_and_b32 s{S_T1}, s{S_W4}, 1")
    a(f"s_lshl_b32 s{S_T2}, s{S_T0}, 13\ns_lshl_b32 s{S_T3}, s{S_T1}, 12\ns_add_u32 s{S_T3}, s{S_T3}, s{S_T2}")
    if ph.lds0: a(f"s_add_u32 s{S_T3}, s{S_T3}, {ph.lds0}")
    a(f"v_lshlrev_b32 v2, 4, v0\nv_add_u32 v2, s{S_T3}, v2\nv_xor_b32 v3, 0x1000, v2" if ph.lds0 % 8192 == 0 else "ERR")
    for k in range(4):
        a(f"s_lshl_b32 s{S_T2}, s{S_T1}, 1\ns_add_u32 s{S_T2}, s{S_T2}, {k}\ns_and_b32 s{S_T2}, s{S_T2}, 3")
        tr_lane_part(a, 4+k, 10, 11, 128, jreg=S_T2)
        a(f"s_mul_i32 s{S_T2}, s{S_T1}, {8192*(2 if k >= 2 else 1)}\ns_add_u32 s{S_T2}, s{S_T2}, {16384 + ph.lds0}\nv_add_u32 v{4+k}, s{S_T2}, v{4+k}")
    for j in range(2):
        tr_lane_part(a, 8+j, 10, 11, 64, j=j)
        a(f"v_add_u32 v{8+j}, {40960 + ph.lds0}, v{8+j}")

def xor16_32(a, v, t, op):
    a(f"v_mov_b32 v{t}, v{v}\ns_nop 1\nv_permlane16_swap_b32 v{t}, v{v}\ns_nop 0\n{op} v{v}, v{t}, v{v}")
    a(f"v_mov_b32 v{t}, v{v}\ns_nop 1\nv_permlane32_swap_b32 v{t}, v{v}\ns_nop 0\n{op} v{v}, v{t}, v{v}")

def xor16_32_multi(a, vs, ts, op):
    n = len(vs)
    for perm in ('v_permlane16_swap_b32', 'v_permlane32_swap_b32'):
        for v, t in zip(vs, ts): a(f"v_mov_b32 v{t}, v{v}")
        if n < 3: a(f"s_nop {2-n}")
        for v, t in zip(vs, ts): a(f"{perm} v{t}, v{v}")
        for v, t in zip(vs, ts): a(f"{op} v{v}, v{t}, v{v}")

def rbf(a, v):
    a(f"v_cvt_pk_bf16_f32 v{v}, v{v}, v{v}\nv_and_b32 v{v}, 0xffff0000, v{v}")

def ln_scale(a, vmean, vvar, t):
    rbf(a, vmean)
    a(f"v_max_f32 v{vvar}, 0, v{vvar}")
    rbf(a, vvar)
    a(f"v_add_f32 v{vvar}, 0x3727c5ac, v{vvar}")
    rbf(a, vvar)
    a(f"v_sqrt_f32 v{vvar}, v{vvar}\ns_nop 0")
    rbf(a, vvar)
    a(f"v_rcp_f32 v{vvar}, v{vvar}\ns_nop 0")

def tree_sum(a, regs, op="v_add_f32"):
    regs = list(regs)
    while len(regs) > 1:
        nxt = []
        for i in range(0, len(regs) - 1, 2):
            a(f"{op} v{regs[i]}, v{regs[i]}, v{regs[i+1]}"); nxt.append(regs[i])
        if len(regs) % 2: nxt.append(regs[-1])
        regs = nxt
    return regs[0]

def p0_ln(a, sf='', sid=2, lds0=0):
    srd(a, SRD_A, S_X, 2048*1024*2)
    srd(a, SRD_C, S_WS, 4 << 20, WS_XN)
    a(f"v_and_b32 v1, 7, v0\nv_lshlrev_b32 v2, 11, v1\nv_bfe_u32 v3, v0, 5, 1\nv_lshlrev_b32 v3, 6, v3\nv_add_u32 v2, v2, v3")
    a(f"v_bfe_u32 v4, v0, 3, 2\nv_lshlrev_b32 v3, 3, v4\nv_add_u32 v2, v2, v3\ns_lshl_b32 s{S_T0}, s{S_W4}, 9\nv_add_u32 v2, s{S_T0}, v2")
    a(f"s_lshl_b32 s{S_T1}, s{sid}, 14")
    for j in range(4):
        a(f"buffer_load_dwordx2 v[{16+4*j}:{17+4*j}], v2, s[{SRD_A}:{SRD_A+3}], s{S_T1} offen offset:{j*128}")
        a(f"buffer_load_dwordx2 v[{18+4*j}:{19+4*j}], v2, s[{SRD_A}:{SRD_A+3}], s{S_T1} offen offset:{j*128+32}")
    a(f"v_bfe_u32 v3, v0, 5, 1\nv_lshlrev_b32 v3, 10, v3\nv_lshlrev_b32 v4, 8, v4\nv_add_u32 v3, v3, v4\nv_lshlrev_b32 v4, 4, v1\nv_add_u32 v3, v3, v4")
    a(f"s_and_b32 s{S_T2}, s{sid}, 1\ns_lshl_b32 s{S_T2}, s{S_T2}, 7\ns_lshl_b32 s{S_T0}, s{S_W4}, 13\ns_add_u32 s{S_T2}, s{S_T2}, s{S_T0}\nv_add_u32 v3, s{S_T2}, v3")
    a(f"s_lshr_b32 s{S_T2}, s{sid}, 1\ns_lshl_b32 s{S_T2}, s{S_T2}, 15")
    a(f"v_lshlrev_b32 v5, 4, v1\nv_add_u32 v5, {lds0}, v5\ns_lshl_b32 s{S_T0}, s{S_W4}, 2\nv_add_u32 v6, s{S_T0}, v5")
    a("s_waitcnt vmcnt(0)")
    for k in range(16):
        a(f"v_lshlrev_b32 v{32+2*k}, 16, v{16+k}\nv_and_b32 v{33+2*k}, 0xffff0000, v{16+k}")
    for k in range(16): a(f"v_add_f32 v{64+k}, v{32+2*k}, v{33+2*k}")
    tree_sum(a, range(64, 80))
    def wg_reduce(off):
        a("s_nop 1\nv_add_f32_dpp v64, v64, v64 row_ror:8 row_mask:0xf bank_mask:0xf")
        xor16_32(a, 64, 65, "v_add_f32")
        a(f"ds_write_b32 v6, v64 offset:{off}\ns_waitcnt lgkmcnt(0)\ns_barrier\nds_read_b128 v[68:71], v5 offset:{off}\ns_waitcnt lgkmcnt(0)")
        a("v_add_f32 v68, v68, v69\nv_add_f32 v70, v70, v71\nv_add_f32 v68, v68, v70\nv_mul_f32 v68, 0x3a800000, v68")
    wg_reduce(0)
    a("v_mov_b32 v7, v68")
    for k in range(16):
        a(f"v_sub_f32 v80, v{32+2*k}, v7\nv_sub_f32 v81, v{33+2*k}, v7\nv_mul_f32 v{64+k}, v80, v80\nv_fmac_f32 v{64+k}, v81, v81")
    tree_sum(a, range(64, 80))
    wg_reduce(128)
    a("v_mov_b32 v8, v68")
    ln_scale(a, 7, 8, 9)
    for k in range(16):
        a(f"v_sub_f32 v80, v{32+2*k}, v7\nv_sub_f32 v81, v{33+2*k}, v7\nv_cvt_pk_bf16_f32 v82, v80, v81")
        a(f"v_lshlrev_b32 v80, 16, v82\nv_and_b32 v81, 0xffff0000, v82\nv_mul_f32 v80, v80, v8\nv_mul_f32 v81, v81, v8\nv_cvt_pk_bf16_f32 v{16+k}, v80, v81")
    for j in range(4):
        if j == 2: a(f"s_add_u32 s{S_T2}, s{S_T2}, 4096")
        a(f"buffer_store_dwordx4 v[{16+4*j}:{19+4*j}], v3, s[{SRD_C}:{SRD_C+3}], s{S_T2} offen offset:{(j&1)*2048} {sf}")

def p0_colsum(a, lds0, nbar_extra, sf=''):
    srd(a, SRD_B, S_W1, 1024*3584*2)
    srd(a, SRD_D, S_WS, 1 << 20, WS_CS)
    a("v_cmp_le_u32 vcc, 28, v0\nv_subrev_u32 v2, 28, v0\ns_nop 0\nv_cndmask_b32 v2, v0, v2, vcc\nv_cndmask_b32 v3, 0, 1, vcc")
    a(f"v_mul_u32_u24 v4, 7168, v3\nv_lshlrev_b32 v5, 4, v2\nv_add_u32 v4, v4, v5")
    a(f"s_lshr_b32 s{S_T0}, s2, 4\ns_lshl_b32 s{S_T0}, s{S_T0}, 6\ns_lshl_b32 s{S_T1}, s{S_W4}, 4\ns_add_u32 s{S_T0}, s{S_T0}, s{S_T1}\ns_mul_i32 s{S_T0}, s{S_T0}, 7168")
    a(f"s_and_b32 s{S_T1}, s2, 15\ns_mul_i32 s{S_T2}, s{S_T1}, 448\ns_add_u32 s{S_T0}, s{S_T0}, s{S_T2}")
    a("s_mov_b64 exec, 0x00ffffffffffffff" if False else "s_mov_b32 exec_hi, 0x00ffffff")
    for j in range(8):
        a(f"s_add_u32 s{S_T3}, s{S_T0}, {j*2*7168}\nbuffer_load_dwordx4 v[{16+4*j}:{19+4*j}], v4, s[{SRD_B}:{SRD_B+3}], s{S_T3} offen")
    a(f"s_lshl_b32 s{S_T3}, s{S_W4}, 1\nv_add_u32 v6, s{S_T3}, v3\nv_mul_u32_u24 v6, 896, v6\nv_lshlrev_b32 v5, 5, v2\nv_add_u32 v6, v6, v5")
    for j in range(8):
        a(f"s_waitcnt vmcnt({7-j})")
        for k in range(4):
            s = 16 + 4*j + k
            if j == 0:
                a(f"v_lshlrev_b32 v{48+2*k}, 16, v{s}\nv_and_b32 v{49+2*k}, 0xffff0000, v{s}")
            else:
                a(f"v_lshlrev_b32 v56, 16, v{s}\nv_and_b32 v57, 0xffff0000, v{s}\nv_add_f32 v{48+2*k}, v{48+2*k}, v56\nv_add_f32 v{49+2*k}, v{49+2*k}, v57")
    a(f"ds_write_b128 v6, v[48:51] offset:{lds0}\nds_write_b128 v6, v[52:55] offset:{lds0+16}")
    a("s_mov_b64 exec, -1\ns_waitcnt lgkmcnt(0)\ns_barrier")
    a(f"s_mul_i32 s{S_T3}, s{S_W4}, 224\nv_lshlrev_b32 v7, 2, v0\nv_add_u32 v7, s{S_T3}, v7")
    for k in range(8): a(f"ds_read_b32 v{16+k}, v7 offset:{lds0 + k*896}")
    a(f"s_lshr_b32 s{S_T0}, s2, 4\ns_mul_i32 s{S_T0}, s{S_T0}, {3584*4}\ns_mul_i32 s{S_T1}, s{S_T1}, 896\ns_add_u32 s{S_T0}, s{S_T0}, s{S_T1}")
    a("s_waitcnt lgkmcnt(0)")
    tree_sum(a, range(16, 24))
    a(f"s_mov_b32 exec_hi, 0x00ffffff\nbuffer_store_dword v16, v7, s[{SRD_D}:{SRD_D+3}], s{S_T0} offen {sf}\ns_mov_b64 exec, -1")
    for _ in range(nbar_extra): a("s_barrier")

def make_p1(lead=True):
    ph = Phase(); ph.name = 'P1'; ph.S = 16; ph.NS = 3; ph.stage = 43008; ph.lds0 = 0; ph.lead = lead
    ph.ka_step = 2048; ph.kb_step = 64*6144; ph.aflags = ''; ph.bflags = ''
    ph.nmin = 10
    ph.pieces = []
    for i in range(2):
        ph.pieces.append(('A', 10+i, S_LA, 2048 + i*2048, 0, None))
        ph.pieces.append(('A', 10+i, S_LA, None, 1024, None))
    ph.pieces.append(('A', 18, S_LH, 0, 0, 2))
    for t in range(3):
        for i in range(2):
            ph.pieces.append(('B', 12 + t*2 + i, S_LB, 18432 + t*8192 + i*1024, 0, None))
    ph.addr_regs = [2, 4, 5]
    ph.afr = [(2, i*2048) for i in range(5)]
    ph.a_kb = 1024
    ph.bfr = [(4 + c, t*8192, 2048, 4096) for t in range(3) for c in range(2)]
    ph.va = [16, 36]; ph.vb = [56, 80]; ph.vacc = 112
    mm = []
    for i in range(5):
        row = [(i*2 + c, i, 2 + c, True) for c in range(2)] + [(10 + i*2 + c, i, 4 + c, False) for c in range(2)]
        if i: row += [(20 + (i-1)*2 + c, i, c, True) for c in range(2)]
        mm += row if i % 2 == 0 else row[::-1]
    ph.mm = mm
    return ph

def a_frag_voff(a, rts_shift_or_mul, v, extra_sgpr=None):
    pass

def p1_producer_setup(a, ph):
    srd(a, SRD_A, S_WS, 4 << 20, WS_XN)
    srd(a, SRD_B, S_WQKV, 1024*3072*2)
    a(f"s_lshl_b32 s{S_LA}, s{S_W4}, 12\ns_lshl_b32 s{S_LB}, s{S_W4}, 11\ns_lshl_b32 s{S_LH}, s{S_W4}, 10")
    a(f"s_lshl_b32 s{S_T0}, s{S_RB}, 3\ns_lshl_b32 s{S_T1}, s{S_W4}, 1\ns_add_u32 s{S_T1}, s{S_T0}, s{S_T1}\ns_lshl_b32 s{S_T1}, s{S_T1}, 15")
    a(f"v_lshlrev_b32 v18, 4, v0\nv_add_u32 v10, s{S_T1}, v18\nv_add_u32 v11, 0x8000, v10")
    a(f"s_max_u32 s{S_T0}, s{S_T0}, 1\ns_sub_u32 s{S_T0}, s{S_T0}, 1\ns_lshl_b32 s{S_T0}, s{S_T0}, 15\ns_add_u32 s{S_T0}, s{S_T0}, s{S_LH}\nv_add_u32 v18, s{S_T0}, v18")
    a(f"s_lshl_b32 s{S_T2}, s{S_CB}, 7\ns_mul_i32 s{S_T0}, s{S_W4}, {16*6144}\ns_add_u32 s{S_T2}, s{S_T2}, s{S_T0}")
    dma_b_lane(a, 12, 20, 21, 6144, 128)
    a(f"v_add_u32 v12, s{S_T2}, v12")
    for t in range(3):
        for i in range(2):
            if t or i: a(f"v_add_u32 v{12+t*2+i}, {t*2048 + i*8*6144}, v12")

S_MASK = 64

def p1_consumer_setup(a, ph):
    a(f"s_lshr_b32 s{S_T0}, s{S_W4}, 1\ns_and_b32 s{S_T1}, s{S_W4}, 1")
    a(f"s_lshl_b32 s{S_T2}, s{S_T0}, 13\nv_lshlrev_b32 v2, 4, v0\nv_add_u32 v2, s{S_T2}, v2")
    if ph.lds0: a(f"v_add_u32 v2, {ph.lds0}, v2")
    for c in range(2):
        a(f"s_lshl_b32 s{S_T2}, s{S_T1}, 1\ns_add_u32 s{S_T2}, s{S_T2}, {c}")
        tr_lane_part(a, 4+c, 10, 11, 128, jreg=S_T2)
        a(f"v_add_u32 v{4+c}, {18432 + ph.lds0}, v{4+c}")
    a("v_and_b32 v10, 15, v0\nv_lshrrev_b32 v11, 4, v0\nv_lshlrev_b32 v11, 2, v11\nv_sub_u32 v10, v10, v11\nv_mov_b32 v12, 0xf149f2ca")
    for t in range(2):
        for r in range(4):
            a(f"v_add_u32 v11, {(16 if t == 0 else 0) - r}, v10\nv_and_b32 v11, 0xfffffff1, v11\nv_cmp_eq_u32 vcc, 0, v11\ns_nop 1\nv_cndmask_b32 v{224+4*t+r}, v12, 0, vcc")
    a(f"s_lshl_b32 s{S_T2}, s{S_RB}, 1\ns_add_u32 s{S_T2}, s{S_T2}, s{S_T0}\ns_cmp_eq_u32 s{S_T2}, 0\ns_cselect_b64 vcc, -1, 0")
    for r in range(4): a(f"v_cndmask_b32 v{232+r}, v{224+r}, v12, vcc")

def p1_epilogue(a, ph, sf='', fold=False, mid=None):
    acc = lambda n: ph.vacc + 4*n
    srd(a, SRD_C, S_WS, 4 << 20, WS_O)
    a(f"s_lshr_b32 s{S_T0}, s{S_W4}, 1\ns_and_b32 s{S_T1}, s{S_W4}, 1\ns_lshl_b32 s{S_T2}, s{S_RB}, 1\ns_add_u32 s{S_T2}, s{S_T2}, s{S_T0}")
    a(f"s_lshl_b32 s{S_T2}, s{S_T2}, 17\ns_lshl_b32 s{S_T3}, s{S_CB}, 1\ns_add_u32 s{S_T3}, s{S_T3}, s{S_T1}\ns_lshl_b32 s{S_T3}, s{S_T3}, 10\ns_add_u32 s{S_T2}, s{S_T2}, s{S_T3}")
    a(f"v_lshlrev_b32 v2, 4, v0\ns_mov_b32 s82, 0x3e8293ee\ns_mov_b32 s83, 0x3e8293ee")
    P = lambda r: f"v[{r}:{r+1}]"
    KP, QP, VP = 16, 36, 52
    for i in range(5):
        for c in range(2):
            for h in range(2):
                a(f"v_cvt_pk_bf16_f32 v{KP+4*i+2*c+h}, v{acc(i*2+c)+2*h}, v{acc(i*2+c)+2*h+1}")
        if i:
            for c in range(2):
                for h in range(2):
                    a(f"v_cvt_pk_bf16_f32 v{QP+4*(i-1)+2*c+h}, v{acc(20+(i-1)*2+c)+2*h}, v{acc(20+(i-1)*2+c)+2*h+1}")
    SS = 72
    a("s_nop 1")
    for i in range(1, 5):
        for t in range(2):
            d = SS + 8*(i-1) + 4*t
            a(f"v_mfma_f32_16x16x32_bf16 v[{d}:{d+3}], v[{KP+4*(i-1+t)}:{KP+4*(i-1+t)+3}], v[{QP+4*(i-1)}:{QP+4*(i-1)+3}], v[{(232 if (i == 1 and t == 0) else 224 + 4*t)}:{(232 if (i == 1 and t == 0) else 224 + 4*t) + 3}]")
    for i in range(5):
        for c in range(2):
            for h in range(2):
                a(f"v_cvt_pk_bf16_f32 v{VP+10*c+2*i+h}, v{acc(10+i*2+c)+2*h}, v{acc(10+i*2+c)+2*h+1}")
    if mid: mid()
    MX = [112, 114, 116, 118]; TT = [113, 115, 117, 119]
    for i in range(4):
        b = SS + 8*i
        a(f"v_max3_f32 v{MX[i]}, v{b}, v{b+1}, v{b+2}\nv_max3_f32 v{TT[i]}, v{b+3}, v{b+4}, v{b+5}")
    for i in range(4):
        b = SS + 8*i
        a(f"v_max3_f32 v{MX[i]}, v{MX[i]}, v{b+6}, v{b+7}")
    for i in range(4): a(f"v_max_f32 v{MX[i]}, v{MX[i]}, v{TT[i]}")
    xor16_32_multi(a, MX, TT, "v_max_f32")
    if fold:
        for i in range(4): a(f"v_mul_f32 v{MX[i]}, v{240+i}, v{MX[i]}")
        for k in range(0, 8, 2):
            for i in range(4): a(f"v_pk_fma_f32 {P(SS+8*i+k)}, {P(SS+8*i+k)}, {P(240 + (i & 2))}, {P(MX[i])} op_sel:[0,{i & 1},0] op_sel_hi:[1,{i & 1},0] neg_lo:[0,0,1] neg_hi:[0,0,1]")
    else:
        for i in range(4): a(f"v_mul_f32 v{MX[i]}, s82, v{MX[i]}")
        for k in range(0, 8, 2):
            for i in range(4): a(f"v_pk_fma_f32 {P(SS+8*i+k)}, {P(SS+8*i+k)}, s[82:83], {P(MX[i])} op_sel_hi:[1,1,0] neg_lo:[0,0,1] neg_hi:[0,0,1]")
    for i in range(4):
        for k in range(8): a(f"v_exp_f32 v{SS+8*i+k}, v{SS+8*i+k}")
    W = 136
    for k in range(2):
        for i in range(4): a(f"v_pk_add_f32 {P(W+4*i+2*k)}, {P(SS+8*i+4*k)}, {P(SS+8*i+4*k+2)}")
    for i in range(4): a(f"v_pk_add_f32 {P(W+4*i)}, {P(W+4*i)}, {P(W+4*i+2)}")
    for i in range(4): a(f"v_add_f32 v{MX[i]}, v{W+4*i}, v{W+4*i+1}")
    xor16_32_multi(a, MX, TT, "v_add_f32")
    for i in range(4): a(f"v_rcp_f32 v{MX[i]}, v{MX[i]}")
    PP = 120
    for k in range(0, 8, 2):
        for i in range(4): a(f"v_pk_mul_f32 {P(SS+8*i+k)}, {P(SS+8*i+k)}, {P(MX[i])} op_sel_hi:[1,0]")
    for i in range(4):
        for k in range(4): a(f"v_cvt_pk_bf16_f32 v{PP+4*i+k}, v{SS+8*i+2*k}, v{SS+8*i+2*k+1}")
    OO = 136
    a("s_nop 1")
    for i in range(4):
        for c in range(2):
            d = OO + 8*i + 4*c
            a(f"v_mfma_f32_16x16x32_bf16 v[{d}:{d+3}], v[{VP+10*c+2*i}:{VP+10*c+2*i+3}], v[{PP+4*i}:{PP+4*i+3}], 0")
    a("s_nop 1")
    for i in range(4):
        if i == 3: a("s_nop 1")
        for k in range(4): a(f"v_cvt_pk_bf16_f32 v{SS+4*i+k}, v{OO+8*i+2*k}, v{OO+8*i+2*k+1}")
        a(f"s_add_u32 s{S_T3}, s{S_T2}, {i*32768}\nbuffer_store_dwordx4 v[{SS+4*i}:{SS+4*i+3}], v2, s[{SRD_C}:{SRD_C+3}], s{S_T3} offen {sf}")

def map_4x8(a):
    a(f"s_and_b32 s{S_T0}, s2, 3\ns_lshl_b32 s{S_T0}, s{S_T0}, 2\ns_lshr_b32 s{S_T1}, s2, 3\ns_and_b32 s{S_T2}, s{S_T1}, 3\ns_add_u32 s{S_RB}, s{S_T0}, s{S_T2}")
    a(f"s_bfe_u32 s{S_T0}, s2, 0x10002\ns_lshl_b32 s{S_T0}, s{S_T0}, 3\ns_lshr_b32 s{S_T1}, s2, 5\ns_add_u32 s{S_CB}, s{S_T0}, s{S_T1}")
    a(f"s_add_u32 s{S_ROT}, s{S_RB}, s{S_CB}\ns_and_b32 s{S_ROT}, s{S_ROT}, 3")

def make_p2(lead=True):
    ph = Phase(); ph.name = 'P2'; ph.S = 16; ph.NS = 4; ph.stage = 24576; ph.lds0 = 0; ph.lead = lead
    ph.ka_step = 2048; ph.kb_step = 64*2048; ph.aflags = ''; ph.bflags = ''
    ph.nmin = 6
    ph.pieces = []
    for i in range(2):
        ph.pieces.append(('A', 10+i, S_LA, i*2048, 0, None))
        ph.pieces.append(('A', 10+i, S_LA, None, 1024, None))
    for i in range(2):
        ph.pieces.append(('B', 12 + i, S_LB, 16384 + i*1024, 0, None))
    ph.addr_regs = [2, 4, 5, 6, 7]
    ph.afr = [(2, 0), (2, 2048)]
    ph.a_kb = 1024
    ph.bfr = [(4 + j, 0, 2048, 4096) for j in range(4)]
    ph.va = [16, 24]; ph.vb = [32, 48]; ph.vacc = 64
    ph.mm = [(j, 0, j, True) for j in range(4)] + [(4 + j, 1, j, True) for j in range(3, -1, -1)]
    return ph

def p2_producer_setup(a, ph):
    srd(a, SRD_A, S_WS, 4 << 20, WS_O)
    srd(a, SRD_B, S_WO, 1024*1024*2)
    a(f"s_lshl_b32 s{S_LA}, s{S_W4}, 12\ns_lshl_b32 s{S_LB}, s{S_W4}, 11")
    a(f"s_lshl_b32 s{S_T0}, s{S_RB}, 3\ns_lshl_b32 s{S_T1}, s{S_W4}, 1\ns_add_u32 s{S_T1}, s{S_T0}, s{S_T1}\ns_lshl_b32 s{S_T1}, s{S_T1}, 15")
    a(f"v_lshlrev_b32 v10, 4, v0\nv_add_u32 v10, s{S_T1}, v10\nv_add_u32 v11, 0x8000, v10")
    a(f"s_lshl_b32 s{S_T2}, s{S_CB}, 7\ns_lshl_b32 s{S_T0}, s{S_W4}, 15\ns_add_u32 s{S_T2}, s{S_T2}, s{S_T0}")
    dma_b_lane(a, 12, 20, 21, 2048, 128)
    a(f"v_add_u32 v12, s{S_T2}, v12\nv_add_u32 v13, {8*2048}, v12")

P2_X = 200
def p2_res_loads(a):
    srd(a, SRD_D, S_X, 2048*1024*2)
    a(f"v_and_b32 v8, 15, v0\nv_lshlrev_b32 v8, 11, v8\nv_lshrrev_b32 v9, 4, v0\nv_lshlrev_b32 v9, 3, v9\nv_add_u32 v8, v8, v9")
    a(f"s_and_b32 s84, s2, 3\ns_lshl_b32 s84, s84, 20\ns_bfe_u32 s85, s2, 0x20003\ns_lshl_b32 s85, s85, 18\ns_add_u32 s84, s84, s85\ns_lshl_b32 s85, s{S_W4}, 16\ns_add_u32 s84, s84, s85")
    a(f"s_bfe_u32 s85, s2, 0x10002\ns_lshl_b32 s85, s85, 10\ns_add_u32 s84, s84, s85\ns_lshr_b32 s85, s2, 5\ns_lshl_b32 s85, s85, 7\ns_add_u32 s84, s84, s85\ns_add_u32 s85, s84, 32768")
    for i in range(2):
        for j in range(4):
            d = P2_X + 2*(i*4 + j)
            a(f"buffer_load_dwordx2 v[{d}:{d+1}], v8, s[{SRD_D}:{SRD_D+3}], s{84+i} offen offset:{j*32}")

def p2_consumer_setup(a, ph, res=True):
    if res: p2_res_loads(a)
    a(f"s_lshl_b32 s{S_T2}, s{S_W4}, 12\nv_lshlrev_b32 v2, 4, v0\nv_add_u32 v2, s{S_T2}, v2")
    if ph.lds0: a(f"v_add_u32 v2, {ph.lds0}, v2")
    for j in range(4):
        tr_lane_part(a, 4+j, 10, 11, 128, j=j)
        a(f"v_add_u32 v{4+j}, {16384 + ph.lds0}, v{4+j}")

def p2_epilogue(a, ph, sf=''):
    acc = ph.vacc
    srd(a, SRD_C, S_WS, 4 << 20, WS_H)
    srd(a, SRD_D, S_WS, 1 << 20, WS_ST)
    a(f"s_lshl_b32 s{S_T0}, s{S_RB}, 3\ns_lshl_b32 s{S_T1}, s{S_W4}, 1\ns_add_u32 s{S_T0}, s{S_T0}, s{S_T1}")
    a(f"s_lshl_b32 s{S_T1}, s{S_T0}, 15\ns_lshl_b32 s{S_T2}, s{S_CB}, 11\ns_add_u32 s{S_T1}, s{S_T1}, s{S_T2}\ns_add_u32 s{S_T2}, s{S_T1}, 32768")
    a(f"s_lshl_b32 s{S_T0}, s{S_T0}, 11\ns_lshl_b32 s{S_T3}, s{S_CB}, 7\ns_add_u32 s{S_T0}, s{S_T0}, s{S_T3}")
    a(f"v_lshlrev_b32 v2, 4, v0\nv_lshlrev_b32 v3, 3, v0")
    P = lambda r: f"v[{r}:{r+1}]"
    a("s_waitcnt vmcnt(0)")
    for n in range(16):
        a(f"v_lshlrev_b32 v{112+2*n}, 16, v{P2_X+n}\nv_and_b32 v{113+2*n}, 0xffff0000, v{P2_X+n}")
    for n in range(16): a(f"v_pk_add_f32 {P(acc+2*n)}, {P(acc+2*n)}, {P(112+2*n)}")
    for i in range(2):
        for p in range(2):
            d = 20 + 8*i + 4*p
            for k in range(4):
                s = acc + 16*i + 8*p + 2*k
                a(f"v_cvt_pk_bf16_f32 v{d+k}, v{s}, v{s+1}")
            a(f"buffer_store_dwordx4 v[{d}:{d+3}], v2, s[{SRD_C}:{SRD_C+3}], s{S_T1+i} offen offset:{p*1024} {sf}")
    for k in range(4):
        for i in range(2): a(f"v_pk_add_f32 {P(112+8*i+2*k)}, {P(acc+16*i+4*k)}, {P(acc+16*i+4*k+2)}")
    for k in range(2):
        for i in range(2): a(f"v_pk_add_f32 {P(112+8*i+4*k)}, {P(112+8*i+4*k)}, {P(112+8*i+4*k+2)}")
    for i in range(2): a(f"v_pk_add_f32 {P(112+8*i)}, {P(112+8*i)}, {P(112+8*i+4)}")
    a("v_add_f32 v40, v112, v113\nv_add_f32 v48, v120, v121")
    xor16_32_multi(a, [40, 48], [41, 49], "v_add_f32")
    a("v_mul_f32 v42, 0x3c800000, v40\nv_mul_f32 v50, 0x3c800000, v48")
    for k in range(8):
        for i in range(2): a(f"v_pk_add_f32 {P(acc+16*i+2*k)}, {P(acc+16*i+2*k)}, {P(42+8*i)} op_sel_hi:[1,0] neg_lo:[0,1] neg_hi:[0,1]")
    for k in range(2):
        for i in range(2): a(f"v_pk_mul_f32 {P(112+8*i+2*k)}, {P(acc+16*i+2*k)}, {P(acc+16*i+2*k)}")
    for k in range(2, 8):
        for i in range(2): a(f"v_pk_fma_f32 {P(112+8*i+2*(k&1))}, {P(acc+16*i+2*k)}, {P(acc+16*i+2*k)}, {P(112+8*i+2*(k&1))}")
    for i in range(2): a(f"v_pk_add_f32 {P(112+8*i)}, {P(112+8*i)}, {P(112+8*i+2)}")
    a("v_add_f32 v41, v112, v113\nv_add_f32 v49, v120, v121")
    xor16_32_multi(a, [41, 49], [43, 51], "v_add_f32")
    a("s_mov_b64 exec, 0xffff")
    a(f"buffer_store_dwordx2 v[40:41], v3, s[{SRD_D}:{SRD_D+3}], s{S_T0} offen {sf}")
    a(f"buffer_store_dwordx2 v[48:49], v3, s[{SRD_D}:{SRD_D+3}], s{S_T0} offen offset:2048 {sf}")
    a("s_mov_b64 exec, -1")

P3_CONST = 135168
def p3_const_issue(a, lf=''):
    srd(a, SRD_C, S_WS, 2 << 20, WS_ST)
    srd(a, SRD_D, S_B1, 3584*2)
    Lc = a.lab('cols'); Le = a.lab('cend')
    a(f"s_cmp_ge_u32 s{S_W4}, 2\ns_cbranch_scc1 {Lc}")
    a(f"v_lshrrev_b32 v22, 4, v0\nv_lshlrev_b32 v22, 11, v22\nv_and_b32 v23, 15, v0\nv_lshlrev_b32 v23, 3, v23\nv_add_u32 v22, v22, v23")
    a(f"s_lshl_b32 s{S_T0}, s{S_RB}, 14\ns_lshl_b32 s{S_T1}, s{S_W4}, 13\ns_add_u32 s{S_T0}, s{S_T0}, s{S_T1}")
    for c in range(16):
        a(f"buffer_load_dwordx2 v[{32+2*c}:{33+2*c}], v22, s[{SRD_C}:{SRD_C+3}], s{S_T0} offen offset:{c*128} {lf}")
    a(f"s_branch {Le}\n{Lc}:")
    a(f"s_mul_i32 s{S_T0}, s{S_CB}, 224\ns_and_b32 s{S_T1}, s{S_CB}, 1\ns_lshl_b32 s{S_T2}, s{S_T1}, 5\ns_add_u32 s{S_T2}, s{S_T2}, s{S_T0}")
    a(f"s_cmp_eq_u32 s{S_T1}, 0\ns_cselect_b32 s{S_T1}, 0, 192\ns_sub_u32 s{S_T1}, s{S_T0}, s{S_T1}")
    a(f"s_and_b32 s{S_T0}, s{S_W4}, 1\ns_lshl_b32 s{S_T0}, s{S_T0}, 7\nv_lshlrev_b32 v23, 1, v0\nv_add_u32 v23, s{S_T0}, v23\nv_min_u32 v23, 222, v23")
    a(f"v_cmp_gt_u32 vcc, 192, v23\nv_mov_b32 v24, s{S_T1}\nv_mov_b32 v25, s{S_T2}\nv_cndmask_b32 v24, v24, v25, vcc\nv_add_u32 v24, v24, v23")
    a(f"v_lshlrev_b32 v22, 2, v24\nv_lshlrev_b32 v24, 1, v24")
    for c in range(16):
        a(f"s_mov_b32 s{S_T0}, {(1 << 20) + c*3584*4}\nbuffer_load_dwordx2 v[{32+2*c}:{33+2*c}], v22, s[{SRD_C}:{SRD_C+3}], s{S_T0} offen {lf}")
    a(f"buffer_load_dword v64, v24, s[{SRD_D}:{SRD_D+3}], 0 offen")
    a(f"{Le}:")

def p3_const_finish(a):
    Lc = a.lab('cols'); Le = a.lab('cend')
    a(f"s_cmp_ge_u32 s{S_W4}, 2\ns_cbranch_scc1 {Lc}")
    for c in range(8): a(f"v_add_f32 v{70+c}, v{32+4*c}, v{34+4*c}")
    tree_sum(a, range(70, 78))
    a("v_mul_f32 v70, 0x3a800000, v70")
    for c in range(16):
        a(f"v_fma_f32 v{32+2*c}, v{32+2*c}, 0x3c800000, -v70" if False else f"v_mul_f32 v{32+2*c}, 0x3c800000, v{32+2*c}\nv_sub_f32 v{32+2*c}, v{32+2*c}, v70")
    for c in range(16):
        a(f"v_mul_f32 v{32+2*c}, v{32+2*c}, v{32+2*c}\nv_mul_f32 v{32+2*c}, 0x42800000, v{32+2*c}\nv_add_f32 v{33+2*c}, v{33+2*c}, v{32+2*c}")
    tree_sum(a, range(33, 64, 2))
    a("v_mul_f32 v71, 0x3a800000, v33")
    ln_scale(a, 70, 71, 72)
    a(f"v_mul_f32 v73, v70, v71\nv_mov_b32 v72, v71\ns_lshl_b32 s{S_T0}, s{S_W4}, 9\nv_lshlrev_b32 v22, 3, v0\nv_add_u32 v22, s{S_T0}, v22\nv_add_u32 v22, {P3_CONST}, v22")
    a(f"ds_write_b64 v22, v[72:73]\ns_branch {Le}\n{Lc}:")
    tree_sum(a, range(32, 64, 2)); tree_sum(a, range(33, 64, 2))
    a(f"v_lshlrev_b32 v34, 16, v64\nv_and_b32 v35, 0xffff0000, v64\nv_lshlrev_b32 v23, 2, v23\nv_add_u32 v23, {P3_CONST + 1024}, v23")
    a(f"ds_write_b64 v23, v[32:33]\nds_write_b64 v23, v[34:35] offset:896")
    a(f"{Le}:\ns_waitcnt lgkmcnt(0)")

def p3_epilogue(a, ph, sf=''):
    acc = lambda n: ph.vacc + 4*n
    srd(a, SRD_C, S_WS, 16 << 20, WS_G)
    a(f"s_lshr_b32 s{S_T0}, s{S_W4}, 1\ns_and_b32 s{S_T1}, s{S_W4}, 1")
    a(f"s_lshl_b32 s{S_T2}, s{S_T0}, 9\ns_lshl_b32 s{S_T3}, s{S_T1}, 8\ns_add_u32 s{S_T2}, s{S_T2}, s{S_T3}\ns_add_u32 s{S_T2}, s{S_T2}, {P3_CONST}")
    a(f"v_and_b32 v2, 15, v0\nv_lshlrev_b32 v2, 3, v2\nv_add_u32 v2, s{S_T2}, v2\nv_xor_b32 v3, 0x100, v2")
    for i in range(4): a(f"ds_read_b64 v[{8+2*i}:{9+2*i}], v{2 + (i >> 1)} offset:{(i & 1)*128}")
    a(f"s_mul_i32 s{S_T2}, s{S_T1}, 384\ns_add_u32 s{S_T2}, s{S_T2}, {P3_CONST + 1024}\nv_and_b32 v5, 0x30, v0\nv_add_u32 v4, s{S_T2}, v5\nv_add_u32 v5, {P3_CONST + 1024 + 768}, v5")
    CS, BB = 16, 48
    for c in range(8):
        r, o = (4, c*64) if c < 6 else (5, (c-6)*64)
        a(f"ds_read_b128 v[{CS+4*c}:{CS+4*c+3}], v{r} offset:{o}\nds_read_b128 v[{BB+4*c}:{BB+4*c+3}], v{r} offset:{o+896}")
    a(f"s_lshl_b32 s{S_T2}, s{S_RB}, 3\ns_lshl_b32 s{S_T3}, s{S_T0}, 2\ns_add_u32 s{S_T2}, s{S_T2}, s{S_T3}\ns_lshl_b32 s{S_T3}, s{S_T1}, 1")
    for i in range(4):
        a(f"s_xor_b32 s{84+i}, s{S_T3}, {i}\ns_add_u32 s{84+i}, s{84+i}, s{S_T2}\ns_mul_i32 s{84+i}, s{84+i}, {112*1024}")
    a(f"s_mul_i32 s{S_T2}, s{S_CB}, 7\ns_and_b32 s{S_T3}, s{S_CB}, 1\ns_mul_i32 s88, s{S_T1}, 3\ns_add_u32 s88, s88, s{S_T2}\ns_add_u32 s88, s88, s{S_T3}\ns_lshl_b32 s88, s88, 10")
    a(f"s_cmp_eq_u32 s{S_T3}, 0\ns_cselect_b32 s89, 6, 0\ns_add_u32 s89, s89, s{S_T2}\ns_lshl_b32 s89, s89, 10")
    a(f"v_lshlrev_b32 v6, 4, v0\nv_add_u32 v7, s89, v6\nv_add_u32 v6, s88, v6")
    k2 = -2.0*0.7978845608028654*1.4426950408889634
    import struct
    f2h = lambda x: struct.unpack('<I', struct.pack('<f', x))[0]
    KK, ONE = 224, 226
    a(f"v_mov_b32 v{KK}, {f2h(k2*0.044715):#x}\nv_mov_b32 v{KK+1}, {f2h(k2):#x}\nv_mov_b32 v{ONE}, 1.0\nv_mov_b32 v{ONE+1}, 1.0")
    a("s_waitcnt lgkmcnt(0)")
    units = [(i, p) for p in range(3) for i in range(4)] + [(0, 3), (1, 3)]
    P = lambda r: f"v[{r}:{r+1}]"
    for n, (i, p) in enumerate(units):
        A = acc(i*6 + 2*p) if p < 3 else acc(24 + i*2)
        T = 80 + 16*(n & 1); U = T + 8
        R = 8 + 2*i
        for k in range(0, 8, 2): a(f"v_pk_fma_f32 {P(T+k)}, {P(R)}, {P(CS+8*p+k)}, {P(BB+8*p+k)} op_sel:[1,0,0] op_sel_hi:[1,1,1] neg_lo:[1,0,0] neg_hi:[1,0,0]")
        for k in range(0, 8, 2): a(f"v_pk_fma_f32 {P(A+k)}, {P(R)}, {P(A+k)}, {P(T+k)} op_sel_hi:[0,1,1]")
        for k in range(0, 8, 2): a(f"v_pk_mul_f32 {P(T+k)}, {P(A+k)}, {P(A+k)}")
        for k in range(0, 8, 2): a(f"v_pk_fma_f32 {P(T+k)}, {P(T+k)}, {P(KK)}, {P(KK)} op_sel:[0,0,1] op_sel_hi:[1,0,1]")
        for k in range(0, 8, 2): a(f"v_pk_mul_f32 {P(T+k)}, {P(T+k)}, {P(A+k)}")
        for k in range(8): a(f"v_exp_f32 v{T+k}, v{T+k}")
        for k in range(0, 8, 2): a(f"v_pk_add_f32 {P(T+k)}, {P(T+k)}, {P(ONE)}")
        for k in range(8): a(f"v_rcp_f32 v{T+k}, v{T+k}")
        for k in range(0, 8, 2): a(f"v_pk_mul_f32 {P(A+k)}, {P(A+k)}, {P(T+k)}")
        for k in range(4): a(f"v_cvt_pk_bf16_f32 v{U+k}, v{A+2*k}, v{A+2*k+1}")
        if p < 3: a(f"buffer_store_dwordx4 v[{U}:{U+3}], v6, s[{SRD_C}:{SRD_C+3}], s{84+i} offen offset:{p*1024} {sf}")
        else: a(f"buffer_store_dwordx4 v[{U}:{U+3}], v7, s[{SRD_C}:{SRD_C+3}], s{84+i} offen {sf}")

def map_p4(a):
    a(f"s_and_b32 s{S_T0}, s2, 3\ns_lshl_b32 s{S_T0}, s{S_T0}, 2\ns_lshr_b32 s{S_T1}, s2, 3\ns_and_b32 s{S_T2}, s{S_T1}, 3\ns_add_u32 s{S_RB}, s{S_T0}, s{S_T2}")
    a(f"s_bfe_u32 s{S_KH}, s2, 0x10002\ns_lshr_b32 s{S_CB}, s2, 5")
    a(f"s_add_u32 s{S_ROT}, s{S_RB}, s{S_CB}\ns_and_b32 s{S_ROT}, s{S_ROT}, 3")

def make_p4(lead=True):
    ph = Phase(); ph.name = 'P4'; ph.S = 28; ph.NS = 3; ph.stage = 32768; ph.lds0 = 0; ph.lead = lead
    ph.ka_step = 2048; ph.kb_step = 64*2048; ph.aflags = ''; ph.bflags = ''
    ph.nmin = 8
    ph.pieces = []
    for i in range(2):
        ph.pieces.append(('A', 10+i, S_LA, i*2048, 0, None))
        ph.pieces.append(('A', 10+i, S_LA, None, 1024, None))
    for t in range(2):
        for i in range(2):
            ph.pieces.append(('B', 12 + 2*t + i, S_LB, 16384 + t*8192 + i*1024, 0, None))
    ph.addr_regs = [2, 4, 5, 6, 7]
    ph.afr = [(2, i*2048) for i in range(4)]
    ph.a_kb = 1024
    ph.bfr = [(4 + c, 0, 2048, 4096) for c in range(4)]
    ph.va = [16, 32]; ph.vb = [48, 64]; ph.vacc = 112
    ph.mm = [(i*4 + c, i, c, True) for i in range(4) for c in (range(4) if i % 2 == 0 else range(3, -1, -1))]
    return ph

def p4_producer_setup(a, ph):
    srd(a, SRD_A, S_WS, 16 << 20, WS_G)
    srd(a, SRD_B, S_W2, 3584*1024*2)
    a(f"s_lshl_b32 s{S_LA}, s{S_W4}, 12\ns_lshl_b32 s{S_LB}, s{S_W4}, 11")
    a(f"s_lshl_b32 s{S_T0}, s{S_RB}, 3\ns_lshl_b32 s{S_T1}, s{S_W4}, 1\ns_add_u32 s{S_T1}, s{S_T0}, s{S_T1}\ns_mul_i32 s{S_T1}, s{S_T1}, {112*1024}")
    a(f"s_mul_i32 s{S_T0}, s{S_KH}, {56*1024}\ns_add_u32 s{S_T1}, s{S_T1}, s{S_T0}")
    a(f"v_lshlrev_b32 v10, 4, v0\nv_add_u32 v10, s{S_T1}, v10\nv_add_u32 v11, {112*1024}, v10")
    a(f"s_lshl_b32 s{S_T2}, s{S_CB}, 8\ns_lshl_b32 s{S_T0}, s{S_W4}, 15\ns_add_u32 s{S_T2}, s{S_T2}, s{S_T0}\ns_mul_i32 s{S_T0}, s{S_KH}, {1792*2048}\ns_add_u32 s{S_T2}, s{S_T2}, s{S_T0}")
    dma_b_lane(a, 12, 20, 21, 2048, 128)
    a(f"v_add_u32 v12, s{S_T2}, v12\nv_add_u32 v13, {8*2048}, v12\nv_add_u32 v14, 128, v12\nv_add_u32 v15, 128, v13")

P4_H = 80
def p4_res_loads(a, lf=''):
    a(f"s_lshl_b32 s84, s82, 15\ns_lshl_b32 s85, s83, 10\ns_add_u32 s84, s84, s85")
    for i in range(4):
        a(f"s_add_u32 s85, s84, {i*32768}\nbuffer_load_dwordx4 v[{P4_H+4*i}:{P4_H+4*i+3}], v3, s[{SRD_C}:{SRD_C+3}], s85 offen {lf}")

def p4_consumer_setup(a, ph, lf='', res=True):
    srd(a, SRD_C, S_WS, 4 << 20, WS_H)
    srd(a, SRD_D, S_B2, 1024*2)
    a(f"s_lshr_b32 s{S_T0}, s{S_W4}, 1\ns_and_b32 s{S_T1}, s{S_W4}, 1")
    a(f"s_lshl_b32 s83, s{S_CB}, 2\ns_lshl_b32 s{S_T2}, s{S_KH}, 1\ns_add_u32 s83, s83, s{S_T2}\ns_add_u32 s83, s83, s{S_T1}")
    a(f"s_lshl_b32 s82, s{S_RB}, 3\ns_lshl_b32 s{S_T2}, s{S_T0}, 2\ns_add_u32 s82, s82, s{S_T2}")
    a(f"v_lshlrev_b32 v3, 4, v0")
    if res: p4_res_loads(a, lf)
    a(f"v_lshrrev_b32 v8, 4, v0\nv_lshlrev_b32 v8, 3, v8\ns_lshl_b32 s{S_T3}, s83, 6")
    a(f"buffer_load_dwordx2 v[96:97], v8, s[{SRD_D}:{SRD_D+3}], s{S_T3} offen\nbuffer_load_dwordx2 v[98:99], v8, s[{SRD_D}:{SRD_D+3}], s{S_T3} offen offset:32")
    a(f"s_lshl_b32 s{S_T2}, s{S_T0}, 13\nv_add_u32 v2, s{S_T2}, v3")
    if ph.lds0: a(f"v_add_u32 v2, {ph.lds0}, v2")
    for c in range(2):
        a(f"s_lshl_b32 s{S_T2}, s{S_T1}, 1\ns_add_u32 s{S_T2}, s{S_T2}, {c}")
        tr_lane_part(a, 4+c, 10, 11, 128, jreg=S_T2)
        a(f"s_lshl_b32 s{S_T2}, s{S_KH}, 13\ns_add_u32 s{S_T2}, s{S_T2}, {16384 + ph.lds0}\nv_add_u32 v{4+c}, s{S_T2}, v{4+c}\nv_xor_b32 v{6+c}, 0x2000, v{4+c}")

def p4_epilogue(a, ph, fval='1', fbase=0):
    acc = lambda n: ph.vacc + 4*n
    srd(a, SRD_C, S_WS, 8 << 20, WS_PX)
    srd(a, SRD_D, S_WS, 1 << 20, WS_FL)
    srd(a, SRD_A, S_OUT, 2048*1024*2)
    a(f"s_lshl_b32 s{S_T0}, s{S_RB}, 3\ns_add_u32 s{S_T0}, s{S_T0}, s{S_CB}\ns_lshl_b32 s{S_T0}, s{S_T0}, 1\ns_add_u32 s{S_T0}, s{S_T0}, s{S_KH}")
    a(f"s_lshl_b32 s{S_T1}, s{S_T0}, 2\ns_add_u32 s{S_T1}, s{S_T1}, s{S_W4}")
    a(f"s_lshl_b32 s84, s{S_T1}, 13\ns_xor_b32 s85, s84, 0x8000")
    a(f"s_lshl_b32 s86, s{S_T1}, 7\ns_add_u32 s86, s86, {fbase}\ns_xor_b32 s87, s86, 0x200")
    for i in range(4):
        for c in range(2):
            n = i*2 + c
            if n == 4: a("s_add_u32 s84, s84, 4096")
            a(f"buffer_store_dwordx4 v[{acc(i*4+2+c)}:{acc(i*4+2+c)+3}], v3, s[{SRD_C}:{SRD_C+3}], s84 offen offset:{(n & 3)*1024} sc1")
    a("s_waitcnt vmcnt(8)")
    for h in range(4):
        a(f"v_lshlrev_b32 v{100+2*h}, 16, v{96+h}\nv_and_b32 v{101+2*h}, 0xffff0000, v{96+h}")
    for i in range(4):
        for h in range(4):
            d = acc(i*4) + 2*h
            a(f"v_lshlrev_b32 v16, 16, v{P4_H+4*i+h}\nv_and_b32 v17, 0xffff0000, v{P4_H+4*i+h}")
            a(f"v_add_f32 v16, v16, v{100+2*h}\nv_add_f32 v17, v17, v{101+2*h}\nv_add_f32 v{d}, v{d}, v16\nv_add_f32 v{d+1}, v{d+1}, v17")
    a(f"v_mov_b32 v18, 0\nv_mov_b32 v19, {fval}\ns_waitcnt vmcnt(0)\ns_mov_b64 exec, 1")
    a(f"buffer_store_dword v19, v18, s[{SRD_D}:{SRD_D+3}], s86 offen sc1")
    L = a.lab('poll')
    a(f"s_mov_b32 s88, 0\n{L}:\ns_add_u32 s88, s88, 1\ns_cmp_gt_u32 s88, 0x40000\ns_cbranch_scc1 {L}_x\nbuffer_load_dword v20, v18, s[{SRD_D}:{SRD_D+3}], s87 offen sc1\ns_waitcnt vmcnt(0)\nv_readfirstlane_b32 s{S_T2}, v20\ns_cmp_lg_u32 s{S_T2}, {fval}\ns_cbranch_scc1 {L}")
    a(f"{L}_x:\ns_mov_b64 exec, -1")
    RX = 24
    for n in range(8):
        if n == 4: a("s_add_u32 s85, s85, 4096")
        a(f"buffer_load_dwordx4 v[{RX+4*n}:{RX+4*n+3}], v3, s[{SRD_C}:{SRD_C+3}], s85 offen offset:{(n & 3)*1024} sc1")
    a("v_and_b32 v4, 15, v0\nv_lshlrev_b32 v4, 11, v4\nv_bfe_u32 v5, v0, 4, 1\nv_lshlrev_b32 v5, 5, v5\nv_add_u32 v4, v4, v5\nv_bfe_u32 v5, v0, 5, 1\nv_lshlrev_b32 v5, 4, v5\nv_add_u32 v4, v4, v5")
    a(f"s_lshl_b32 s{S_T2}, s82, 15\ns_lshl_b32 s{S_T3}, s83, 6\ns_add_u32 s{S_T2}, s{S_T2}, s{S_T3}")
    for i in range(4):
        a(f"s_waitcnt vmcnt({6 - 2*i + i})")
        d = acc(i*4)
        for k in range(8): a(f"v_add_f32 v{d+k}, v{d+k}, v{RX+8*i+k}")
        U = 64 + 4*i
        for k in range(4): a(f"v_cvt_pk_bf16_f32 v{U+k}, v{d+2*k}, v{d+2*k+1}")
        a(f"s_add_u32 s{S_T3}, s{S_T2}, {i*32768}\ns_nop 0\nv_permlane16_swap_b32 v{U}, v{U+2}\nv_permlane16_swap_b32 v{U+1}, v{U+3}")
        a(f"buffer_store_dwordx4 v[{U}:{U+3}], v4, s[{SRD_A}:{SRD_A+3}], s{S_T3} offen")


S_E = 62
S_FO = 63
SRD_F = 96
FL_E, FL_0, FL_1, FL_2, FL_3, FL_C, FL_X = 0, 0x1000, 0x2000, 0x3000, 0x4000, 0x5000, 0x10000

def flag_off(a, dst, base, srow, scol):
    a(f"s_lshl_b32 s{dst}, s{srow}, 7\ns_lshl_b32 s{S_T0}, s{scol}, 2\ns_add_u32 s{dst}, s{dst}, s{S_T0}\ns_add_u32 s{dst}, s{dst}, {base}")

def flag_set(a, soff, only_wave=4):
    L = a.lab('noflag')
    if only_wave is not None: a(f"s_cmp_lg_u32 s{S_WAVE}, {only_wave}\ns_cbranch_scc1 {L}")
    a(f"v_mov_b32 v28, 0\nv_mov_b32 v29, s{S_E}\ns_mov_b64 exec, 1\nbuffer_store_dword v29, v28, s[{SRD_F}:{SRD_F+3}], s{soff} offen sc1\ns_mov_b64 exec, -1")
    a(f"{L}:")

def poll(a, voff, soff, execmask, hook=None):
    L = a.lab('poll')
    a(f"s_mov_b64 exec, {execmask:#x}\ns_mov_b32 s{S_T0}, 0\n{L}:")
    a(f"buffer_load_dword v31, v{voff}, s[{SRD_F}:{SRD_F+3}], s{soff} offen sc1\ns_add_u32 s{S_T0}, s{S_T0}, 1\ns_cmp_gt_u32 s{S_T0}, 0x20000\ns_cbranch_scc1 {L}_x")
    if hook: hook()
    a(f"s_waitcnt vmcnt(0)\nv_cmp_ne_u32 vcc, s{S_E}, v31\ns_cbranch_vccnz {L}\n{L}_x:\ns_waitcnt vmcnt(0)\ns_mov_b64 exec, -1")

def colsum_wave(a, sk, scb, sf='sc1'):
    srd(a, SRD_C, S_W1, 1024*3584*2)
    srd(a, SRD_D, S_WS, 1 << 20, WS_CS)
    a(f"v_lshrrev_b32 v22, 3, v0\nv_mul_u32_u24 v22, 7168, v22\nv_and_b32 v23, 7, v0\nv_min_u32 v23, 6, v23\nv_lshlrev_b32 v24, 4, v23\nv_add_u32 v22, v22, v24")
    a(f"s_mul_i32 s{S_T0}, s{sk}, {64*7168}\ns_mul_i32 s{S_T1}, s{scb}, 448\ns_add_u32 s{S_T0}, s{S_T0}, s{S_T1}\ns_mul_i32 s{S_T1}, s{S_W4}, 112\ns_add_u32 s{S_T0}, s{S_T0}, s{S_T1}")
    for j in range(8):
        a(f"s_add_u32 s{S_T1}, s{S_T0}, {j*8*7168}\nbuffer_load_dwordx4 v[{32+4*j}:{35+4*j}], v22, s[{SRD_C}:{SRD_C+3}], s{S_T1} offen")
    a(f"s_mul_i32 s{S_T0}, s{sk}, {3584*4}\ns_mul_i32 s{S_T1}, s{scb}, 896\ns_add_u32 s{S_T0}, s{S_T0}, s{S_T1}\ns_mul_i32 s{S_T1}, s{S_W4}, 224\ns_add_u32 s{S_T0}, s{S_T0}, s{S_T1}")
    cs_store_voff(a, 23, 23)
    for j in range(8):
        a(f"s_waitcnt vmcnt({7-j})")
        for x in cs_acc(32, j): a(x)
    for x in cs_fold(): a(x)
    a(f"s_mov_b32 exec_lo, 0x007f007f\ns_mov_b32 exec_hi, 0x007f007f\nbuffer_store_dwordx2 v[64:65], v23, s[{SRD_D}:{SRD_D+3}], s{S_T0} offen {sf}\ns_mov_b64 exec, -1")

CNT_LDS = 160256
def publish(a, k, base, srow, scol, cnt=None):
    L = a.lab('nopub')
    flag_off(a, S_FO, base, srow, scol)
    a(f"v_mov_b32 v236, {cnt or CNT_LDS + 4*k}\nv_mov_b32 v237, 1\nv_mov_b32 v238, 0\nv_mov_b32 v239, s{S_E}\ns_mov_b64 exec, 1")
    a(f"s_waitcnt vmcnt(0)\nds_add_rtn_u32 v237, v236, v237\ns_waitcnt lgkmcnt(0)\nv_cmp_ne_u32 vcc, 3, v237\ns_cbranch_vccnz {L}")
    a(f"buffer_store_dword v239, v238, s[{SRD_F}:{SRD_F+3}], s{S_FO} offen sc1\n{L}:\ns_mov_b64 exec, -1")

S_PF = 78
def pf_setup(a, ptr, share, span):
    a(f"s_lshl_b32 s{S_T0}, s2, 2\ns_add_u32 s{S_T0}, s{S_T0}, s{S_W4}\ns_mul_i32 s{S_T0}, s{S_T0}, {share}\ns_min_u32 s{S_T0}, s{S_T0}, {1024*share - span}\ns_add_u32 s{S_PF}, s{ptr}, s{S_T0}\ns_addc_u32 s{S_PF+1}, s{ptr+1}, 0")
def pf_step(a, n):
    a(f"s_waitcnt lgkmcnt({15 - n})")
    for i in range(n): a(f"s_load_dword s64, s[{S_PF}:{S_PF+1}], {i*64}")
    a(f"s_add_u32 s{S_PF}, s{S_PF}, {n*64}\ns_addc_u32 s{S_PF+1}, s{S_PF+1}, 0")
def pf_code(a, nbytes, per):
    L = a.lab('pc')
    a(f"s_getpc_b64 s[{S_PF}:{S_PF+1}]\n{L}:\ns_sub_u32 s{S_PF}, s{S_PF}, {L}-KSTART\ns_subb_u32 s{S_PF+1}, s{S_PF+1}, 0")
    a(f"s_lshr_b32 s{S_T0}, s2, 3\ns_lshl_b32 s{S_T0}, s{S_T0}, 2\ns_add_u32 s{S_T0}, s{S_T0}, s{S_W4}\ns_lshl_b32 s{S_T0}, s{S_T0}, 6")
    for i in range(per):
        a(f"s_add_u32 s{S_T1}, s{S_T0}, {i*8192}\ns_min_u32 s{S_T1}, s{S_T1}, KEND-KSTART-4\ns_load_dword s64, s[{S_PF}:{S_PF+1}], s{S_T1}")

WS_GR = WS_BASE + (30 << 20)
WS_CQ = WS_BASE + (31 << 20)
FL_Q = 0x7000
P1C = 153600

def make_p1x(lead=True):
    ph = make_p1(lead)
    ph.ka_step = 128
    ph.pieces = []
    for i in range(4):
        ph.pieces.append(('A', 6 + i, S_LA, 2048 + i*1024, 0, None))
    ph.pieces.append(('A', 18, S_LH, 0, 0, 2))
    for t in range(3):
        for i in range(2):
            ph.pieces.append(('B', 12 + t*2 + i, S_LB, 18432 + t*8192 + i*1024, 0, None))
    ph.addr_regs = [2, 3, 4, 5]
    ph.afr = [(2, 3, i*2048) for i in range(5)]
    ph.bfr = [(4 + c, t*8192, 512, 4096) for t in range(3) for c in range(2)]
    return ph

def p1x_producer_srds(a):
    srd(a, SRD_A, S_X, 2048*1024*2)
    srd(a, SRD_B, S_WQKV, 1024*3072*2)
def p1x_producer_setup(a, ph, srds=True):
    if srds: p1x_producer_srds(a)
    a(f"s_lshl_b32 s{S_LA}, s{S_W4}, 12\ns_lshl_b32 s{S_LB}, s{S_W4}, 11\ns_lshl_b32 s{S_LH}, s{S_W4}, 10")
    a("v_lshrrev_b32 v20, 3, v0\nv_lshlrev_b32 v20, 11, v20\nv_lshrrev_b32 v21, 4, v0\nv_and_b32 v22, 7, v0\nv_xor_b32 v21, v21, v22\nv_lshlrev_b32 v21, 4, v21\nv_add_u32 v20, v20, v21")
    a(f"s_lshl_b32 s{S_T0}, s{S_RB}, 18\ns_lshl_b32 s{S_T1}, s{S_W4}, 16\ns_add_u32 s{S_T1}, s{S_T1}, s{S_T0}")
    a(f"v_add_u32 v6, s{S_T1}, v20\nv_xor_b32 v21, 64, v20\nv_add_u32 v7, s{S_T1}, v21\nv_add_u32 v7, 0x4000, v7\nv_add_u32 v8, 0x8000, v6\nv_add_u32 v9, 0x8000, v7")
    a(f"s_max_u32 s{S_T0}, s{S_T0}, 0x8000\ns_sub_u32 s{S_T0}, s{S_T0}, 0x8000\ns_lshl_b32 s{S_T1}, s{S_W4}, 14\ns_add_u32 s{S_T0}, s{S_T0}, s{S_T1}")
    a(f"s_lshl_b32 s{S_T1}, s{S_W4}, 6\ns_and_b32 s{S_T1}, s{S_T1}, 64\nv_xor_b32 v18, s{S_T1}, v20\nv_add_u32 v18, s{S_T0}, v18")
    a(f"s_lshl_b32 s{S_T2}, s{S_CB}, 7\ns_mul_i32 s{S_T0}, s{S_W4}, {16*6144}\ns_add_u32 s{S_T2}, s{S_T2}, s{S_T0}")
    a("v_lshrrev_b32 v20, 3, v0\nv_mul_u32_u24 v20, 6144, v20\nv_bfe_u32 v21, v0, 4, 1\nv_lshlrev_b32 v21, 1, v21\nv_xor_b32 v21, v21, v22\nv_lshlrev_b32 v21, 4, v21")
    a(f"v_add_u32 v12, v20, v21\nv_add_u32 v12, s{S_T2}, v12\nv_xor_b32 v21, 64, v21\nv_add_u32 v13, v20, v21\nv_add_u32 v13, s{S_T2}, v13\nv_add_u32 v13, {8*6144}, v13")
    for t in range(1, 3):
        for i in range(2): a(f"v_add_u32 v{12+t*2+i}, {t*2048}, v{12+i}")

def p1x_consumer_setup(a, ph):
    a(f"s_lshr_b32 s{S_T0}, s{S_W4}, 1\ns_and_b32 s{S_T1}, s{S_W4}, 1")
    a(f"s_lshl_b32 s{S_T2}, s{S_T0}, 13\nv_and_b32 v10, 15, v0\nv_lshrrev_b32 v11, 1, v10\nv_lshrrev_b32 v2, 4, v0\nv_xor_b32 v2, v2, v11\nv_lshlrev_b32 v2, 4, v2")
    a(f"v_lshlrev_b32 v10, 7, v10\nv_add_u32 v2, v2, v10\nv_add_u32 v2, s{S_T2}, v2\nv_xor_b32 v3, 64, v2")
    a("v_lshrrev_b32 v10, 4, v0\nv_lshlrev_b32 v10, 10, v10\nv_bfe_u32 v11, v0, 2, 2\nv_lshlrev_b32 v11, 7, v11\nv_add_u32 v10, v10, v11")
    a(f"v_and_b32 v11, 3, v0\nv_lshlrev_b32 v11, 3, v11\nv_add_u32 v10, v10, v11\nv_add_u32 v10, 18432, v10\nv_bfe_u32 v11, v0, 3, 2")
    for c in range(2):
        a(f"s_lshl_b32 s{S_T2}, s{S_T1}, 1\ns_add_u32 s{S_T2}, s{S_T2}, {c}\nv_xor_b32 v{4+c}, s{S_T2}, v11\nv_lshlrev_b32 v{4+c}, 5, v{4+c}\nv_add_u32 v{4+c}, v{4+c}, v10")
    a("v_and_b32 v10, 15, v0\nv_lshrrev_b32 v11, 4, v0\nv_lshlrev_b32 v11, 2, v11\nv_sub_u32 v10, v10, v11\nv_mov_b32 v12, 0xf149f2ca")
    for t in range(2):
        for r in range(4):
            a(f"v_add_u32 v11, {(16 if t == 0 else 0) - r}, v10\nv_and_b32 v11, 0xfffffff1, v11\nv_cmp_eq_u32 vcc, 0, v11\ns_nop 1\nv_cndmask_b32 v{224+4*t+r}, v12, 0, vcc")
    a(f"s_lshl_b32 s{S_T2}, s{S_RB}, 1\ns_add_u32 s{S_T2}, s{S_T2}, s{S_T0}\ns_cmp_eq_u32 s{S_T2}, 0\ns_cselect_b64 vcc, -1, 0")
    for r in range(4): a(f"v_cndmask_b32 v{232+r}, v{224+r}, v12, vcc")

def wave_sum(a, vs, ts):
    def gap():
        if len(vs) < 3: a(f"s_nop {2 - len(vs)}")
    for m in ("quad_perm:[1,0,3,2]", "quad_perm:[2,3,0,1]", "row_half_mirror", "row_mirror"):
        gap()
        for v in vs: a(f"v_add_f32_dpp v{v}, v{v}, v{v} {m} row_mask:0xf bank_mask:0xf")
    xor16_32_multi(a, vs, ts, "v_add_f32")

def row_stats_issue(a, sid):
    srd(a, SRD_A, S_X, 2048*1024*2)
    a(f"v_lshlrev_b32 v1, 4, v0\ns_lshl_b32 s{S_T0}, s{sid}, 14\ns_lshl_b32 s{S_T1}, s{S_W4}, 12\ns_add_u32 s{S_T0}, s{S_T0}, s{S_T1}")
    for j in range(4): a(f"buffer_load_dwordx4 v[{16+4*j}:{19+4*j}], v1, s[{SRD_A}:{SRD_A+3}], s{S_T0} offen offset:{j*1024}")

def row_stats_finish(a, sid):
    P = lambda r: f"v[{r}:{r+1}]"
    srd(a, SRD_C, S_WS, 16384, WS_GR)
    a(f"s_lshl_b32 s{S_T0}, s{sid}, 6\ns_lshl_b32 s{S_T1}, s{S_W4}, 4\ns_add_u32 s{S_T0}, s{S_T0}, s{S_T1}\nv_mov_b32 v1, 0")
    a("s_waitcnt vmcnt(0)")
    for k in range(16): a(f"v_lshlrev_b32 v{32+2*k}, 16, v{16+k}\nv_and_b32 v{33+2*k}, 0xffff0000, v{16+k}")
    def psum(dst, src):
        for k in range(4):
            for r in range(2): a(f"v_pk_add_f32 {P(dst+8*r+2*k)}, {P(src+16*r+4*k)}, {P(src+16*r+4*k+2)}")
        for k in range(2):
            for r in range(2): a(f"v_pk_add_f32 {P(dst+8*r+4*k)}, {P(dst+8*r+4*k)}, {P(dst+8*r+4*k+2)}")
        for r in range(2): a(f"v_pk_add_f32 {P(dst+8*r)}, {P(dst+8*r)}, {P(dst+8*r+4)}")
        for r in range(2): a(f"v_add_f32 v{dst+8*r}, v{dst+8*r}, v{dst+8*r+1}")
        wave_sum(a, [dst, dst+8], [dst+1, dst+9])
        for r in range(2): a(f"v_mul_f32 v{dst+8*r}, 0x3a800000, v{dst+8*r}")
    psum(64, 32)
    for k in range(8):
        for r in range(2): a(f"v_pk_add_f32 {P(32+16*r+2*k)}, {P(32+16*r+2*k)}, {P(64+8*r)} op_sel_hi:[1,0] neg_lo:[0,1] neg_hi:[0,1]")
    for k in range(16): a(f"v_pk_mul_f32 {P(32+2*k)}, {P(32+2*k)}, {P(32+2*k)}")
    psum(80, 32)
    a("v_cvt_pk_bf16_f32 v80, v80, v88\nv_and_b32 v81, 0xffff0000, v80\nv_lshlrev_b32 v80, 16, v80")
    a("v_add_f32 v80, 0x3727c5ac, v80\nv_add_f32 v81, 0x3727c5ac, v81\nv_cvt_pk_bf16_f32 v80, v80, v81\nv_and_b32 v81, 0xffff0000, v80\nv_lshlrev_b32 v80, 16, v80")
    a("v_sqrt_f32 v80, v80\nv_sqrt_f32 v81, v81\ns_nop 0")
    a(f"v_cvt_pk_bf16_f32 v84, v64, v80\nv_cvt_pk_bf16_f32 v86, v72, v81\nv_mov_b32 v85, s{S_E}\nv_mov_b32 v87, s{S_E}")
    a(f"s_mov_b64 exec, 1\nbuffer_store_dwordx4 v[84:87], v1, s[{SRD_C}:{SRD_C+3}], s{S_T0} offen sc1\ns_mov_b64 exec, -1")

def cs_acc(src, j):
    out = []
    for k in range(4):
        s = src + 4*j + k
        if j == 0: out += [f"v_lshlrev_b32 v{64+2*k}, 16, v{s}", f"v_and_b32 v{65+2*k}, 0xffff0000, v{s}"]
        else: out += [f"v_lshlrev_b32 v{72+2*k}, 16, v{s}", f"v_and_b32 v{73+2*k}, 0xffff0000, v{s}"]
    if j:
        for k in range(4): out.append(f"v_pk_add_f32 v[{64+2*k}:{65+2*k}], v[{64+2*k}:{65+2*k}], v[{72+2*k}:{73+2*k}]")
    return out
def cs_fold():
    out = ["s_nop 1"]
    out += [f"v_permlane32_swap_b32 v{64+k}, v{68+k}" for k in range(4)]
    out += [f"v_add_f32 v{64+k}, v{64+k}, v{68+k}" for k in (2, 3, 0, 1)]
    out += ["s_nop 1", "v_permlane16_swap_b32 v64, v66", "v_permlane16_swap_b32 v65, v67", "v_add_f32 v64, v64, v66", "v_add_f32 v65, v65, v67", "s_nop 1"]
    out += [f"v_add_f32_dpp v{64+k}, v{64+k}, v{64+k} row_ror:8 row_mask:0xf bank_mask:0xf" for k in range(2)]
    return out
def cs_store_voff(a, dst, chunk):
    a(f"v_lshlrev_b32 v{dst}, 5, v{chunk}\nv_lshrrev_b32 v25, 4, v0\nv_lshlrev_b32 v25, 3, v25\nv_add_u32 v{dst}, v{dst}, v25")

def skip_w3(a):
    L = a.lab('w3')
    a(f"s_cmp_eq_u32 s{S_W4}, 3\ns_cbranch_scc1 {L}")
    return L

def jq_setup(a):
    a(f"v_lshrrev_b32 v22, 3, v0\nv_mul_u32_u24 v22, 6144, v22\nv_and_b32 v23, 7, v0\nv_lshlrev_b32 v24, 4, v23\nv_add_u32 v22, v22, v24")
    cs_store_voff(a, 23, 23)
    a(f"s_mul_i32 s84, s{S_RB}, {64*6144}\ns_lshl_b32 s{S_T1}, s{S_CB}, 7\ns_add_u32 s84, s84, s{S_T1}\ns_add_u32 s84, s84, s{S_LB}")
    for k in range(32, 64): a(f"v_mov_b32 v{k}, 0")
def jq_issue(a, q, js):
    L = skip_w3(a)
    for j in js:
        a(f"s_add_u32 s{S_T1}, s84, {j*8*6144}\nbuffer_load_dwordx4 v[{32+4*j}:{35+4*j}], v22, s[{SRD_B}:{SRD_B+3}], s{S_T1} offen")
    a(f"{L}:")
def jq_store(a, q):
    L = skip_w3(a)
    srd(a, SRD_D, S_WS, 1 << 20, WS_CQ)
    a(f"s_mul_i32 s{S_T0}, s{S_RB}, {3072*4}\ns_lshl_b32 s{S_T1}, s{S_CB}, 8\ns_add_u32 s{S_T0}, s{S_T0}, s{S_T1}\ns_add_u32 s{S_T0}, s{S_T0}, s{S_LA}")
    a(f"s_mov_b32 exec_lo, 0x00ff00ff\ns_mov_b32 exec_hi, 0x00ff00ff\nbuffer_store_dwordx2 v[64:65], v23, s[{SRD_D}:{SRD_D+3}], s{S_T0} offen sc1\ns_mov_b64 exec, -1")
    a(f"{L}:")
    q.push('jqs', 0)
def jq_flag(a, q):
    L = skip_w3(a)
    q.wait('jqs')
    a(f"s_lshl_b32 s82, s{S_CB}, 8\ns_lshl_b32 s{S_T0}, s{S_RB}, 4\ns_add_u32 s82, s82, s{S_T0}\ns_lshl_b32 s{S_T0}, s{S_W4}, 2\ns_add_u32 s82, s82, s{S_T0}\ns_add_u32 s82, s82, {FL_Q}")
    flag_set(a, 82, only_wave=None)
    a(f"{L}:")

def jg_loads(a):
    Lr = a.lab('rows'); Le = a.lab('gend')
    a(f"s_cmp_eq_u32 s{S_W4}, 3\ns_cbranch_scc1 {Lr}")
    srd(a, SRD_D, S_WS, 1 << 20, WS_CQ)
    a(f"v_and_b32 v22, 15, v0\nv_lshlrev_b32 v22, 4, v22\ns_lshl_b32 s82, s{S_CB}, 8\ns_lshl_b32 s{S_T0}, s{S_W4}, 2\ns_add_u32 s82, s82, s{S_T0}\ns_add_u32 s82, s82, {FL_Q}")
    a(f"buffer_load_dword v48, v22, s[{SRD_F}:{SRD_F+3}], s82 offen sc1")
    a(f"v_lshrrev_b32 v23, 4, v0\nv_mul_u32_u24 v23, {3072*4}, v23\nv_add_u32 v23, v23, v22\ns_lshl_b32 s{S_T0}, s{S_CB}, 8\ns_add_u32 s{S_T0}, s{S_T0}, s{S_LA}")
    for k in range(4):
        a(f"s_add_u32 s{S_T1}, s{S_T0}, {k*4*3072*4}\nbuffer_load_dwordx4 v[{32+4*k}:{35+4*k}], v23, s[{SRD_D}:{SRD_D+3}], s{S_T1} offen sc1")
    a(f"s_branch {Le}\n{Lr}:")
    srd(a, SRD_D, S_WS, 16384, WS_GR)
    a(f"s_lshl_b32 s{S_T0}, s{S_RB}, 7\ns_sub_u32 s{S_T0}, s{S_T0}, 16")
    a(f"v_add_u32 v22, s{S_T0}, v0\nv_add_u32 v23, 16, v22\nv_cmp_gt_i32 vcc, 0, v22\nv_add_u32 v24, 128, v0\nv_min_u32 v24, 143, v24\nv_cndmask_b32 v23, v22, v23, vcc")
    a(f"v_add_u32 v24, s{S_T0}, v24\nv_lshlrev_b32 v23, 3, v23\nv_add_u32 v22, 64, v22\nv_lshlrev_b32 v22, 3, v22\nv_lshlrev_b32 v24, 3, v24")
    a(f"buffer_load_dwordx2 v[32:33], v23, s[{SRD_D}:{SRD_D+3}], 0 offen sc1\nbuffer_load_dwordx2 v[34:35], v22, s[{SRD_D}:{SRD_D+3}], 0 offen sc1\nbuffer_load_dwordx2 v[36:37], v24, s[{SRD_D}:{SRD_D+3}], 0 offen sc1")
    a(f"{Le}:")
def fold4(a, b):
    P = lambda r: f"v[{r}:{r+1}]"
    for h in (0, 2): a(f"v_pk_add_f32 {P(b+h)}, {P(b+h)}, {P(b+4+h)}\nv_pk_add_f32 {P(b+8+h)}, {P(b+8+h)}, {P(b+12+h)}")
    for h in (0, 2): a(f"v_pk_add_f32 {P(b+h)}, {P(b+h)}, {P(b+8+h)}")
    a(f"s_nop 1\nv_permlane32_swap_b32 v{b}, v{b+2}\nv_permlane32_swap_b32 v{b+1}, v{b+3}\nv_add_f32 v{b}, v{b}, v{b+2}\nv_add_f32 v{b+1}, v{b+1}, v{b+3}")
    a(f"s_nop 1\nv_permlane16_swap_b32 v{b}, v{b+1}\nv_add_f32 v{b}, v{b}, v{b+1}")

def jg_issue(a, q):
    jg_loads(a); q.push('jg', 3)
def jg_process(a, q):
    q.wait('jg')
    Lc = a.lab('gchk'); Lr = a.lab('grows'); Lok = a.lab('gok'); Le = a.lab('gdone'); Lt = a.lab('gretry')
    a(f"s_mov_b32 s83, 0\n{Lc}:\ns_cmp_eq_u32 s{S_W4}, 3\ns_cbranch_scc1 {Lr}")
    a(f"v_cmp_ne_u32 vcc, s{S_E}, v48\ns_cbranch_vccnz {Lt}")
    fold4(a, 32)
    a(f"v_bfe_u32 v23, v0, 4, 1\nv_lshrrev_b32 v24, 5, v0\nv_lshl_add_u32 v23, v24, 1, v23\nv_lshl_add_u32 v22, v23, 2, v22")
    a(f"s_lshl_b32 s{S_T0}, s{S_W4}, 8\ns_add_u32 s{S_T0}, s{S_T0}, {P1C}\nv_add_u32 v22, s{S_T0}, v22\nds_write_b32 v22, v32\ns_branch {Le}")
    a(f"{Lt}:\ns_add_u32 s83, s83, 1\ns_cmp_gt_u32 s83, 0x8000\ns_cbranch_scc1 {Le}")
    jg_loads(a)
    a(f"s_waitcnt vmcnt(0)\ns_branch {Lc}")
    a(f"{Lr}:\nv_cmp_ne_u32 vcc, s{S_E}, v33\ns_cbranch_vccnz {Lt}\nv_cmp_ne_u32 vcc, s{S_E}, v35\ns_cbranch_vccnz {Lt}\nv_cmp_ne_u32 vcc, s{S_E}, v37\ns_cbranch_vccnz {Lt}")
    for j in range(3):
        a(f"v_and_b32 v{40+2*j}, 0xffff0000, v{32+2*j}\nv_lshlrev_b32 v{41+2*j}, 16, v{32+2*j}")
    for j in range(3): a(f"v_rcp_f32 v{40+2*j}, v{40+2*j}")
    a(f"v_add_u32 v24, 128, v0\nv_min_u32 v24, 143, v24\nv_lshlrev_b32 v25, 2, v24\nv_lshlrev_b32 v24, 3, v24\nv_lshlrev_b32 v23, 3, v0")
    a(f"v_add_u32 v22, {P1C}, v30\nv_add_u32 v23, {P1C}, v23\nv_add_u32 v24, {P1C}, v24\nv_add_u32 v25, {P1C}, v25")
    a("ds_write_b64 v23, v[40:41] offset:768\nds_write_b64 v23, v[42:43] offset:1280\nds_write_b64 v24, v[44:45] offset:768")
    a("ds_write_b32 v22, v41 offset:1920\nds_write_b32 v22, v43 offset:2176\nds_write_b32 v25, v45 offset:1920")
    a("ds_write_b32 v22, v40 offset:2496\nds_write_b32 v22, v42 offset:2752\nds_write_b32 v25, v44 offset:2496")
    a(f"{Le}:\ns_waitcnt lgkmcnt(0)")

def p1x_fold(a, ph):
    acc = lambda n: ph.vacc + 4*n
    P = lambda r: f"v[{r}:{r+1}]"
    a(f"s_lshr_b32 s{S_T0}, s{S_W4}, 1\ns_and_b32 s{S_T1}, s{S_W4}, 1")
    a(f"s_lshl_b32 s{S_T2}, s{S_T0}, 9\ns_add_u32 s{S_T2}, s{S_T2}, {P1C + 768}\nv_and_b32 v6, 15, v0\nv_lshlrev_b32 v7, 3, v6\nv_add_u32 v7, s{S_T2}, v7")
    a(f"s_lshl_b32 s{S_T2}, s{S_T0}, 8\ns_add_u32 s{S_T2}, s{S_T2}, {P1C + 1920}\nv_and_b32 v8, 0x30, v0\nv_add_u32 v9, s{S_T2}, v8")
    a(f"s_lshl_b32 s{S_T2}, s{S_T1}, 7\ns_add_u32 s{S_T2}, s{S_T2}, {P1C}\nv_add_u32 v8, s{S_T2}, v8\nv_lshlrev_b32 v6, 2, v6\nv_add_u32 v6, s{S_T2}, v6")
    RM, CQ, CK, CV, MV, RV = 16, 28, 36, 44, 48, 68
    for i in range(5): a(f"ds_read_b64 {P(RM+2*i)}, v7 offset:{i*128}")
    for c in range(2): a(f"ds_read_b128 v[{CK+4*c}:{CK+4*c+3}], v8 offset:{256 + c*64}")
    for c in range(2): a(f"ds_read_b128 v[{CQ+4*c}:{CQ+4*c+3}], v8 offset:{c*64}")
    for c in range(2): a(f"ds_read_b32 v{CV+2*c}, v6 offset:{512 + c*64}")
    for i in range(5): a(f"ds_read_b128 v[{MV+4*i}:{MV+4*i+3}], v9 offset:{i*64}")
    a("s_waitcnt lgkmcnt(7)")
    for i in range(5): a(f"ds_read_b128 v[{RV+4*i}:{RV+4*i+3}], v9 offset:{576 + i*64}")
    for i in range(5):
        for c in range(2):
            for h in (0, 2): a(f"v_pk_fma_f32 {P(acc(i*2+c)+h)}, {P(RM+2*i)}, {P(CK+4*c+h)}, {P(acc(i*2+c)+h)} op_sel:[1,0,0] op_sel_hi:[1,1,1] neg_lo:[1,0,0] neg_hi:[1,0,0]")
    for i in range(1, 5):
        for c in range(2):
            for h in (0, 2): a(f"v_pk_fma_f32 {P(acc(20+(i-1)*2+c)+h)}, {P(RM+2*i)}, {P(CQ+4*c+h)}, {P(acc(20+(i-1)*2+c)+h)} op_sel:[1,0,0] op_sel_hi:[1,1,1] neg_lo:[1,0,0] neg_hi:[1,0,0]")
        a(f"v_mul_f32 v{239+i}, 0x3e8293ee, v{RM+2*i}")
    for i in range(5):
        for c in range(2):
            for h in (0, 2): a(f"v_pk_mul_f32 {P(acc(i*2+c)+h)}, {P(acc(i*2+c)+h)}, {P(RM+2*i)} op_sel_hi:[1,0]")
    a("s_waitcnt lgkmcnt(0)")
    for i in range(5):
        for c in range(2):
            for h in (0, 2): a(f"v_pk_fma_f32 {P(acc(10+i*2+c)+h)}, {P(MV+4*i+h)}, {P(CV+2*c)}, {P(acc(10+i*2+c)+h)} op_sel_hi:[1,0,1] neg_lo:[1,0,0] neg_hi:[1,0,0]")
    for i in range(5):
        for c in range(2):
            for h in (0, 2): a(f"v_pk_mul_f32 {P(acc(10+i*2+c)+h)}, {P(acc(10+i*2+c)+h)}, {P(RV+4*i+h)}")

def pf_chunk_setup(a, sk, scb):
    a(f"s_lshl_b32 s{S_T0}, s{sk}, 6\ns_lshl_b32 s{S_T1}, s{S_W4}, 4\ns_add_u32 s{S_T0}, s{S_T0}, s{S_T1}\ns_mul_i32 s{S_T0}, s{S_T0}, 7168\ns_mul_i32 s{S_T1}, s{scb}, 448\ns_add_u32 s{S_T0}, s{S_T0}, s{S_T1}")
    a(f"s_add_u32 s{S_PF}, s{S_W1}, s{S_T0}\ns_addc_u32 s{S_PF+1}, s{S_W1+1}, 0")
def pf_chunk_step(a, extra):
    a(f"s_waitcnt lgkmcnt({15 - 7 - extra})")
    for i in range(7): a(f"s_load_dword s64, s[{S_PF}:{S_PF+1}], {i*64}")
    for i in range(extra): a(f"s_load_dword s64, s[76:77], {i*64}")
    a(f"s_add_u32 s{S_PF}, s{S_PF}, 7168\ns_addc_u32 s{S_PF+1}, s{S_PF+1}, 0")
    if extra: a(f"s_add_u32 s76, s76, {extra*64}\ns_addc_u32 s77, s77, 0")

def p3c_issue(a):
    srd(a, SRD_C, S_WS, 2 << 20, WS_ST)
    srd(a, SRD_D, S_B1, 3584*2)
    a(f"v_lshlrev_b32 v22, 4, v0\ns_lshl_b32 s{S_T0}, s{S_RB}, 14\ns_add_u32 s{S_T0}, s{S_T0}, s{S_LA}")
    for j in range(4): a(f"buffer_load_dwordx4 v[{32+4*j}:{35+4*j}], v22, s[{SRD_C}:{SRD_C+3}], s{S_T0} offen offset:{j*1024} sc1")
    a(f"s_mul_i32 s{S_T0}, s{S_CB}, 224\ns_and_b32 s{S_T1}, s{S_CB}, 1\ns_lshl_b32 s{S_T2}, s{S_T1}, 5\ns_add_u32 s{S_T2}, s{S_T2}, s{S_T0}")
    a(f"s_cmp_eq_u32 s{S_T1}, 0\ns_cselect_b32 s{S_T1}, 0, 192\ns_sub_u32 s{S_T1}, s{S_T0}, s{S_T1}")
    a(f"s_mul_i32 s{S_T0}, s{S_W4}, 14\nv_and_b32 v23, 15, v0\nv_min_u32 v23, 13, v23\nv_add_u32 v23, s{S_T0}, v23\nv_lshlrev_b32 v23, 2, v23")
    a(f"v_cmp_gt_u32 vcc, 192, v23\nv_mov_b32 v24, s{S_T1}\nv_mov_b32 v25, s{S_T2}\nv_cndmask_b32 v24, v24, v25, vcc\nv_add_u32 v24, v24, v23")
    a(f"v_lshrrev_b32 v25, 4, v0\nv_mul_u32_u24 v26, {3584*4}, v25\nv_lshl_add_u32 v26, v24, 2, v26")
    for k in range(4): a(f"s_mov_b32 s{S_T0}, {(1 << 20) + k*4*3584*4}\nbuffer_load_dwordx4 v[{48+4*k}:{51+4*k}], v26, s[{SRD_C}:{SRD_C+3}], s{S_T0} offen sc1")
    a("v_bfe_u32 v25, v0, 4, 1\nv_lshrrev_b32 v26, 5, v0\nv_lshl_add_u32 v25, v26, 1, v25\nv_add_u32 v23, v23, v25\nv_add_u32 v24, v24, v25\nv_lshlrev_b32 v24, 1, v24")
    a(f"buffer_load_ushort v64, v24, s[{SRD_D}:{SRD_D+3}], 0 offen")
    return 9
def allsum3(a, vs, ts):
    for v in vs: a(f"v_add_f32_dpp v{v}, v{v}, v{v} row_ror:8 row_mask:0xf bank_mask:0xf")
    xor16_32_multi(a, vs, ts, "v_add_f32")
def p3c_finish(a, part):
    M = [70, 71, 72, 73]
    V = [80, 81, 82, 83]
    if part == 1: return p3c_finish2(a, M, V)
    a("s_waitcnt vmcnt(0)")
    for t in range(2):
        for r in range(2): a(f"v_add_f32 v{M[2*t+r]}, v{32+8*t+2*r}, v{36+8*t+2*r}")
    fold4(a, 48)
    allsum3(a, M, [74, 75, 76, 77])
    for m in M: a(f"v_mul_f32 v{m}, 0x3a800000, v{m}")
def p3c_finish2(a, M, V):
    a("s_mov_b32 s84, 0x3c800000\ns_mov_b32 s85, 0x42800000")
    for t in range(2):
        for j in range(2):
            for r in range(2): a(f"v_fma_f32 v{32+8*t+4*j+2*r}, v{32+8*t+4*j+2*r}, s84, -v{M[2*t+r]}")
    for t in range(2):
        for j in range(2):
            for r in range(2): a(f"v_mul_f32 v{32+8*t+4*j+2*r}, v{32+8*t+4*j+2*r}, v{32+8*t+4*j+2*r}")
    for t in range(2):
        for j in range(2):
            for r in range(2): a(f"v_fma_f32 v{33+8*t+4*j+2*r}, v{32+8*t+4*j+2*r}, s85, v{33+8*t+4*j+2*r}")
    for t in range(2):
        for r in range(2): a(f"v_add_f32 v{V[2*t+r]}, v{33+8*t+2*r}, v{37+8*t+2*r}")
    a(f"v_lshlrev_b32 v49, 16, v64\nv_lshlrev_b32 v23, 2, v23\nv_add_u32 v23, {P3_CONST + 1024}, v23\nds_write_b32 v23, v48\nds_write_b32 v23, v49 offset:896")
    allsum3(a, V, [74, 75, 76, 77])
    a("v_and_b32 v22, 16, v0\nv_cmp_ne_u32 vcc, 0, v22\nv_and_b32 v22, 32, v0\nv_cmp_ne_u32 s[86:87], 0, v22\ns_nop 0")
    a("v_cndmask_b32 v70, v70, v71, vcc\nv_cndmask_b32 v72, v72, v73, vcc\nv_cndmask_b32 v80, v80, v81, vcc\nv_cndmask_b32 v82, v82, v83, vcc")
    a("v_cndmask_b32 v70, v70, v72, s[86:87]\nv_cndmask_b32 v71, v80, v82, s[86:87]\nv_mul_f32 v71, 0x3a800000, v71")
    ln_scale(a, 70, 71, 72)
    a(f"v_and_b32 v22, 7, v0\nv_lshlrev_b32 v22, 1, v22\nv_bfe_u32 v24, v0, 4, 1\nv_add_u32 v22, v22, v24\nv_lshrrev_b32 v24, 5, v0\nv_lshl_add_u32 v22, v24, 4, v22")
    a(f"s_lshl_b32 s{S_T0}, s{S_W4}, 8\ns_add_u32 s{S_T0}, s{S_T0}, {P3_CONST}\nv_lshlrev_b32 v22, 3, v22\nv_add_u32 v22, s{S_T0}, v22")
    a("v_mul_f32 v73, v70, v71\nv_mov_b32 v72, v71\nds_write_b64 v22, v[72:73]\ns_waitcnt lgkmcnt(0)")

PFN = 37
PFB = 1024*448
def pfe_setup(a):
    a(f"s_lshl_b32 s{S_T0}, s2, 2\ns_add_u32 s{S_T0}, s{S_T0}, s{S_W4}\ns_mul_i32 s73, s{S_T0}, 448\ns_mov_b32 s75, 0\ns_mov_b32 s72, s73")
    a(f"s_mov_b32 s70, s{S_WO}\ns_mov_b32 s71, s{S_WO+1}")
def pfe_try(a, n=2, limit=None):
    L = a.lab('pfs'); T = a.lab('pft')
    if n > 1: a(f"s_mov_b32 s76, {n}\n{T}:")
    a(f"s_getreg_b32 s74, hwreg(HW_REG_IB_STS, 8, 4)\ns_cmp_gt_u32 s74, 8\ns_cbranch_scc1 {L}\ns_cmp_ge_u32 s75, {limit or PFN}\ns_cbranch_scc1 {L}")
    a(f"s_add_u32 s{S_PF}, s70, s72\ns_addc_u32 s{S_PF+1}, s71, 0")
    for i in range(7): a(f"s_load_dword s64, s[{S_PF}:{S_PF+1}], {i*64}")
    a(f"s_add_u32 s75, s75, 1\ns_add_u32 s72, s72, {PFB}")
    a(f"s_cmp_gt_u32 s75, 21\ns_cselect_b32 s74, {7*PFB}, 0\ns_bitcmp1_b32 s75, 0\ns_cselect_b32 s74, {(-8*PFB) & 0xffffffff:#x}, s74\ns_cmp_gt_u32 s75, 21\ns_cselect_b32 s74, s74, 0\ns_add_u32 s72, s72, s74")
    a(f"s_cmp_eq_u32 s75, 4\ns_cselect_b32 s74, {(2 << 20) - 448}, -1\ns_min_u32 s72, s72, s74")
    a(f"s_cmp_eq_u32 s75, 5\ns_cselect_b64 s[70:71], s[{S_W1}:{S_W1+1}], s[70:71]\ns_cselect_b32 s72, s73, s72")
    a(f"s_cmp_eq_u32 s75, 21\ns_cselect_b64 s[70:71], s[{S_W2}:{S_W2+1}], s[70:71]\ns_cselect_b32 s72, s73, s72")
    if n > 1: a(f"s_sub_u32 s76, s76, 1\ns_cmp_lg_u32 s76, 0\ns_cbranch_scc1 {T}")
    a(f"{L}:")
def pf_static(a, ptr, batches):
    a(f"s_lshl_b32 s{S_T0}, s2, 2\ns_add_u32 s{S_T0}, s{S_T0}, s{S_W4}\ns_mul_i32 s{S_T0}, s{S_T0}, 448")
    for b in batches:
        a(f"s_add_u32 s{S_T1}, s{S_T0}, {b*PFB}\ns_add_u32 s{S_PF}, s{ptr}, s{S_T1}\ns_addc_u32 s{S_PF+1}, s{ptr+1}, 0")
        for i in range(7): a(f"s_load_dword s64, s[{S_PF}:{S_PF+1}], {i*64}")

JQ_LDS = 129024
def jm_setup(a, pre, sk):
    a("v_lshrrev_b32 v20, 4, v0\nv_lshlrev_b32 v21, 10, v20\nv_bfe_u32 v22, v0, 2, 2\nv_lshlrev_b32 v22, 7, v22\nv_add_u32 v21, v21, v22")
    a(f"v_and_b32 v22, 3, v0\nv_lshlrev_b32 v22, 3, v22\nv_add_u32 v21, v21, v22\nv_bfe_u32 v22, v0, 3, 2\nv_xor_b32 v22, s{S_W4}, v22\nv_lshlrev_b32 v22, 5, v22")
    a(f"v_add_u32 v40, v21, v22\nv_add_u32 v40, 18432, v40")
    pre()
    for k in range(4): a(f"v_mov_b32 v{44+k}, 0x3f803f80")
    a("v_lshlrev_b32 v41, 12, v20\nv_and_b32 v22, 15, v0\nv_lshl_add_u32 v41, v22, 2, v41\nv_cmp_eq_u32 s[86:87], 1, v20\nv_cmp_eq_u32 s[88:89], 2, v20")
    a(f"v_lshlrev_b32 v22, 4, v22\nv_mul_u32_u24 v42, {3072*4}, v20\nv_add_u32 v42, v42, v22")
    a(f"v_bfe_u32 v23, v0, 4, 1\nv_lshrrev_b32 v24, 5, v0\nv_lshl_add_u32 v23, v24, 1, v23\nv_lshl_add_u32 v43, v23, 2, v22\ns_lshl_b32 s{S_T0}, s{S_W4}, 8\ns_add_u32 s{S_T0}, s{S_T0}, {P1C}\nv_add_u32 v43, s{S_T0}, v43")
    a(f"s_lshl_b32 s{S_T0}, s{S_RB}, 7\ns_sub_u32 s{S_T0}, s{S_T0}, 16")
    a(f"v_add_u32 v22, s{S_T0}, v0\nv_add_u32 v23, 16, v22\nv_cmp_gt_i32 vcc, 0, v22\nv_add_u32 v24, 128, v0\nv_min_u32 v24, 143, v24\nv_cndmask_b32 v23, v22, v23, vcc")
    a(f"v_lshlrev_b32 v49, 3, v23\nv_add_u32 v22, 64, v22\nv_lshlrev_b32 v50, 3, v22\nv_add_u32 v22, s{S_T0}, v24\nv_lshlrev_b32 v51, 3, v22")
    a(f"v_mov_b32 v22, {P1C}\nv_lshl_add_u32 v52, v0, 2, v22\nv_lshl_add_u32 v53, v0, 3, v22\nv_lshl_add_u32 v54, v24, 3, v22\nv_lshl_add_u32 v55, v24, 2, v22")
    a(f"s_mul_i32 s84, s{sk}, {3072*4}\ns_lshl_b32 s91, s{S_CB}, 8\ns_add_u32 s84, s84, s91\ns_lshl_b32 s{S_T0}, s{S_W4}, 6\ns_add_u32 s84, s84, s{S_T0}")
    a(f"s_add_u32 s90, s91, {FL_Q}\ns_lshl_b32 s82, s{sk}, 4\ns_lshl_b32 s{S_T0}, s{S_W4}, 2\ns_add_u32 s82, s82, s{S_T0}\ns_add_u32 s82, s82, s90\ns_add_u32 s91, s91, s{S_LA}")
    srd(a, SRD_D, S_WS, 1 << 20, WS_CQ)
    srd(a, SRD_C, S_WS, 16384, WS_GR)
def jm_issue(a, ph, q):
    a(f"s_mul_i32 s{S_KB}, s{S_RB}, {ph.kb_step}\ns_mov_b32 s{S_LDS}, {JQ_LDS - 18432}")
    emit_stage_loads(a, ph, 'B'); q.push('jm', 6)
def jm_process(a, q, first_use_of_e=False):
    for t in range(3):
        for kb in range(2):
            d = 56 + 8*t + 4*kb
            a(f"ds_read_b64_tr_b16 v[{d}:{d+1}], v40 offset:{t*8192 + kb*4096}\nds_read_b64_tr_b16 v[{d+2}:{d+3}], v40 offset:{t*8192 + kb*4096 + 512}")
    a("s_waitcnt lgkmcnt(0)")
    if first_use_of_e: a(f"s_add_u32 s{S_E}, s{S_E}, 1")
    for kb in range(2):
        for t in range(3):
            d = 56 + 8*t + 4*kb
            a(f"v_mfma_f32_16x16x32_bf16 v[{80+4*t}:{83+4*t}], v[44:47], v[{d}:{d+3}], " + ("0" if kb == 0 else f"v[{80+4*t}:{83+4*t}]"))
    a("s_nop 7\nv_cndmask_b32 v80, v80, v84, s[86:87]\nv_cndmask_b32 v80, v80, v88, s[88:89]")
    a(f"s_mov_b32 exec_hi, 0xffff\nbuffer_store_dword v80, v41, s[{SRD_D}:{SRD_D+3}], s84 offen sc1\ns_mov_b64 exec, -1")
    q.push('jms', 1)
def jm_flag(a, q):
    q.wait('jms')
    flag_set(a, 82, only_wave=None); q.push('jmf', 1)
def jg2_loads(a):
    Lr = a.lab('rows'); Le = a.lab('gend')
    a(f"s_cmp_eq_u32 s{S_W4}, 3\ns_cbranch_scc1 {Lr}")
    a(f"buffer_load_dword v48, v30, s[{SRD_F}:{SRD_F+3}], s90 offen sc1")
    for k in range(4):
        a(f"s_add_u32 s{S_T1}, s91, {k*4*3072*4}\nbuffer_load_dwordx4 v[{56+4*k}:{59+4*k}], v42, s[{SRD_D}:{SRD_D+3}], s{S_T1} offen sc1")
    a(f"s_branch {Le}\n{Lr}:")
    for j in range(3): a(f"buffer_load_dwordx2 v[{56+2*j}:{57+2*j}], v{49+j}, s[{SRD_C}:{SRD_C+3}], 0 offen sc1")
    a(f"{Le}:")
def jg2_issue(a, q):
    jg2_loads(a); q.push('jg', 3)
def jg2_process(a, q):
    q.wait('jg')
    Lc = a.lab('gchk'); Lr = a.lab('grows'); Le = a.lab('gdone'); Lt = a.lab('gretry')
    a(f"s_mov_b32 s83, 0\n{Lc}:\ns_cmp_eq_u32 s{S_W4}, 3\ns_cbranch_scc1 {Lr}")
    a(f"v_cmp_ne_u32 vcc, s{S_E}, v48\ns_cbranch_vccnz {Lt}")
    fold4(a, 56)
    a(f"ds_write_b32 v43, v56\ns_branch {Le}")
    a(f"{Lt}:\ns_add_u32 s83, s83, 1\ns_cmp_gt_u32 s83, 0x8000\ns_cbranch_scc1 {Le}")
    jg2_loads(a)
    a(f"s_waitcnt vmcnt(0)\ns_branch {Lc}")
    a(f"{Lr}:\nv_cmp_ne_u32 vcc, s{S_E}, v57\ns_cbranch_vccnz {Lt}\nv_cmp_ne_u32 vcc, s{S_E}, v59\ns_cbranch_vccnz {Lt}\nv_cmp_ne_u32 vcc, s{S_E}, v61\ns_cbranch_vccnz {Lt}")
    for j in range(3): a(f"v_and_b32 v{64+2*j}, 0xffff0000, v{56+2*j}")
    for j in range(3): a(f"v_rcp_f32 v{64+2*j}, v{64+2*j}")
    for j in range(3): a(f"v_lshlrev_b32 v{65+2*j}, 16, v{56+2*j}")
    a("ds_write_b64 v53, v[64:65] offset:768\nds_write_b64 v53, v[66:67] offset:1280\nds_write_b64 v54, v[68:69] offset:768")
    a("ds_write_b32 v52, v65 offset:1920\nds_write_b32 v52, v67 offset:2176\nds_write_b32 v55, v69 offset:1920")
    a("ds_write_b32 v52, v64 offset:2496\nds_write_b32 v52, v66 offset:2752\nds_write_b32 v55, v68 offset:2496")
    a(f"{Le}:\ns_waitcnt lgkmcnt(0)")

class NoQ:
    def push(self, *x): pass
    def wait(self, *x): pass

def jm_issue_l(a, ph, ldsbase):
    a(f"s_mov_b32 s85, s{S_LDS}\ns_mul_i32 s{S_KB}, s{S_RB}, {ph.kb_step}\ns_mov_b32 s{S_LDS}, {ldsbase}")
    emit_stage_loads(a, ph, 'B')
    a(f"s_mov_b32 s{S_LDS}, s85")
def jm_flag_l(a, n):
    a(f"s_waitcnt vmcnt({n})")
    flag_set(a, 82, only_wave=None)

J3_LDS = 135168
def j3_setup(a, pre, sk):
    tr_lane_part(a, 40, 20, 21, 128, jreg=S_W4)
    a(f"v_add_u32 v40, 16384, v40\ns_and_b32 s{S_T0}, s{S_W4}, 1")
    tr_lane_part(a, 39, 20, 21, 64, jreg=S_T0)
    a(f"v_add_u32 v39, 40960, v39")
    pre()
    a(f"s_and_b32 s{S_T0}, s{S_W4}, 1")
    for k in range(4): a(f"v_mov_b32 v{44+k}, 0x3f803f80")
    a(f"s_mul_i32 s{S_T1}, s{S_CB}, 224\ns_and_b32 s{S_T2}, s{S_CB}, 1\ns_lshl_b32 s{S_T3}, s{S_T2}, 5\ns_add_u32 s{S_T3}, s{S_T3}, s{S_T1}\ns_lshl_b32 s84, s{S_W4}, 4\ns_add_u32 s{S_T3}, s{S_T3}, s84")
    a(f"s_cmp_eq_u32 s{S_T2}, 0\ns_cselect_b32 s{S_T2}, 192, 0\ns_add_u32 s{S_T2}, s{S_T2}, s{S_T1}\ns_lshl_b32 s{S_T0}, s{S_T0}, 4\ns_add_u32 s{S_T2}, s{S_T2}, s{S_T0}")
    a(f"v_lshrrev_b32 v20, 4, v0\nv_lshlrev_b32 v41, 6, v20\nv_add_u32 v41, s{S_T3}, v41\nv_mov_b32 v21, s{S_T2}")
    a("v_cmp_eq_u32 s[86:87], 1, v20\nv_cmp_eq_u32 s[88:89], 2, v20\nv_cmp_eq_u32 s[90:91], 3, v20\nv_and_b32 v22, 15, v0\ns_nop 0\nv_cndmask_b32 v41, v41, v21, s[90:91]\nv_add_lshl_u32 v41, v41, v22, 2")
    a(f"s_mul_i32 s84, s{sk}, {3584*4}\ns_add_u32 s84, s84, {1 << 20}")
    a(f"s_lshl_b32 s83, s{S_CB}, 8\ns_add_u32 s83, s83, {FL_C}\ns_lshl_b32 s82, s{sk}, 4\ns_lshl_b32 s{S_T0}, s{S_W4}, 2\ns_add_u32 s82, s82, s{S_T0}\ns_add_u32 s82, s82, s83")
    srd(a, SRD_C, S_WS, 2 << 20, WS_ST)
    srd(a, SRD_D, S_B1, 3584*2)
    a(f"v_lshlrev_b32 v22, 4, v0\ns_lshl_b32 s80, s{S_RB}, 14\ns_add_u32 s80, s80, s{S_LA}")
    a(f"s_mul_i32 s{S_T0}, s{S_CB}, 224\ns_and_b32 s{S_T1}, s{S_CB}, 1\ns_lshl_b32 s{S_T2}, s{S_T1}, 5\ns_add_u32 s{S_T2}, s{S_T2}, s{S_T0}")
    a(f"s_cmp_eq_u32 s{S_T1}, 0\ns_cselect_b32 s{S_T1}, 0, 192\ns_sub_u32 s{S_T1}, s{S_T0}, s{S_T1}")
    a(f"s_mul_i32 s{S_T0}, s{S_W4}, 14\nv_and_b32 v23, 15, v0\nv_min_u32 v23, 13, v23\nv_add_u32 v23, s{S_T0}, v23\nv_lshlrev_b32 v23, 2, v23")
    a(f"v_cmp_gt_u32 vcc, 192, v23\nv_mov_b32 v24, s{S_T1}\nv_mov_b32 v25, s{S_T2}\nv_cndmask_b32 v24, v24, v25, vcc\nv_add_u32 v24, v24, v23")
    a(f"v_mul_u32_u24 v26, {3584*4}, v20\nv_lshl_add_u32 v26, v24, 2, v26")
    a("v_bfe_u32 v25, v0, 4, 1\nv_lshrrev_b32 v21, 5, v0\nv_lshl_add_u32 v27, v21, 1, v25\nv_add_u32 v23, v23, v27\nv_add_lshl_u32 v24, v24, v27, 1")
    a(f"v_lshlrev_b32 v23, 2, v23\nv_add_u32 v23, {P3_CONST + 1024}, v23")
    a(f"v_and_b32 v27, 7, v0\nv_lshl_add_u32 v27, v27, 1, v25\nv_lshl_add_u32 v27, v21, 4, v27\ns_lshl_b32 s{S_T0}, s{S_W4}, 8\ns_add_u32 s{S_T0}, s{S_T0}, {P3_CONST}\nv_lshlrev_b32 v27, 3, v27\nv_add_u32 v27, s{S_T0}, v27")
    a("v_cmp_ne_u32 s[70:71], 0, v25\nv_cmp_ne_u32 s[72:73], 0, v21")
def j3_process(a):
    for t in range(4):
        for kb in range(2):
            d = 56 + 8*t + 4*kb
            r, o, h = (40, t*8192 + kb*4096, 2048) if t < 3 else (39, kb*2048, 1024)
            a(f"ds_read_b64_tr_b16 v[{d}:{d+1}], v{r} offset:{o}\nds_read_b64_tr_b16 v[{d+2}:{d+3}], v{r} offset:{o + h}")
    a("s_waitcnt lgkmcnt(0)")
    for kb in range(2):
        for t in range(4):
            d = 56 + 8*t + 4*kb
            a(f"v_mfma_f32_16x16x32_bf16 v[{88+4*t}:{91+4*t}], v[44:47], v[{d}:{d+3}], " + ("0" if kb == 0 else f"v[{88+4*t}:{91+4*t}]"))
    a("s_nop 6\nv_cndmask_b32 v88, v88, v92, s[86:87]\nv_cndmask_b32 v88, v88, v96, s[88:89]\nv_cndmask_b32 v88, v88, v100, s[90:91]")
    a(f"buffer_store_dword v88, v41, s[{SRD_C}:{SRD_C+3}], s84 offen sc1")
def j3_cols(a):
    a(f"buffer_load_dword v65, v30, s[{SRD_F}:{SRD_F+3}], s83 offen sc1")
    for k in range(4): a(f"s_mov_b32 s{S_T0}, {(1 << 20) + k*4*3584*4}\nbuffer_load_dwordx4 v[{48+4*k}:{51+4*k}], v26, s[{SRD_C}:{SRD_C+3}], s{S_T0} offen sc1")
def j3_issue(a):
    for j in range(4): a(f"buffer_load_dwordx4 v[{72+4*j}:{75+4*j}], v22, s[{SRD_C}:{SRD_C+3}], s80 offen offset:{j*1024} sc1")
    a(f"buffer_load_ushort v64, v24, s[{SRD_D}:{SRD_D+3}], 0 offen")
    j3_cols(a)
    return 10
def j3_finish(a, part):
    B = 72
    M = [88, 89, 90, 91]; V = [96, 97, 98, 99]; T = [92, 93, 94, 95]
    if part == 0:
        a("s_waitcnt vmcnt(0)")
        for t in range(2):
            for r in range(2): a(f"v_add_f32 v{M[2*t+r]}, v{B+8*t+2*r}, v{B+4+8*t+2*r}")
        a("s_mov_b32 s84, 0x3c800000\ns_mov_b32 s85, 0x42800000")
        allsum3(a, M, T)
        for m in M: a(f"v_mul_f32 v{m}, 0x3a800000, v{m}")
        return
    Lc = a.lab('c3chk'); Lo = a.lab('c3ok')
    a(f"s_mov_b32 s81, 0\n{Lc}:\nv_cmp_ne_u32 vcc, s{S_E}, v65\ns_cbranch_vccz {Lo}\ns_add_u32 s81, s81, 1\ns_cmp_gt_u32 s81, 0x8000\ns_cbranch_scc1 {Lo}")
    j3_cols(a)
    a(f"s_waitcnt vmcnt(0)\ns_branch {Lc}\n{Lo}:")
    idx = [(t, j, r) for t in range(2) for j in range(2) for r in range(2)]
    for (t, j, r) in idx: a(f"v_fma_f32 v{B+8*t+4*j+2*r}, v{B+8*t+4*j+2*r}, s84, -v{M[2*t+r]}")
    for (t, j, r) in idx: a(f"v_mul_f32 v{B+8*t+4*j+2*r}, v{B+8*t+4*j+2*r}, v{B+8*t+4*j+2*r}")
    for (t, j, r) in idx: a(f"v_fma_f32 v{B+1+8*t+4*j+2*r}, v{B+8*t+4*j+2*r}, s85, v{B+1+8*t+4*j+2*r}")
    for t in range(2):
        for r in range(2): a(f"v_add_f32 v{V[2*t+r]}, v{B+1+8*t+2*r}, v{B+5+8*t+2*r}")
    fold4(a, 48)
    a(f"v_lshlrev_b32 v49, 16, v64\nds_write_b32 v23, v48\nds_write_b32 v23, v49 offset:896")
    allsum3(a, V, T)
    a("v_cndmask_b32 v88, v88, v89, s[70:71]\nv_cndmask_b32 v90, v90, v91, s[70:71]\nv_cndmask_b32 v96, v96, v97, s[70:71]\nv_cndmask_b32 v98, v98, v99, s[70:71]")
    a("v_cndmask_b32 v88, v88, v90, s[72:73]\nv_cndmask_b32 v89, v96, v98, s[72:73]\nv_mul_f32 v89, 0x3a800000, v89")
    ln_scale(a, 88, 89, 90)
    a(f"v_mul_f32 v91, v88, v89\nv_mov_b32 v90, v89\nds_write_b64 v27, v[90:91]")
    a(f"v_mov_b32 v20, {P3_CONST + 2816}\nv_mov_b32 v21, 0\nds_write_b32 v20, v21\ns_waitcnt lgkmcnt(0)")

def vec_prefetch(a, ptr, first, n, dst):
    srd(a, SRD_A, ptr, 1024*3584*2)
    a(f"s_lshl_b32 s{S_T0}, s2, 2\ns_add_u32 s{S_T0}, s{S_T0}, s{S_W4}\ns_mul_i32 s{S_T0}, s{S_T0}, 7168\ns_add_u32 s{S_T0}, s{S_T0}, {first*1024}\nv_lshlrev_b32 v1, 4, v0")
    for i in range(n): a(f"buffer_load_dwordx4 v[{dst+4*i}:{dst+4*i+3}], v1, s[{SRD_A}:{SRD_A+3}], s{S_T0} offen offset:{i*1024}")

def cs1_issue(a):
    srd(a, SRD_C, S_W1, 1024*3584*2)
    srd(a, SRD_D, S_WS, 1 << 20, WS_CS)
    a(f"v_lshrrev_b32 v22, 3, v0\nv_mul_u32_u24 v22, 7168, v22\nv_and_b32 v23, 7, v0\nv_min_u32 v23, 6, v23\nv_lshlrev_b32 v24, 4, v23\nv_add_u32 v22, v22, v24")
    a(f"s_mul_i32 s{S_T0}, s{S_RB}, {64*7168}\ns_mul_i32 s{S_T1}, s{S_CB}, 448\ns_add_u32 s{S_T0}, s{S_T0}, s{S_T1}\ns_mul_i32 s{S_T1}, s{S_W4}, 112\ns_add_u32 s{S_T0}, s{S_T0}, s{S_T1}")
    for j in range(8):
        a(f"s_add_u32 s{S_T1}, s{S_T0}, {j*8*7168}\nbuffer_load_dwordx4 v[{32+4*j}:{35+4*j}], v22, s[{SRD_C}:{SRD_C+3}], s{S_T1} offen")
def cs1_finish(a, younger):
    a(f"s_mul_i32 s{S_T0}, s{S_RB}, {3584*4}\ns_mul_i32 s{S_T1}, s{S_CB}, 896\ns_add_u32 s{S_T0}, s{S_T0}, s{S_T1}\ns_mul_i32 s{S_T1}, s{S_W4}, 224\ns_add_u32 s{S_T0}, s{S_T0}, s{S_T1}")
    cs_store_voff(a, 23, 23)
    for j in range(8):
        a(f"s_waitcnt vmcnt({7 - j + younger})")
        for x in cs_acc(32, j): a(x)
    for x in cs_fold(): a(x)
    a(f"s_mov_b32 exec_lo, 0x007f007f\ns_mov_b32 exec_hi, 0x007f007f\nbuffer_store_dwordx2 v[64:65], v23, s[{SRD_D}:{SRD_D+3}], s{S_T0} offen sc1\ns_mov_b64 exec, -1")
    a(f"s_lshl_b32 s82, s{S_CB}, 8\ns_lshl_b32 s{S_T0}, s{S_RB}, 4\ns_add_u32 s82, s82, s{S_T0}\ns_lshl_b32 s{S_T0}, s{S_W4}, 2\ns_add_u32 s82, s82, s{S_T0}\ns_add_u32 s82, s82, {FL_C}")
    a(f"v_mov_b32 v240, 0\nv_mov_b32 v241, s{S_E}")
def cs1_flag(a):
    a(f"s_waitcnt vmcnt(0)\ns_mov_b64 exec, 1\nbuffer_store_dword v241, v240, s[{SRD_F}:{SRD_F+3}], s82 offen sc1\ns_mov_b64 exec, -1")

S_RDY = 77
def need_flags(a, mask, p4=False, sleep=0):
    L = a.lab('nd'); K = a.lab('rdy')
    if p4:
        a(f"s_mul_i32 s{S_T1}, s{S_T0}, 74\ns_add_u32 s{S_T2}, s{S_T1}, 37\ns_lshr_b32 s{S_T1}, s{S_T1}, 8\ns_lshr_b32 s{S_T2}, s{S_T2}, 8")
        a(f"s_lshl_b32 s{S_T1}, 1, s{S_T1}\ns_lshl_b32 s{S_T2}, 1, s{S_T2}\ns_or_b32 s{S_T1}, s{S_T1}, s{S_T2}")
    else:
        a(f"s_lshl_b32 s{S_T1}, 1, s{S_T0}")
    a(f"s_andn2_b32 s{S_T2}, s{S_T1}, s{S_RDY}\ns_cbranch_scc0 {K}")
    a(f"s_mov_b64 exec, {mask:#x}\ns_mov_b32 s{S_T3}, 0\n{L}:")
    if sleep: a(f"s_sleep {sleep}")
    a(f"buffer_load_dword v31, v30, s[{SRD_F}:{SRD_F+3}], s{S_FO} offen sc1\ns_add_u32 s{S_T3}, s{S_T3}, 1\ns_waitcnt vmcnt(0)\nv_cmp_eq_u32 vcc, s{S_E}, v31\ns_nop 1")
    a(f"s_cmp_gt_u32 s{S_T3}, 0x20000\ns_cselect_b32 s{S_RDY}, -1, vcc_lo\ns_andn2_b32 s{S_T2}, s{S_T1}, s{S_RDY}\ns_cbranch_scc1 {L}\ns_mov_b64 exec, -1\n{K}:")

def duty_stage(a, ph, sduty, dst):
    L = a.lab('ds'); K = a.lab('dk')
    a(f"s_mov_b32 s{dst}, 0\ns_mov_b64 s[{S_T1}:{S_T1+1}], s[{S_SEQ}:{S_SEQ+1}]\n{L}:\ns_and_b32 s{S_T0}, s{S_T1}, 15\ns_cmp_eq_u32 s{S_T0}, s{sduty}\ns_cbranch_scc1 {K}")
    a(f"s_lshr_b64 s[{S_T1}:{S_T1+1}], s[{S_T1}:{S_T1+1}], 4\ns_add_u32 s{dst}, s{dst}, 1\ns_cmp_lt_u32 s{dst}, 15\ns_cbranch_scc1 {L}\n{K}:")

S_DT = 69
def duty_setup(a, ph, sidx, regs, sflag_base, skrow):
    duty_stage(a, ph, sidx, S_DT)
    a(f"s_mul_i32 s{S_T0}, s{S_DT}, 43\ns_lshr_b32 s{S_T0}, s{S_T0}, 7\ns_mul_i32 s{S_T0}, s{S_T0}, 3\ns_sub_u32 s{S_T0}, s{S_DT}, s{S_T0}\ns_mul_i32 s{S_T0}, s{S_T0}, {ph.stage}")
    for r in regs: a(f"v_add_u32 v{r}, s{S_T0}, v{r}")
    a(f"s_add_u32 s{S_DT}, s{S_DT}, 2\ns_add_u32 s{skrow}, s{sidx}, s{S_XR}\ns_and_b32 s{skrow}, s{skrow}, 15")
def duty_hook(a, process, n):
    L = a.lab('nd1'); M = a.lab('nd2')
    a(f"s_cmp_lg_u32 s{S_T}, s{S_DT}\ns_cbranch_scc1 {L}")
    process()
    a(f"s_branch {M}\n{L}:\ns_add_u32 s{S_T0}, s{S_DT}, 1\ns_cmp_lg_u32 s{S_T}, s{S_T0}\ns_cbranch_scc1 {M}")
    jm_flag_l(a, n)
    a(f"{M}:")

def lp_setup(a):
    a(f"s_lshl_b32 s74, s2, 2\ns_add_u32 s74, s74, s{S_W4}\ns_mul_i32 s74, s74, 448\ns_mov_b32 s75, {8*PFB}")
def lp_step(a, ptr, steps, duty=False):
    if not steps: return
    L = a.lab('lp')
    m = sum(1 << t for t in steps)
    a(f"s_bitcmp1_b32 {m:#x}, s{S_T}\ns_cbranch_scc0 {L}\ns_getreg_b32 s{S_T0}, hwreg(HW_REG_IB_STS, 8, 4)\ns_cmp_gt_u32 s{S_T0}, 8\ns_cbranch_scc1 {L}")
    a(f"s_cmp_ge_u32 s74, {16*PFB}\ns_cbranch_scc1 {L}")
    if duty: a(f"s_add_u32 s{S_T0}, s{S_T}, 1\ns_cmp_eq_u32 s{S_T0}, s{S_DT}\ns_cbranch_scc1 {L}")
    a(f"s_add_u32 s{S_PF}, s{ptr}, s74\ns_addc_u32 s{S_PF+1}, s{ptr+1}, 0")
    a(f"s_load_dwordx2 s[66:67], s[{S_PF}:{S_PF+1}], 60\ns_load_dwordx2 s[66:67], s[{S_PF}:{S_PF+1}], 188\ns_load_dwordx2 s[66:67], s[{S_PF}:{S_PF+1}], 316\ns_load_dword s66, s[{S_PF}:{S_PF+1}], 384")
    a(f"s_add_u32 s74, s74, s75\ns_sub_u32 s75, {PFB}, s75\n{L}:")

def warm_flags(a):
    a(f"s_lshl_b32 s{S_T0}, s2, 2\ns_add_u32 s{S_T0}, s{S_T0}, s{S_W4}\ns_lshl_b32 s{S_T1}, s{S_T0}, 7\ns_add_u32 s{S_T1}, s{S_T1}, {FL_X}\ns_and_b32 s{S_T0}, s{S_T0}, 0x1ff\ns_lshl_b32 s{S_T0}, s{S_T0}, 6")
    a(f"s_load_dword s64, s[{SRD_F}:{SRD_F+1}], s{S_T0}\ns_load_dword s64, s[{SRD_F}:{SRD_F+1}], s{S_T1}")

P2XL = 122880
def p2x_dma(a, thr):
    srd(a, SRD_C, S_X, 2048*1024*2)
    a("v_lshrrev_b32 v20, 3, v0\nv_lshlrev_b32 v20, 11, v20\nv_lshrrev_b32 v21, 4, v0\nv_and_b32 v22, 7, v0\nv_xor_b32 v21, v21, v22\nv_lshl_add_u32 v6, v21, 4, v20\nv_xor_b32 v7, 64, v6")
    a(f"s_lshl_b32 s{S_T0}, s{S_RB}, 18\ns_lshl_b32 s{S_T1}, s{S_W4}, 16\ns_add_u32 s{S_T0}, s{S_T0}, s{S_T1}\ns_lshl_b32 s{S_T1}, s{S_CB}, 7\ns_add_u32 s{S_T0}, s{S_T0}, s{S_T1}")
    for i in range(4):
        a(f"s_add_u32 m0, s{S_LA}, {P2XL + i*1024}\ns_add_u32 s{S_T1}, s{S_T0}, {i*16384}\ns_waitcnt vmcnt({thr})\nbuffer_load_dwordx4 v{6 + (i & 1)}, s[{SRD_C}:{SRD_C+3}], s{S_T1} offen lds")
def p2x_read(a):
    a(f"v_and_b32 v8, 15, v0\nv_lshrrev_b32 v9, 1, v8\nv_lshrrev_b32 v10, 5, v0\nv_xor_b32 v9, v9, v10\nv_lshlrev_b32 v9, 4, v9\nv_lshl_add_u32 v8, v8, 7, v9")
    a(f"v_bfe_u32 v9, v0, 4, 1\nv_lshl_add_u32 v8, v9, 3, v8\ns_lshl_b32 s84, s{S_W4}, 12\ns_add_u32 s84, s84, {P2XL}\nv_add_u32 v8, s84, v8")
    for j in range(1, 4): a(f"v_xor_b32 v{8+j}, {32*j}, v8")
    for i in range(2):
        for j in range(4):
            d = P2_X + 2*(i*4 + j)
            a(f"ds_read_b64 v[{d}:{d+1}], v{8+j} offset:{i*2048}")
```

```python
import sys
from phases import *
import hazard
STAMP['on'] = '--stamp' in sys.argv; STAMP['noprod'] = '--noprod' in sys.argv
O = dict(kv.split('=') for kv in sys.argv[1:] if '=' in kv)
gi = lambda k, d: int(O[k]) if k in O else d
NAME = 'sequential_preLN__sliding_local_dilated__dense_activation_gelu__prompt_kernel'
LDS = 163840
OPT = dict(early=1, pre=4, tail=4)
p1, p2, p3, p4 = make_p1x(), make_p2(), make_p3(), make_p4()
p2.NS = 5
for ph, k in ((p1, 'd1'), (p2, 'd2'), (p3, 'd3'), (p4, 'd4')): ph.lead = gi(k, 1)
for ph in (p2, p3, p4): ph.aflags = 'sc1'
THR = gi('thr', 6)
M3 = gi('m3', 0)
map_p3 = map_4x8 if M3 else map_8x4
a = Asm()
a('KSTART:')
if STAMP['on']: a("s_memrealtime s[94:95]")
prologue(a, 'L_done')
map_8x4(a)
def after_kernarg():
    a("s_waitcnt lgkmcnt(0)")
    a(f"s_add_u32 s{SRD_F}, s{S_WS}, {WS_FL}\ns_addc_u32 s{SRD_F+1}, s{S_WS+1}, 0\ns_mov_b32 s{SRD_F+2}, {1 << 20}\ns_mov_b32 s{SRD_F+3}, 0x20000")
    if STAMP['on']: a("v_writelane_b32 v255, s94, 0\nv_writelane_b32 v255, s94, 30\ns_memrealtime s[92:93]\ns_waitcnt lgkmcnt(0)\nv_writelane_b32 v255, s92, 31")
def load_epoch(): a(f"s_load_dword s{S_E}, s[{SRD_F}:{SRD_F+1}], 0")
a(f"s_cmp_ge_u32 s{S_WAVE}, 4\ns_cbranch_scc1 L_prod")
a(f"s_lshl_b32 s61, s{S_RB}, 4\ns_add_u32 s61, s61, s{S_CB}")
after_kernarg()
row_stats_issue(a, 61)
load_epoch()
p1x_consumer_setup(a, p1)
a(f"s_waitcnt lgkmcnt(0)\ns_add_u32 s{S_E}, s{S_E}, 1")
row_stats_finish(a, 61)
stamp(a, 1)
consumer_gemm(a, p1, OPT, final_bar=True, sbase=0)
stamp(a, 3)
p1x_fold(a, p1)
p1_epilogue(a, p1, 'sc1', fold=True)
stamp(a, 4)
publish(a, 1, FL_1, S_RB, S_CB)
stamp(a, 5)
a('s_barrier')
map_4x8(a)
p2_consumer_setup(a, p2, res=False)
consumer_gemm(a, p2, dict(early=0, pre=0, tail=0), final_bar=True, sbase=4, after_first=lambda: p2x_read(a))
stamp(a, 7)
p2_epilogue(a, p2, 'sc1')
stamp(a, 8)
publish(a, 2, FL_2, S_RB, S_CB)
stamp(a, 9)
a('s_barrier')
map_p3(a)
p3_consumer_setup(a, p3)
consumer_gemm(a, p3, OPT, final_bar=True, sbase=8)
a('s_barrier')
stamp(a, 11)
p3_epilogue(a, p3, 'sc1')
stamp(a, 12)
publish(a, 3, FL_3, S_RB, S_CB, cnt=P3_CONST + 2816)
stamp(a, 13)
a('s_barrier')
map_p4(a)
p4_consumer_setup(a, p4, res=False)
consumer_gemm(a, p4, dict(early=0, pre=2, tail=2), after_first=lambda: p4_res_loads(a, 'sc1'), final_bar=True, sbase=12)
stamp(a, 15)
p4_epilogue(a, p4, fval=f"s{S_E}", fbase=FL_X)
stamp(a, 16)
if STAMP['on']: a("s_waitcnt vmcnt(0)")
stamp(a, 17)
stamp_flush(a, 0, WS_TM)
a("s_endpgm")
a("L_prod:")
p1x_producer_setup(a, p1, srds=False)
R1 = gi('r1', 1)
a(f"s_lshr_b32 s{S_T0}, s{S_RB}, 3\ns_lshl_b32 s{S_XR}, s{S_T0}, 3")
if R1: a(f"s_and_b32 s{S_T1}, s{S_CB}, 12\ns_add_u32 s{S_XR}, s{S_XR}, s{S_T1}\ns_and_b32 s{S_XR}, s{S_XR}, 15")
seq_setup(a, p1)
after_kernarg()
p1x_producer_srds(a)
stamp(a, 2, True)
def pre_first():
    load_epoch()
    stamp(a, 0, True)
    if gi('pfcode', 1): pf_code(a, 0, 5)
    if gi('warm', 1): warm_flags(a)
    a(f"v_mov_b32 v28, {CNT_LDS}\nv_mov_b32 v32, 0\nv_mov_b32 v33, 0\nv_mov_b32 v34, 0\nv_mov_b32 v35, 0\nds_write_b128 v28, v[32:35]")
    a(f"v_lshlrev_b32 v30, 2, v0\ns_and_b32 s81, s{S_RB}, 7")
    lp_setup(a)
    jm_setup(a, lambda: duty_setup(a, p1, 81, [40], None, 80), 80)
    stamp(a, 1, True)
PF = gi('pf', 1)
h1 = lambda: duty_hook(a, lambda: jm_process(a, NoQ(), True), 10)
h1l = lambda: (h1(), lp_step(a, S_W1, range(gi('lo1', 4), gi('hi1', 13) + 1) if PF else [], True))
producer_first(a, p1, pre_first, h1l, [None, lambda: (jg2_loads(a), 3)[1], lambda: (a("s_waitcnt vmcnt(0)"), jg2_process(a, NoQ()))[1]], peel_hook=h1, early1=gi('early1', 1))
stamp(a, 3, True)
def own(sb=None):
    if sb is not None: stamp(a, sb, True)
    a('s_barrier')
def nf(mask, p4, sb):
    st = {'n': 0}
    def f():
        need_flags(a, mask, p4, gi('sleep', 0))
        if st['n'] == 0 and STAMP['on'] and not STAMP['noprod']:
            a(f"s_mov_b32 s60, s{S_T0}"); stamp(a, sb, True)
        st['n'] += 1
    return f
def handoff(base, extra_off=None, sb=0):
    def f():
        a(f"s_lshl_b32 s{S_FO}, s{S_RB}, 7\ns_add_u32 s{S_FO}, s{S_FO}, {base}\ns_mov_b32 s{S_RDY}, 0")
        if extra_off: extra_off()
        stamp(a, sb+1, True)
    return f
map_4x8(a)
p2_producer_setup(a, p2)
a(f"s_and_b32 s{S_XR}, s{S_RB}, {12 if gi('r2', 1) else 0}")
producer_fused(a, p2, handoff(FL_1, sb=4), thr=THR, mid=lambda: (p2x_dma(a, THR), own(4)), need=nf(0xffff, False, 6), preA=gi('prea2', 3), PB=gi('pb2', None))
stamp(a, 7, True)
map_p3(a)
p3_producer_setup(a, p3)
a(f"s_and_b32 s{S_XR}, s{S_RB}, {12 if M3 else 8}\ns_and_b32 s81, s{S_RB}, {3 if M3 else 7}")
h3 = lambda: duty_hook(a, lambda: j3_process(a), 11)
lp_setup(a)
h3l = lambda: (h3(), lp_step(a, S_W2, range(gi('lo3', 5), gi('hi3', 13) + 1) if PF else [], True))
producer_fused(a, p3, handoff(FL_2, sb=8), thr=THR, mid=lambda: (j3_setup(a, lambda: duty_setup(a, p3, 81, [40, 39], None, 76), 76), own(8)),
               PB=gi('pb3', None), need=nf(0xffff, False, 10),
               loop_hook=h3l, peel_hook=h3, first_hook=h3, tail=[lambda: 0, lambda: j3_issue(a), lambda: j3_finish(a, 0)])
j3_finish(a, 1)
a('s_barrier')
stamp(a, 11, True)
map_p4(a)
p4_producer_setup(a, p4)
a(f"s_lshr_b32 s{S_XR}, s{S_RB}, 2\ns_mul_i32 s{S_XR}, s{S_XR}, {7 if gi('r4', 0) else 0}\ns_sub_u32 s{S_XR}, s{S_XR}, 1")
producer_fused(a, p4, handoff(FL_3, extra_off=lambda: a(f"s_lshl_b32 s{S_T1}, s{S_KH}, 5\ns_add_u32 s{S_FO}, s{S_FO}, s{S_T1}"), sb=12), thr=gi('thr4', THR), mid=lambda: own(12), need=nf(0xff, True, 14), loop_hook=lambda: lp_step(a, S_W2, range(5, 20) if PF else []))
stamp(a, 15, True)
a(f"s_cmp_lg_u32 s2, 0\ns_cbranch_scc1 L_pend\ns_cmp_lg_u32 s{S_WAVE}, 4\ns_cbranch_scc1 L_pend")
a(f"v_mov_b32 v28, 0\nv_mov_b32 v29, s{S_E}\ns_mov_b64 exec, 1\nbuffer_store_dword v29, v28, s[{SRD_F}:{SRD_F+3}], 0 offen sc1\ns_mov_b64 exec, -1")
a("L_pend:")
stamp_flush(a, 0, WS_TM)
a("L_done:\ns_endpgm\nKEND:")

ref = open('sequential_preLN__sliding_local_dilated__dense_activation_gelu__prompt.s.ref').read().split('\n')
hdr = [l for l in ref if l.startswith(';') and '@launch' not in l and 'Override' not in l and 'grid=ceil' not in l]
lst = '--list' in sys.argv
out = hdr + [f"; @launch " + (f"kernel={NAME} " if lst else "") + f"grid=(256,1,1) block=(512,1,1) lds={LDS}"]
out.append('.amdgcn_target "amdgcn-amd-amdhsa--gfx950"\n.text')
out.append(f".globl {NAME}\n.p2align 8\n.type {NAME},@function\n{NAME}:\n{a.text()}")
out.append('.section .rodata,"a"')
out.append(kernel_desc(NAME))
txt = '\n'.join(out) + '\n'
for x in hazard.check(txt): sys.stderr.write("HAZARD line %d [%s] -> line %d [%s]: need %d have %d\n" % x)
print(txt)
```

```python
import math

class Asm:
    def __init__(self):
        self.l = []; self.nlab = 0
    def __call__(self, s):
        for x in s.split('\n'):
            x = x.strip()
            if x: self.l.append(('' if x.endswith(':') else '    ') + x)
    def lab(self, base='L'):
        self.nlab += 1
        return f"{base}_{self.nlab}"
    def c(self, s): self.l.append('    ; ' + s)
    def text(self): return '\n'.join(self.l)

def vr(b, n=1): return f"v{b}" if n == 1 else f"v[{b}:{b+n-1}]"
def sr(b, n=1): return f"s{b}" if n == 1 else f"s[{b}:{b+n-1}]"

S_X, S_WQKV, S_WO, S_BX, S_W1, S_B1, S_W2, S_B2, S_OUT, S_DBG, S_WS = 4, 6, 8, 10, 12, 14, 16, 18, 20, 22, 24
S_WAVE = 26
S_W4 = 27
SRD_A, SRD_B, SRD_C, SRD_D = 28, 32, 36, 40
S_RB, S_CB, S_KH, S_ROT = 44, 45, 46, 47
S_T, S_KA, S_KB, S_LDS, S_CNT = 48, 49, 50, 51, 52
S_T0, S_T1, S_T2, S_T3 = 53, 54, 55, 56
S_TIME = 60
WS_BYTES = 268435456

def srd(a, dst, ptr, nbytes, off=0):
    if off:
        a(f"s_add_u32 s{dst}, s{ptr}, {off}\ns_addc_u32 s{dst+1}, s{ptr+1}, 0")
    else:
        a(f"s_mov_b32 s{dst}, s{ptr}\ns_mov_b32 s{dst+1}, s{ptr+1}")
    a(f"s_mov_b32 s{dst+2}, {nbytes}\ns_mov_b32 s{dst+3}, 0x20000")

def prologue(a, done):
    a(f"s_cmp_ge_u32 s2, 256\ns_cbranch_scc1 {done}")
    a("s_load_dwordx16 s[4:19], s[0:1], 0\ns_load_dwordx4 s[20:23], s[0:1], 64\ns_load_dwordx2 s[24:25], s[0:1], 80")
    a(f"v_lshrrev_b32 v1, 6, v0\nv_and_b32 v0, 63, v0\ns_nop 0\nv_readfirstlane_b32 s{S_WAVE}, v1")
    a(f"s_and_b32 s{S_W4}, s{S_WAVE}, 3")

S_SEQ = 100
def lead_seq(S, G, D, r, rot=0):
    out = [None]*S
    for s in range(S):
        if s % G == r:
            p = max(0, s - D)
            while out[p] is not None: p += 1
            out[p] = s
    it = iter([s for s in range(S) if s % G != r])
    for t in range(S):
        if out[t] is None: out[t] = next(it)
    return [(x + rot) % S for x in out]
def seq_setup(a, ph):
    nrot = 2 if getattr(ph, 'rot2', False) else 1
    for k in range(4*nrot):
        q = lead_seq(ph.S, 4, ph.lead, k & 3, (k >> 2)*(ph.S//2))
        if getattr(ph, 'base', None): q = [ph.base[x] for x in q]
        v = 0
        for t, x in enumerate(q):
            if ph.S <= 16: v |= x << (4*t)
            else:
                assert 0 <= x - t + 1 <= 3
                v |= (x - t + 1) << (2*t)
        if k == 0: a(f"s_mov_b32 s{S_SEQ}, {v & 0xffffffff:#x}\ns_mov_b32 s{S_SEQ+1}, {v >> 32:#x}")
        else: a(f"s_cmp_eq_u32 s{S_ROT}, {k}\ns_cselect_b32 s{S_SEQ}, {v & 0xffffffff:#x}, s{S_SEQ}\ns_cselect_b32 s{S_SEQ+1}, {v >> 32:#x}, s{S_SEQ+1}")
S_XR = 65
S_SL = 66
def slice_of_t(a, S, lead, wrap=True):
    if S <= 16:
        a(f"s_lshl_b32 s{S_T0}, s{S_T}, 2\ns_lshr_b64 s[{S_T1}:{S_T1+1}], s[{S_SEQ}:{S_SEQ+1}], s{S_T0}\ns_add_u32 s{S_T0}, s{S_T1}, s{S_XR}\ns_and_b32 s{S_T0}, s{S_T0}, 15")
    else:
        a(f"s_lshl_b32 s{S_T0}, s{S_T}, 1\ns_lshr_b64 s[{S_T1}:{S_T1+1}], s[{S_SEQ}:{S_SEQ+1}], s{S_T0}\ns_and_b32 s{S_T0}, s{S_T1}, 3\ns_add_u32 s{S_T0}, s{S_T0}, s{S_T}\ns_add_u32 s{S_T0}, s{S_T0}, s{S_XR}")
        if wrap: a(f"s_sub_u32 s{S_T1}, s{S_T0}, {S}\ns_min_u32 s{S_T0}, s{S_T0}, s{S_T1}")

class Phase:
    pass

def emit_stage_loads(a, ph, which='AB', throttle=None, fill=None):
    last = [None, False]
    fill = list(fill or []); npc = len([p for p in ph.pieces if p[0] in which]); per = -(-len(fill) // npc)
    for (kind, voff, sldsw, ldsoff, imm, cond) in ph.pieces:
        if kind not in which: continue
        skip = None
        if cond is not None:
            skip = a.lab('skip')
            a(f"s_cmp_ge_u32 s{S_W4}, {cond}\ns_cbranch_scc1 {skip}")
        if ldsoff is not None:
            if last[0] != sldsw or skip or last[1]: a(f"s_add_u32 s{S_T3}, s{S_LDS}, s{sldsw}")
            last[0] = sldsw; last[1] = bool(skip) or bool(fill)
            a(f"s_add_u32 m0, s{S_T3}, {ldsoff}" + ("" if throttle is not None else "\ns_nop 0"))
        if throttle is not None: a(f"s_waitcnt vmcnt({throttle})")
        srdn, sk = (SRD_A, S_KA) if kind == 'A' else (SRD_B, S_KB)
        fl = ph.aflags if kind == 'A' else ph.bflags
        a(f"buffer_load_dwordx4 v{voff}, s[{srdn}:{srdn+3}], s{sk} offen" + (f" offset:{imm}" if imm else "") + (" " + fl if fl else "") + " lds")
        if skip: a(f"{skip}:")
        for x in fill[:per]: a(x)
        fill = fill[per:]

def set_stage_k(a, ph, need=None):
    if getattr(ph, 'linear', False): a(f"s_add_u32 s{S_T0}, s{S_T}, s{S_XR}")
    else: slice_of_t(a, ph.S, ph.lead, getattr(ph, 'wrap', True))
    if need: need[0]()
    if getattr(ph, 'kfn', None): ph.kfn(a)
    else: a(f"s_mul_i32 s{S_KA}, s{S_T0}, {ph.ka_step}\ns_mul_i32 s{S_KB}, s{S_T0}, {ph.kb_step}")

def next_slot(a, ph):
    a(f"s_add_u32 s{S_LDS}, s{S_LDS}, {ph.stage}\ns_cmp_ge_u32 s{S_LDS}, {ph.lds0 + ph.NS*ph.stage}\ns_cselect_b32 s{S_LDS}, {ph.lds0}, s{S_LDS}")

def producer_gemm(a, ph, after_first=None, opt={}):
    seq_setup(a, ph)
    n = ph.nmin
    bar = "" if opt.get('nobar') else "s_barrier"
    a.c(f"--- producer {ph.name}: prologue")
    a(f"s_mov_b32 s{S_T}, 0\ns_mov_b32 s{S_LDS}, {ph.lds0}")
    def stage():
        set_stage_k(a, ph)
        emit_stage_loads(a, ph)
        next_slot(a, ph)
        a(f"s_add_u32 s{S_T}, s{S_T}, 1")
    pre = ph.NS - 1
    for s in range(pre): stage()
    a(f"s_waitcnt vmcnt({min(63, (pre-1)*n)})\ns_barrier")
    stage()
    if after_first: after_first()
    L = a.lab('ploop')
    a(f"{L}:")
    a(f"s_waitcnt vmcnt({min(63, (ph.NS-2)*n)})\n{bar}")
    stage()
    a(f"s_cmp_lt_u32 s{S_T}, {ph.S}\ns_cbranch_scc1 {L}")
    for s in range(ph.S - ph.NS, ph.S - 1):
        left = (ph.S - 1) - (s + 1)
        a(f"s_waitcnt vmcnt({min(63, left*n)})\n{bar}")

def producer_fused(a, ph, handoff, extras=None, nextra=0, finish=None, preA=2, loop_hook=None, thr=6, mid=None, tail=None, peel_hook=None, need=None, PB=None, late=None, first_hook=None, post_seq=None, cont=None, lean=None):
    seq_setup(a, ph)
    if post_seq: post_seq()
    NS, S = ph.NS, ph.S
    nA = sum(1 for p in ph.pieces if p[0] == 'A' and p[5] is None)
    nB = sum(1 for p in ph.pieces if p[0] == 'B' and p[5] is None)
    n = nA + nB
    def issue(t, which, throttle=None):
        a(f"s_mov_b32 s{S_T}, {t}\ns_mov_b32 s{S_LDS}, {ph.lds0 + (t % NS)*ph.stage}")
        set_stage_k(a, ph, (lambda: need[0](a), None) if need and 'A' in which else None)
        if need and 'A' in which: need[1]()
        emit_stage_loads(a, ph, which, throttle)
    a.c(f"--- producer {ph.name}: B prefill")
    PB = NS if PB is None else PB
    late = PB if late is None else late
    for t in range(PB):
        if t == late: mid()
        issue(t, 'B', thr)
    if late >= PB and mid: mid()
    rest = lambda t: ('A', nA) if t < PB else ('AB', n)
    handoff()
    q = []
    def wait(t):
        last = max(i for i, x in enumerate(q) if x[0] == t)
        a(f"s_waitcnt vmcnt({min(63, sum(x[1] for x in q[last+1:]))})")
    for t in range(preA):
        issue(t, rest(t)[0]); q.append((t, rest(t)[1]))
    wait(0); a("s_barrier")
    nxtA = preA
    s = 0
    while True:
        for _ in range(2):
            if nxtA < NS:
                issue(nxtA, rest(nxtA)[0]); q.append((nxtA, rest(nxtA)[1])); nxtA += 1
        if s == 0 and first_hook: first_hook()
        if extras and nxtA >= NS:
            extras(); q.append((-1, nextra)); extras = None
        if s >= NS - 1 and nxtA >= NS: break
        wait(s + 1); a("s_barrier")
        issue(s + NS, 'AB'); q.append((s + NS, n))
        if peel_hook: peel_hook()
        s += 1
    t0 = s + NS
    a(f"s_mov_b32 s{S_T}, {t0}\ns_mov_b32 s{S_LDS}, {ph.lds0 + (t0 % NS)*ph.stage}")
    first = True
    if finish:
        a(f"s_waitcnt vmcnt({min(63, (NS-2)*n)})\ns_barrier")
        set_stage_k(a, ph); emit_stage_loads(a, ph); next_slot(a, ph)
        a(f"s_add_u32 s{S_T}, s{S_T}, 1")
        finish()
    if lean:
        tl, allready, kcalc, looped = lean
        if tl > t0: tight_loop(a, ph, n, need, loop_hook, tl)
        else: set_stage_k(a, ph)
        allready()
        lean_steps(a, ph, n, tl, S - tl, kcalc, looped)
    else:
        tight_loop(a, ph, n, need, loop_hook)
    if cont:
        ph2, switch = cont
        n2 = sum(1 for p in ph2.pieces if p[5] is None)
        switch()
        cnt = [n]*(NS - 1)
        for t in range(ph2.S):
            a(f"s_waitcnt vmcnt({sum(cnt[1:])})\ns_barrier\ns_mov_b32 s{S_T}, {t}")
            set_stage_k(a, ph2, need); emit_stage_loads(a, ph2); next_slot(a, ph2)
            cnt = cnt[1:] + [n2]
        n = n2
    ex = 0
    if tail: ex = tail[0]()
    for s in range(S - NS, S - 1):
        left = (S - 1) - (s + 1)
        a(f"s_waitcnt vmcnt({min(63, left*n + ex)})\ns_barrier")
        k = s - (S - NS) + 1
        if tail and k < len(tail) and tail[k]: ex += tail[k]() or 0
    a("s_barrier")

import re
S_TN, S_KA2, S_KB2, S_MB = 52, 3, 64, 47
def tight_loop(a, ph, n, need=None, hook=None, end=None):
    NS, S = ph.NS, ph.S
    def knext():
        t = Asm(); t.nlab = a.nlab
        sub = (lambda: need[0](t), None) if need else None
        set_stage_k(t, ph, sub)
        a.nlab = t.nlab
        out = []
        for l in t.l:
            l = re.sub(rf"\bs{S_T}\b", f"s{S_TN}", l); l = re.sub(rf"\bs{S_KA}\b", f"s{S_KA2}", l); l = re.sub(rf"\bs{S_KB}\b", f"s{S_KB2}", l)
            out.append(l.strip())
        return out
    set_stage_k(a, ph, (lambda: need[0](a), None) if need else None)
    p0 = ph.pieces[0]
    pre0 = f"s_add_u32 s{S_MB}, s{S_LDS}, s{p0[2]}\ns_add_u32 m0, s{S_MB}, {p0[3]}"
    a(pre0)
    if getattr(ph, 'prio', 0): a(f"s_setprio {ph.prio}")
    L = a.lab('ploop')
    a(f"{L}:\ns_waitcnt vmcnt({min(63, (NS-2)*n)})\ns_barrier")
    if need: need[1]()
    K = [f"s_add_u32 s{S_TN}, s{S_T}, 1"] + knext()
    groups = [p[2] for p in ph.pieces if p[3] is not None]
    lastg = max(i for i, p in enumerate(ph.pieces) if p[3] is not None and (i == 0 or p[2] != [q for q in ph.pieces[:i] if q[3] is not None][-1][2] or p[5] is not None or ph.pieces[i-1][5] is not None))
    npc = len(ph.pieces)
    hook_at = getattr(ph, 'hook_at', 1)
    slots = [i for i in range(npc) if i > hook_at] or [i for i in range(1, npc - 1)]
    per = -(-len(K) // len(slots))
    cur = p0[2]
    for i, (kind, voff, sldsw, ldsoff, imm, cond) in enumerate(ph.pieces):
        skip = None
        if cond is not None:
            skip = a.lab('skip')
            a(f"s_cmp_ge_u32 s{S_W4}, {cond}\ns_cbranch_scc1 {skip}")
        if ldsoff is not None and i:
            if cur != sldsw: a(f"s_add_u32 s{S_MB}, s{S_LDS}, s{sldsw}")
            cur = None if skip else sldsw
            a(f"s_add_u32 m0, s{S_MB}, {ldsoff}")
            if i in slots and K and not skip and not K[0].startswith(('s_cselect', 's_addc')): a(K.pop(0))
            else: a("s_nop 0")
        srdn, sk = (SRD_A, S_KA) if kind == 'A' else (SRD_B, S_KB)
        fl = ph.aflags if kind == 'A' else ph.bflags
        a(f"buffer_load_dwordx4 v{voff}, s[{srdn}:{srdn+3}], s{sk} offen" + (f" offset:{imm}" if imm else "") + (" " + fl if fl else "") + " lds")
        if skip: a(f"{skip}:")
        if i == hook_at and hook:
            if i == npc - 1:
                while K: a(K.pop(0))
            hook()
        if i in slots:
            k = 0
            while K and (k < per - 1 or K[0].startswith(('s_cselect', 's_addc'))):
                a(K.pop(0)); k += 1
    for x in K: a(x)
    next_slot(a, ph)
    a(f"s_mov_b32 s{S_KA}, s{S_KA2}\ns_mov_b32 s{S_KB}, s{S_KB2}\ns_mov_b32 s{S_T}, s{S_TN}")
    a(pre0)
    a(f"s_cmp_lt_u32 s{S_T}, {end or S}\ns_cbranch_scc1 {L}")
    if getattr(ph, 'prio', 0): a("s_setprio 0")

def lean_steps(a, ph, n, t0, nsteps, kcalc, looped):
    NS = ph.NS
    body = NS if NS % 2 == 0 else 2*NS
    regs = [(S_KA, S_KB), (S_KA2, S_KB2)]
    def m0(t, p): return f"s_add_u32 m0, s{p[2]}, {ph.lds0 + (t % NS)*ph.stage + p[3]}"
    def step(t, par, last):
        ka, kb = regs[par]
        K = [] if last else kcalc(*regs[1 - par])
        a(f"s_waitcnt vmcnt({min(63, (NS-2)*n)})\ns_barrier")
        for i, p in enumerate(ph.pieces):
            (kind, voff, sldsw, ldsoff, imm, cond) = p
            assert cond is None
            if ldsoff is not None and i:
                a(m0(t, p))
                if K and not K[0].startswith('s_cselect'): a(K.pop(0))
                else: a("s_nop 0")
            srdn, sk = (SRD_A, ka) if kind == 'A' else (SRD_B, kb)
            fl = ph.aflags if kind == 'A' else ph.bflags
            a(f"buffer_load_dwordx4 v{voff}, s[{srdn}:{srdn+3}], s{sk} offen" + (f" offset:{imm}" if imm else "") + (" " + fl if fl else "") + " lds")
            while K and K[0].startswith('s_cselect'): a(K.pop(0))
        for x in K: a(x)
        if not last: a(m0(t + 1, ph.pieces[0]))
    a(m0(t0, ph.pieces[0]))
    t = t0; par = 0
    if looped:
        reps = (nsteps - 1) // body
        if reps > 1:
            L = a.lab('lean')
            a(f"s_mov_b32 s{S_TN}, {reps}\n{L}:")
            for k in range(body): step(t + k, k & 1, False)
            a(f"s_sub_u32 s{S_TN}, s{S_TN}, 1\ns_cmp_lg_u32 s{S_TN}, 0\ns_cbranch_scc1 {L}")
            t += reps*body
    while t < t0 + nsteps:
        step(t, par, t == t0 + nsteps - 1); t += 1; par ^= 1

class Q:
    def __init__(self, a): self.a = a; self.q = []
    def push(self, tag, n): self.q.append((tag, n))
    def wait(self, tag):
        last = max(i for i, x in enumerate(self.q) if x[0] == tag)
        self.a(f"s_waitcnt vmcnt({min(63, sum(x[1] for x in self.q[last+1:]))})")

def producer_unrolled(a, ph, jobs, pre_first=None, fills={}):
    seq_setup(a, ph)
    NS, S = ph.NS, ph.S
    n = sum(1 for p in ph.pieces if p[5] is None)
    q = Q(a)
    def issue(t, fill=None):
        a(f"s_mov_b32 s{S_T}, {t}\ns_mov_b32 s{S_LDS}, {ph.lds0 + (t % NS)*ph.stage}")
        set_stage_k(a, ph); emit_stage_loads(a, ph, fill=fill); q.push(t, n)
    for t in range(NS - 1): issue(t)
    if pre_first: pre_first()
    q.wait(0); a("s_barrier")
    issue(NS - 1)
    for f in jobs.get(-1, []): f(q)
    for s in range(S - 1):
        q.wait(s + 1); a("s_barrier")
        if s + NS < S: issue(s + NS, fills.get(s))
        else:
            for x in fills.get(s, []): a(x)
        for f in jobs.get(s, []): f(q)
    a("s_barrier")

def cond_jobs(a, jobs):
    for t, f in sorted(jobs.items()):
        L = a.lab('nj')
        a(f"s_cmp_lg_u32 s{S_T}, {t}\ns_cbranch_scc1 {L}")
        f()
        a(f"{L}:")

def producer_first(a, ph, pre_first, loop_hook, tail, peel_hook=None, early1=True):
    NS, S = ph.NS, ph.S
    n = sum(1 for p in ph.pieces if p[5] is None)
    a(f"s_mov_b32 s{S_T}, 0\ns_mov_b32 s{S_LDS}, {ph.lds0}")
    def stage():
        set_stage_k(a, ph); emit_stage_loads(a, ph); next_slot(a, ph)
    stage(); a(f"s_add_u32 s{S_T}, s{S_T}, 1")
    pre_first()
    if early1:
        stage(); a(f"s_add_u32 s{S_T}, s{S_T}, 1")
        a(f"s_waitcnt vmcnt({n})\ns_barrier")
    else:
        a(f"s_waitcnt vmcnt(0)\ns_barrier")
        stage(); a(f"s_add_u32 s{S_T}, s{S_T}, 1")
    stage()
    if peel_hook: peel_hook()
    a(f"s_add_u32 s{S_T}, s{S_T}, 1")
    tight_loop(a, ph, n, None, loop_hook)
    ex = 0
    for s in range(S - NS, S - 1):
        left = (S - 1) - (s + 1)
        a(f"s_waitcnt vmcnt({min(63, left*n + ex)})\ns_barrier")
        k = s - (S - NS) + 1
        if k < len(tail) and tail[k]: ex += tail[k]() or 0
    a("s_barrier")

def reads(a, ph, st, kb):
    out = []
    A = []
    for i, e in enumerate(ph.afr):
        d = ph.va[st] + 4*i
        if len(e) == 3: A.append(f"ds_read_b128 {vr(d,4)}, v{e[kb]} offset:{e[2]}")
        else: A.append(f"ds_read_b128 {vr(d,4)}, v{e[0]} offset:{e[1] + kb*ph.a_kb}")
    B = []
    for i, (breg, off, half, kbs) in enumerate(ph.bfr):
        d = ph.vb[st] + 4*i
        B.append(f"ds_read_b64_tr_b16 {vr(d,2)}, v{breg} offset:{off + kb*kbs}")
        B.append(f"ds_read_b64_tr_b16 {vr(d+2,2)}, v{breg} offset:{off + kb*kbs + half}")
    return A + B

def mfmas(ph, st, first=False):
    out = []
    for (acc, ai, bi, swap) in ph.mm:
        A = vr(ph.va[st] + 4*ai, 4); B = vr(ph.vb[st] + 4*bi, 4)
        D = vr(ph.vacc + 4*acc, 4)
        C = "0" if first else D
        x, y = (B, A) if swap else (A, B)
        out.append(f"v_mfma_f32_16x16x32_bf16 {D}, {x}, {y}, {C}")
    return out

def interleave(a, M, R, lead=0, extra=None):
    R = list(R)
    per = max(1, math.ceil(len(R) / max(1, len(M) - lead - ph_tail(M, R))))
    for i, m in enumerate(M):
        a(m)
        if i >= lead:
            for _ in range(per):
                if R: a(R.pop(0))
    for r in R: a(r)

def ph_tail(M, R):
    return min(6, max(0, len(M) - len(R)))

def addr_update(a, ph):
    out = []
    out.append(f"s_add_u32 s{S_LDS}, s{S_LDS}, {ph.stage}")
    out.append(f"s_cmp_ge_u32 s{S_LDS}, {ph.NS*ph.stage}")
    out.append(f"s_cselect_b32 s{S_LDS}, 0, s{S_LDS}")
    out.append(f"s_cselect_b32 s{S_T0}, {(-(ph.NS-1)*ph.stage) & 0xffffffff:#x}, {ph.stage}" if False else f"s_cselect_b32 s{S_T0}, s{S_T1}, s{S_T2}")
    for cur in ph.addr_regs:
        out.append(f"v_add_u32 v{cur}, s{S_T0}, v{cur}")
    return out

def spread(a, M, F, start=0, end=None):
    end = len(M) if end is None else end
    n = max(1, end - start)
    F = list(F); k = 0
    for i, m in enumerate(M):
        a(m)
        if start <= i < end:
            want = ((i - start + 1) * len(F) + n - 1) // n
            while k < want: a(F[k]); k += 1
    while k < len(F): a(F[k]); k += 1

def merge(A, B):
    out = []; i = j = 0
    while i < len(A) or j < len(B):
        if j >= len(B) or (i < len(A) and i*len(B) <= j*len(A)): out.append(A[i]); i += 1
        else: out.append(B[j]); j += 1
    return out

def consumer_gemm(a, ph, opt={}, after_first=None, final_bar=False, sbase=0, after_half=None, cont=None, at_iter=None):
    a.c(f"--- consumer {ph.name}")
    bar = "" if opt.get('nobar') else "s_barrier"
    tail = opt.get('tail', 6)
    if opt.get('prio'): a(f"s_setprio {opt['prio']}")
    a(f"s_mov_b32 s{S_LDS}, 0\ns_mov_b32 s{S_CNT}, {ph.S - 2}")
    a(f"s_mov_b32 s{S_T1}, {(-(ph.NS-1)*ph.stage) & 0xffffffff:#x}\ns_mov_b32 s{S_T2}, {ph.stage}")
    a("s_barrier")
    if opt.get('stamp'): a("s_memtime s[68:69]")
    stamp(a, sbase + 2)
    for r in reads(a, ph, 0, 0): a(r)
    if after_first: after_first()
    a("s_waitcnt lgkmcnt(0)")
    nm = len(ph.mm)
    xf = opt.get('xf') or (lambda st: [])
    upd = addr_update(a, ph)
    early = opt.get('early', False)
    def half_a(first):
        M = mfmas(ph, 0, first=first)
        R = merge(reads(a, ph, 1, 1), xf(0))
        if early:
            e = max(1, nm - tail - 4)
            spread(a, M[:e], R)
            spread(a, M[e:], upd, 0, max(1, len(M[e:]) - 1))
        else:
            spread(a, M, R, 0, max(1, nm - tail))
    half_a(True)
    if after_half: after_half()
    L = a.lab('cloop')
    if opt.get('align'): a(f".p2align {opt['align']}")
    a(f"{L}:")
    pre = opt.get('pre', 0)
    a("s_waitcnt lgkmcnt(0)")
    M = mfmas(ph, 1)
    for m in M[:pre]: a(m)
    a(bar)
    F = merge(([] if early else upd) + reads(a, ph, 0, 0), xf(1))
    spread(a, M[pre:], F, 0, max(1, nm - pre - tail))
    a(f"s_waitcnt lgkmcnt(0)")
    half_a(False)
    if at_iter:
        K = a.lab('ni')
        a(f"s_cmp_lg_u32 s{S_CNT}, {ph.S - 2 - at_iter[0]}\ns_cbranch_scc1 {K}")
        at_iter[1]()
        a(f"{K}:")
    a(f"s_sub_u32 s{S_CNT}, s{S_CNT}, 1")
    a(f"s_cbranch_scc0 {L}")
    if cont:
        ph2, order_last, ex = cont
        M = order_last(mfmas(ph, 1))
        for t in range(ph2.S):
            a("s_waitcnt lgkmcnt(0)")
            for m in M[:pre]: a(m)
            a("s_barrier")
            spread(a, M[pre:], addr_update(a, ph2) + reads(a, ph2, 0, 0) + ex.get((t, 0), []))
            a("s_waitcnt lgkmcnt(0)")
            spread(a, mfmas(ph2, 0), reads(a, ph2, 1, 1) + ex.get((t, 1), []))
            M = mfmas(ph2, 1)
        ph = ph2
    a("s_waitcnt lgkmcnt(0)")
    M = mfmas(ph, 1)
    for m in M[:pre]: a(m)
    if final_bar: a("s_barrier")
    spread(a, M[pre:], xf(1))

STAMP = {'on': False}
def stamp(a, i, prod=False):
    if STAMP['on'] and not (prod and STAMP.get('noprod')):
        a(f"s_memrealtime s[92:93]\ns_waitcnt lgkmcnt(0)\nv_writelane_b32 v255, s92, {i}\ns_memtime s[92:93]\ns_waitcnt lgkmcnt(0)\nv_writelane_b32 v255, s92, {32+i}")
def stamp_flush(a, k, ws_tm):
    if STAMP['on']:
        srd(a, SRD_D, S_WS, 4 << 20, ws_tm)
        a(f"s_mov_b64 exec, -1\ns_lshl_b32 s{S_T0}, s2, 11\ns_lshl_b32 s{S_T1}, s{S_WAVE}, 8\ns_add_u32 s{S_T0}, s{S_T0}, s{S_T1}\ns_add_u32 s{S_T0}, s{S_T0}, {k*524288}")
        a(f"v_lshlrev_b32 v254, 2, v0\nbuffer_store_dword v255, v254, s[{SRD_D}:{SRD_D+3}], s{S_T0} offen")

def kernel_desc(name, vg=256, sg=102):
    return f""".p2align 6
.amdhsa_kernel {name}
  .amdhsa_next_free_vgpr {vg}
  .amdhsa_next_free_sgpr {sg}
  .amdhsa_accum_offset {(vg+3)//4*4}
  .amdhsa_group_segment_fixed_size 0
  .amdhsa_kernarg_size 88
  .amdhsa_user_sgpr_count 2
  .amdhsa_user_sgpr_kernarg_segment_ptr 1
  .amdhsa_system_sgpr_workgroup_id_x 1
  .amdhsa_float_denorm_mode_32 3
.end_amdhsa_kernel"""
```

```python
from gcore import *

import os
WS_BASE = int(os.environ.get('WSB', 0)) << 20
WS_XN = WS_BASE + 0
WS_O  = WS_BASE + (4 << 20)
WS_H  = WS_BASE + (8 << 20)
WS_G  = WS_BASE + (12 << 20)
WS_ST = WS_BASE + (28 << 20)
WS_CS = WS_BASE + (29 << 20)
WS_PX = WS_BASE + (32 << 20)
WS_FL = WS_BASE + (48 << 20)
WS_TM = 64 << 20

def map_8x4(a):
    a(f"s_and_b32 s{S_T0}, s2, 1\ns_lshl_b32 s{S_T0}, s{S_T0}, 3\ns_lshr_b32 s{S_T1}, s2, 3\ns_and_b32 s{S_T2}, s{S_T1}, 7\ns_add_u32 s{S_RB}, s{S_T0}, s{S_T2}")
    a(f"s_and_b32 s{S_T0}, s2, 7\ns_lshr_b32 s{S_T0}, s{S_T0}, 1\ns_lshl_b32 s{S_T0}, s{S_T0}, 2\ns_lshr_b32 s{S_T1}, s2, 6\ns_add_u32 s{S_CB}, s{S_T0}, s{S_T1}")
    a(f"s_add_u32 s{S_ROT}, s{S_RB}, s{S_CB}\ns_and_b32 s{S_ROT}, s{S_ROT}, 3")

def tr_lane_part(a, dst, t0, t1, pitch, jreg=None, j=0):
    a(f"v_lshrrev_b32 v{t0}, 2, v0")
    if pitch == 128:
        a(f"v_bfe_u32 v{t1}, v0, 3, 2")
    else:
        a(f"v_bfe_u32 v{t1}, v0, 4, 1")
    if jreg is not None: a(f"v_xor_b32 v{t1}, s{jreg}, v{t1}")
    else: a(f"v_xor_b32 v{t1}, {j}, v{t1}")
    a(f"v_lshlrev_b32 v{t1}, 5, v{t1}")
    a(f"v_lshlrev_b32 v{t0}, {int(math.log2(pitch))}, v{t0}")
    a(f"v_add_u32 v{dst}, v{t0}, v{t1}")
    a(f"v_and_b32 v{t0}, 3, v0\nv_lshlrev_b32 v{t0}, 3, v{t0}\nv_add_u32 v{dst}, v{dst}, v{t0}")

def dma_b_lane(a, dst, t0, t1, ldb, width):
    if width == 128:
        a(f"v_lshrrev_b32 v{t0}, 3, v0\nv_bfe_u32 v{t1}, v0, 4, 2\nv_lshlrev_b32 v{t1}, 1, v{t1}\nv_and_b32 v{dst}, 7, v0")
    else:
        a(f"v_lshrrev_b32 v{t0}, 2, v0\nv_bfe_u32 v{t1}, v0, 4, 1\nv_lshlrev_b32 v{t1}, 1, v{t1}\nv_and_b32 v{dst}, 3, v0")
    a(f"v_xor_b32 v{dst}, v{dst}, v{t1}\nv_lshlrev_b32 v{dst}, 4, v{dst}")
    a(f"v_mul_u32_u24 v{t0}, {ldb}, v{t0}\nv_add_u32 v{dst}, v{dst}, v{t0}")

S_LA, S_LB, S_LH = 57, 58, 59

def make_p3(lead=True, NS=3):
    ph = Phase(); ph.name = 'P3'; ph.S = 16; ph.NS = NS; ph.stage = 45056; ph.lds0 = 0; ph.lead = lead
    ph.ka_step = 2048; ph.kb_step = 64*7168; ph.aflags = ''; ph.bflags = ''
    ph.nmin = 11
    ph.pieces = []
    for i in range(2):
        ph.pieces.append(('A', 10+i, S_LA, i*2048, 0, None))
        ph.pieces.append(('A', 10+i, S_LA, None, 1024, None))
    for t in range(3):
        for i in range(2):
            ph.pieces.append(('B', 12 + t*2 + i, S_LB, 16384 + t*8192 + i*1024, 0, None))
    ph.pieces.append(('B', 18, S_LH, 40960, 0, None))
    ph.addr_regs = list(range(2, 10))
    ph.afr = [(2, 0), (2, 2048), (3, 0), (3, 2048)]
    ph.a_kb = 1024
    ph.bfr = [(4 + (c & 3), (c >> 2)*8192, 2048, 4096) for c in range(6)] + [(8, 0, 1024, 2048), (9, 0, 1024, 2048)]
    ph.va = [16, 32]; ph.vb = [48, 80]; ph.vacc = 112
    ph.mm = [(i*6 + c, i, c, True) for i in range(4) for c in range(6)] + [(24 + i*2 + c, i, 6 + c, True) for i in range(2) for c in range(2)]
    return ph

def p3_producer_setup(a, ph):
    srd(a, SRD_A, S_WS, 4 << 20, WS_H)
    srd(a, SRD_B, S_W1, 1024*3584*2)
    a(f"s_lshl_b32 s{S_LA}, s{S_W4}, 12\ns_lshl_b32 s{S_LB}, s{S_W4}, 11\ns_lshl_b32 s{S_LH}, s{S_W4}, 10")
    a(f"s_lshl_b32 s{S_T0}, s{S_RB}, 3\ns_lshl_b32 s{S_T1}, s{S_W4}, 1\ns_add_u32 s{S_T0}, s{S_T0}, s{S_T1}\ns_lshl_b32 s{S_T0}, s{S_T0}, 15")
    a(f"v_lshlrev_b32 v10, 4, v0\nv_add_u32 v10, s{S_T0}, v10\nv_add_u32 v11, 0x8000, v10")
    a(f"s_mul_i32 s{S_T0}, s{S_CB}, 448\ns_and_b32 s{S_T1}, s{S_CB}, 1\ns_lshl_b32 s{S_T2}, s{S_T1}, 6\ns_add_u32 s{S_T2}, s{S_T2}, s{S_T0}")
    a(f"s_cmp_eq_u32 s{S_T1}, 0\ns_cselect_b32 s{S_T1}, 384, 0\ns_add_u32 s{S_T1}, s{S_T1}, s{S_T0}")
    a(f"s_mul_i32 s{S_T0}, s{S_W4}, {16*7168}\ns_add_u32 s{S_T2}, s{S_T2}, s{S_T0}\ns_add_u32 s{S_T1}, s{S_T1}, s{S_T0}")
    dma_b_lane(a, 12, 20, 21, 7168, 128)
    a(f"v_add_u32 v12, s{S_T2}, v12")
    for t in range(3):
        for i in range(2):
            if t or i: a(f"v_add_u32 v{12+t*2+i}, {t*128 + i*8*7168}, v12")
    dma_b_lane(a, 18, 20, 21, 7168, 64)
    a(f"v_add_u32 v18, s{S_T1}, v18")

def p3_consumer_setup(a, ph):
    a(f"s_lshr_b32 s{S_T0}, s{S_W4}, 1\ns_and_b32 s{S_T1}, s{S_W4}, 1")
    a(f"s_lshl_b32 s{S_T2}, s{S_T0}, 13\ns_lshl_b32 s{S_T3}, s{S_T1}, 12\ns_add_u32 s{S_T3}, s{S_T3}, s{S_T2}")
    if ph.lds0: a(f"s_add_u32 s{S_T3}, s{S_T3}, {ph.lds0}")
    a(f"v_lshlrev_b32 v2, 4, v0\nv_add_u32 v2, s{S_T3}, v2\nv_xor_b32 v3, 0x1000, v2" if ph.lds0 % 8192 == 0 else "ERR")
    for k in range(4):
        a(f"s_lshl_b32 s{S_T2}, s{S_T1}, 1\ns_add_u32 s{S_T2}, s{S_T2}, {k}\ns_and_b32 s{S_T2}, s{S_T2}, 3")
        tr_lane_part(a, 4+k, 10, 11, 128, jreg=S_T2)
        a(f"s_mul_i32 s{S_T2}, s{S_T1}, {8192*(2 if k >= 2 else 1)}\ns_add_u32 s{S_T2}, s{S_T2}, {16384 + ph.lds0}\nv_add_u32 v{4+k}, s{S_T2}, v{4+k}")
    for j in range(2):
        tr_lane_part(a, 8+j, 10, 11, 64, j=j)
        a(f"v_add_u32 v{8+j}, {40960 + ph.lds0}, v{8+j}")

def xor16_32(a, v, t, op):
    a(f"v_mov_b32 v{t}, v{v}\ns_nop 1\nv_permlane16_swap_b32 v{t}, v{v}\ns_nop 0\n{op} v{v}, v{t}, v{v}")
    a(f"v_mov_b32 v{t}, v{v}\ns_nop 1\nv_permlane32_swap_b32 v{t}, v{v}\ns_nop 0\n{op} v{v}, v{t}, v{v}")

def xor16_32_multi(a, vs, ts, op):
    n = len(vs)
    for perm in ('v_permlane16_swap_b32', 'v_permlane32_swap_b32'):
        for v, t in zip(vs, ts): a(f"v_mov_b32 v{t}, v{v}")
        if n < 3: a(f"s_nop {2-n}")
        for v, t in zip(vs, ts): a(f"{perm} v{t}, v{v}")
        for v, t in zip(vs, ts): a(f"{op} v{v}, v{t}, v{v}")

def rbf(a, v):
    a(f"v_cvt_pk_bf16_f32 v{v}, v{v}, v{v}\nv_and_b32 v{v}, 0xffff0000, v{v}")

def ln_scale(a, vmean, vvar, t):
    rbf(a, vmean)
    a(f"v_max_f32 v{vvar}, 0, v{vvar}")
    rbf(a, vvar)
    a(f"v_add_f32 v{vvar}, 0x3727c5ac, v{vvar}")
    rbf(a, vvar)
    a(f"v_sqrt_f32 v{vvar}, v{vvar}\ns_nop 0")
    rbf(a, vvar)
    a(f"v_rcp_f32 v{vvar}, v{vvar}\ns_nop 0")

def tree_sum(a, regs, op="v_add_f32"):
    regs = list(regs)
    while len(regs) > 1:
        nxt = []
        for i in range(0, len(regs) - 1, 2):
            a(f"{op} v{regs[i]}, v{regs[i]}, v{regs[i+1]}"); nxt.append(regs[i])
        if len(regs) % 2: nxt.append(regs[-1])
        regs = nxt
    return regs[0]

def p0_ln(a, sf='', sid=2, lds0=0):
    srd(a, SRD_A, S_X, 2048*1024*2)
    srd(a, SRD_C, S_WS, 4 << 20, WS_XN)
    a(f"v_and_b32 v1, 7, v0\nv_lshlrev_b32 v2, 11, v1\nv_bfe_u32 v3, v0, 5, 1\nv_lshlrev_b32 v3, 6, v3\nv_add_u32 v2, v2, v3")
    a(f"v_bfe_u32 v4, v0, 3, 2\nv_lshlrev_b32 v3, 3, v4\nv_add_u32 v2, v2, v3\ns_lshl_b32 s{S_T0}, s{S_W4}, 9\nv_add_u32 v2, s{S_T0}, v2")
    a(f"s_lshl_b32 s{S_T1}, s{sid}, 14")
    for j in range(4):
        a(f"buffer_load_dwordx2 v[{16+4*j}:{17+4*j}], v2, s[{SRD_A}:{SRD_A+3}], s{S_T1} offen offset:{j*128}")
        a(f"buffer_load_dwordx2 v[{18+4*j}:{19+4*j}], v2, s[{SRD_A}:{SRD_A+3}], s{S_T1} offen offset:{j*128+32}")
    a(f"v_bfe_u32 v3, v0, 5, 1\nv_lshlrev_b32 v3, 10, v3\nv_lshlrev_b32 v4, 8, v4\nv_add_u32 v3, v3, v4\nv_lshlrev_b32 v4, 4, v1\nv_add_u32 v3, v3, v4")
    a(f"s_and_b32 s{S_T2}, s{sid}, 1\ns_lshl_b32 s{S_T2}, s{S_T2}, 7\ns_lshl_b32 s{S_T0}, s{S_W4}, 13\ns_add_u32 s{S_T2}, s{S_T2}, s{S_T0}\nv_add_u32 v3, s{S_T2}, v3")
    a(f"s_lshr_b32 s{S_T2}, s{sid}, 1\ns_lshl_b32 s{S_T2}, s{S_T2}, 15")
    a(f"v_lshlrev_b32 v5, 4, v1\nv_add_u32 v5, {lds0}, v5\ns_lshl_b32 s{S_T0}, s{S_W4}, 2\nv_add_u32 v6, s{S_T0}, v5")
    a("s_waitcnt vmcnt(0)")
    for k in range(16):
        a(f"v_lshlrev_b32 v{32+2*k}, 16, v{16+k}\nv_and_b32 v{33+2*k}, 0xffff0000, v{16+k}")
    for k in range(16): a(f"v_add_f32 v{64+k}, v{32+2*k}, v{33+2*k}")
    tree_sum(a, range(64, 80))
    def wg_reduce(off):
        a("s_nop 1\nv_add_f32_dpp v64, v64, v64 row_ror:8 row_mask:0xf bank_mask:0xf")
        xor16_32(a, 64, 65, "v_add_f32")
        a(f"ds_write_b32 v6, v64 offset:{off}\ns_waitcnt lgkmcnt(0)\ns_barrier\nds_read_b128 v[68:71], v5 offset:{off}\ns_waitcnt lgkmcnt(0)")
        a("v_add_f32 v68, v68, v69\nv_add_f32 v70, v70, v71\nv_add_f32 v68, v68, v70\nv_mul_f32 v68, 0x3a800000, v68")
    wg_reduce(0)
    a("v_mov_b32 v7, v68")
    for k in range(16):
        a(f"v_sub_f32 v80, v{32+2*k}, v7\nv_sub_f32 v81, v{33+2*k}, v7\nv_mul_f32 v{64+k}, v80, v80\nv_fmac_f32 v{64+k}, v81, v81")
    tree_sum(a, range(64, 80))
    wg_reduce(128)
    a("v_mov_b32 v8, v68")
    ln_scale(a, 7, 8, 9)
    for k in range(16):
        a(f"v_sub_f32 v80, v{32+2*k}, v7\nv_sub_f32 v81, v{33+2*k}, v7\nv_cvt_pk_bf16_f32 v82, v80, v81")
        a(f"v_lshlrev_b32 v80, 16, v82\nv_and_b32 v81, 0xffff0000, v82\nv_mul_f32 v80, v80, v8\nv_mul_f32 v81, v81, v8\nv_cvt_pk_bf16_f32 v{16+k}, v80, v81")
    for j in range(4):
        if j == 2: a(f"s_add_u32 s{S_T2}, s{S_T2}, 4096")
        a(f"buffer_store_dwordx4 v[{16+4*j}:{19+4*j}], v3, s[{SRD_C}:{SRD_C+3}], s{S_T2} offen offset:{(j&1)*2048} {sf}")

def p0_colsum(a, lds0, nbar_extra, sf=''):
    srd(a, SRD_B, S_W1, 1024*3584*2)
    srd(a, SRD_D, S_WS, 1 << 20, WS_CS)
    a("v_cmp_le_u32 vcc, 28, v0\nv_subrev_u32 v2, 28, v0\ns_nop 0\nv_cndmask_b32 v2, v0, v2, vcc\nv_cndmask_b32 v3, 0, 1, vcc")
    a(f"v_mul_u32_u24 v4, 7168, v3\nv_lshlrev_b32 v5, 4, v2\nv_add_u32 v4, v4, v5")
    a(f"s_lshr_b32 s{S_T0}, s2, 4\ns_lshl_b32 s{S_T0}, s{S_T0}, 6\ns_lshl_b32 s{S_T1}, s{S_W4}, 4\ns_add_u32 s{S_T0}, s{S_T0}, s{S_T1}\ns_mul_i32 s{S_T0}, s{S_T0}, 7168")
    a(f"s_and_b32 s{S_T1}, s2, 15\ns_mul_i32 s{S_T2}, s{S_T1}, 448\ns_add_u32 s{S_T0}, s{S_T0}, s{S_T2}")
    a("s_mov_b64 exec, 0x00ffffffffffffff" if False else "s_mov_b32 exec_hi, 0x00ffffff")
    for j in range(8):
        a(f"s_add_u32 s{S_T3}, s{S_T0}, {j*2*7168}\nbuffer_load_dwordx4 v[{16+4*j}:{19+4*j}], v4, s[{SRD_B}:{SRD_B+3}], s{S_T3} offen")
    a(f"s_lshl_b32 s{S_T3}, s{S_W4}, 1\nv_add_u32 v6, s{S_T3}, v3\nv_mul_u32_u24 v6, 896, v6\nv_lshlrev_b32 v5, 5, v2\nv_add_u32 v6, v6, v5")
    for j in range(8):
        a(f"s_waitcnt vmcnt({7-j})")
        for k in range(4):
            s = 16 + 4*j + k
            if j == 0:
                a(f"v_lshlrev_b32 v{48+2*k}, 16, v{s}\nv_and_b32 v{49+2*k}, 0xffff0000, v{s}")
            else:
                a(f"v_lshlrev_b32 v56, 16, v{s}\nv_and_b32 v57, 0xffff0000, v{s}\nv_add_f32 v{48+2*k}, v{48+2*k}, v56\nv_add_f32 v{49+2*k}, v{49+2*k}, v57")
    a(f"ds_write_b128 v6, v[48:51] offset:{lds0}\nds_write_b128 v6, v[52:55] offset:{lds0+16}")
    a("s_mov_b64 exec, -1\ns_waitcnt lgkmcnt(0)\ns_barrier")
    a(f"s_mul_i32 s{S_T3}, s{S_W4}, 224\nv_lshlrev_b32 v7, 2, v0\nv_add_u32 v7, s{S_T3}, v7")
    for k in range(8): a(f"ds_read_b32 v{16+k}, v7 offset:{lds0 + k*896}")
    a(f"s_lshr_b32 s{S_T0}, s2, 4\ns_mul_i32 s{S_T0}, s{S_T0}, {3584*4}\ns_mul_i32 s{S_T1}, s{S_T1}, 896\ns_add_u32 s{S_T0}, s{S_T0}, s{S_T1}")
    a("s_waitcnt lgkmcnt(0)")
    tree_sum(a, range(16, 24))
    a(f"s_mov_b32 exec_hi, 0x00ffffff\nbuffer_store_dword v16, v7, s[{SRD_D}:{SRD_D+3}], s{S_T0} offen {sf}\ns_mov_b64 exec, -1")
    for _ in range(nbar_extra): a("s_barrier")

def make_p1(lead=True):
    ph = Phase(); ph.name = 'P1'; ph.S = 16; ph.NS = 3; ph.stage = 43008; ph.lds0 = 0; ph.lead = lead
    ph.ka_step = 2048; ph.kb_step = 64*6144; ph.aflags = ''; ph.bflags = ''
    ph.nmin = 10
    ph.pieces = []
    for i in range(2):
        ph.pieces.append(('A', 10+i, S_LA, 2048 + i*2048, 0, None))
        ph.pieces.append(('A', 10+i, S_LA, None, 1024, None))
    ph.pieces.append(('A', 18, S_LH, 0, 0, 2))
    for t in range(3):
        for i in range(2):
            ph.pieces.append(('B', 12 + t*2 + i, S_LB, 18432 + t*8192 + i*1024, 0, None))
    ph.addr_regs = [2, 4, 5]
    ph.afr = [(2, i*2048) for i in range(5)]
    ph.a_kb = 1024
    ph.bfr = [(4 + c, t*8192, 2048, 4096) for t in range(3) for c in range(2)]
    ph.va = [16, 36]; ph.vb = [56, 80]; ph.vacc = 112
    mm = []
    for i in range(5):
        row = [(i*2 + c, i, 2 + c, True) for c in range(2)] + [(10 + i*2 + c, i, 4 + c, False) for c in range(2)]
        if i: row += [(20 + (i-1)*2 + c, i, c, True) for c in range(2)]
        mm += row if i % 2 == 0 else row[::-1]
    ph.mm = mm
    return ph

def a_frag_voff(a, rts_shift_or_mul, v, extra_sgpr=None):
    pass

def p1_producer_setup(a, ph):
    srd(a, SRD_A, S_WS, 4 << 20, WS_XN)
    srd(a, SRD_B, S_WQKV, 1024*3072*2)
    a(f"s_lshl_b32 s{S_LA}, s{S_W4}, 12\ns_lshl_b32 s{S_LB}, s{S_W4}, 11\ns_lshl_b32 s{S_LH}, s{S_W4}, 10")
    a(f"s_lshl_b32 s{S_T0}, s{S_RB}, 3\ns_lshl_b32 s{S_T1}, s{S_W4}, 1\ns_add_u32 s{S_T1}, s{S_T0}, s{S_T1}\ns_lshl_b32 s{S_T1}, s{S_T1}, 15")
    a(f"v_lshlrev_b32 v18, 4, v0\nv_add_u32 v10, s{S_T1}, v18\nv_add_u32 v11, 0x8000, v10")
    a(f"s_max_u32 s{S_T0}, s{S_T0}, 1\ns_sub_u32 s{S_T0}, s{S_T0}, 1\ns_lshl_b32 s{S_T0}, s{S_T0}, 15\ns_add_u32 s{S_T0}, s{S_T0}, s{S_LH}\nv_add_u32 v18, s{S_T0}, v18")
    a(f"s_lshl_b32 s{S_T2}, s{S_CB}, 7\ns_mul_i32 s{S_T0}, s{S_W4}, {16*6144}\ns_add_u32 s{S_T2}, s{S_T2}, s{S_T0}")
    dma_b_lane(a, 12, 20, 21, 6144, 128)
    a(f"v_add_u32 v12, s{S_T2}, v12")
    for t in range(3):
        for i in range(2):
            if t or i: a(f"v_add_u32 v{12+t*2+i}, {t*2048 + i*8*6144}, v12")

S_MASK = 64

def p1_consumer_setup(a, ph):
    a(f"s_lshr_b32 s{S_T0}, s{S_W4}, 1\ns_and_b32 s{S_T1}, s{S_W4}, 1")
    a(f"s_lshl_b32 s{S_T2}, s{S_T0}, 13\nv_lshlrev_b32 v2, 4, v0\nv_add_u32 v2, s{S_T2}, v2")
    if ph.lds0: a(f"v_add_u32 v2, {ph.lds0}, v2")
    for c in range(2):
        a(f"s_lshl_b32 s{S_T2}, s{S_T1}, 1\ns_add_u32 s{S_T2}, s{S_T2}, {c}")
        tr_lane_part(a, 4+c, 10, 11, 128, jreg=S_T2)
        a(f"v_add_u32 v{4+c}, {18432 + ph.lds0}, v{4+c}")
    a("v_and_b32 v10, 15, v0\nv_lshrrev_b32 v11, 4, v0\nv_lshlrev_b32 v11, 2, v11\nv_sub_u32 v10, v10, v11\nv_mov_b32 v12, 0xf149f2ca")
    for t in range(2):
        for r in range(4):
            a(f"v_add_u32 v11, {(16 if t == 0 else 0) - r}, v10\nv_and_b32 v11, 0xfffffff1, v11\nv_cmp_eq_u32 vcc, 0, v11\ns_nop 1\nv_cndmask_b32 v{224+4*t+r}, v12, 0, vcc")
    a(f"s_lshl_b32 s{S_T2}, s{S_RB}, 1\ns_add_u32 s{S_T2}, s{S_T2}, s{S_T0}\ns_cmp_eq_u32 s{S_T2}, 0\ns_cselect_b64 vcc, -1, 0")
    for r in range(4): a(f"v_cndmask_b32 v{232+r}, v{224+r}, v12, vcc")

def p1_epilogue(a, ph, sf='', fold=False, mid=None, oing=False):
    acc = lambda n: ph.vacc + 4*n
    if oing: srd(a, SRD_C, S_WS, 16 << 20, WS_G)
    else: srd(a, SRD_C, S_WS, 4 << 20, WS_O)
    RTS = 114688 if oing else 32768
    a(f"s_lshr_b32 s{S_T0}, s{S_W4}, 1\ns_and_b32 s{S_T1}, s{S_W4}, 1\ns_lshl_b32 s{S_T2}, s{S_RB}, 1\ns_add_u32 s{S_T2}, s{S_T2}, s{S_T0}")
    a(f"s_mul_i32 s{S_T2}, s{S_T2}, {4*RTS}")
    if oing: a(f"s_cmp_ge_u32 s{S_CB}, 8\ns_cselect_b32 s{S_T3}, 40960, 0\ns_add_u32 s{S_T2}, s{S_T2}, s{S_T3}")
    a(f"s_lshl_b32 s{S_T3}, s{S_CB}, 1\ns_add_u32 s{S_T3}, s{S_T3}, s{S_T1}\ns_lshl_b32 s{S_T3}, s{S_T3}, 10\ns_add_u32 s{S_T2}, s{S_T2}, s{S_T3}")
    a(f"v_lshlrev_b32 v2, 4, v0\ns_mov_b32 s82, 0x3e8293ee\ns_mov_b32 s83, 0x3e8293ee")
    P = lambda r: f"v[{r}:{r+1}]"
    KP, QP, VP = 16, 36, 52
    for i in range(5):
        for c in range(2):
            for h in range(2):
                a(f"v_cvt_pk_bf16_f32 v{KP+4*i+2*c+h}, v{acc(i*2+c)+2*h}, v{acc(i*2+c)+2*h+1}")
        if i:
            for c in range(2):
                for h in range(2):
                    a(f"v_cvt_pk_bf16_f32 v{QP+4*(i-1)+2*c+h}, v{acc(20+(i-1)*2+c)+2*h}, v{acc(20+(i-1)*2+c)+2*h+1}")
    SS = 72
    a("s_nop 1")
    for i in range(1, 5):
        for t in range(2):
            d = SS + 8*(i-1) + 4*t
            a(f"v_mfma_f32_16x16x32_bf16 v[{d}:{d+3}], v[{KP+4*(i-1+t)}:{KP+4*(i-1+t)+3}], v[{QP+4*(i-1)}:{QP+4*(i-1)+3}], v[{(232 if (i == 1 and t == 0) else 224 + 4*t)}:{(232 if (i == 1 and t == 0) else 224 + 4*t) + 3}]")
    for i in range(5):
        for c in range(2):
            for h in range(2):
                a(f"v_cvt_pk_bf16_f32 v{VP+10*c+2*i+h}, v{acc(10+i*2+c)+2*h}, v{acc(10+i*2+c)+2*h+1}")
    if mid: mid()
    MX = [112, 114, 116, 118]; TT = [113, 115, 117, 119]
    for i in range(4):
        b = SS + 8*i
        a(f"v_max3_f32 v{MX[i]}, v{b}, v{b+1}, v{b+2}\nv_max3_f32 v{TT[i]}, v{b+3}, v{b+4}, v{b+5}")
    for i in range(4):
        b = SS + 8*i
        a(f"v_max3_f32 v{MX[i]}, v{MX[i]}, v{b+6}, v{b+7}")
    for i in range(4): a(f"v_max_f32 v{MX[i]}, v{MX[i]}, v{TT[i]}")
    xor16_32_multi(a, MX, TT, "v_max_f32")
    if fold:
        for i in range(4): a(f"v_mul_f32 v{MX[i]}, v{240+i}, v{MX[i]}")
        for k in range(0, 8, 2):
            for i in range(4): a(f"v_pk_fma_f32 {P(SS+8*i+k)}, {P(SS+8*i+k)}, {P(240 + (i & 2))}, {P(MX[i])} op_sel:[0,{i & 1},0] op_sel_hi:[1,{i & 1},0] neg_lo:[0,0,1] neg_hi:[0,0,1]")
    else:
        for i in range(4): a(f"v_mul_f32 v{MX[i]}, s82, v{MX[i]}")
        for k in range(0, 8, 2):
            for i in range(4): a(f"v_pk_fma_f32 {P(SS+8*i+k)}, {P(SS+8*i+k)}, s[82:83], {P(MX[i])} op_sel_hi:[1,1,0] neg_lo:[0,0,1] neg_hi:[0,0,1]")
    for i in range(4):
        for k in range(8): a(f"v_exp_f32 v{SS+8*i+k}, v{SS+8*i+k}")
    W = 136
    for k in range(2):
        for i in range(4): a(f"v_pk_add_f32 {P(W+4*i+2*k)}, {P(SS+8*i+4*k)}, {P(SS+8*i+4*k+2)}")
    for i in range(4): a(f"v_pk_add_f32 {P(W+4*i)}, {P(W+4*i)}, {P(W+4*i+2)}")
    for i in range(4): a(f"v_add_f32 v{MX[i]}, v{W+4*i}, v{W+4*i+1}")
    xor16_32_multi(a, MX, TT, "v_add_f32")
    for i in range(4): a(f"v_rcp_f32 v{MX[i]}, v{MX[i]}")
    PP = 120
    for k in range(0, 8, 2):
        for i in range(4): a(f"v_pk_mul_f32 {P(SS+8*i+k)}, {P(SS+8*i+k)}, {P(MX[i])} op_sel_hi:[1,0]")
    for i in range(4):
        for k in range(4): a(f"v_cvt_pk_bf16_f32 v{PP+4*i+k}, v{SS+8*i+2*k}, v{SS+8*i+2*k+1}")
    OO = 136
    a("s_nop 1")
    for i in range(4):
        for c in range(2):
            d = OO + 8*i + 4*c
            a(f"v_mfma_f32_16x16x32_bf16 v[{d}:{d+3}], v[{VP+10*c+2*i}:{VP+10*c+2*i+3}], v[{PP+4*i}:{PP+4*i+3}], 0")
    a("s_nop 1")
    for i in range(4):
        if i == 3: a("s_nop 1")
        for k in range(4): a(f"v_cvt_pk_bf16_f32 v{SS+4*i+k}, v{OO+8*i+2*k}, v{OO+8*i+2*k+1}")
        a(f"s_add_u32 s{S_T3}, s{S_T2}, {i*RTS}\nbuffer_store_dwordx4 v[{SS+4*i}:{SS+4*i+3}], v2, s[{SRD_C}:{SRD_C+3}], s{S_T3} offen {sf}")

def map_4x8(a):
    a(f"s_and_b32 s{S_T0}, s2, 3\ns_lshl_b32 s{S_T0}, s{S_T0}, 2\ns_lshr_b32 s{S_T1}, s2, 3\ns_and_b32 s{S_T2}, s{S_T1}, 3\ns_add_u32 s{S_RB}, s{S_T0}, s{S_T2}")
    a(f"s_bfe_u32 s{S_T0}, s2, 0x10002\ns_lshl_b32 s{S_T0}, s{S_T0}, 3\ns_lshr_b32 s{S_T1}, s2, 5\ns_add_u32 s{S_CB}, s{S_T0}, s{S_T1}")
    a(f"s_add_u32 s{S_ROT}, s{S_RB}, s{S_CB}\ns_and_b32 s{S_ROT}, s{S_ROT}, 3")

def make_p2(lead=True):
    ph = Phase(); ph.name = 'P2'; ph.S = 16; ph.NS = 4; ph.stage = 24576; ph.lds0 = 0; ph.lead = lead
    ph.ka_step = 2048; ph.kb_step = 64*2048; ph.aflags = ''; ph.bflags = ''
    ph.nmin = 6
    ph.pieces = []
    for i in range(2):
        ph.pieces.append(('A', 10+i, S_LA, i*2048, 0, None))
        ph.pieces.append(('A', 10+i, S_LA, None, 1024, None))
    for i in range(2):
        ph.pieces.append(('B', 12 + i, S_LB, 16384 + i*1024, 0, None))
    ph.addr_regs = [2, 4, 5, 6, 7]
    ph.afr = [(2, 0), (2, 2048)]
    ph.a_kb = 1024
    ph.bfr = [(4 + j, 0, 2048, 4096) for j in range(4)]
    ph.va = [16, 24]; ph.vb = [32, 48]; ph.vacc = 64
    ph.mm = [(j, 0, j, True) for j in range(4)] + [(4 + j, 1, j, True) for j in range(3, -1, -1)]
    return ph

def p2_producer_setup(a, ph, oing=False):
    if oing: srd(a, SRD_A, S_WS, 16 << 20, WS_G)
    else: srd(a, SRD_A, S_WS, 4 << 20, WS_O)
    RTS = 114688 if oing else 32768
    srd(a, SRD_B, S_WO, 1024*1024*2)
    a(f"s_lshl_b32 s{S_LA}, s{S_W4}, 12\ns_lshl_b32 s{S_LB}, s{S_W4}, 11")
    a(f"s_lshl_b32 s{S_T0}, s{S_RB}, 3\ns_lshl_b32 s{S_T1}, s{S_W4}, 1\ns_add_u32 s{S_T1}, s{S_T0}, s{S_T1}\ns_mul_i32 s{S_T1}, s{S_T1}, {RTS}")
    a(f"v_lshlrev_b32 v10, 4, v0\nv_add_u32 v10, s{S_T1}, v10\nv_add_u32 v11, {RTS}, v10")
    a(f"s_lshl_b32 s{S_T2}, s{S_CB}, 7\ns_lshl_b32 s{S_T0}, s{S_W4}, 15\ns_add_u32 s{S_T2}, s{S_T2}, s{S_T0}")
    dma_b_lane(a, 12, 20, 21, 2048, 128)
    a(f"v_add_u32 v12, s{S_T2}, v12\nv_add_u32 v13, {8*2048}, v12")

P2_X = 200
def p2_res_loads(a):
    srd(a, SRD_D, S_X, 2048*1024*2)
    a(f"v_and_b32 v8, 15, v0\nv_lshlrev_b32 v8, 11, v8\nv_lshrrev_b32 v9, 4, v0\nv_lshlrev_b32 v9, 3, v9\nv_add_u32 v8, v8, v9")
    a(f"s_and_b32 s84, s2, 3\ns_lshl_b32 s84, s84, 20\ns_bfe_u32 s85, s2, 0x20003\ns_lshl_b32 s85, s85, 18\ns_add_u32 s84, s84, s85\ns_lshl_b32 s85, s{S_W4}, 16\ns_add_u32 s84, s84, s85")
    a(f"s_bfe_u32 s85, s2, 0x10002\ns_lshl_b32 s85, s85, 10\ns_add_u32 s84, s84, s85\ns_lshr_b32 s85, s2, 5\ns_lshl_b32 s85, s85, 7\ns_add_u32 s84, s84, s85\ns_add_u32 s85, s84, 32768")
    for i in range(2):
        for j in range(4):
            d = P2_X + 2*(i*4 + j)
            a(f"buffer_load_dwordx2 v[{d}:{d+1}], v8, s[{SRD_D}:{SRD_D+3}], s{84+i} offen offset:{j*32}")

def p2_consumer_setup(a, ph, res=True):
    if res: p2_res_loads(a)
    a(f"s_lshl_b32 s{S_T2}, s{S_W4}, 12\nv_lshlrev_b32 v2, 4, v0\nv_add_u32 v2, s{S_T2}, v2")
    if ph.lds0: a(f"v_add_u32 v2, {ph.lds0}, v2")
    for j in range(4):
        tr_lane_part(a, 4+j, 10, 11, 128, j=j)
        a(f"v_add_u32 v{4+j}, {16384 + ph.lds0}, v{4+j}")

def p2_epilogue(a, ph, sf='', before_stats_store=None):
    acc = ph.vacc
    srd(a, SRD_C, S_WS, 4 << 20, WS_H)
    srd(a, SRD_D, S_WS, 1 << 20, WS_ST)
    a(f"s_lshl_b32 s{S_T0}, s{S_RB}, 3\ns_lshl_b32 s{S_T1}, s{S_W4}, 1\ns_add_u32 s{S_T0}, s{S_T0}, s{S_T1}")
    a(f"s_lshl_b32 s{S_T1}, s{S_T0}, 15\ns_lshl_b32 s{S_T2}, s{S_CB}, 11\ns_add_u32 s{S_T1}, s{S_T1}, s{S_T2}\ns_add_u32 s{S_T2}, s{S_T1}, 32768")
    a(f"s_lshl_b32 s{S_T0}, s{S_T0}, 11\ns_lshl_b32 s{S_T3}, s{S_CB}, 7\ns_add_u32 s{S_T0}, s{S_T0}, s{S_T3}")
    a(f"v_lshlrev_b32 v2, 4, v0\nv_lshlrev_b32 v3, 3, v0")
    P = lambda r: f"v[{r}:{r+1}]"
    a("s_waitcnt vmcnt(0)")
    for n in range(16):
        a(f"v_lshlrev_b32 v{112+2*n}, 16, v{P2_X+n}\nv_and_b32 v{113+2*n}, 0xffff0000, v{P2_X+n}")
    for n in range(16): a(f"v_pk_add_f32 {P(acc+2*n)}, {P(acc+2*n)}, {P(112+2*n)}")
    for i in range(2):
        for p in range(2):
            d = 20 + 8*i + 4*p
            for k in range(4):
                s = acc + 16*i + 8*p + 2*k
                a(f"v_cvt_pk_bf16_f32 v{d+k}, v{s}, v{s+1}")
            a(f"buffer_store_dwordx4 v[{d}:{d+3}], v2, s[{SRD_C}:{SRD_C+3}], s{S_T1+i} offen offset:{p*1024} {sf}")
    for k in range(4):
        for i in range(2): a(f"v_pk_add_f32 {P(112+8*i+2*k)}, {P(acc+16*i+4*k)}, {P(acc+16*i+4*k+2)}")
    for k in range(2):
        for i in range(2): a(f"v_pk_add_f32 {P(112+8*i+4*k)}, {P(112+8*i+4*k)}, {P(112+8*i+4*k+2)}")
    for i in range(2): a(f"v_pk_add_f32 {P(112+8*i)}, {P(112+8*i)}, {P(112+8*i+4)}")
    a("v_add_f32 v40, v112, v113\nv_add_f32 v48, v120, v121")
    xor16_32_multi(a, [40, 48], [41, 49], "v_add_f32")
    a("v_mul_f32 v42, 0x3c800000, v40\nv_mul_f32 v50, 0x3c800000, v48")
    for k in range(8):
        for i in range(2): a(f"v_pk_add_f32 {P(acc+16*i+2*k)}, {P(acc+16*i+2*k)}, {P(42+8*i)} op_sel_hi:[1,0] neg_lo:[0,1] neg_hi:[0,1]")
    for k in range(2):
        for i in range(2): a(f"v_pk_mul_f32 {P(112+8*i+2*k)}, {P(acc+16*i+2*k)}, {P(acc+16*i+2*k)}")
    for k in range(2, 8):
        for i in range(2): a(f"v_pk_fma_f32 {P(112+8*i+2*(k&1))}, {P(acc+16*i+2*k)}, {P(acc+16*i+2*k)}, {P(112+8*i+2*(k&1))}")
    for i in range(2): a(f"v_pk_add_f32 {P(112+8*i)}, {P(112+8*i)}, {P(112+8*i+2)}")
    a("v_add_f32 v41, v112, v113\nv_add_f32 v49, v120, v121")
    xor16_32_multi(a, [41, 49], [43, 51], "v_add_f32")
    if before_stats_store: before_stats_store()
    a("s_mov_b64 exec, 0xffff")
    a(f"buffer_store_dwordx2 v[40:41], v3, s[{SRD_D}:{SRD_D+3}], s{S_T0} offen {sf}")
    a(f"buffer_store_dwordx2 v[48:49], v3, s[{SRD_D}:{SRD_D+3}], s{S_T0} offen offset:2048 {sf}")
    a("s_mov_b64 exec, -1")

P3_CONST = 135168
def p3_const_issue(a, lf=''):
    srd(a, SRD_C, S_WS, 2 << 20, WS_ST)
    srd(a, SRD_D, S_B1, 3584*2)
    Lc = a.lab('cols'); Le = a.lab('cend')
    a(f"s_cmp_ge_u32 s{S_W4}, 2\ns_cbranch_scc1 {Lc}")
    a(f"v_lshrrev_b32 v22, 4, v0\nv_lshlrev_b32 v22, 11, v22\nv_and_b32 v23, 15, v0\nv_lshlrev_b32 v23, 3, v23\nv_add_u32 v22, v22, v23")
    a(f"s_lshl_b32 s{S_T0}, s{S_RB}, 14\ns_lshl_b32 s{S_T1}, s{S_W4}, 13\ns_add_u32 s{S_T0}, s{S_T0}, s{S_T1}")
    for c in range(16):
        a(f"buffer_load_dwordx2 v[{32+2*c}:{33+2*c}], v22, s[{SRD_C}:{SRD_C+3}], s{S_T0} offen offset:{c*128} {lf}")
    a(f"s_branch {Le}\n{Lc}:")
    a(f"s_mul_i32 s{S_T0}, s{S_CB}, 224\ns_and_b32 s{S_T1}, s{S_CB}, 1\ns_lshl_b32 s{S_T2}, s{S_T1}, 5\ns_add_u32 s{S_T2}, s{S_T2}, s{S_T0}")
    a(f"s_cmp_eq_u32 s{S_T1}, 0\ns_cselect_b32 s{S_T1}, 0, 192\ns_sub_u32 s{S_T1}, s{S_T0}, s{S_T1}")
    a(f"s_and_b32 s{S_T0}, s{S_W4}, 1\ns_lshl_b32 s{S_T0}, s{S_T0}, 7\nv_lshlrev_b32 v23, 1, v0\nv_add_u32 v23, s{S_T0}, v23\nv_min_u32 v23, 222, v23")
    a(f"v_cmp_gt_u32 vcc, 192, v23\nv_mov_b32 v24, s{S_T1}\nv_mov_b32 v25, s{S_T2}\nv_cndmask_b32 v24, v24, v25, vcc\nv_add_u32 v24, v24, v23")
    a(f"v_lshlrev_b32 v22, 2, v24\nv_lshlrev_b32 v24, 1, v24")
    for c in range(16):
        a(f"s_mov_b32 s{S_T0}, {(1 << 20) + c*3584*4}\nbuffer_load_dwordx2 v[{32+2*c}:{33+2*c}], v22, s[{SRD_C}:{SRD_C+3}], s{S_T0} offen {lf}")
    a(f"buffer_load_dword v64, v24, s[{SRD_D}:{SRD_D+3}], 0 offen")
    a(f"{Le}:")

def p3_const_finish(a):
    Lc = a.lab('cols'); Le = a.lab('cend')
    a(f"s_cmp_ge_u32 s{S_W4}, 2\ns_cbranch_scc1 {Lc}")
    for c in range(8): a(f"v_add_f32 v{70+c}, v{32+4*c}, v{34+4*c}")
    tree_sum(a, range(70, 78))
    a("v_mul_f32 v70, 0x3a800000, v70")
    for c in range(16):
        a(f"v_fma_f32 v{32+2*c}, v{32+2*c}, 0x3c800000, -v70" if False else f"v_mul_f32 v{32+2*c}, 0x3c800000, v{32+2*c}\nv_sub_f32 v{32+2*c}, v{32+2*c}, v70")
    for c in range(16):
        a(f"v_mul_f32 v{32+2*c}, v{32+2*c}, v{32+2*c}\nv_mul_f32 v{32+2*c}, 0x42800000, v{32+2*c}\nv_add_f32 v{33+2*c}, v{33+2*c}, v{32+2*c}")
    tree_sum(a, range(33, 64, 2))
    a("v_mul_f32 v71, 0x3a800000, v33")
    ln_scale(a, 70, 71, 72)
    a(f"v_mul_f32 v73, v70, v71\nv_mov_b32 v72, v71\ns_lshl_b32 s{S_T0}, s{S_W4}, 9\nv_lshlrev_b32 v22, 3, v0\nv_add_u32 v22, s{S_T0}, v22\nv_add_u32 v22, {P3_CONST}, v22")
    a(f"ds_write_b64 v22, v[72:73]\ns_branch {Le}\n{Lc}:")
    tree_sum(a, range(32, 64, 2)); tree_sum(a, range(33, 64, 2))
    a(f"v_lshlrev_b32 v34, 16, v64\nv_and_b32 v35, 0xffff0000, v64\nv_lshlrev_b32 v23, 2, v23\nv_add_u32 v23, {P3_CONST + 1024}, v23")
    a(f"ds_write_b64 v23, v[32:33]\nds_write_b64 v23, v[34:35] offset:896")
    a(f"{Le}:\ns_waitcnt lgkmcnt(0)")

def p3_epilogue(a, ph, sf='', lvl=False, early=None, early_at=8):
    acc = lambda n: ph.vacc + 4*n
    srd(a, SRD_C, S_WS, 16 << 20, WS_G)
    a(f"s_lshr_b32 s{S_T0}, s{S_W4}, 1\ns_and_b32 s{S_T1}, s{S_W4}, 1")
    a(f"s_lshl_b32 s{S_T2}, s{S_T0}, 9\ns_lshl_b32 s{S_T3}, s{S_T1}, 8\ns_add_u32 s{S_T2}, s{S_T2}, s{S_T3}\ns_add_u32 s{S_T2}, s{S_T2}, {P3_CONST}")
    a(f"v_and_b32 v2, 15, v0\nv_lshlrev_b32 v2, 3, v2\nv_add_u32 v2, s{S_T2}, v2\nv_xor_b32 v3, 0x100, v2")
    for i in range(4): a(f"ds_read_b64 v[{8+2*i}:{9+2*i}], v{2 + (i >> 1)} offset:{(i & 1)*128}")
    a(f"s_mul_i32 s{S_T2}, s{S_T1}, 384\ns_add_u32 s{S_T2}, s{S_T2}, {P3_CONST + 1024}\nv_and_b32 v5, 0x30, v0\nv_add_u32 v4, s{S_T2}, v5\nv_add_u32 v5, {P3_CONST + 1024 + 768}, v5")
    CS, BB = 16, 48
    for c in range(8):
        r, o = (4, c*64) if c < 6 else (5, (c-6)*64)
        a(f"ds_read_b128 v[{CS+4*c}:{CS+4*c+3}], v{r} offset:{o}\nds_read_b128 v[{BB+4*c}:{BB+4*c+3}], v{r} offset:{o+896}")
    a(f"s_lshl_b32 s{S_T2}, s{S_RB}, 3\ns_lshl_b32 s{S_T3}, s{S_T0}, 2\ns_add_u32 s{S_T2}, s{S_T2}, s{S_T3}\ns_lshl_b32 s{S_T3}, s{S_T1}, 1")
    for i in range(4):
        a(f"s_xor_b32 s{84+i}, s{S_T3}, {i}\ns_add_u32 s{84+i}, s{84+i}, s{S_T2}\ns_mul_i32 s{84+i}, s{84+i}, {112*1024}")
    if lvl:
        a(f"s_lshr_b32 s{S_T2}, s{S_CB}, 3\ns_mul_i32 s{S_T2}, s{S_T2}, {28*2048}\ns_and_b32 s{S_T3}, s{S_CB}, 7\ns_lshl_b32 s89, s{S_T3}, 10\ns_add_u32 s89, s89, s{S_T2}\ns_add_u32 s89, s89, {24*2048}")
        a(f"s_lshl_b32 s88, s{S_T3}, 11\ns_add_u32 s88, s88, s{S_T2}\ns_lshl_b32 s{S_T3}, s{S_T1}, 10\ns_add_u32 s88, s88, s{S_T3}")
    else:
        a(f"s_mul_i32 s{S_T2}, s{S_CB}, 7\ns_and_b32 s{S_T3}, s{S_CB}, 1\ns_mul_i32 s88, s{S_T1}, 3\ns_add_u32 s88, s88, s{S_T2}\ns_add_u32 s88, s88, s{S_T3}\ns_lshl_b32 s88, s88, 10")
        a(f"s_cmp_eq_u32 s{S_T3}, 0\ns_cselect_b32 s89, 6, 0\ns_add_u32 s89, s89, s{S_T2}\ns_lshl_b32 s89, s89, 10")
    a(f"v_lshlrev_b32 v6, 4, v0\nv_add_u32 v7, s89, v6\nv_add_u32 v6, s88, v6")
    k2 = -2.0*0.7978845608028654*1.4426950408889634
    import struct
    f2h = lambda x: struct.unpack('<I', struct.pack('<f', x))[0]
    KK, ONE = 224, 226
    a(f"v_mov_b32 v{KK}, {f2h(k2*0.044715):#x}\nv_mov_b32 v{KK+1}, {f2h(k2):#x}\nv_mov_b32 v{ONE}, 1.0\nv_mov_b32 v{ONE+1}, 1.0")
    a("s_waitcnt lgkmcnt(0)")
    units = [(i, p) for p in range(3) for i in range(4)] + [(0, 3), (1, 3)]
    P = lambda r: f"v[{r}:{r+1}]"
    for n, (i, p) in enumerate(units):
        A = acc(i*6 + 2*p) if p < 3 else acc(24 + i*2)
        T = 80 + 16*(n & 1); U = T + 8
        R = 8 + 2*i
        for k in range(0, 8, 2): a(f"v_pk_fma_f32 {P(T+k)}, {P(R)}, {P(CS+8*p+k)}, {P(BB+8*p+k)} op_sel:[1,0,0] op_sel_hi:[1,1,1] neg_lo:[1,0,0] neg_hi:[1,0,0]")
        for k in range(0, 8, 2): a(f"v_pk_fma_f32 {P(A+k)}, {P(R)}, {P(A+k)}, {P(T+k)} op_sel_hi:[0,1,1]")
        for k in range(0, 8, 2): a(f"v_pk_mul_f32 {P(T+k)}, {P(A+k)}, {P(A+k)}")
        for k in range(0, 8, 2): a(f"v_pk_fma_f32 {P(T+k)}, {P(T+k)}, {P(KK)}, {P(KK)} op_sel:[0,0,1] op_sel_hi:[1,0,1]")
        for k in range(0, 8, 2): a(f"v_pk_mul_f32 {P(T+k)}, {P(T+k)}, {P(A+k)}")
        for k in range(8): a(f"v_exp_f32 v{T+k}, v{T+k}")
        for k in range(0, 8, 2): a(f"v_pk_add_f32 {P(T+k)}, {P(T+k)}, {P(ONE)}")
        for k in range(8): a(f"v_rcp_f32 v{T+k}, v{T+k}")
        for k in range(0, 8, 2): a(f"v_pk_mul_f32 {P(A+k)}, {P(A+k)}, {P(T+k)}")
        for k in range(4): a(f"v_cvt_pk_bf16_f32 v{U+k}, v{A+2*k}, v{A+2*k+1}")
        if p < 3 and lvl:
            a(f"buffer_store_dwordx4 v[{U}:{U+3}], v6, s[{SRD_C}:{SRD_C+3}], s{84+i} offen {sf}")
            if i == 3 and p < 2: a(f"v_add_u32 v6, {8*2048}, v6")
        elif p < 3: a(f"buffer_store_dwordx4 v[{U}:{U+3}], v6, s[{SRD_C}:{SRD_C+3}], s{84+i} offen offset:{p*1024} {sf}")
        else: a(f"buffer_store_dwordx4 v[{U}:{U+3}], v7, s[{SRD_C}:{SRD_C+3}], s{84+i} offen {sf}")
        if early and n + 1 == early_at: early(early_at - 4)

def map_p4(a):
    a(f"s_and_b32 s{S_T0}, s2, 3\ns_lshl_b32 s{S_T0}, s{S_T0}, 2\ns_lshr_b32 s{S_T1}, s2, 3\ns_and_b32 s{S_T2}, s{S_T1}, 3\ns_add_u32 s{S_RB}, s{S_T0}, s{S_T2}")
    a(f"s_bfe_u32 s{S_KH}, s2, 0x10002\ns_lshr_b32 s{S_CB}, s2, 5")
    a(f"s_add_u32 s{S_ROT}, s{S_RB}, s{S_CB}\ns_and_b32 s{S_ROT}, s{S_ROT}, 3")

def make_p4(lead=True):
    ph = Phase(); ph.name = 'P4'; ph.S = 28; ph.NS = 3; ph.stage = 32768; ph.lds0 = 0; ph.lead = lead
    ph.ka_step = 2048; ph.kb_step = 64*2048; ph.aflags = ''; ph.bflags = ''
    ph.nmin = 8
    ph.pieces = []
    for i in range(2):
        ph.pieces.append(('A', 10+i, S_LA, i*2048, 0, None))
        ph.pieces.append(('A', 10+i, S_LA, None, 1024, None))
    for t in range(2):
        for i in range(2):
            ph.pieces.append(('B', 12 + 2*t + i, S_LB, 16384 + t*8192 + i*1024, 0, None))
    ph.addr_regs = [2, 4, 5, 6, 7]
    ph.afr = [(2, i*2048) for i in range(4)]
    ph.a_kb = 1024
    ph.bfr = [(4 + c, 0, 2048, 4096) for c in range(4)]
    ph.va = [16, 32]; ph.vb = [48, 64]; ph.vacc = 112
    ph.mm = [(i*4 + c, i, c, True) for i in range(4) for c in (range(4) if i % 2 == 0 else range(3, -1, -1))]
    return ph

def p4_producer_setup(a, ph):
    srd(a, SRD_A, S_WS, 16 << 20, WS_G)
    srd(a, SRD_B, S_W2, 3584*1024*2)
    a(f"s_lshl_b32 s{S_LA}, s{S_W4}, 12\ns_lshl_b32 s{S_LB}, s{S_W4}, 11")
    a(f"s_lshl_b32 s{S_T0}, s{S_RB}, 3\ns_lshl_b32 s{S_T1}, s{S_W4}, 1\ns_add_u32 s{S_T1}, s{S_T0}, s{S_T1}\ns_mul_i32 s{S_T1}, s{S_T1}, {112*1024}")
    a(f"s_mul_i32 s{S_T0}, s{S_KH}, {56*1024}\ns_add_u32 s{S_T1}, s{S_T1}, s{S_T0}")
    a(f"v_lshlrev_b32 v10, 4, v0\nv_add_u32 v10, s{S_T1}, v10\nv_add_u32 v11, {112*1024}, v10")
    a(f"s_lshl_b32 s{S_T2}, s{S_CB}, 8\ns_lshl_b32 s{S_T0}, s{S_W4}, 15\ns_add_u32 s{S_T2}, s{S_T2}, s{S_T0}\ns_mul_i32 s{S_T0}, s{S_KH}, {1792*2048}\ns_add_u32 s{S_T2}, s{S_T2}, s{S_T0}")
    dma_b_lane(a, 12, 20, 21, 2048, 128)
    a(f"v_add_u32 v12, s{S_T2}, v12\nv_add_u32 v13, {8*2048}, v12\nv_add_u32 v14, 128, v12\nv_add_u32 v15, 128, v13")

P4_H = 80
def p4_res_loads(a, lf=''):
    a(f"s_lshl_b32 s84, s82, 15\ns_lshl_b32 s85, s83, 10\ns_add_u32 s84, s84, s85")
    for i in range(4):
        a(f"s_add_u32 s85, s84, {i*32768}\nbuffer_load_dwordx4 v[{P4_H+4*i}:{P4_H+4*i+3}], v3, s[{SRD_C}:{SRD_C+3}], s85 offen {lf}")

def p4_consumer_setup(a, ph, lf='', res=True):
    srd(a, SRD_C, S_WS, 4 << 20, WS_H)
    srd(a, SRD_D, S_B2, 1024*2)
    a(f"s_lshr_b32 s{S_T0}, s{S_W4}, 1\ns_and_b32 s{S_T1}, s{S_W4}, 1")
    a(f"s_lshl_b32 s83, s{S_CB}, 2\ns_lshl_b32 s{S_T2}, s{S_KH}, 1\ns_add_u32 s83, s83, s{S_T2}\ns_add_u32 s83, s83, s{S_T1}")
    a(f"s_lshl_b32 s82, s{S_RB}, 3\ns_lshl_b32 s{S_T2}, s{S_T0}, 2\ns_add_u32 s82, s82, s{S_T2}")
    a(f"v_lshlrev_b32 v3, 4, v0")
    if res: p4_res_loads(a, lf)
    a(f"v_lshrrev_b32 v8, 4, v0\nv_lshlrev_b32 v8, 3, v8\ns_lshl_b32 s{S_T3}, s83, 6")
    a(f"buffer_load_dwordx2 v[96:97], v8, s[{SRD_D}:{SRD_D+3}], s{S_T3} offen\nbuffer_load_dwordx2 v[98:99], v8, s[{SRD_D}:{SRD_D+3}], s{S_T3} offen offset:32")
    a(f"s_lshl_b32 s{S_T2}, s{S_T0}, 13\nv_add_u32 v2, s{S_T2}, v3")
    if ph.lds0: a(f"v_add_u32 v2, {ph.lds0}, v2")
    for c in range(2):
        a(f"s_lshl_b32 s{S_T2}, s{S_T1}, 1\ns_add_u32 s{S_T2}, s{S_T2}, {c}")
        tr_lane_part(a, 4+c, 10, 11, 128, jreg=S_T2)
        a(f"s_lshl_b32 s{S_T2}, s{S_KH}, 13\ns_add_u32 s{S_T2}, s{S_T2}, {16384 + ph.lds0}\nv_add_u32 v{4+c}, s{S_T2}, v{4+c}\nv_xor_b32 v{6+c}, 0x2000, v{4+c}")

def p4_epilogue(a, ph, fval='1', fbase=0):
    acc = lambda n: ph.vacc + 4*n
    srd(a, SRD_C, S_WS, 8 << 20, WS_PX)
    srd(a, SRD_D, S_WS, 1 << 20, WS_FL)
    srd(a, SRD_A, S_OUT, 2048*1024*2)
    a(f"s_lshl_b32 s{S_T0}, s{S_RB}, 3\ns_add_u32 s{S_T0}, s{S_T0}, s{S_CB}\ns_lshl_b32 s{S_T0}, s{S_T0}, 1\ns_add_u32 s{S_T0}, s{S_T0}, s{S_KH}")
    a(f"s_lshl_b32 s{S_T1}, s{S_T0}, 2\ns_add_u32 s{S_T1}, s{S_T1}, s{S_W4}")
    a(f"s_lshl_b32 s84, s{S_T1}, 13\ns_xor_b32 s85, s84, 0x8000")
    a(f"s_lshl_b32 s86, s{S_T1}, 7\ns_add_u32 s86, s86, {fbase}\ns_xor_b32 s87, s86, 0x200")
    for i in range(4):
        for c in range(2):
            n = i*2 + c
            if n == 4: a("s_add_u32 s84, s84, 4096")
            a(f"buffer_store_dwordx4 v[{acc(i*4+2+c)}:{acc(i*4+2+c)+3}], v3, s[{SRD_C}:{SRD_C+3}], s84 offen offset:{(n & 3)*1024} sc1")
    a("s_waitcnt vmcnt(8)")
    for h in range(4):
        a(f"v_lshlrev_b32 v{100+2*h}, 16, v{96+h}\nv_and_b32 v{101+2*h}, 0xffff0000, v{96+h}")
    for i in range(4):
        for h in range(4):
            d = acc(i*4) + 2*h
            a(f"v_lshlrev_b32 v16, 16, v{P4_H+4*i+h}\nv_and_b32 v17, 0xffff0000, v{P4_H+4*i+h}")
            a(f"v_add_f32 v16, v16, v{100+2*h}\nv_add_f32 v17, v17, v{101+2*h}\nv_add_f32 v{d}, v{d}, v16\nv_add_f32 v{d+1}, v{d+1}, v17")
    a(f"v_mov_b32 v18, 0\nv_mov_b32 v19, {fval}\ns_waitcnt vmcnt(0)\ns_mov_b64 exec, 1")
    a(f"buffer_store_dword v19, v18, s[{SRD_D}:{SRD_D+3}], s86 offen sc1")
    L = a.lab('poll')
    a(f"s_mov_b32 s88, 0\n{L}:\ns_add_u32 s88, s88, 1\ns_cmp_gt_u32 s88, 0x40000\ns_cbranch_scc1 {L}_x\nbuffer_load_dword v20, v18, s[{SRD_D}:{SRD_D+3}], s87 offen sc1\ns_waitcnt vmcnt(0)\nv_readfirstlane_b32 s{S_T2}, v20\ns_cmp_lg_u32 s{S_T2}, {fval}\ns_cbranch_scc1 {L}")
    a(f"{L}_x:\ns_mov_b64 exec, -1")
    RX = 24
    for n in range(8):
        if n == 4: a("s_add_u32 s85, s85, 4096")
        a(f"buffer_load_dwordx4 v[{RX+4*n}:{RX+4*n+3}], v3, s[{SRD_C}:{SRD_C+3}], s85 offen offset:{(n & 3)*1024} sc1")
    a("v_and_b32 v4, 15, v0\nv_lshlrev_b32 v4, 11, v4\nv_bfe_u32 v5, v0, 4, 1\nv_lshlrev_b32 v5, 5, v5\nv_add_u32 v4, v4, v5\nv_bfe_u32 v5, v0, 5, 1\nv_lshlrev_b32 v5, 4, v5\nv_add_u32 v4, v4, v5")
    a(f"s_lshl_b32 s{S_T2}, s82, 15\ns_lshl_b32 s{S_T3}, s83, 6\ns_add_u32 s{S_T2}, s{S_T2}, s{S_T3}")
    for i in range(4):
        a(f"s_waitcnt vmcnt({6 - 2*i + i})")
        d = acc(i*4)
        for k in range(8): a(f"v_add_f32 v{d+k}, v{d+k}, v{RX+8*i+k}")
        U = 64 + 4*i
        for k in range(4): a(f"v_cvt_pk_bf16_f32 v{U+k}, v{d+2*k}, v{d+2*k+1}")
        a(f"s_add_u32 s{S_T3}, s{S_T2}, {i*32768}\ns_nop 0\nv_permlane16_swap_b32 v{U}, v{U+2}\nv_permlane16_swap_b32 v{U+1}, v{U+3}")
        a(f"buffer_store_dwordx4 v[{U}:{U+3}], v4, s[{SRD_A}:{SRD_A+3}], s{S_T3} offen")


S_E = 62
S_FO = 63
SRD_F = 96
FL_E, FL_0, FL_1, FL_2, FL_3, FL_C, FL_X = 0, 0x1000, 0x2000, 0x3000, 0x4000, 0x5000, 0x10000

def flag_off(a, dst, base, srow, scol):
    a(f"s_lshl_b32 s{dst}, s{srow}, 7\ns_lshl_b32 s{S_T0}, s{scol}, 2\ns_add_u32 s{dst}, s{dst}, s{S_T0}\ns_add_u32 s{dst}, s{dst}, {base}")

def flag_set(a, soff, only_wave=4):
    L = a.lab('noflag')
    if only_wave is not None: a(f"s_cmp_lg_u32 s{S_WAVE}, {only_wave}\ns_cbranch_scc1 {L}")
    a(f"v_mov_b32 v28, 0\nv_mov_b32 v29, s{S_E}\ns_mov_b64 exec, 1\nbuffer_store_dword v29, v28, s[{SRD_F}:{SRD_F+3}], s{soff} offen sc1\ns_mov_b64 exec, -1")
    a(f"{L}:")

def poll(a, voff, soff, execmask, hook=None):
    L = a.lab('poll')
    a(f"s_mov_b64 exec, {execmask:#x}\ns_mov_b32 s{S_T0}, 0\n{L}:")
    a(f"buffer_load_dword v31, v{voff}, s[{SRD_F}:{SRD_F+3}], s{soff} offen sc1\ns_add_u32 s{S_T0}, s{S_T0}, 1\ns_cmp_gt_u32 s{S_T0}, 0x20000\ns_cbranch_scc1 {L}_x")
    if hook: hook()
    a(f"s_waitcnt vmcnt(0)\nv_cmp_ne_u32 vcc, s{S_E}, v31\ns_cbranch_vccnz {L}\n{L}_x:\ns_waitcnt vmcnt(0)\ns_mov_b64 exec, -1")

def colsum_wave(a, sk, scb, sf='sc1'):
    srd(a, SRD_C, S_W1, 1024*3584*2)
    srd(a, SRD_D, S_WS, 1 << 20, WS_CS)
    a(f"v_lshrrev_b32 v22, 3, v0\nv_mul_u32_u24 v22, 7168, v22\nv_and_b32 v23, 7, v0\nv_min_u32 v23, 6, v23\nv_lshlrev_b32 v24, 4, v23\nv_add_u32 v22, v22, v24")
    a(f"s_mul_i32 s{S_T0}, s{sk}, {64*7168}\ns_mul_i32 s{S_T1}, s{scb}, 448\ns_add_u32 s{S_T0}, s{S_T0}, s{S_T1}\ns_mul_i32 s{S_T1}, s{S_W4}, 112\ns_add_u32 s{S_T0}, s{S_T0}, s{S_T1}")
    for j in range(8):
        a(f"s_add_u32 s{S_T1}, s{S_T0}, {j*8*7168}\nbuffer_load_dwordx4 v[{32+4*j}:{35+4*j}], v22, s[{SRD_C}:{SRD_C+3}], s{S_T1} offen")
    a(f"s_mul_i32 s{S_T0}, s{sk}, {3584*4}\ns_mul_i32 s{S_T1}, s{scb}, 896\ns_add_u32 s{S_T0}, s{S_T0}, s{S_T1}\ns_mul_i32 s{S_T1}, s{S_W4}, 224\ns_add_u32 s{S_T0}, s{S_T0}, s{S_T1}")
    cs_store_voff(a, 23, 23)
    for j in range(8):
        a(f"s_waitcnt vmcnt({7-j})")
        for x in cs_acc(32, j): a(x)
    for x in cs_fold(): a(x)
    a(f"s_mov_b32 exec_lo, 0x007f007f\ns_mov_b32 exec_hi, 0x007f007f\nbuffer_store_dwordx2 v[64:65], v23, s[{SRD_D}:{SRD_D+3}], s{S_T0} offen {sf}\ns_mov_b64 exec, -1")

CNT_LDS = 160256
def publish(a, k, base, srow, scol, cnt=None, younger=0):
    L = a.lab('nopub')
    flag_off(a, S_FO, base, srow, scol)
    a(f"v_mov_b32 v236, {cnt or CNT_LDS + 4*k}\nv_mov_b32 v237, 1\nv_mov_b32 v238, 0\nv_mov_b32 v239, s{S_E}\ns_mov_b64 exec, 1")
    a(f"s_waitcnt vmcnt({younger})\nds_add_rtn_u32 v237, v236, v237\ns_waitcnt lgkmcnt(0)\nv_cmp_ne_u32 vcc, 3, v237\ns_cbranch_vccnz {L}")
    a(f"buffer_store_dword v239, v238, s[{SRD_F}:{SRD_F+3}], s{S_FO} offen sc1\n{L}:\ns_mov_b64 exec, -1")

S_PF = 78
def pf_setup(a, ptr, share, span):
    a(f"s_lshl_b32 s{S_T0}, s2, 2\ns_add_u32 s{S_T0}, s{S_T0}, s{S_W4}\ns_mul_i32 s{S_T0}, s{S_T0}, {share}\ns_min_u32 s{S_T0}, s{S_T0}, {1024*share - span}\ns_add_u32 s{S_PF}, s{ptr}, s{S_T0}\ns_addc_u32 s{S_PF+1}, s{ptr+1}, 0")
def pf_step(a, n):
    a(f"s_waitcnt lgkmcnt({15 - n})")
    for i in range(n): a(f"s_load_dword s64, s[{S_PF}:{S_PF+1}], {i*64}")
    a(f"s_add_u32 s{S_PF}, s{S_PF}, {n*64}\ns_addc_u32 s{S_PF+1}, s{S_PF+1}, 0")
def pf_code(a, nbytes, per):
    L = a.lab('pc')
    a(f"s_getpc_b64 s[{S_PF}:{S_PF+1}]\n{L}:\ns_sub_u32 s{S_PF}, s{S_PF}, {L}-KSTART\ns_subb_u32 s{S_PF+1}, s{S_PF+1}, 0")
    a(f"s_lshr_b32 s{S_T0}, s2, 3\ns_lshl_b32 s{S_T0}, s{S_T0}, 2\ns_add_u32 s{S_T0}, s{S_T0}, s{S_W4}\ns_lshl_b32 s{S_T0}, s{S_T0}, 6")
    for i in range(per):
        a(f"s_add_u32 s{S_T1}, s{S_T0}, {i*8192}\ns_min_u32 s{S_T1}, s{S_T1}, KEND-KSTART-4\ns_load_dword s64, s[{S_PF}:{S_PF+1}], s{S_T1}")

WS_GR = WS_BASE + (30 << 20)
WS_CQ = WS_BASE + (31 << 20)
FL_Q = 0x7000
P1C = 153600

def make_p1x(lead=True):
    ph = make_p1(lead)
    ph.ka_step = 128
    ph.pieces = []
    for i in range(4):
        ph.pieces.append(('A', 6 + i, S_LA, 2048 + i*1024, 0, None))
    ph.pieces.append(('A', 18, S_LH, 0, 0, 2))
    for t in range(3):
        for i in range(2):
            ph.pieces.append(('B', 12 + t*2 + i, S_LB, 18432 + t*8192 + i*1024, 0, None))
    ph.addr_regs = [2, 3, 4, 5]
    ph.afr = [(2, 3, i*2048) for i in range(5)]
    ph.bfr = [(4 + c, t*8192, 512, 4096) for t in range(3) for c in range(2)]
    return ph

def p1x_producer_srds(a):
    srd(a, SRD_A, S_X, 2048*1024*2)
    srd(a, SRD_B, S_WQKV, 1024*3072*2)
def p1x_producer_setup(a, ph, srds=True):
    if srds: p1x_producer_srds(a)
    a(f"s_lshl_b32 s{S_LA}, s{S_W4}, 12\ns_lshl_b32 s{S_LB}, s{S_W4}, 11\ns_lshl_b32 s{S_LH}, s{S_W4}, 10")
    a("v_lshrrev_b32 v20, 3, v0\nv_lshlrev_b32 v20, 11, v20\nv_lshrrev_b32 v21, 4, v0\nv_and_b32 v22, 7, v0\nv_xor_b32 v21, v21, v22\nv_lshlrev_b32 v21, 4, v21\nv_add_u32 v20, v20, v21")
    a(f"s_lshl_b32 s{S_T0}, s{S_RB}, 18\ns_lshl_b32 s{S_T1}, s{S_W4}, 16\ns_add_u32 s{S_T1}, s{S_T1}, s{S_T0}")
    a(f"v_add_u32 v6, s{S_T1}, v20\nv_xor_b32 v21, 64, v20\nv_add_u32 v7, s{S_T1}, v21\nv_add_u32 v7, 0x4000, v7\nv_add_u32 v8, 0x8000, v6\nv_add_u32 v9, 0x8000, v7")
    a(f"s_max_u32 s{S_T0}, s{S_T0}, 0x8000\ns_sub_u32 s{S_T0}, s{S_T0}, 0x8000\ns_lshl_b32 s{S_T1}, s{S_W4}, 14\ns_add_u32 s{S_T0}, s{S_T0}, s{S_T1}")
    a(f"s_lshl_b32 s{S_T1}, s{S_W4}, 6\ns_and_b32 s{S_T1}, s{S_T1}, 64\nv_xor_b32 v18, s{S_T1}, v20\nv_add_u32 v18, s{S_T0}, v18")
    a(f"s_lshl_b32 s{S_T2}, s{S_CB}, 7\ns_mul_i32 s{S_T0}, s{S_W4}, {16*6144}\ns_add_u32 s{S_T2}, s{S_T2}, s{S_T0}")
    a("v_lshrrev_b32 v20, 3, v0\nv_mul_u32_u24 v20, 6144, v20\nv_bfe_u32 v21, v0, 4, 1\nv_lshlrev_b32 v21, 1, v21\nv_xor_b32 v21, v21, v22\nv_lshlrev_b32 v21, 4, v21")
    a(f"v_add_u32 v12, v20, v21\nv_add_u32 v12, s{S_T2}, v12\nv_xor_b32 v21, 64, v21\nv_add_u32 v13, v20, v21\nv_add_u32 v13, s{S_T2}, v13\nv_add_u32 v13, {8*6144}, v13")
    for t in range(1, 3):
        for i in range(2): a(f"v_add_u32 v{12+t*2+i}, {t*2048}, v{12+i}")

def p1x_consumer_setup(a, ph):
    a(f"s_lshr_b32 s{S_T0}, s{S_W4}, 1\ns_and_b32 s{S_T1}, s{S_W4}, 1")
    a(f"s_lshl_b32 s{S_T2}, s{S_T0}, 13\nv_and_b32 v10, 15, v0\nv_lshrrev_b32 v11, 1, v10\nv_lshrrev_b32 v2, 4, v0\nv_xor_b32 v2, v2, v11\nv_lshlrev_b32 v2, 4, v2")
    a(f"v_lshlrev_b32 v10, 7, v10\nv_add_u32 v2, v2, v10\nv_add_u32 v2, s{S_T2}, v2\nv_xor_b32 v3, 64, v2")
    a("v_lshrrev_b32 v10, 4, v0\nv_lshlrev_b32 v10, 10, v10\nv_bfe_u32 v11, v0, 2, 2\nv_lshlrev_b32 v11, 7, v11\nv_add_u32 v10, v10, v11")
    a(f"v_and_b32 v11, 3, v0\nv_lshlrev_b32 v11, 3, v11\nv_add_u32 v10, v10, v11\nv_add_u32 v10, 18432, v10\nv_bfe_u32 v11, v0, 3, 2")
    for c in range(2):
        a(f"s_lshl_b32 s{S_T2}, s{S_T1}, 1\ns_add_u32 s{S_T2}, s{S_T2}, {c}\nv_xor_b32 v{4+c}, s{S_T2}, v11\nv_lshlrev_b32 v{4+c}, 5, v{4+c}\nv_add_u32 v{4+c}, v{4+c}, v10")
    a("v_and_b32 v10, 15, v0\nv_lshrrev_b32 v11, 4, v0\nv_lshlrev_b32 v11, 2, v11\nv_sub_u32 v10, v10, v11\nv_mov_b32 v12, 0xf149f2ca")
    for t in range(2):
        for r in range(4):
            a(f"v_add_u32 v11, {(16 if t == 0 else 0) - r}, v10\nv_and_b32 v11, 0xfffffff1, v11\nv_cmp_eq_u32 vcc, 0, v11\ns_nop 1\nv_cndmask_b32 v{224+4*t+r}, v12, 0, vcc")
    a(f"s_lshl_b32 s{S_T2}, s{S_RB}, 1\ns_add_u32 s{S_T2}, s{S_T2}, s{S_T0}\ns_cmp_eq_u32 s{S_T2}, 0\ns_cselect_b64 vcc, -1, 0")
    for r in range(4): a(f"v_cndmask_b32 v{232+r}, v{224+r}, v12, vcc")

def wave_sum(a, vs, ts):
    def gap():
        if len(vs) < 3: a(f"s_nop {2 - len(vs)}")
    for m in ("quad_perm:[1,0,3,2]", "quad_perm:[2,3,0,1]", "row_half_mirror", "row_mirror"):
        gap()
        for v in vs: a(f"v_add_f32_dpp v{v}, v{v}, v{v} {m} row_mask:0xf bank_mask:0xf")
    xor16_32_multi(a, vs, ts, "v_add_f32")

def row_stats_issue(a, sid):
    srd(a, SRD_A, S_X, 2048*1024*2)
    a(f"v_lshlrev_b32 v1, 4, v0\ns_lshl_b32 s{S_T0}, s{sid}, 14\ns_lshl_b32 s{S_T1}, s{S_W4}, 12\ns_add_u32 s{S_T0}, s{S_T0}, s{S_T1}")
    for j in range(4): a(f"buffer_load_dwordx4 v[{16+4*j}:{19+4*j}], v1, s[{SRD_A}:{SRD_A+3}], s{S_T0} offen offset:{j*1024}")

def row_stats_finish(a, sid):
    P = lambda r: f"v[{r}:{r+1}]"
    srd(a, SRD_C, S_WS, 16384, WS_GR)
    a(f"s_lshl_b32 s{S_T0}, s{sid}, 6\ns_lshl_b32 s{S_T1}, s{S_W4}, 4\ns_add_u32 s{S_T0}, s{S_T0}, s{S_T1}\nv_mov_b32 v1, 0")
    a("s_waitcnt vmcnt(0)")
    for k in range(16): a(f"v_lshlrev_b32 v{32+2*k}, 16, v{16+k}\nv_and_b32 v{33+2*k}, 0xffff0000, v{16+k}")
    def psum(dst, src):
        for k in range(4):
            for r in range(2): a(f"v_pk_add_f32 {P(dst+8*r+2*k)}, {P(src+16*r+4*k)}, {P(src+16*r+4*k+2)}")
        for k in range(2):
            for r in range(2): a(f"v_pk_add_f32 {P(dst+8*r+4*k)}, {P(dst+8*r+4*k)}, {P(dst+8*r+4*k+2)}")
        for r in range(2): a(f"v_pk_add_f32 {P(dst+8*r)}, {P(dst+8*r)}, {P(dst+8*r+4)}")
        for r in range(2): a(f"v_add_f32 v{dst+8*r}, v{dst+8*r}, v{dst+8*r+1}")
        wave_sum(a, [dst, dst+8], [dst+1, dst+9])
        for r in range(2): a(f"v_mul_f32 v{dst+8*r}, 0x3a800000, v{dst+8*r}")
    psum(64, 32)
    for k in range(8):
        for r in range(2): a(f"v_pk_add_f32 {P(32+16*r+2*k)}, {P(32+16*r+2*k)}, {P(64+8*r)} op_sel_hi:[1,0] neg_lo:[0,1] neg_hi:[0,1]")
    for k in range(16): a(f"v_pk_mul_f32 {P(32+2*k)}, {P(32+2*k)}, {P(32+2*k)}")
    psum(80, 32)
    a("v_cvt_pk_bf16_f32 v80, v80, v88\nv_and_b32 v81, 0xffff0000, v80\nv_lshlrev_b32 v80, 16, v80")
    a("v_add_f32 v80, 0x3727c5ac, v80\nv_add_f32 v81, 0x3727c5ac, v81\nv_cvt_pk_bf16_f32 v80, v80, v81\nv_and_b32 v81, 0xffff0000, v80\nv_lshlrev_b32 v80, 16, v80")
    a("v_sqrt_f32 v80, v80\nv_sqrt_f32 v81, v81\ns_nop 0")
    a(f"v_cvt_pk_bf16_f32 v84, v64, v80\nv_cvt_pk_bf16_f32 v86, v72, v81\nv_mov_b32 v85, s{S_E}\nv_mov_b32 v87, s{S_E}")
    a(f"s_mov_b64 exec, 1\nbuffer_store_dwordx4 v[84:87], v1, s[{SRD_C}:{SRD_C+3}], s{S_T0} offen sc1\ns_mov_b64 exec, -1")

def cs_acc(src, j):
    out = []
    for k in range(4):
        s = src + 4*j + k
        if j == 0: out += [f"v_lshlrev_b32 v{64+2*k}, 16, v{s}", f"v_and_b32 v{65+2*k}, 0xffff0000, v{s}"]
        else: out += [f"v_lshlrev_b32 v{72+2*k}, 16, v{s}", f"v_and_b32 v{73+2*k}, 0xffff0000, v{s}"]
    if j:
        for k in range(4): out.append(f"v_pk_add_f32 v[{64+2*k}:{65+2*k}], v[{64+2*k}:{65+2*k}], v[{72+2*k}:{73+2*k}]")
    return out
def cs_fold():
    out = ["s_nop 1"]
    out += [f"v_permlane32_swap_b32 v{64+k}, v{68+k}" for k in range(4)]
    out += [f"v_add_f32 v{64+k}, v{64+k}, v{68+k}" for k in (2, 3, 0, 1)]
    out += ["s_nop 1", "v_permlane16_swap_b32 v64, v66", "v_permlane16_swap_b32 v65, v67", "v_add_f32 v64, v64, v66", "v_add_f32 v65, v65, v67", "s_nop 1"]
    out += [f"v_add_f32_dpp v{64+k}, v{64+k}, v{64+k} row_ror:8 row_mask:0xf bank_mask:0xf" for k in range(2)]
    return out
def cs_store_voff(a, dst, chunk):
    a(f"v_lshlrev_b32 v{dst}, 5, v{chunk}\nv_lshrrev_b32 v25, 4, v0\nv_lshlrev_b32 v25, 3, v25\nv_add_u32 v{dst}, v{dst}, v25")

def skip_w3(a):
    L = a.lab('w3')
    a(f"s_cmp_eq_u32 s{S_W4}, 3\ns_cbranch_scc1 {L}")
    return L

def jq_setup(a):
    a(f"v_lshrrev_b32 v22, 3, v0\nv_mul_u32_u24 v22, 6144, v22\nv_and_b32 v23, 7, v0\nv_lshlrev_b32 v24, 4, v23\nv_add_u32 v22, v22, v24")
    cs_store_voff(a, 23, 23)
    a(f"s_mul_i32 s84, s{S_RB}, {64*6144}\ns_lshl_b32 s{S_T1}, s{S_CB}, 7\ns_add_u32 s84, s84, s{S_T1}\ns_add_u32 s84, s84, s{S_LB}")
    for k in range(32, 64): a(f"v_mov_b32 v{k}, 0")
def jq_issue(a, q, js):
    L = skip_w3(a)
    for j in js:
        a(f"s_add_u32 s{S_T1}, s84, {j*8*6144}\nbuffer_load_dwordx4 v[{32+4*j}:{35+4*j}], v22, s[{SRD_B}:{SRD_B+3}], s{S_T1} offen")
    a(f"{L}:")
def jq_store(a, q):
    L = skip_w3(a)
    srd(a, SRD_D, S_WS, 1 << 20, WS_CQ)
    a(f"s_mul_i32 s{S_T0}, s{S_RB}, {3072*4}\ns_lshl_b32 s{S_T1}, s{S_CB}, 8\ns_add_u32 s{S_T0}, s{S_T0}, s{S_T1}\ns_add_u32 s{S_T0}, s{S_T0}, s{S_LA}")
    a(f"s_mov_b32 exec_lo, 0x00ff00ff\ns_mov_b32 exec_hi, 0x00ff00ff\nbuffer_store_dwordx2 v[64:65], v23, s[{SRD_D}:{SRD_D+3}], s{S_T0} offen sc1\ns_mov_b64 exec, -1")
    a(f"{L}:")
    q.push('jqs', 0)
def jq_flag(a, q):
    L = skip_w3(a)
    q.wait('jqs')
    a(f"s_lshl_b32 s82, s{S_CB}, 8\ns_lshl_b32 s{S_T0}, s{S_RB}, 4\ns_add_u32 s82, s82, s{S_T0}\ns_lshl_b32 s{S_T0}, s{S_W4}, 2\ns_add_u32 s82, s82, s{S_T0}\ns_add_u32 s82, s82, {FL_Q}")
    flag_set(a, 82, only_wave=None)
    a(f"{L}:")

def jg_loads(a):
    Lr = a.lab('rows'); Le = a.lab('gend')
    a(f"s_cmp_eq_u32 s{S_W4}, 3\ns_cbranch_scc1 {Lr}")
    srd(a, SRD_D, S_WS, 1 << 20, WS_CQ)
    a(f"v_and_b32 v22, 15, v0\nv_lshlrev_b32 v22, 4, v22\ns_lshl_b32 s82, s{S_CB}, 8\ns_lshl_b32 s{S_T0}, s{S_W4}, 2\ns_add_u32 s82, s82, s{S_T0}\ns_add_u32 s82, s82, {FL_Q}")
    a(f"buffer_load_dword v48, v22, s[{SRD_F}:{SRD_F+3}], s82 offen sc1")
    a(f"v_lshrrev_b32 v23, 4, v0\nv_mul_u32_u24 v23, {3072*4}, v23\nv_add_u32 v23, v23, v22\ns_lshl_b32 s{S_T0}, s{S_CB}, 8\ns_add_u32 s{S_T0}, s{S_T0}, s{S_LA}")
    for k in range(4):
        a(f"s_add_u32 s{S_T1}, s{S_T0}, {k*4*3072*4}\nbuffer_load_dwordx4 v[{32+4*k}:{35+4*k}], v23, s[{SRD_D}:{SRD_D+3}], s{S_T1} offen sc1")
    a(f"s_branch {Le}\n{Lr}:")
    srd(a, SRD_D, S_WS, 16384, WS_GR)
    a(f"s_lshl_b32 s{S_T0}, s{S_RB}, 7\ns_sub_u32 s{S_T0}, s{S_T0}, 16")
    a(f"v_add_u32 v22, s{S_T0}, v0\nv_add_u32 v23, 16, v22\nv_cmp_gt_i32 vcc, 0, v22\nv_add_u32 v24, 128, v0\nv_min_u32 v24, 143, v24\nv_cndmask_b32 v23, v22, v23, vcc")
    a(f"v_add_u32 v24, s{S_T0}, v24\nv_lshlrev_b32 v23, 3, v23\nv_add_u32 v22, 64, v22\nv_lshlrev_b32 v22, 3, v22\nv_lshlrev_b32 v24, 3, v24")
    a(f"buffer_load_dwordx2 v[32:33], v23, s[{SRD_D}:{SRD_D+3}], 0 offen sc1\nbuffer_load_dwordx2 v[34:35], v22, s[{SRD_D}:{SRD_D+3}], 0 offen sc1\nbuffer_load_dwordx2 v[36:37], v24, s[{SRD_D}:{SRD_D+3}], 0 offen sc1")
    a(f"{Le}:")
def fold4(a, b):
    P = lambda r: f"v[{r}:{r+1}]"
    for h in (0, 2): a(f"v_pk_add_f32 {P(b+h)}, {P(b+h)}, {P(b+4+h)}\nv_pk_add_f32 {P(b+8+h)}, {P(b+8+h)}, {P(b+12+h)}")
    for h in (0, 2): a(f"v_pk_add_f32 {P(b+h)}, {P(b+h)}, {P(b+8+h)}")
    a(f"s_nop 1\nv_permlane32_swap_b32 v{b}, v{b+2}\nv_permlane32_swap_b32 v{b+1}, v{b+3}\nv_add_f32 v{b}, v{b}, v{b+2}\nv_add_f32 v{b+1}, v{b+1}, v{b+3}")
    a(f"s_nop 1\nv_permlane16_swap_b32 v{b}, v{b+1}\nv_add_f32 v{b}, v{b}, v{b+1}")

def jg_issue(a, q):
    jg_loads(a); q.push('jg', 3)
def jg_process(a, q):
    q.wait('jg')
    Lc = a.lab('gchk'); Lr = a.lab('grows'); Lok = a.lab('gok'); Le = a.lab('gdone'); Lt = a.lab('gretry')
    a(f"s_mov_b32 s83, 0\n{Lc}:\ns_cmp_eq_u32 s{S_W4}, 3\ns_cbranch_scc1 {Lr}")
    a(f"v_cmp_ne_u32 vcc, s{S_E}, v48\ns_cbranch_vccnz {Lt}")
    fold4(a, 32)
    a(f"v_bfe_u32 v23, v0, 4, 1\nv_lshrrev_b32 v24, 5, v0\nv_lshl_add_u32 v23, v24, 1, v23\nv_lshl_add_u32 v22, v23, 2, v22")
    a(f"s_lshl_b32 s{S_T0}, s{S_W4}, 8\ns_add_u32 s{S_T0}, s{S_T0}, {P1C}\nv_add_u32 v22, s{S_T0}, v22\nds_write_b32 v22, v32\ns_branch {Le}")
    a(f"{Lt}:\ns_add_u32 s83, s83, 1\ns_cmp_gt_u32 s83, 0x8000\ns_cbranch_scc1 {Le}")
    jg_loads(a)
    a(f"s_waitcnt vmcnt(0)\ns_branch {Lc}")
    a(f"{Lr}:\nv_cmp_ne_u32 vcc, s{S_E}, v33\ns_cbranch_vccnz {Lt}\nv_cmp_ne_u32 vcc, s{S_E}, v35\ns_cbranch_vccnz {Lt}\nv_cmp_ne_u32 vcc, s{S_E}, v37\ns_cbranch_vccnz {Lt}")
    for j in range(3):
        a(f"v_and_b32 v{40+2*j}, 0xffff0000, v{32+2*j}\nv_lshlrev_b32 v{41+2*j}, 16, v{32+2*j}")
    for j in range(3): a(f"v_rcp_f32 v{40+2*j}, v{40+2*j}")
    a(f"v_add_u32 v24, 128, v0\nv_min_u32 v24, 143, v24\nv_lshlrev_b32 v25, 2, v24\nv_lshlrev_b32 v24, 3, v24\nv_lshlrev_b32 v23, 3, v0")
    a(f"v_add_u32 v22, {P1C}, v30\nv_add_u32 v23, {P1C}, v23\nv_add_u32 v24, {P1C}, v24\nv_add_u32 v25, {P1C}, v25")
    a("ds_write_b64 v23, v[40:41] offset:768\nds_write_b64 v23, v[42:43] offset:1280\nds_write_b64 v24, v[44:45] offset:768")
    a("ds_write_b32 v22, v41 offset:1920\nds_write_b32 v22, v43 offset:2176\nds_write_b32 v25, v45 offset:1920")
    a("ds_write_b32 v22, v40 offset:2496\nds_write_b32 v22, v42 offset:2752\nds_write_b32 v25, v44 offset:2496")
    a(f"{Le}:\ns_waitcnt lgkmcnt(0)")

def p1x_fold(a, ph):
    acc = lambda n: ph.vacc + 4*n
    P = lambda r: f"v[{r}:{r+1}]"
    a(f"s_lshr_b32 s{S_T0}, s{S_W4}, 1\ns_and_b32 s{S_T1}, s{S_W4}, 1")
    a(f"s_lshl_b32 s{S_T2}, s{S_T0}, 9\ns_add_u32 s{S_T2}, s{S_T2}, {P1C + 768}\nv_and_b32 v6, 15, v0\nv_lshlrev_b32 v7, 3, v6\nv_add_u32 v7, s{S_T2}, v7")
    a(f"s_lshl_b32 s{S_T2}, s{S_T0}, 8\ns_add_u32 s{S_T2}, s{S_T2}, {P1C + 1920}\nv_and_b32 v8, 0x30, v0\nv_add_u32 v9, s{S_T2}, v8")
    a(f"s_lshl_b32 s{S_T2}, s{S_T1}, 7\ns_add_u32 s{S_T2}, s{S_T2}, {P1C}\nv_add_u32 v8, s{S_T2}, v8\nv_lshlrev_b32 v6, 2, v6\nv_add_u32 v6, s{S_T2}, v6")
    RM, CQ, CK, CV, MV, RV = 16, 28, 36, 44, 48, 68
    for i in range(5): a(f"ds_read_b64 {P(RM+2*i)}, v7 offset:{i*128}")
    for c in range(2): a(f"ds_read_b128 v[{CK+4*c}:{CK+4*c+3}], v8 offset:{256 + c*64}")
    for c in range(2): a(f"ds_read_b128 v[{CQ+4*c}:{CQ+4*c+3}], v8 offset:{c*64}")
    for c in range(2): a(f"ds_read_b32 v{CV+2*c}, v6 offset:{512 + c*64}")
    for i in range(5): a(f"ds_read_b128 v[{MV+4*i}:{MV+4*i+3}], v9 offset:{i*64}")
    a("s_waitcnt lgkmcnt(7)")
    for i in range(5): a(f"ds_read_b128 v[{RV+4*i}:{RV+4*i+3}], v9 offset:{576 + i*64}")
    for i in range(5):
        for c in range(2):
            for h in (0, 2): a(f"v_pk_fma_f32 {P(acc(i*2+c)+h)}, {P(RM+2*i)}, {P(CK+4*c+h)}, {P(acc(i*2+c)+h)} op_sel:[1,0,0] op_sel_hi:[1,1,1] neg_lo:[1,0,0] neg_hi:[1,0,0]")
    for i in range(1, 5):
        for c in range(2):
            for h in (0, 2): a(f"v_pk_fma_f32 {P(acc(20+(i-1)*2+c)+h)}, {P(RM+2*i)}, {P(CQ+4*c+h)}, {P(acc(20+(i-1)*2+c)+h)} op_sel:[1,0,0] op_sel_hi:[1,1,1] neg_lo:[1,0,0] neg_hi:[1,0,0]")
        a(f"v_mul_f32 v{239+i}, 0x3e8293ee, v{RM+2*i}")
    for i in range(5):
        for c in range(2):
            for h in (0, 2): a(f"v_pk_mul_f32 {P(acc(i*2+c)+h)}, {P(acc(i*2+c)+h)}, {P(RM+2*i)} op_sel_hi:[1,0]")
    a("s_waitcnt lgkmcnt(0)")
    for i in range(5):
        for c in range(2):
            for h in (0, 2): a(f"v_pk_fma_f32 {P(acc(10+i*2+c)+h)}, {P(MV+4*i+h)}, {P(CV+2*c)}, {P(acc(10+i*2+c)+h)} op_sel_hi:[1,0,1] neg_lo:[1,0,0] neg_hi:[1,0,0]")
    for i in range(5):
        for c in range(2):
            for h in (0, 2): a(f"v_pk_mul_f32 {P(acc(10+i*2+c)+h)}, {P(acc(10+i*2+c)+h)}, {P(RV+4*i+h)}")

def pf_chunk_setup(a, sk, scb):
    a(f"s_lshl_b32 s{S_T0}, s{sk}, 6\ns_lshl_b32 s{S_T1}, s{S_W4}, 4\ns_add_u32 s{S_T0}, s{S_T0}, s{S_T1}\ns_mul_i32 s{S_T0}, s{S_T0}, 7168\ns_mul_i32 s{S_T1}, s{scb}, 448\ns_add_u32 s{S_T0}, s{S_T0}, s{S_T1}")
    a(f"s_add_u32 s{S_PF}, s{S_W1}, s{S_T0}\ns_addc_u32 s{S_PF+1}, s{S_W1+1}, 0")
def pf_chunk_step(a, extra):
    a(f"s_waitcnt lgkmcnt({15 - 7 - extra})")
    for i in range(7): a(f"s_load_dword s64, s[{S_PF}:{S_PF+1}], {i*64}")
    for i in range(extra): a(f"s_load_dword s64, s[76:77], {i*64}")
    a(f"s_add_u32 s{S_PF}, s{S_PF}, 7168\ns_addc_u32 s{S_PF+1}, s{S_PF+1}, 0")
    if extra: a(f"s_add_u32 s76, s76, {extra*64}\ns_addc_u32 s77, s77, 0")

def p3c_issue(a):
    srd(a, SRD_C, S_WS, 2 << 20, WS_ST)
    srd(a, SRD_D, S_B1, 3584*2)
    a(f"v_lshlrev_b32 v22, 4, v0\ns_lshl_b32 s{S_T0}, s{S_RB}, 14\ns_add_u32 s{S_T0}, s{S_T0}, s{S_LA}")
    for j in range(4): a(f"buffer_load_dwordx4 v[{32+4*j}:{35+4*j}], v22, s[{SRD_C}:{SRD_C+3}], s{S_T0} offen offset:{j*1024} sc1")
    a(f"s_mul_i32 s{S_T0}, s{S_CB}, 224\ns_and_b32 s{S_T1}, s{S_CB}, 1\ns_lshl_b32 s{S_T2}, s{S_T1}, 5\ns_add_u32 s{S_T2}, s{S_T2}, s{S_T0}")
    a(f"s_cmp_eq_u32 s{S_T1}, 0\ns_cselect_b32 s{S_T1}, 0, 192\ns_sub_u32 s{S_T1}, s{S_T0}, s{S_T1}")
    a(f"s_mul_i32 s{S_T0}, s{S_W4}, 14\nv_and_b32 v23, 15, v0\nv_min_u32 v23, 13, v23\nv_add_u32 v23, s{S_T0}, v23\nv_lshlrev_b32 v23, 2, v23")
    a(f"v_cmp_gt_u32 vcc, 192, v23\nv_mov_b32 v24, s{S_T1}\nv_mov_b32 v25, s{S_T2}\nv_cndmask_b32 v24, v24, v25, vcc\nv_add_u32 v24, v24, v23")
    a(f"v_lshrrev_b32 v25, 4, v0\nv_mul_u32_u24 v26, {3584*4}, v25\nv_lshl_add_u32 v26, v24, 2, v26")
    for k in range(4): a(f"s_mov_b32 s{S_T0}, {(1 << 20) + k*4*3584*4}\nbuffer_load_dwordx4 v[{48+4*k}:{51+4*k}], v26, s[{SRD_C}:{SRD_C+3}], s{S_T0} offen sc1")
    a("v_bfe_u32 v25, v0, 4, 1\nv_lshrrev_b32 v26, 5, v0\nv_lshl_add_u32 v25, v26, 1, v25\nv_add_u32 v23, v23, v25\nv_add_u32 v24, v24, v25\nv_lshlrev_b32 v24, 1, v24")
    a(f"buffer_load_ushort v64, v24, s[{SRD_D}:{SRD_D+3}], 0 offen")
    return 9
def allsum3(a, vs, ts):
    for v in vs: a(f"v_add_f32_dpp v{v}, v{v}, v{v} row_ror:8 row_mask:0xf bank_mask:0xf")
    xor16_32_multi(a, vs, ts, "v_add_f32")
def p3c_finish(a, part):
    M = [70, 71, 72, 73]
    V = [80, 81, 82, 83]
    if part == 1: return p3c_finish2(a, M, V)
    a("s_waitcnt vmcnt(0)")
    for t in range(2):
        for r in range(2): a(f"v_add_f32 v{M[2*t+r]}, v{32+8*t+2*r}, v{36+8*t+2*r}")
    fold4(a, 48)
    allsum3(a, M, [74, 75, 76, 77])
    for m in M: a(f"v_mul_f32 v{m}, 0x3a800000, v{m}")
def p3c_finish2(a, M, V):
    a("s_mov_b32 s84, 0x3c800000\ns_mov_b32 s85, 0x42800000")
    for t in range(2):
        for j in range(2):
            for r in range(2): a(f"v_fma_f32 v{32+8*t+4*j+2*r}, v{32+8*t+4*j+2*r}, s84, -v{M[2*t+r]}")
    for t in range(2):
        for j in range(2):
            for r in range(2): a(f"v_mul_f32 v{32+8*t+4*j+2*r}, v{32+8*t+4*j+2*r}, v{32+8*t+4*j+2*r}")
    for t in range(2):
        for j in range(2):
            for r in range(2): a(f"v_fma_f32 v{33+8*t+4*j+2*r}, v{32+8*t+4*j+2*r}, s85, v{33+8*t+4*j+2*r}")
    for t in range(2):
        for r in range(2): a(f"v_add_f32 v{V[2*t+r]}, v{33+8*t+2*r}, v{37+8*t+2*r}")
    a(f"v_lshlrev_b32 v49, 16, v64\nv_lshlrev_b32 v23, 2, v23\nv_add_u32 v23, {P3_CONST + 1024}, v23\nds_write_b32 v23, v48\nds_write_b32 v23, v49 offset:896")
    allsum3(a, V, [74, 75, 76, 77])
    a("v_and_b32 v22, 16, v0\nv_cmp_ne_u32 vcc, 0, v22\nv_and_b32 v22, 32, v0\nv_cmp_ne_u32 s[86:87], 0, v22\ns_nop 0")
    a("v_cndmask_b32 v70, v70, v71, vcc\nv_cndmask_b32 v72, v72, v73, vcc\nv_cndmask_b32 v80, v80, v81, vcc\nv_cndmask_b32 v82, v82, v83, vcc")
    a("v_cndmask_b32 v70, v70, v72, s[86:87]\nv_cndmask_b32 v71, v80, v82, s[86:87]\nv_mul_f32 v71, 0x3a800000, v71")
    ln_scale(a, 70, 71, 72)
    a(f"v_and_b32 v22, 7, v0\nv_lshlrev_b32 v22, 1, v22\nv_bfe_u32 v24, v0, 4, 1\nv_add_u32 v22, v22, v24\nv_lshrrev_b32 v24, 5, v0\nv_lshl_add_u32 v22, v24, 4, v22")
    a(f"s_lshl_b32 s{S_T0}, s{S_W4}, 8\ns_add_u32 s{S_T0}, s{S_T0}, {P3_CONST}\nv_lshlrev_b32 v22, 3, v22\nv_add_u32 v22, s{S_T0}, v22")
    a("v_mul_f32 v73, v70, v71\nv_mov_b32 v72, v71\nds_write_b64 v22, v[72:73]\ns_waitcnt lgkmcnt(0)")

PFN = 37
PFB = 1024*448
def pfe_setup(a):
    a(f"s_lshl_b32 s{S_T0}, s2, 2\ns_add_u32 s{S_T0}, s{S_T0}, s{S_W4}\ns_mul_i32 s73, s{S_T0}, 448\ns_mov_b32 s75, 0\ns_mov_b32 s72, s73")
    a(f"s_mov_b32 s70, s{S_WO}\ns_mov_b32 s71, s{S_WO+1}")
def pfe_try(a, n=2, limit=None):
    L = a.lab('pfs'); T = a.lab('pft')
    if n > 1: a(f"s_mov_b32 s76, {n}\n{T}:")
    a(f"s_getreg_b32 s74, hwreg(HW_REG_IB_STS, 8, 4)\ns_cmp_gt_u32 s74, 8\ns_cbranch_scc1 {L}\ns_cmp_ge_u32 s75, {limit or PFN}\ns_cbranch_scc1 {L}")
    a(f"s_add_u32 s{S_PF}, s70, s72\ns_addc_u32 s{S_PF+1}, s71, 0")
    for i in range(7): a(f"s_load_dword s64, s[{S_PF}:{S_PF+1}], {i*64}")
    a(f"s_add_u32 s75, s75, 1\ns_add_u32 s72, s72, {PFB}")
    a(f"s_cmp_gt_u32 s75, 21\ns_cselect_b32 s74, {7*PFB}, 0\ns_bitcmp1_b32 s75, 0\ns_cselect_b32 s74, {(-8*PFB) & 0xffffffff:#x}, s74\ns_cmp_gt_u32 s75, 21\ns_cselect_b32 s74, s74, 0\ns_add_u32 s72, s72, s74")
    a(f"s_cmp_eq_u32 s75, 4\ns_cselect_b32 s74, {(2 << 20) - 448}, -1\ns_min_u32 s72, s72, s74")
    a(f"s_cmp_eq_u32 s75, 5\ns_cselect_b64 s[70:71], s[{S_W1}:{S_W1+1}], s[70:71]\ns_cselect_b32 s72, s73, s72")
    a(f"s_cmp_eq_u32 s75, 21\ns_cselect_b64 s[70:71], s[{S_W2}:{S_W2+1}], s[70:71]\ns_cselect_b32 s72, s73, s72")
    if n > 1: a(f"s_sub_u32 s76, s76, 1\ns_cmp_lg_u32 s76, 0\ns_cbranch_scc1 {T}")
    a(f"{L}:")
def pf_static(a, ptr, batches):
    a(f"s_lshl_b32 s{S_T0}, s2, 2\ns_add_u32 s{S_T0}, s{S_T0}, s{S_W4}\ns_mul_i32 s{S_T0}, s{S_T0}, 448")
    for b in batches:
        a(f"s_add_u32 s{S_T1}, s{S_T0}, {b*PFB}\ns_add_u32 s{S_PF}, s{ptr}, s{S_T1}\ns_addc_u32 s{S_PF+1}, s{ptr+1}, 0")
        for i in range(7): a(f"s_load_dword s64, s[{S_PF}:{S_PF+1}], {i*64}")

JQ_LDS = 129024
def jm_setup(a, pre, sk):
    a("v_lshrrev_b32 v20, 4, v0\nv_lshlrev_b32 v21, 10, v20\nv_bfe_u32 v22, v0, 2, 2\nv_lshlrev_b32 v22, 7, v22\nv_add_u32 v21, v21, v22")
    a(f"v_and_b32 v22, 3, v0\nv_lshlrev_b32 v22, 3, v22\nv_add_u32 v21, v21, v22\nv_bfe_u32 v22, v0, 3, 2\nv_xor_b32 v22, s{S_W4}, v22\nv_lshlrev_b32 v22, 5, v22")
    a(f"v_add_u32 v40, v21, v22\nv_add_u32 v40, 18432, v40")
    pre()
    for k in range(4): a(f"v_mov_b32 v{44+k}, 0x3f803f80")
    a("v_lshlrev_b32 v41, 12, v20\nv_and_b32 v22, 15, v0\nv_lshl_add_u32 v41, v22, 2, v41\nv_cmp_eq_u32 s[86:87], 1, v20\nv_cmp_eq_u32 s[88:89], 2, v20")
    a(f"v_lshlrev_b32 v22, 4, v22\nv_mul_u32_u24 v42, {3072*4}, v20\nv_add_u32 v42, v42, v22")
    a(f"v_bfe_u32 v23, v0, 4, 1\nv_lshrrev_b32 v24, 5, v0\nv_lshl_add_u32 v23, v24, 1, v23\nv_lshl_add_u32 v43, v23, 2, v22\ns_lshl_b32 s{S_T0}, s{S_W4}, 8\ns_add_u32 s{S_T0}, s{S_T0}, {P1C}\nv_add_u32 v43, s{S_T0}, v43")
    a(f"s_lshl_b32 s{S_T0}, s{S_RB}, 7\ns_sub_u32 s{S_T0}, s{S_T0}, 16")
    a(f"v_add_u32 v22, s{S_T0}, v0\nv_add_u32 v23, 16, v22\nv_cmp_gt_i32 vcc, 0, v22\nv_add_u32 v24, 128, v0\nv_min_u32 v24, 143, v24\nv_cndmask_b32 v23, v22, v23, vcc")
    a(f"v_lshlrev_b32 v49, 3, v23\nv_add_u32 v22, 64, v22\nv_lshlrev_b32 v50, 3, v22\nv_add_u32 v22, s{S_T0}, v24\nv_lshlrev_b32 v51, 3, v22")
    a(f"v_mov_b32 v22, {P1C}\nv_lshl_add_u32 v52, v0, 2, v22\nv_lshl_add_u32 v53, v0, 3, v22\nv_lshl_add_u32 v54, v24, 3, v22\nv_lshl_add_u32 v55, v24, 2, v22")
    a(f"s_mul_i32 s84, s{sk}, {3072*4}\ns_lshl_b32 s91, s{S_CB}, 8\ns_add_u32 s84, s84, s91\ns_lshl_b32 s{S_T0}, s{S_W4}, 6\ns_add_u32 s84, s84, s{S_T0}")
    a(f"s_add_u32 s90, s91, {FL_Q}\ns_lshl_b32 s82, s{sk}, 4\ns_lshl_b32 s{S_T0}, s{S_W4}, 2\ns_add_u32 s82, s82, s{S_T0}\ns_add_u32 s82, s82, s90\ns_add_u32 s91, s91, s{S_LA}")
    srd(a, SRD_D, S_WS, 1 << 20, WS_CQ)
    srd(a, SRD_C, S_WS, 16384, WS_GR)
def jm_issue(a, ph, q):
    a(f"s_mul_i32 s{S_KB}, s{S_RB}, {ph.kb_step}\ns_mov_b32 s{S_LDS}, {JQ_LDS - 18432}")
    emit_stage_loads(a, ph, 'B'); q.push('jm', 6)
def jm_process(a, q, first_use_of_e=False):
    for t in range(3):
        for kb in range(2):
            d = 56 + 8*t + 4*kb
            a(f"ds_read_b64_tr_b16 v[{d}:{d+1}], v40 offset:{t*8192 + kb*4096}\nds_read_b64_tr_b16 v[{d+2}:{d+3}], v40 offset:{t*8192 + kb*4096 + 512}")
    a("s_waitcnt lgkmcnt(0)")
    if first_use_of_e: a(f"s_add_u32 s{S_E}, s{S_E}, 1")
    for kb in range(2):
        for t in range(3):
            d = 56 + 8*t + 4*kb
            a(f"v_mfma_f32_16x16x32_bf16 v[{80+4*t}:{83+4*t}], v[44:47], v[{d}:{d+3}], " + ("0" if kb == 0 else f"v[{80+4*t}:{83+4*t}]"))
    a("s_nop 7\nv_cndmask_b32 v80, v80, v84, s[86:87]\nv_cndmask_b32 v80, v80, v88, s[88:89]")
    a(f"s_mov_b32 exec_hi, 0xffff\nbuffer_store_dword v80, v41, s[{SRD_D}:{SRD_D+3}], s84 offen sc1\ns_mov_b64 exec, -1")
    q.push('jms', 1)
def jm_flag(a, q):
    q.wait('jms')
    flag_set(a, 82, only_wave=None); q.push('jmf', 1)
def jg2_loads(a):
    Lr = a.lab('rows'); Le = a.lab('gend')
    a(f"s_cmp_eq_u32 s{S_W4}, 3\ns_cbranch_scc1 {Lr}")
    a(f"buffer_load_dword v48, v30, s[{SRD_F}:{SRD_F+3}], s90 offen sc1")
    for k in range(4):
        a(f"s_add_u32 s{S_T1}, s91, {k*4*3072*4}\nbuffer_load_dwordx4 v[{56+4*k}:{59+4*k}], v42, s[{SRD_D}:{SRD_D+3}], s{S_T1} offen sc1")
    a(f"s_branch {Le}\n{Lr}:")
    for j in range(3): a(f"buffer_load_dwordx2 v[{56+2*j}:{57+2*j}], v{49+j}, s[{SRD_C}:{SRD_C+3}], 0 offen sc1")
    a(f"{Le}:")
def jg2_issue(a, q):
    jg2_loads(a); q.push('jg', 3)
def jg2_process(a, q):
    q.wait('jg')
    Lc = a.lab('gchk'); Lr = a.lab('grows'); Le = a.lab('gdone'); Lt = a.lab('gretry')
    a(f"s_mov_b32 s83, 0\n{Lc}:\ns_cmp_eq_u32 s{S_W4}, 3\ns_cbranch_scc1 {Lr}")
    a(f"v_cmp_ne_u32 vcc, s{S_E}, v48\ns_cbranch_vccnz {Lt}")
    fold4(a, 56)
    a(f"ds_write_b32 v43, v56\ns_branch {Le}")
    a(f"{Lt}:\ns_add_u32 s83, s83, 1\ns_cmp_gt_u32 s83, 0x8000\ns_cbranch_scc1 {Le}")
    jg2_loads(a)
    a(f"s_waitcnt vmcnt(0)\ns_branch {Lc}")
    a(f"{Lr}:\nv_cmp_ne_u32 vcc, s{S_E}, v57\ns_cbranch_vccnz {Lt}\nv_cmp_ne_u32 vcc, s{S_E}, v59\ns_cbranch_vccnz {Lt}\nv_cmp_ne_u32 vcc, s{S_E}, v61\ns_cbranch_vccnz {Lt}")
    for j in range(3): a(f"v_and_b32 v{64+2*j}, 0xffff0000, v{56+2*j}")
    for j in range(3): a(f"v_rcp_f32 v{64+2*j}, v{64+2*j}")
    for j in range(3): a(f"v_lshlrev_b32 v{65+2*j}, 16, v{56+2*j}")
    a("ds_write_b64 v53, v[64:65] offset:768\nds_write_b64 v53, v[66:67] offset:1280\nds_write_b64 v54, v[68:69] offset:768")
    a("ds_write_b32 v52, v65 offset:1920\nds_write_b32 v52, v67 offset:2176\nds_write_b32 v55, v69 offset:1920")
    a("ds_write_b32 v52, v64 offset:2496\nds_write_b32 v52, v66 offset:2752\nds_write_b32 v55, v68 offset:2496")
    a(f"{Le}:\ns_waitcnt lgkmcnt(0)")

class NoQ:
    def push(self, *x): pass
    def wait(self, *x): pass

def jm_issue_l(a, ph, ldsbase):
    a(f"s_mov_b32 s85, s{S_LDS}\ns_mul_i32 s{S_KB}, s{S_RB}, {ph.kb_step}\ns_mov_b32 s{S_LDS}, {ldsbase}")
    emit_stage_loads(a, ph, 'B')
    a(f"s_mov_b32 s{S_LDS}, s85")
def jm_flag_l(a, n):
    a(f"s_waitcnt vmcnt({n})")
    flag_set(a, 82, only_wave=None)

J3_LDS = 135168
def j3_setup(a, pre, sk):
    tr_lane_part(a, 40, 20, 21, 128, jreg=S_W4)
    a(f"v_add_u32 v40, 16384, v40\ns_and_b32 s{S_T0}, s{S_W4}, 1")
    tr_lane_part(a, 39, 20, 21, 64, jreg=S_T0)
    a(f"v_add_u32 v39, 40960, v39")
    pre()
    a(f"s_and_b32 s{S_T0}, s{S_W4}, 1")
    for k in range(4): a(f"v_mov_b32 v{44+k}, 0x3f803f80")
    a(f"s_mul_i32 s{S_T1}, s{S_CB}, 224\ns_and_b32 s{S_T2}, s{S_CB}, 1\ns_lshl_b32 s{S_T3}, s{S_T2}, 5\ns_add_u32 s{S_T3}, s{S_T3}, s{S_T1}\ns_lshl_b32 s84, s{S_W4}, 4\ns_add_u32 s{S_T3}, s{S_T3}, s84")
    a(f"s_cmp_eq_u32 s{S_T2}, 0\ns_cselect_b32 s{S_T2}, 192, 0\ns_add_u32 s{S_T2}, s{S_T2}, s{S_T1}\ns_lshl_b32 s{S_T0}, s{S_T0}, 4\ns_add_u32 s{S_T2}, s{S_T2}, s{S_T0}")
    a(f"v_lshrrev_b32 v20, 4, v0\nv_lshlrev_b32 v41, 6, v20\nv_add_u32 v41, s{S_T3}, v41\nv_mov_b32 v21, s{S_T2}")
    a("v_cmp_eq_u32 s[86:87], 1, v20\nv_cmp_eq_u32 s[88:89], 2, v20\nv_cmp_eq_u32 s[90:91], 3, v20\nv_and_b32 v22, 15, v0\ns_nop 0\nv_cndmask_b32 v41, v41, v21, s[90:91]\nv_add_lshl_u32 v41, v41, v22, 2")
    a(f"s_mul_i32 s84, s{sk}, {3584*4}\ns_add_u32 s84, s84, {1 << 20}")
    a(f"s_lshl_b32 s83, s{S_CB}, 8\ns_add_u32 s83, s83, {FL_C}\ns_lshl_b32 s82, s{sk}, 4\ns_lshl_b32 s{S_T0}, s{S_W4}, 2\ns_add_u32 s82, s82, s{S_T0}\ns_add_u32 s82, s82, s83")
    srd(a, SRD_C, S_WS, 2 << 20, WS_ST)
    srd(a, SRD_D, S_B1, 3584*2)
    a(f"v_lshlrev_b32 v22, 4, v0\ns_lshl_b32 s80, s{S_RB}, 14\ns_add_u32 s80, s80, s{S_LA}")
    a(f"s_mul_i32 s{S_T0}, s{S_CB}, 224\ns_and_b32 s{S_T1}, s{S_CB}, 1\ns_lshl_b32 s{S_T2}, s{S_T1}, 5\ns_add_u32 s{S_T2}, s{S_T2}, s{S_T0}")
    a(f"s_cmp_eq_u32 s{S_T1}, 0\ns_cselect_b32 s{S_T1}, 0, 192\ns_sub_u32 s{S_T1}, s{S_T0}, s{S_T1}")
    a(f"s_mul_i32 s{S_T0}, s{S_W4}, 14\nv_and_b32 v23, 15, v0\nv_min_u32 v23, 13, v23\nv_add_u32 v23, s{S_T0}, v23\nv_lshlrev_b32 v23, 2, v23")
    a(f"v_cmp_gt_u32 vcc, 192, v23\nv_mov_b32 v24, s{S_T1}\nv_mov_b32 v25, s{S_T2}\nv_cndmask_b32 v24, v24, v25, vcc\nv_add_u32 v24, v24, v23")
    a(f"v_mul_u32_u24 v26, {3584*4}, v20\nv_lshl_add_u32 v26, v24, 2, v26")
    a("v_bfe_u32 v25, v0, 4, 1\nv_lshrrev_b32 v21, 5, v0\nv_lshl_add_u32 v27, v21, 1, v25\nv_add_u32 v23, v23, v27\nv_add_lshl_u32 v24, v24, v27, 1")
    a(f"v_lshlrev_b32 v23, 2, v23\nv_add_u32 v23, {P3_CONST + 1024}, v23")
    a(f"v_and_b32 v27, 7, v0\nv_lshl_add_u32 v27, v27, 1, v25\nv_lshl_add_u32 v27, v21, 4, v27\ns_lshl_b32 s{S_T0}, s{S_W4}, 8\ns_add_u32 s{S_T0}, s{S_T0}, {P3_CONST}\nv_lshlrev_b32 v27, 3, v27\nv_add_u32 v27, s{S_T0}, v27")
    a("v_cmp_ne_u32 s[70:71], 0, v25\nv_cmp_ne_u32 s[72:73], 0, v21")
def j3_process(a):
    for t in range(4):
        for kb in range(2):
            d = 56 + 8*t + 4*kb
            r, o, h = (40, t*8192 + kb*4096, 2048) if t < 3 else (39, kb*2048, 1024)
            a(f"ds_read_b64_tr_b16 v[{d}:{d+1}], v{r} offset:{o}\nds_read_b64_tr_b16 v[{d+2}:{d+3}], v{r} offset:{o + h}")
    a("s_waitcnt lgkmcnt(0)")
    for kb in range(2):
        for t in range(4):
            d = 56 + 8*t + 4*kb
            a(f"v_mfma_f32_16x16x32_bf16 v[{88+4*t}:{91+4*t}], v[44:47], v[{d}:{d+3}], " + ("0" if kb == 0 else f"v[{88+4*t}:{91+4*t}]"))
    a("s_nop 6\nv_cndmask_b32 v88, v88, v92, s[86:87]\nv_cndmask_b32 v88, v88, v96, s[88:89]\nv_cndmask_b32 v88, v88, v100, s[90:91]")
    a(f"buffer_store_dword v88, v41, s[{SRD_C}:{SRD_C+3}], s84 offen sc1")
def j3_cols(a):
    a(f"buffer_load_dword v65, v30, s[{SRD_F}:{SRD_F+3}], s83 offen sc1")
    for k in range(4): a(f"s_mov_b32 s{S_T0}, {(1 << 20) + k*4*3584*4}\nbuffer_load_dwordx4 v[{48+4*k}:{51+4*k}], v26, s[{SRD_C}:{SRD_C+3}], s{S_T0} offen sc1")
def j3_stats(a):
    a(f"buffer_load_dword v66, v30, s[{SRD_F}:{SRD_F+3}], s68 offen sc1")
    for j in range(4): a(f"buffer_load_dwordx4 v[{72+4*j}:{75+4*j}], v22, s[{SRD_C}:{SRD_C+3}], s80 offen offset:{j*1024} sc1")
def j3_issue(a, sflag=False):
    if sflag:
        a(f"s_lshl_b32 s68, s{S_RB}, 8\ns_add_u32 s68, s68, {FL_S}")
        j3_stats(a)
        a(f"buffer_load_ushort v64, v24, s[{SRD_D}:{SRD_D+3}], 0 offen")
        j3_cols(a)
        return 11
    for j in range(4): a(f"buffer_load_dwordx4 v[{72+4*j}:{75+4*j}], v22, s[{SRD_C}:{SRD_C+3}], s80 offen offset:{j*1024} sc1")
    a(f"buffer_load_ushort v64, v24, s[{SRD_D}:{SRD_D+3}], 0 offen")
    j3_cols(a)
    return 10
def j3_finish(a, part, sflag=False):
    B = 72
    M = [88, 89, 90, 91]; V = [96, 97, 98, 99]; T = [92, 93, 94, 95]
    if part == 0:
        a("s_waitcnt vmcnt(0)")
        if sflag:
            Lc = a.lab('s3chk'); Lo = a.lab('s3ok')
            a(f"s_mov_b32 s81, 0\n{Lc}:\nv_cmp_ne_u32 vcc, s{S_E}, v66\ns_cbranch_vccz {Lo}\ns_add_u32 s81, s81, 1\ns_cmp_gt_u32 s81, 0x8000\ns_cbranch_scc1 {Lo}")
            j3_stats(a)
            a(f"s_waitcnt vmcnt(0)\ns_branch {Lc}\n{Lo}:")
        for t in range(2):
            for r in range(2): a(f"v_add_f32 v{M[2*t+r]}, v{B+8*t+2*r}, v{B+4+8*t+2*r}")
        a("s_mov_b32 s84, 0x3c800000\ns_mov_b32 s85, 0x42800000")
        allsum3(a, M, T)
        for m in M: a(f"v_mul_f32 v{m}, 0x3a800000, v{m}")
        return
    Lc = a.lab('c3chk'); Lo = a.lab('c3ok')
    a(f"s_mov_b32 s81, 0\n{Lc}:\nv_cmp_ne_u32 vcc, s{S_E}, v65\ns_cbranch_vccz {Lo}\ns_add_u32 s81, s81, 1\ns_cmp_gt_u32 s81, 0x8000\ns_cbranch_scc1 {Lo}")
    j3_cols(a)
    a(f"s_waitcnt vmcnt(0)\ns_branch {Lc}\n{Lo}:")
    idx = [(t, j, r) for t in range(2) for j in range(2) for r in range(2)]
    for (t, j, r) in idx: a(f"v_fma_f32 v{B+8*t+4*j+2*r}, v{B+8*t+4*j+2*r}, s84, -v{M[2*t+r]}")
    for (t, j, r) in idx: a(f"v_mul_f32 v{B+8*t+4*j+2*r}, v{B+8*t+4*j+2*r}, v{B+8*t+4*j+2*r}")
    for (t, j, r) in idx: a(f"v_fma_f32 v{B+1+8*t+4*j+2*r}, v{B+8*t+4*j+2*r}, s85, v{B+1+8*t+4*j+2*r}")
    for t in range(2):
        for r in range(2): a(f"v_add_f32 v{V[2*t+r]}, v{B+1+8*t+2*r}, v{B+5+8*t+2*r}")
    fold4(a, 48)
    a(f"v_lshlrev_b32 v49, 16, v64\nds_write_b32 v23, v48\nds_write_b32 v23, v49 offset:896")
    allsum3(a, V, T)
    a("v_cndmask_b32 v88, v88, v89, s[70:71]\nv_cndmask_b32 v90, v90, v91, s[70:71]\nv_cndmask_b32 v96, v96, v97, s[70:71]\nv_cndmask_b32 v98, v98, v99, s[70:71]")
    a("v_cndmask_b32 v88, v88, v90, s[72:73]\nv_cndmask_b32 v89, v96, v98, s[72:73]\nv_mul_f32 v89, 0x3a800000, v89")
    ln_scale(a, 88, 89, 90)
    a(f"v_mul_f32 v91, v88, v89\nv_mov_b32 v90, v89\nds_write_b64 v27, v[90:91]")
    a(f"v_mov_b32 v20, {P3_CONST + 2816}\nv_mov_b32 v21, 0\nds_write_b32 v20, v21\nds_write_b32 v20, v21 offset:4\ns_waitcnt lgkmcnt(0)")

def vec_prefetch(a, ptr, first, n, dst):
    srd(a, SRD_A, ptr, 1024*3584*2)
    a(f"s_lshl_b32 s{S_T0}, s2, 2\ns_add_u32 s{S_T0}, s{S_T0}, s{S_W4}\ns_mul_i32 s{S_T0}, s{S_T0}, 7168\ns_add_u32 s{S_T0}, s{S_T0}, {first*1024}\nv_lshlrev_b32 v1, 4, v0")
    for i in range(n): a(f"buffer_load_dwordx4 v[{dst+4*i}:{dst+4*i+3}], v1, s[{SRD_A}:{SRD_A+3}], s{S_T0} offen offset:{i*1024}")

def cs1_issue(a):
    srd(a, SRD_C, S_W1, 1024*3584*2)
    srd(a, SRD_D, S_WS, 1 << 20, WS_CS)
    a(f"v_lshrrev_b32 v22, 3, v0\nv_mul_u32_u24 v22, 7168, v22\nv_and_b32 v23, 7, v0\nv_min_u32 v23, 6, v23\nv_lshlrev_b32 v24, 4, v23\nv_add_u32 v22, v22, v24")
    a(f"s_mul_i32 s{S_T0}, s{S_RB}, {64*7168}\ns_mul_i32 s{S_T1}, s{S_CB}, 448\ns_add_u32 s{S_T0}, s{S_T0}, s{S_T1}\ns_mul_i32 s{S_T1}, s{S_W4}, 112\ns_add_u32 s{S_T0}, s{S_T0}, s{S_T1}")
    for j in range(8):
        a(f"s_add_u32 s{S_T1}, s{S_T0}, {j*8*7168}\nbuffer_load_dwordx4 v[{32+4*j}:{35+4*j}], v22, s[{SRD_C}:{SRD_C+3}], s{S_T1} offen")
def cs1_finish(a, younger):
    a(f"s_mul_i32 s{S_T0}, s{S_RB}, {3584*4}\ns_mul_i32 s{S_T1}, s{S_CB}, 896\ns_add_u32 s{S_T0}, s{S_T0}, s{S_T1}\ns_mul_i32 s{S_T1}, s{S_W4}, 224\ns_add_u32 s{S_T0}, s{S_T0}, s{S_T1}")
    cs_store_voff(a, 23, 23)
    for j in range(8):
        a(f"s_waitcnt vmcnt({7 - j + younger})")
        for x in cs_acc(32, j): a(x)
    for x in cs_fold(): a(x)
    a(f"s_mov_b32 exec_lo, 0x007f007f\ns_mov_b32 exec_hi, 0x007f007f\nbuffer_store_dwordx2 v[64:65], v23, s[{SRD_D}:{SRD_D+3}], s{S_T0} offen sc1\ns_mov_b64 exec, -1")
    a(f"s_lshl_b32 s82, s{S_CB}, 8\ns_lshl_b32 s{S_T0}, s{S_RB}, 4\ns_add_u32 s82, s82, s{S_T0}\ns_lshl_b32 s{S_T0}, s{S_W4}, 2\ns_add_u32 s82, s82, s{S_T0}\ns_add_u32 s82, s82, {FL_C}")
    a(f"v_mov_b32 v240, 0\nv_mov_b32 v241, s{S_E}")
def cs1_flag(a):
    a(f"s_waitcnt vmcnt(0)\ns_mov_b64 exec, 1\nbuffer_store_dword v241, v240, s[{SRD_F}:{SRD_F+3}], s82 offen sc1\ns_mov_b64 exec, -1")

S_RDY = 77
def need_flags(a, mask, p4=False, sleep=0):
    L = a.lab('nd'); K = a.lab('rdy')
    if p4:
        a(f"s_mul_i32 s{S_T1}, s{S_T0}, 294\ns_add_u32 s{S_T2}, s{S_T1}, 147\ns_lshr_b32 s{S_T1}, s{S_T1}, 10\ns_lshr_b32 s{S_T2}, s{S_T2}, 10")
        a(f"s_lshl_b32 s{S_T1}, 1, s{S_T1}\ns_lshl_b32 s{S_T2}, 1, s{S_T2}\ns_or_b32 s{S_T1}, s{S_T1}, s{S_T2}")
    else:
        a(f"s_lshl_b32 s{S_T1}, 1, s{S_T0}")
    a(f"s_andn2_b32 s{S_T2}, s{S_T1}, s{S_RDY}\ns_cbranch_scc0 {K}")
    a(f"s_mov_b64 exec, {mask:#x}\ns_mov_b32 s{S_T3}, 0\n{L}:")
    if sleep: a(f"s_sleep {sleep}")
    a(f"buffer_load_dword v31, v30, s[{SRD_F}:{SRD_F+3}], s{S_FO} offen sc1\ns_add_u32 s{S_T3}, s{S_T3}, 1\ns_waitcnt vmcnt(0)\nv_cmp_eq_u32 vcc, s{S_E}, v31\ns_nop 1")
    a(f"s_cmp_gt_u32 s{S_T3}, 0x20000\ns_cselect_b32 s{S_RDY}, -1, vcc_lo\ns_andn2_b32 s{S_T2}, s{S_T1}, s{S_RDY}\ns_cbranch_scc1 {L}\ns_mov_b64 exec, -1\n{K}:")

def duty_stage(a, ph, sduty, dst):
    L = a.lab('ds'); K = a.lab('dk')
    a(f"s_mov_b32 s{dst}, 0\ns_mov_b64 s[{S_T1}:{S_T1+1}], s[{S_SEQ}:{S_SEQ+1}]\n{L}:\ns_and_b32 s{S_T0}, s{S_T1}, 15\ns_cmp_eq_u32 s{S_T0}, s{sduty}\ns_cbranch_scc1 {K}")
    a(f"s_lshr_b64 s[{S_T1}:{S_T1+1}], s[{S_T1}:{S_T1+1}], 4\ns_add_u32 s{dst}, s{dst}, 1\ns_cmp_lt_u32 s{dst}, 15\ns_cbranch_scc1 {L}\n{K}:")

S_DT = 69
def duty_setup(a, ph, sidx, regs, sflag_base, skrow):
    duty_stage(a, ph, sidx, S_DT)
    a(f"s_mul_i32 s{S_T0}, s{S_DT}, 43\ns_lshr_b32 s{S_T0}, s{S_T0}, 7\ns_mul_i32 s{S_T0}, s{S_T0}, 3\ns_sub_u32 s{S_T0}, s{S_DT}, s{S_T0}\ns_mul_i32 s{S_T0}, s{S_T0}, {ph.stage}")
    for r in regs: a(f"v_add_u32 v{r}, s{S_T0}, v{r}")
    a(f"s_add_u32 s{S_DT}, s{S_DT}, 2\ns_add_u32 s{skrow}, s{sidx}, s{S_XR}\ns_and_b32 s{skrow}, s{skrow}, 15")
def duty_hook(a, process, n):
    L = a.lab('nd1'); M = a.lab('nd2')
    a(f"s_cmp_lg_u32 s{S_T}, s{S_DT}\ns_cbranch_scc1 {L}")
    process()
    a(f"s_branch {M}\n{L}:\ns_add_u32 s{S_T0}, s{S_DT}, 1\ns_cmp_lg_u32 s{S_T}, s{S_T0}\ns_cbranch_scc1 {M}")
    jm_flag_l(a, n)
    a(f"{M}:")

def lp_setup(a):
    a(f"s_lshl_b32 s74, s2, 2\ns_add_u32 s74, s74, s{S_W4}\ns_mul_i32 s74, s74, 448\ns_mov_b32 s75, {8*PFB}")
def lp_step(a, ptr, steps, duty=False):
    if not steps: return
    L = a.lab('lp')
    m = sum(1 << t for t in steps)
    a(f"s_bitcmp1_b32 {m:#x}, s{S_T}\ns_cbranch_scc0 {L}\ns_getreg_b32 s{S_T0}, hwreg(HW_REG_IB_STS, 8, 4)\ns_cmp_gt_u32 s{S_T0}, 8\ns_cbranch_scc1 {L}")
    a(f"s_cmp_ge_u32 s74, {16*PFB}\ns_cbranch_scc1 {L}")
    if duty: a(f"s_add_u32 s{S_T0}, s{S_T}, 1\ns_cmp_eq_u32 s{S_T0}, s{S_DT}\ns_cbranch_scc1 {L}")
    a(f"s_add_u32 s{S_PF}, s{ptr}, s74\ns_addc_u32 s{S_PF+1}, s{ptr+1}, 0")
    a(f"s_load_dwordx2 s[66:67], s[{S_PF}:{S_PF+1}], 60\ns_load_dwordx2 s[66:67], s[{S_PF}:{S_PF+1}], 188\ns_load_dwordx2 s[66:67], s[{S_PF}:{S_PF+1}], 316\ns_load_dword s66, s[{S_PF}:{S_PF+1}], 384")
    a(f"s_add_u32 s74, s74, s75\ns_sub_u32 s75, {PFB}, s75\n{L}:")

def warm_flags(a):
    a(f"s_lshl_b32 s{S_T0}, s2, 2\ns_add_u32 s{S_T0}, s{S_T0}, s{S_W4}\ns_lshl_b32 s{S_T1}, s{S_T0}, 7\ns_add_u32 s{S_T1}, s{S_T1}, {FL_X}\ns_and_b32 s{S_T0}, s{S_T0}, 0x3ff\ns_lshl_b32 s{S_T0}, s{S_T0}, 6")
    a(f"s_load_dword s66, s[{SRD_F}:{SRD_F+1}], s{S_T0}\ns_load_dword s66, s[{SRD_F}:{SRD_F+1}], s{S_T1}")

P2XL = 122880
def p2x_dma(a, thr):
    srd(a, SRD_C, S_X, 2048*1024*2)
    a("v_lshrrev_b32 v20, 3, v0\nv_lshlrev_b32 v20, 11, v20\nv_lshrrev_b32 v21, 4, v0\nv_and_b32 v22, 7, v0\nv_xor_b32 v21, v21, v22\nv_lshl_add_u32 v6, v21, 4, v20\nv_xor_b32 v7, 64, v6")
    a(f"s_lshl_b32 s{S_T0}, s{S_RB}, 18\ns_lshl_b32 s{S_T1}, s{S_W4}, 16\ns_add_u32 s{S_T0}, s{S_T0}, s{S_T1}\ns_lshl_b32 s{S_T1}, s{S_CB}, 7\ns_add_u32 s{S_T0}, s{S_T0}, s{S_T1}")
    for i in range(4):
        a(f"s_add_u32 m0, s{S_LA}, {P2XL + i*1024}\ns_add_u32 s{S_T1}, s{S_T0}, {i*16384}\ns_waitcnt vmcnt({thr})\nbuffer_load_dwordx4 v{6 + (i & 1)}, s[{SRD_C}:{SRD_C+3}], s{S_T1} offen lds")
def p2x_read(a):
    a(f"v_and_b32 v8, 15, v0\nv_lshrrev_b32 v9, 1, v8\nv_lshrrev_b32 v10, 5, v0\nv_xor_b32 v9, v9, v10\nv_lshlrev_b32 v9, 4, v9\nv_lshl_add_u32 v8, v8, 7, v9")
    a(f"v_bfe_u32 v9, v0, 4, 1\nv_lshl_add_u32 v8, v9, 3, v8\ns_lshl_b32 s84, s{S_W4}, 12\ns_add_u32 s84, s84, {P2XL}\nv_add_u32 v8, s84, v8")
    for j in range(1, 4): a(f"v_xor_b32 v{8+j}, {32*j}, v8")
    for i in range(2):
        for j in range(4):
            d = P2_X + 2*(i*4 + j)
            a(f"ds_read_b64 v[{d}:{d+1}], v{8+j} offset:{i*2048}")

import copy
def make_p4t(d, lead=1):
    pa = make_p4(lead); pa.S = 28 - d; pa.wrap = False; pa.aflags = 'sc1'
    pb = copy.copy(pa); pb.name = 'P4b'; pb.S = 2*d; pb.linear = True
    pb.pieces = [x for x in pa.pieces if x[0] == 'A'] + [('B', 16 + i, S_LH, 16384 + i*1024, 0, None) for i in range(2)]
    pb.addr_regs = [2, 4, 5]
    pb.bfr = pa.bfr[:2]
    pb.mm = [m for m in pa.mm if m[2] < 2]
    return pa, pb

def p4t_producer_setup(a, d):
    srd(a, SRD_A, S_WS, 16 << 20, WS_G)
    srd(a, SRD_B, S_W2, 3584*1024*2)
    a(f"s_lshl_b32 s{S_LA}, s{S_W4}, 12\ns_lshl_b32 s{S_LB}, s{S_W4}, 11\ns_lshl_b32 s{S_LH}, s{S_KH}, 13\ns_add_u32 s{S_LH}, s{S_LH}, s{S_LB}")
    a(f"s_lshl_b32 s{S_T0}, s{S_RB}, 3\ns_lshl_b32 s{S_T1}, s{S_W4}, 1\ns_add_u32 s{S_T1}, s{S_T0}, s{S_T1}\ns_mul_i32 s{S_T1}, s{S_T1}, {112*1024}")
    a(f"v_lshlrev_b32 v10, 4, v0\nv_add_u32 v10, s{S_T1}, v10\nv_add_u32 v11, {112*1024}, v10")
    a(f"s_lshl_b32 s{S_T2}, s{S_CB}, 8\ns_lshl_b32 s{S_T0}, s{S_W4}, 15\ns_add_u32 s{S_T2}, s{S_T2}, s{S_T0}")
    dma_b_lane(a, 12, 20, 21, 2048, 128)
    a(f"v_add_u32 v12, s{S_T2}, v12\nv_add_u32 v13, {8*2048}, v12\nv_add_u32 v14, 128, v12\nv_add_u32 v15, 128, v13")
    a(f"s_lshl_b32 s{S_T0}, s{S_KH}, 7\nv_add_u32 v16, s{S_T0}, v12\nv_add_u32 v17, s{S_T0}, v13")
    a(f"s_mul_i32 s{S_XR}, s{S_KH}, {28 + d}\ns_sub_u32 s{S_XR}, s{S_XR}, 1")

def p4t_setup_exchange(a, fbase):
    srd(a, SRD_B, S_WS, 8 << 20, WS_PX)
    srd(a, SRD_A, S_OUT, 2048*1024*2)
    a(f"s_lshl_b32 s{S_T0}, s{S_RB}, 3\ns_add_u32 s{S_T0}, s{S_T0}, s{S_CB}\ns_lshl_b32 s{S_T0}, s{S_T0}, 1\ns_add_u32 s{S_T0}, s{S_T0}, s{S_KH}")
    a(f"s_lshl_b32 s{S_T3}, s{S_T0}, 2\ns_add_u32 s{S_T3}, s{S_T3}, s{S_W4}")
    a(f"s_lshl_b32 s86, s{S_T3}, 13\ns_add_u32 s87, s86, 4096\ns_xor_b32 s88, s86, 0x8000\ns_xor_b32 s89, s87, 0x8000")
    a(f"s_lshl_b32 s90, s{S_T3}, 7\ns_add_u32 s90, s90, {fbase}\ns_xor_b32 s91, s90, 0x200")
    a(f"v_mov_b32 v8, 0\nv_mov_b32 v9, s{S_E}")
    a("v_and_b32 v10, 15, v0\nv_lshlrev_b32 v10, 11, v10\nv_bfe_u32 v11, v0, 4, 1\nv_lshl_add_u32 v10, v11, 5, v10\nv_bfe_u32 v11, v0, 5, 1\nv_lshl_add_u32 v10, v11, 4, v10")
    a(f"s_lshl_b32 s80, s82, 15\ns_lshl_b32 s81, s83, 6\ns_add_u32 s80, s80, s81")

P4_HB, P4_RX = 176, 208
def p4t_extras(a, ph, d, t_flag, t_poll):
    acc = lambda n: ph.vacc + 4*n
    ex = {}
    ex[(0, 1)] = [f"buffer_store_dwordx4 v[{acc(i*4+2+c)}:{acc(i*4+2+c)+3}], v3, s[{SRD_B}:{SRD_B+3}], s{86 + ((i*2+c) >> 2)} offen offset:{((i*2+c) & 3)*1024} sc1" for i in range(4) for c in range(2)]
    hb = ["s_waitcnt vmcnt(8)"]
    for h in range(4): hb += [f"v_lshlrev_b32 v{100+2*h}, 16, v{96+h}", f"v_and_b32 v{101+2*h}, 0xffff0000, v{96+h}"]
    ex[(1, 0)] = hb
    rest = []
    for i in range(4):
        for h in range(4):
            dd = P4_HB + 8*i + 2*h
            rest += [f"v_lshlrev_b32 v{dd}, 16, v{P4_H+4*i+h}", f"v_and_b32 v{dd+1}, 0xffff0000, v{P4_H+4*i+h}", f"v_pk_add_f32 v[{dd}:{dd+1}], v[{dd}:{dd+1}], v[{100+2*h}:{101+2*h}]"]
    slots = [(t, hf) for t in range(1, 2*d) for hf in range(2)][1:5]
    for k, sl in enumerate(slots): ex.setdefault(sl, []).extend(rest[12*k:12*k+12])
    ex.setdefault((t_flag, 0), []).append(f"s_waitcnt vmcnt(0)\ns_mov_b64 exec, 1\nbuffer_store_dword v9, v8, s[{SRD_F}:{SRD_F+3}], s90 offen sc1\ns_mov_b64 exec, -1")
    ex.setdefault((t_poll, 0), []).append(f"buffer_load_dword v12, v8, s[{SRD_F}:{SRD_F+3}], s91 offen sc1")
    L = a.lab('xp')
    chk = [f"s_mov_b32 s81, 0\n{L}:\ns_waitcnt vmcnt(0)\nv_cmp_eq_u32 vcc, s{S_E}, v12\ns_cbranch_vccnz {L}_k\ns_add_u32 s81, s81, 1\ns_cmp_gt_u32 s81, 0x20000\ns_cbranch_scc1 {L}_k\n"
           f"buffer_load_dword v12, v8, s[{SRD_F}:{SRD_F+3}], s91 offen sc1\ns_branch {L}\n{L}_k:"]
    chk += [f"buffer_load_dwordx4 v[{P4_RX+4*n}:{P4_RX+4*n+3}], v3, s[{SRD_B}:{SRD_B+3}], s{88 + (n >> 2)} offen offset:{(n & 3)*1024} sc1" for n in range(8)]
    ex.setdefault((t_poll + 1, 0), []).extend(chk)
    return ex

def p4t_epilogue(a, ph, sf=''):
    acc = lambda n: ph.vacc + 4*n
    P = lambda r: f"v[{r}:{r+1}]"
    a("s_nop 3")
    for i in range(4):
        for k in range(0, 8, 2): a(f"v_pk_add_f32 {P(acc(i*4)+k)}, {P(acc(i*4)+k)}, {P(P4_HB+8*i+k)}")
    for i in range(4):
        a(f"s_waitcnt vmcnt({6 - i})")
        dd = acc(i*4)
        for k in range(0, 8, 2): a(f"v_pk_add_f32 {P(dd+k)}, {P(dd+k)}, {P(P4_RX+8*i+k)}")
        U = 64 + 4*i
        for k in range(4): a(f"v_cvt_pk_bf16_f32 v{U+k}, v{dd+2*k}, v{dd+2*k+1}")
        a(f"s_add_u32 s81, s80, {i*32768}\ns_nop 0\nv_permlane16_swap_b32 v{U}, v{U+2}\nv_permlane16_swap_b32 v{U+1}, v{U+3}")
        a(f"buffer_store_dwordx4 v[{U}:{U+3}], v10, s[{SRD_A}:{SRD_A+3}], s81 offen {sf}")

def p4x_setup(a):
    srd(a, SRD_B, S_WS, 8 << 20, WS_PX)
    srd(a, SRD_A, S_OUT, 2048*1024*2)
    a(f"s_lshl_b32 s{S_T0}, s{S_RB}, 3\ns_add_u32 s{S_T0}, s{S_T0}, s{S_CB}\ns_lshl_b32 s{S_T0}, s{S_T0}, 1\ns_add_u32 s{S_T0}, s{S_T0}, s{S_KH}")
    a(f"s_lshl_b32 s{S_T3}, s{S_T0}, 2\ns_add_u32 s{S_T3}, s{S_T3}, s{S_W4}")
    a(f"s_lshl_b32 s86, s{S_T3}, 13\ns_add_u32 s87, s86, 4096\ns_xor_b32 s88, s86, 0x8000\ns_xor_b32 s89, s87, 0x8000")
    a(f"v_mov_b32 v12, s{S_E}\nv_lshrrev_b32 v13, 8, v12\nv_lshrrev_b32 v14, 16, v12\nv_lshrrev_b32 v15, 24, v12\ns_movk_i32 s90, 0xff\ns_mov_b32 s91, 0x0c0c0400")
    a("v_and_b32 v10, 15, v0\nv_lshlrev_b32 v10, 11, v10\nv_bfe_u32 v11, v0, 4, 1\nv_lshl_add_u32 v10, v11, 5, v10\nv_bfe_u32 v11, v0, 5, 1\nv_lshl_add_u32 v10, v11, 4, v10")
    a(f"s_lshl_b32 s80, s82, 15\ns_lshl_b32 s81, s83, 6\ns_add_u32 s80, s80, s81")

def p4x_epilogue(a, ph, sf='', spin_first=True):
    acc = lambda n: ph.vacc + 4*n
    P = lambda r: f"v[{r}:{r+1}]"
    RX = 24
    for i in range(4):
        for c in range(2):
            n = i*2 + c; s = acc(i*4 + 2 + c)
            for k in range(4): a(f"v_bfi_b32 v{s+k}, s90, v{12+k}, v{s+k}")
            a(f"buffer_store_dwordx4 v[{s}:{s+3}], v3, s[{SRD_B}:{SRD_B+3}], s{86 + (n >> 2)} offen offset:{(n & 3)*1024} sc1")
    a("s_waitcnt vmcnt(8)")
    for h in range(4): a(f"v_lshlrev_b32 v{100+2*h}, 16, v{96+h}\nv_and_b32 v{101+2*h}, 0xffff0000, v{96+h}")
    for i in range(4):
        for h in range(4):
            a(f"v_lshlrev_b32 v{56+2*h}, 16, v{P4_H+4*i+h}\nv_and_b32 v{57+2*h}, 0xffff0000, v{P4_H+4*i+h}")
        for h in range(4): a(f"v_pk_add_f32 {P(56+2*h)}, {P(56+2*h)}, {P(100+2*h)}")
        for h in range(4): a(f"v_pk_add_f32 {P(acc(i*4)+2*h)}, {P(acc(i*4)+2*h)}, {P(56+2*h)}")
    def load(n): a(f"buffer_load_dwordx4 v[{RX+4*n}:{RX+4*n+3}], v3, s[{SRD_B}:{SRD_B+3}], s{88 + (n >> 2)} offen offset:{(n & 3)*1024} sc1")
    def tags(n, first):
        r = RX + 4*n
        a(f"v_perm_b32 v16, v{r+1}, v{r}, s91\nv_perm_b32 v17, v{r+3}, v{r+2}, s91\nv_lshl_or_b32 v16, v17, 16, v16")
        a(f"v_xor_b32 v18, v16, v12" if first else f"v_xor_b32 v16, v16, v12\nv_or_b32 v18, v18, v16")
    L = a.lab('xs'); K = a.lab('xa')
    a("s_mov_b32 s81, 0")
    if not spin_first: a(f"s_branch {K}")
    a(f"{L}:\ns_add_u32 s81, s81, 1\ns_cmp_gt_u32 s81, 0x20000\ns_cbranch_scc1 {K}_x")
    load(7); a("s_waitcnt vmcnt(0)"); tags(7, True)
    a(f"v_cmp_ne_u32 vcc, 0, v18\ns_cbranch_vccnz {L}\n{K}:")
    for n in range(8): load(n)
    for n in range(8):
        a(f"s_waitcnt vmcnt({7-n})"); tags(n, n == 0)
    a(f"v_cmp_ne_u32 vcc, 0, v18\ns_cbranch_vccnz {L}\n{K}_x:")
    for i in range(4):
        dd = acc(i*4)
        for k in range(0, 8, 2): a(f"v_pk_add_f32 {P(dd+k)}, {P(dd+k)}, {P(RX+8*i+k)}")
        U = 64 + 4*i
        for k in range(4): a(f"v_cvt_pk_bf16_f32 v{U+k}, v{dd+2*k}, v{dd+2*k+1}")
        a(f"s_add_u32 s81, s80, {i*32768}\ns_nop 0\nv_permlane16_swap_b32 v{U}, v{U+2}\nv_permlane16_swap_b32 v{U+1}, v{U+3}")
        a(f"buffer_store_dwordx4 v[{U}:{U+3}], v10, s[{SRD_A}:{SRD_A+3}], s81 offen {sf}")

def p4b_setup(a, fbase):
    srd(a, SRD_B, S_WS, 8 << 20, WS_PX)
    srd(a, SRD_A, S_OUT, 2048*1024*2)
    a(f"s_lshl_b32 s{S_T0}, s{S_RB}, 3\ns_add_u32 s{S_T0}, s{S_T0}, s{S_CB}\ns_lshl_b32 s{S_T0}, s{S_T0}, 1\ns_add_u32 s{S_T0}, s{S_T0}, s{S_KH}")
    a(f"s_lshl_b32 s{S_T3}, s{S_T0}, 2\ns_add_u32 s{S_T3}, s{S_T3}, s{S_W4}")
    a(f"s_lshl_b32 s86, s{S_T3}, 12\ns_xor_b32 s88, s86, 0x4000")
    a(f"s_lshl_b32 s90, s{S_T3}, 7\ns_add_u32 s90, s90, {fbase}\ns_xor_b32 s91, s90, 0x200")
    a(f"v_mov_b32 v8, 0\nv_mov_b32 v9, s{S_E}")
    a("v_and_b32 v10, 15, v0\nv_lshlrev_b32 v10, 11, v10\nv_bfe_u32 v11, v0, 4, 1\nv_lshl_add_u32 v10, v11, 5, v10\nv_bfe_u32 v11, v0, 5, 1\nv_lshl_add_u32 v10, v11, 4, v10")
    a(f"s_lshl_b32 s80, s82, 15\ns_lshl_b32 s81, s83, 6\ns_add_u32 s80, s80, s81")

def p4b_epilogue(a, ph, sf=''):
    acc = lambda n: ph.vacc + 4*n
    P = lambda r: f"v[{r}:{r+1}]"
    RX = 24
    for i in range(4):
        s = acc(i*4 + 2)
        for k in range(4): a(f"v_cvt_pk_bf16_f32 v{64+4*i+k}, v{s+2*k}, v{s+2*k+1}")
        a(f"buffer_store_dwordx4 v[{64+4*i}:{67+4*i}], v3, s[{SRD_B}:{SRD_B+3}], s86 offen offset:{i*1024} sc1")
    a("s_waitcnt vmcnt(4)")
    for h in range(4): a(f"v_lshlrev_b32 v{100+2*h}, 16, v{96+h}\nv_and_b32 v{101+2*h}, 0xffff0000, v{96+h}")
    for i in range(4):
        for h in range(4):
            a(f"v_lshlrev_b32 v{56+2*h}, 16, v{P4_H+4*i+h}\nv_and_b32 v{57+2*h}, 0xffff0000, v{P4_H+4*i+h}")
        for h in range(4): a(f"v_pk_add_f32 {P(56+2*h)}, {P(56+2*h)}, {P(100+2*h)}")
        for h in range(4): a(f"v_pk_add_f32 {P(acc(i*4)+2*h)}, {P(acc(i*4)+2*h)}, {P(56+2*h)}")
    L = a.lab('xp')
    a(f"s_waitcnt vmcnt(0)\ns_mov_b64 exec, 1\nbuffer_store_dword v9, v8, s[{SRD_F}:{SRD_F+3}], s90 offen sc1\ns_mov_b32 s81, 0")
    a(f"{L}:\nbuffer_load_dword v12, v8, s[{SRD_F}:{SRD_F+3}], s91 offen sc1\ns_add_u32 s81, s81, 1\ns_cmp_gt_u32 s81, 0x20000\ns_cbranch_scc1 {L}_x\ns_waitcnt vmcnt(0)\nv_cmp_ne_u32 vcc, s{S_E}, v12\ns_cbranch_vccnz {L}\n{L}_x:\ns_mov_b64 exec, -1")
    for n in range(4): a(f"buffer_load_dwordx4 v[{RX+4*n}:{RX+4*n+3}], v3, s[{SRD_B}:{SRD_B+3}], s88 offen offset:{n*1024} sc1")
    for i in range(4):
        a(f"s_waitcnt vmcnt(3)")
        dd = acc(i*4)
        for k in range(4): a(f"v_lshlrev_b32 v{56+2*k}, 16, v{RX+4*i+k}\nv_and_b32 v{57+2*k}, 0xffff0000, v{RX+4*i+k}")
        for k in range(4): a(f"v_pk_add_f32 {P(dd+2*k)}, {P(dd+2*k)}, {P(56+2*k)}")
        U = 64 + 4*i
        for k in range(4): a(f"v_cvt_pk_bf16_f32 v{U+k}, v{dd+2*k}, v{dd+2*k+1}")
        a(f"s_add_u32 s81, s80, {i*32768}\ns_nop 0\nv_permlane16_swap_b32 v{U}, v{U+2}\nv_permlane16_swap_b32 v{U+1}, v{U+3}")
        a(f"buffer_store_dwordx4 v[{U}:{U+3}], v10, s[{SRD_A}:{SRD_A+3}], s81 offen {sf}")

FL_S = 0x8000
def stats_flag_setup(a):
    a(f"s_lshl_b32 s79, s{S_RB}, 8\ns_lshl_b32 s78, s{S_CB}, 4\ns_add_u32 s79, s79, s78\ns_lshl_b32 s78, s{S_W4}, 2\ns_add_u32 s79, s79, s78\ns_add_u32 s79, s79, {FL_S}")
def stats_flag(a):
    a(f"v_mov_b32 v240, 0\nv_mov_b32 v241, s{S_E}\ns_waitcnt vmcnt(0)\ns_mov_b64 exec, 1\nbuffer_store_dword v241, v240, s[{SRD_F}:{SRD_F+3}], s79 offen sc1\ns_mov_b64 exec, -1")

def code_touch(a, at=None):
    L = a.lab('ct'); K = a.lab('pc')
    if at is not None: a(f"s_cmp_lg_u32 s{S_T}, {at}\ns_cbranch_scc1 {L}")
    a(f"s_getpc_b64 s[{S_PF}:{S_PF+1}]\n{K}:\ns_sub_u32 s{S_PF}, s{S_PF}, {K}-KSTART-60\ns_subb_u32 s{S_PF+1}, s{S_PF+1}, 0")
    a(f"s_lshr_b32 s{S_T0}, s2, 3\ns_lshl_b32 s{S_T0}, s{S_T0}, 2\ns_add_u32 s{S_T0}, s{S_T0}, s{S_W4}\ns_lshl_b32 s{S_T0}, s{S_T0}, 7")
    for i in range(3):
        a(f"s_add_u32 s{S_T1}, s{S_T0}, {i*16384}\ns_min_u32 s{S_T1}, s{S_T1}, KEND-KSTART-68\ns_load_dwordx2 s[66:67], s[{S_PF}:{S_PF+1}], s{S_T1}")
    a(f"{L}:")

def p2_kfn(a):
    a(f"s_lshl_b32 s{S_KA}, s{S_T0}, 11\ns_cmp_ge_u32 s{S_T0}, 8\ns_cselect_b32 s{S_T1}, 40960, 0\ns_add_u32 s{S_KA}, s{S_KA}, s{S_T1}\ns_lshl_b32 s{S_KB}, s{S_T0}, 17")

def kb_of_u(a, su, skh8, swhich, dst, t1, t2):
    a(f"s_and_b32 s{t1}, s{su}, 7\ns_add_u32 s{t1}, s{t1}, s{skh8}\ns_mul_i32 s{dst}, s{t1}, 7\ns_and_b32 s{t1}, s{t1}, 1\ns_add_u32 s{dst}, s{dst}, s{t1}")
    a(f"s_lshr_b32 s{t1}, s{su}, 3\ns_add_u32 s{dst}, s{dst}, s{t1}\ns_mul_i32 s{t1}, s{swhich}, 3\ns_add_u32 s{dst}, s{dst}, s{t1}")
    a(f"s_and_b32 s{t1}, s{su}, 3\ns_lshl_b32 s{t1}, s{t1}, 1\ns_add_u32 s{t1}, s{t1}, s{skh8}\ns_mul_i32 s{t1}, s{t1}, 7\ns_add_u32 s{t1}, s{t1}, s{swhich}\ns_add_u32 s{t1}, s{t1}, 6")
    a(f"s_cmp_ge_u32 s{su}, 24\ns_cselect_b32 s{dst}, s{t1}, s{dst}")
def p4_kfn(a):
    kb_of_u(a, S_T0, 80, 81, S_KB, S_T1, S_T2)
    a(f"s_lshl_b32 s{S_KB}, s{S_KB}, 16\ns_lshl_b32 s{S_KA}, s{S_T0}, 11")
def p4l_producer_setup(a):
    srd(a, SRD_A, S_WS, 16 << 20, WS_G)
    srd(a, SRD_B, S_W2, 3584*1024*2)
    a(f"s_lshl_b32 s{S_LA}, s{S_W4}, 12\ns_lshl_b32 s{S_LB}, s{S_W4}, 11\ns_lshl_b32 s80, s{S_KH}, 3\ns_lshr_b32 s81, s{S_W4}, 1")
    a(f"s_lshl_b32 s{S_T0}, s{S_RB}, 3\ns_lshl_b32 s{S_T1}, s{S_W4}, 1\ns_add_u32 s{S_T1}, s{S_T0}, s{S_T1}\ns_mul_i32 s{S_T1}, s{S_T1}, {112*1024}")
    a(f"s_mul_i32 s{S_T0}, s{S_KH}, {56*1024}\ns_add_u32 s{S_T1}, s{S_T1}, s{S_T0}")
    a(f"v_lshlrev_b32 v10, 4, v0\nv_add_u32 v10, s{S_T1}, v10\nv_add_u32 v11, {112*1024}, v10")
    a(f"s_lshl_b32 s{S_T2}, s{S_CB}, 8\ns_and_b32 s{S_T0}, s{S_W4}, 1\ns_lshl_b32 s{S_T0}, s{S_T0}, 15\ns_add_u32 s{S_T2}, s{S_T2}, s{S_T0}")
    dma_b_lane(a, 12, 20, 21, 2048, 128)
    a(f"v_add_u32 v12, s{S_T2}, v12\nv_add_u32 v13, {8*2048}, v12\nv_add_u32 v14, 128, v12\nv_add_u32 v15, 128, v13")
    a(f"v_bfe_u32 v20, v0, 4, 1\nv_and_b32 v27, 15, v0\nv_lshlrev_b32 v27, 2, v27\nv_lshl_add_u32 v27, v20, 11, v27")
def need_flags_l(a):
    L = a.lab('nd'); K = a.lab('rdy')
    a(f"s_and_b32 s{S_T1}, s{S_T0}, 7\ns_add_u32 s{S_T1}, s{S_T1}, s80\ns_cmp_lt_u32 s{S_T0}, 8\ns_cselect_b32 s{S_T2}, 16, 0\ns_add_u32 s{S_T1}, s{S_T1}, s{S_T2}\ns_lshl_b32 s{S_T1}, 1, s{S_T1}")
    a(f"s_and_b32 s{S_T2}, s{S_T0}, 3\ns_lshl_b32 s{S_T2}, s{S_T2}, 1\ns_add_u32 s{S_T2}, s{S_T2}, s80\ns_lshl_b32 s{S_T2}, 3, s{S_T2}\ns_cmp_ge_u32 s{S_T0}, 24\ns_cselect_b32 s{S_T1}, s{S_T2}, s{S_T1}")
    a(f"s_andn2_b32 s{S_T2}, s{S_T1}, s{S_RDY}\ns_cbranch_scc0 {K}")
    a(f"s_mov_b32 exec_hi, 0\ns_mov_b32 s{S_T3}, 0\n{L}:")
    a(f"buffer_load_dword v31, v27, s[{SRD_F}:{SRD_F+3}], s{S_FO} offen sc1\ns_add_u32 s{S_T3}, s{S_T3}, 1\ns_waitcnt vmcnt(0)\nv_cmp_eq_u32 vcc, s{S_E}, v31\ns_nop 1")
    a(f"s_cmp_gt_u32 s{S_T3}, 0x20000\ns_cselect_b32 s{S_RDY}, -1, vcc_lo\ns_andn2_b32 s{S_T2}, s{S_T1}, s{S_RDY}\ns_cbranch_scc1 {L}\ns_mov_b64 exec, -1\n{K}:")

def lw2_setup(a):
    a(f"s_lshl_b32 s{S_T0}, s2, 2\ns_add_u32 s{S_T0}, s{S_T0}, s{S_W4}\ns_and_b32 s74, s{S_T0}, 127\ns_lshl_b32 s74, s74, 9\ns_lshr_b32 s75, s{S_T0}, 9")
    a(f"s_bfe_u32 s60, s{S_T0}, 0x10007\ns_bfe_u32 s61, s{S_T0}, 0x10008\ns_lshl_b32 s61, s61, 3")
def lw2_step(a, steps, duty=False):
    if not steps: return
    L = a.lab('lp')
    m = sum(1 << t for t in steps)
    a(f"s_bitcmp1_b32 {m:#x}, s{S_T}\ns_cbranch_scc0 {L}\ns_getreg_b32 s{S_T0}, hwreg(HW_REG_IB_STS, 8, 4)\ns_cmp_gt_u32 s{S_T0}, 7\ns_cbranch_scc1 {L}")
    a(f"s_cmp_ge_u32 s75, 28\ns_cbranch_scc1 {L}")
    if duty: a(f"s_add_u32 s{S_T0}, s{S_T}, 1\ns_cmp_eq_u32 s{S_T0}, s{S_DT}\ns_cbranch_scc1 {L}")
    kb_of_u(a, 75, 61, 60, S_T0, S_T1, S_T2)
    a(f"s_lshl_b32 s{S_T0}, s{S_T0}, 16\ns_add_u32 s{S_T0}, s{S_T0}, s74\ns_add_u32 s{S_PF}, s{S_W2}, s{S_T0}\ns_addc_u32 s{S_PF+1}, s{S_W2+1}, 0")
    for k in range(4): a(f"s_load_dwordx2 s[66:67], s[{S_PF}:{S_PF+1}], {60 + 128*k}")
    a(f"s_add_u32 s75, s75, 2\n{L}:")

S_NM = 68
def need_mask(a):
    a(f"s_lshl_b32 s{S_NM}, 1, s{S_T0}")
def need_mask_p4(a):
    a(f"s_mul_i32 s{S_T1}, s{S_T0}, 294\ns_add_u32 s{S_T2}, s{S_T1}, 147\ns_lshr_b32 s{S_T1}, s{S_T1}, 10\ns_lshr_b32 s{S_T2}, s{S_T2}, 10")
    a(f"s_lshl_b32 s{S_T1}, 1, s{S_T1}\ns_lshl_b32 s{S_T2}, 1, s{S_T2}\ns_or_b32 s{S_NM}, s{S_T1}, s{S_T2}")
def need_mask_l(a):
    a(f"s_and_b32 s{S_T1}, s{S_T0}, 7\ns_add_u32 s{S_T1}, s{S_T1}, s80\ns_cmp_lt_u32 s{S_T0}, 8\ns_cselect_b32 s{S_T2}, 16, 0\ns_add_u32 s{S_T1}, s{S_T1}, s{S_T2}\ns_lshl_b32 s{S_T1}, 1, s{S_T1}")
    a(f"s_and_b32 s{S_T2}, s{S_T0}, 3\ns_lshl_b32 s{S_T2}, s{S_T2}, 1\ns_add_u32 s{S_T2}, s{S_T2}, s80\ns_lshl_b32 s{S_T2}, 3, s{S_T2}\ns_cmp_ge_u32 s{S_T0}, 24\ns_cselect_b32 s{S_NM}, s{S_T2}, s{S_T1}")
def need_check(a, mask, voff):
    L = a.lab('nd'); K = a.lab('rdy')
    a(f"s_andn2_b32 s{S_T2}, s{S_NM}, s{S_RDY}\ns_cbranch_scc0 {K}")
    a(f"s_mov_b32 exec_lo, {mask:#x}\ns_mov_b32 exec_hi, 0\ns_mov_b32 s{S_T3}, 0\n{L}:")
    a(f"buffer_load_dword v31, v{voff}, s[{SRD_F}:{SRD_F+3}], s{S_FO} offen sc1\ns_add_u32 s{S_T3}, s{S_T3}, 1\ns_waitcnt vmcnt(0)\nv_cmp_eq_u32 vcc, s{S_E}, v31\ns_nop 1")
    a(f"s_cmp_gt_u32 s{S_T3}, 0x20000\ns_cselect_b32 s{S_RDY}, -1, vcc_lo\ns_andn2_b32 s{S_T2}, s{S_NM}, s{S_RDY}\ns_cbranch_scc1 {L}\ns_mov_b64 exec, -1\n{K}:")
```

```python
import sys
from phases import *
import hazard
STAMP['on'] = '--stamp' in sys.argv; STAMP['noprod'] = '--noprod' in sys.argv
O = dict(kv.split('=') for kv in sys.argv[1:] if '=' in kv)
gi = lambda k, d: int(O[k]) if k in O else d
NAME = 'sequential_preLN__sliding_local_dilated__dense_activation_gelu__prompt_kernel'
LDS = 163840
OPT = dict(early=1, pre=4, tail=4)
p1, p2, p3, p4 = make_p1x(), make_p2(), make_p3(), make_p4()
p2.NS = 5; p4.wrap = False; p4.NS = gi('p4ns', 3)
for ph, k in ((p1, 'd1'), (p2, 'd2'), (p3, 'd3'), (p4, 'd4')): ph.lead = gi(k, 1)
for ph in (p2, p3, p4): ph.aflags = 'sc1'
THR = gi('thr', 6)
for ph, k in ((p1, 1), (p2, 2), (p3, 3), (p4, 4)): ph.prio = gi(f'pr{k}', gi('pr', 0))
HL = gi('hl', 1)
if HL: p1.hook_at = len(p1.pieces) - 1; p3.hook_at = len(p3.pieces) - 1
M3 = gi('m3', 0)
map_p3 = map_4x8 if M3 else map_8x4
a = Asm()
a('KSTART:')
if STAMP['on']: a("s_memrealtime s[94:95]")
prologue(a, 'L_done')
if gi('ct0', 1): code_touch0(a)
map_8x4(a)
def after_kernarg():
    a("s_waitcnt lgkmcnt(0)")
    a(f"s_add_u32 s{SRD_F}, s{S_WS}, {WS_FL}\ns_addc_u32 s{SRD_F+1}, s{S_WS+1}, 0\ns_mov_b32 s{SRD_F+2}, {1 << 20}\ns_mov_b32 s{SRD_F+3}, 0x20000")
    if STAMP['on']: a("v_writelane_b32 v255, s94, 0\nv_writelane_b32 v255, s94, 30\ns_memrealtime s[92:93]\ns_waitcnt lgkmcnt(0)\nv_writelane_b32 v255, s92, 31")
def load_epoch(): a(f"s_load_dword s{S_E}, s[{SRD_F}:{SRD_F+1}], 0")
a(f"s_cmp_ge_u32 s{S_WAVE}, 4\ns_cbranch_scc1 L_prod")
a(f"s_lshl_b32 s61, s{S_RB}, 4\ns_add_u32 s61, s61, s{S_CB}")
after_kernarg()
row_stats_issue(a, 61)
load_epoch()
p1x_consumer_setup(a, p1)
a(f"s_waitcnt lgkmcnt(0)\ns_add_u32 s{S_E}, s{S_E}, 1")
row_stats_finish(a, 61)
stamp(a, 1)
consumer_gemm(a, p1, OPT, final_bar=True, sbase=0)
stamp(a, 3)
p1x_fold(a, p1)
p1_epilogue(a, p1, 'sc1', fold=True)
stamp(a, 4)
publish(a, 1, FL_1, S_RB, S_CB)
stamp(a, 5)
a('s_barrier')
map_4x8(a)
p2_consumer_setup(a, p2, res=False)
consumer_gemm(a, p2, dict(early=gi('e2', 1), pre=gi('pre2', 0), tail=gi('tail2', 1)), final_bar=True, sbase=4, after_first=lambda: p2x_read(a))
stamp(a, 7)
SF = gi('sf', 1)
if SF:
    stats_flag_setup(a)
    p2_epilogue(a, p2, 'sc1', before_stats_store=lambda: (a(f"s_mov_b32 s77, s{S_T0}"), stamp(a, 8), publish(a, 2, FL_2, S_RB, S_CB), a(f"s_mov_b32 s{S_T0}, s77")))
else:
    p2_epilogue(a, p2, 'sc1')
    stamp(a, 8)
    publish(a, 2, FL_2, S_RB, S_CB)
stamp(a, 9)
a('s_barrier')
map_p3(a)
p3_consumer_setup(a, p3)
consumer_gemm(a, p3, OPT, final_bar=True, sbase=8, after_half=(lambda: stats_flag(a)) if SF else None)
a('s_barrier')
stamp(a, 11)
p3_epilogue(a, p3, ['sc1', 'sc1 nt', 'sc0 sc1', 'sc0 sc1 nt'][gi('gs', 0)])
stamp(a, 12)
publish(a, 3, FL_3, S_RB, S_CB, cnt=P3_CONST + 2816)
stamp(a, 13)
a('s_barrier')
map_p4(a)
p4_consumer_setup(a, p4, res=False)
consumer_gemm(a, p4, dict(early=gi('e4', 1), pre=gi('pre4', 2), tail=gi('tail4', 2)), after_first=lambda: (p4_res_loads(a, 'sc1'), p4b_setup(a, FL_X) if gi('xb', 1) else None), final_bar=True, sbase=12)
stamp(a, 15)
if gi('xb', 1): a("s_nop 7"); p4b_epilogue(a, p4, 'nt' if gi('outnt', 0) else '')
else: p4_epilogue(a, p4, fval=f"s{S_E}", fbase=FL_X)
stamp(a, 16)
if STAMP['on']: a("s_waitcnt vmcnt(0)")
stamp(a, 17)
stamp_flush(a, 0, WS_TM)
a("s_endpgm")
a("L_prod:")
p1x_producer_setup(a, p1, srds=False)
R1 = gi('r1', 1)
a(f"s_lshr_b32 s{S_T0}, s{S_RB}, 3\ns_lshl_b32 s{S_XR}, s{S_T0}, 3")
if R1: a(f"s_and_b32 s{S_T1}, s{S_CB}, 12\ns_add_u32 s{S_XR}, s{S_XR}, s{S_T1}\ns_and_b32 s{S_XR}, s{S_XR}, 15")
seq_setup(a, p1)
after_kernarg()
p1x_producer_srds(a)
stamp(a, 2, True)
def pre_first():
    load_epoch()
    stamp(a, 0, True)
    if gi('pfcode', 0): code_touch(a)
    if gi('warm', 1): warm_flags(a)
    a(f"v_mov_b32 v28, {CNT_LDS}\nv_mov_b32 v32, 0\nv_mov_b32 v33, 0\nv_mov_b32 v34, 0\nv_mov_b32 v35, 0\nds_write_b128 v28, v[32:35]")
    a(f"v_lshlrev_b32 v30, 2, v0\ns_and_b32 s81, s{S_RB}, 7")
    lp_setup(a)
    jm_setup(a, lambda: duty_setup(a, p1, 81, [40], None, 80), 80)
    stamp(a, 1, True)
PF = gi('pf', 1)
def stepstamp(ph):
    if gi('ss', 0) == ph and STAMP['on']:
        a(f"s_memtime s[92:93]\ns_waitcnt lgkmcnt(0)\ns_add_u32 s{S_T0}, s{S_T}, 32\ns_mov_b32 s93, m0\ns_mov_b32 m0, s{S_T0}\nv_writelane_b32 v255, s92, m0\ns_mov_b32 m0, s93")
h1 = lambda n=10: duty_hook(a, lambda: jm_process(a, NoQ(), True), n)
CT = gi('ct', 1)
h1l = lambda: (stepstamp(1), h1(10 if HL else 2), CT and code_touch(a, gi('ct1', 14)), lp_step(a, S_W1, range(gi('lo1', 4), gi('hi1', 13) + 1) if PF else [], True))
producer_first(a, p1, pre_first, h1l, [None, lambda: (jg2_loads(a), 3)[1], lambda: (a("s_waitcnt vmcnt(0)"), jg2_process(a, NoQ()))[1]], peel_hook=h1, early1=gi('early1', 1))
stamp(a, 3, True)
def own(sb=None):
    if sb is not None: stamp(a, sb, True)
    a('s_barrier')
def nf(mask, mk, sb, voff=30):
    st = {'n': 0}
    def f():
        need_check(a, mask, voff)
        if st['n'] == 0: stamp(a, sb, True)
        st['n'] += 1
    return (mk, f)
def lean_cfg(ph, tl, mask, sa, sb_, looped):
    bits = 4 if ph.S <= 16 else 2
    def allready():
        a(f"s_mov_b32 s{S_NM}, {mask:#x}")
        need_check(a, mask, 30)
        a(f"s_lshr_b64 s[{S_SEQ}:{S_SEQ+1}], s[{S_SEQ}:{S_SEQ+1}], {bits*tl}")
        if bits == 2: a(f"s_add_u32 s{S_T}, s{S_XR}, {tl}")
    def kcalc(ka, kb):
        K = [f"s_lshr_b64 s[{S_SEQ}:{S_SEQ+1}], s[{S_SEQ}:{S_SEQ+1}], {bits}"]
        if bits == 4: K += [f"s_add_u32 s{S_T0}, s{S_SEQ}, s{S_XR}", f"s_and_b32 s{S_T0}, s{S_T0}, 15"]
        else: K += [f"s_add_u32 s{S_T}, s{S_T}, 1", f"s_and_b32 s{S_T0}, s{S_SEQ}, 3", f"s_add_u32 s{S_T0}, s{S_T0}, s{S_T}"]
        return K + [f"s_lshl_b32 s{ka}, s{S_T0}, {sa}", f"s_lshl_b32 s{kb}, s{S_T0}, {sb_}"]
    return (tl, allready, kcalc, looped)
def handoff(base, extra_off=None, sb=0):
    def f():
        a(f"s_lshl_b32 s{S_FO}, s{S_RB}, 7\ns_add_u32 s{S_FO}, s{S_FO}, {base}\ns_mov_b32 s{S_RDY}, 0")
        if extra_off: extra_off()
        stamp(a, sb+1, True)
    return f
map_4x8(a)
p2_producer_setup(a, p2)
a(f"s_and_b32 s{S_XR}, s{S_RB}, {12 if gi('r2', 1) else 0}")
producer_fused(a, p2, handoff(FL_1, sb=4), thr=THR, mid=lambda: (p2x_dma(a, THR), own(4)), need=nf(0xffff, need_mask, 6), preA=gi('prea2', 3), PB=gi('pb2', None), lean=lean_cfg(p2, gi('ln2', 0), 0xffff, 11, 17, False) if gi('ln2', 0) else None, loop_hook=lambda: (stepstamp(2), CT and code_touch(a, 10)), peel_hook=lambda: stepstamp(2))
stamp(a, 7, True)
map_p3(a)
p3_producer_setup(a, p3)
a(f"s_and_b32 s{S_XR}, s{S_RB}, {12 if M3 else 8}\ns_and_b32 s81, s{S_RB}, {3 if M3 else 7}")
h3 = lambda n=11: duty_hook(a, lambda: j3_process(a), n)
lp_setup(a)
h3l = lambda: (stepstamp(3), h3(11 if HL else 2), CT and code_touch(a, gi('ct3', 14)), lp_step(a, S_W2, range(gi('lo3', 5), gi('hi3', 13) + 1) if PF else [], True))
producer_fused(a, p3, handoff(FL_2, sb=8), thr=THR, mid=lambda: (j3_setup(a, lambda: duty_setup(a, p3, 81, [40, 39], None, 76), 76), own(8)),
               PB=gi('pb3', None), need=nf(0xffff, need_mask, 10),
               loop_hook=h3l, peel_hook=lambda: (stepstamp(3), h3()), first_hook=lambda: (stepstamp(3), h3()), tail=[lambda: 0, lambda: j3_issue(a, SF), lambda: j3_finish(a, 0, SF)])
j3_finish(a, 1)
a('s_barrier')
stamp(a, 11, True)
map_p4(a)
p4_producer_setup(a, p4)
a(f"s_lshr_b32 s{S_XR}, s{S_RB}, 2\ns_mul_i32 s{S_XR}, s{S_XR}, {7 if gi('r4', 0) else 0}\ns_sub_u32 s{S_XR}, s{S_XR}, 1")
producer_fused(a, p4, handoff(FL_3, extra_off=lambda: a(f"s_lshl_b32 s{S_T1}, s{S_KH}, 5\ns_add_u32 s{S_FO}, s{S_FO}, s{S_T1}"), sb=12), thr=gi('thr4', THR), mid=lambda: own(12), need=nf(0xff, need_mask_p4, 14), lean=lean_cfg(p4, gi('ln4', 0), 0xff, 11, 17, True) if gi('ln4', 0) else None, loop_hook=lambda: (stepstamp(4), CT and code_touch(a, gi('ln4', 0) - 1 if gi('ln4', 0) else 23), lp_step(a, S_W2, range(5, 20) if PF else [])), peel_hook=lambda: stepstamp(4), first_hook=lambda: stepstamp(4))
stamp(a, 15, True)
a(f"s_cmp_lg_u32 s2, 0\ns_cbranch_scc1 L_pend\ns_cmp_lg_u32 s{S_WAVE}, 4\ns_cbranch_scc1 L_pend")
a(f"v_mov_b32 v28, 0\nv_mov_b32 v29, s{S_E}\ns_mov_b64 exec, 1\nbuffer_store_dword v29, v28, s[{SRD_F}:{SRD_F+3}], 0 offen sc1\ns_mov_b64 exec, -1")
a("L_pend:")
stamp_flush(a, 0, WS_TM)
a("L_done:\ns_endpgm\nKEND:")

ref = open('sequential_preLN__sliding_local_dilated__dense_activation_gelu__prompt.s.ref').read().split('\n')
hdr = [l for l in ref if l.startswith(';') and '@launch' not in l and 'Override' not in l and 'grid=ceil' not in l]
lst = '--list' in sys.argv
out = hdr + [f"; @launch " + (f"kernel={NAME} " if lst else "") + f"grid=(256,1,1) block=(512,1,1) lds={LDS}"]
out.append('.amdgcn_target "amdgcn-amd-amdhsa--gfx950"\n.text')
out.append(f".globl {NAME}\n.p2align 8\n.type {NAME},@function\n{NAME}:\n{a.text()}")
out.append('.section .rodata,"a"')
out.append(kernel_desc(NAME))
txt = '\n'.join(out) + '\n'
for x in hazard.check(txt): sys.stderr.write("HAZARD line %d [%s] -> line %d [%s]: need %d have %d\n" % x)
print(txt)
```

```python
from gcore import *

import os
WS_BASE = int(os.environ.get('WSB', 0)) << 20
WS_XN = WS_BASE + 0
WS_O  = WS_BASE + (4 << 20)
WS_H  = WS_BASE + (8 << 20)
WS_G  = WS_BASE + (12 << 20)
WS_ST = WS_BASE + (28 << 20)
WS_CS = WS_BASE + (29 << 20)
WS_PX = WS_BASE + (32 << 20)
WS_FL = WS_BASE + (48 << 20)
WS_TM = 64 << 20

def map_8x4(a):
    a(f"s_and_b32 s{S_T0}, s2, 1\ns_lshl_b32 s{S_T0}, s{S_T0}, 3\ns_lshr_b32 s{S_T1}, s2, 3\ns_and_b32 s{S_T2}, s{S_T1}, 7\ns_add_u32 s{S_RB}, s{S_T0}, s{S_T2}")
    a(f"s_and_b32 s{S_T0}, s2, 7\ns_lshr_b32 s{S_T0}, s{S_T0}, 1\ns_lshl_b32 s{S_T0}, s{S_T0}, 2\ns_lshr_b32 s{S_T1}, s2, 6\ns_add_u32 s{S_CB}, s{S_T0}, s{S_T1}")
    a(f"s_add_u32 s{S_ROT}, s{S_RB}, s{S_CB}\ns_and_b32 s{S_ROT}, s{S_ROT}, 3")

def tr_lane_part(a, dst, t0, t1, pitch, jreg=None, j=0):
    a(f"v_lshrrev_b32 v{t0}, 2, v0")
    if pitch == 128:
        a(f"v_bfe_u32 v{t1}, v0, 3, 2")
    else:
        a(f"v_bfe_u32 v{t1}, v0, 4, 1")
    if jreg is not None: a(f"v_xor_b32 v{t1}, s{jreg}, v{t1}")
    else: a(f"v_xor_b32 v{t1}, {j}, v{t1}")
    a(f"v_lshlrev_b32 v{t1}, 5, v{t1}")
    a(f"v_lshlrev_b32 v{t0}, {int(math.log2(pitch))}, v{t0}")
    a(f"v_add_u32 v{dst}, v{t0}, v{t1}")
    a(f"v_and_b32 v{t0}, 3, v0\nv_lshlrev_b32 v{t0}, 3, v{t0}\nv_add_u32 v{dst}, v{dst}, v{t0}")

def dma_b_lane(a, dst, t0, t1, ldb, width):
    if width == 128:
        a(f"v_lshrrev_b32 v{t0}, 3, v0\nv_bfe_u32 v{t1}, v0, 4, 2\nv_lshlrev_b32 v{t1}, 1, v{t1}\nv_and_b32 v{dst}, 7, v0")
    else:
        a(f"v_lshrrev_b32 v{t0}, 2, v0\nv_bfe_u32 v{t1}, v0, 4, 1\nv_lshlrev_b32 v{t1}, 1, v{t1}\nv_and_b32 v{dst}, 3, v0")
    a(f"v_xor_b32 v{dst}, v{dst}, v{t1}\nv_lshlrev_b32 v{dst}, 4, v{dst}")
    a(f"v_mul_u32_u24 v{t0}, {ldb}, v{t0}\nv_add_u32 v{dst}, v{dst}, v{t0}")

S_LA, S_LB, S_LH = 57, 58, 59

def make_p3(lead=True, NS=3):
    ph = Phase(); ph.name = 'P3'; ph.S = 16; ph.NS = NS; ph.stage = 45056; ph.lds0 = 0; ph.lead = lead
    ph.ka_step = 2048; ph.kb_step = 64*7168; ph.aflags = ''; ph.bflags = ''
    ph.nmin = 11
    ph.pieces = []
    for i in range(2):
        ph.pieces.append(('A', 10+i, S_LA, i*2048, 0, None))
        ph.pieces.append(('A', 10+i, S_LA, None, 1024, None))
    for t in range(3):
        for i in range(2):
            ph.pieces.append(('B', 12 + t*2 + i, S_LB, 16384 + t*8192 + i*1024, 0, None))
    ph.pieces.append(('B', 18, S_LH, 40960, 0, None))
    ph.addr_regs = list(range(2, 10))
    ph.afr = [(2, 0), (2, 2048), (3, 0), (3, 2048)]
    ph.a_kb = 1024
    ph.bfr = [(4 + (c & 3), (c >> 2)*8192, 2048, 4096) for c in range(6)] + [(8, 0, 1024, 2048), (9, 0, 1024, 2048)]
    ph.va = [16, 32]; ph.vb = [48, 80]; ph.vacc = 112
    ph.mm = [(i*6 + c, i, c, True) for i in range(4) for c in range(6)] + [(24 + i*2 + c, i, 6 + c, True) for i in range(2) for c in range(2)]
    return ph

def p3_producer_setup(a, ph):
    srd(a, SRD_A, S_WS, 4 << 20, WS_H)
    srd(a, SRD_B, S_W1, 1024*3584*2)
    a(f"s_lshl_b32 s{S_LA}, s{S_W4}, 12\ns_lshl_b32 s{S_LB}, s{S_W4}, 11\ns_lshl_b32 s{S_LH}, s{S_W4}, 10")
    a(f"s_lshl_b32 s{S_T0}, s{S_RB}, 3\ns_lshl_b32 s{S_T1}, s{S_W4}, 1\ns_add_u32 s{S_T0}, s{S_T0}, s{S_T1}\ns_lshl_b32 s{S_T0}, s{S_T0}, 15")
    a(f"v_lshlrev_b32 v10, 4, v0\nv_add_u32 v10, s{S_T0}, v10\nv_add_u32 v11, 0x8000, v10")
    a(f"s_mul_i32 s{S_T0}, s{S_CB}, 448\ns_and_b32 s{S_T1}, s{S_CB}, 1\ns_lshl_b32 s{S_T2}, s{S_T1}, 6\ns_add_u32 s{S_T2}, s{S_T2}, s{S_T0}")
    a(f"s_cmp_eq_u32 s{S_T1}, 0\ns_cselect_b32 s{S_T1}, 384, 0\ns_add_u32 s{S_T1}, s{S_T1}, s{S_T0}")
    a(f"s_mul_i32 s{S_T0}, s{S_W4}, {16*7168}\ns_add_u32 s{S_T2}, s{S_T2}, s{S_T0}\ns_add_u32 s{S_T1}, s{S_T1}, s{S_T0}")
    dma_b_lane(a, 12, 20, 21, 7168, 128)
    a(f"v_add_u32 v12, s{S_T2}, v12")
    for t in range(3):
        for i in range(2):
            if t or i: a(f"v_add_u32 v{12+t*2+i}, {t*128 + i*8*7168}, v12")
    dma_b_lane(a, 18, 20, 21, 7168, 64)
    a(f"v_add_u32 v18, s{S_T1}, v18")

def p3_consumer_setup(a, ph):
    a(f"s_lshr_b32 s{S_T0}, s{S_W4}, 1\ns_and_b32 s{S_T1}, s{S_W4}, 1")
    a(f"s_lshl_b32 s{S_T2}, s{S_T0}, 13\ns_lshl_b32 s{S_T3}, s{S_T1}, 12\ns_add_u32 s{S_T3}, s{S_T3}, s{S_T2}")
    if ph.lds0: a(f"s_add_u32 s{S_T3}, s{S_T3}, {ph.lds0}")
    a(f"v_lshlrev_b32 v2, 4, v0\nv_add_u32 v2, s{S_T3}, v2\nv_xor_b32 v3, 0x1000, v2" if ph.lds0 % 8192 == 0 else "ERR")
    for k in range(4):
        a(f"s_lshl_b32 s{S_T2}, s{S_T1}, 1\ns_add_u32 s{S_T2}, s{S_T2}, {k}\ns_and_b32 s{S_T2}, s{S_T2}, 3")
        tr_lane_part(a, 4+k, 10, 11, 128, jreg=S_T2)
        a(f"s_mul_i32 s{S_T2}, s{S_T1}, {8192*(2 if k >= 2 else 1)}\ns_add_u32 s{S_T2}, s{S_T2}, {16384 + ph.lds0}\nv_add_u32 v{4+k}, s{S_T2}, v{4+k}")
    for j in range(2):
        tr_lane_part(a, 8+j, 10, 11, 64, j=j)
        a(f"v_add_u32 v{8+j}, {40960 + ph.lds0}, v{8+j}")

def xor16_32(a, v, t, op):
    a(f"v_mov_b32 v{t}, v{v}\ns_nop 1\nv_permlane16_swap_b32 v{t}, v{v}\ns_nop 0\n{op} v{v}, v{t}, v{v}")
    a(f"v_mov_b32 v{t}, v{v}\ns_nop 1\nv_permlane32_swap_b32 v{t}, v{v}\ns_nop 0\n{op} v{v}, v{t}, v{v}")

def xor16_32_multi(a, vs, ts, op):
    n = len(vs)
    for perm in ('v_permlane16_swap_b32', 'v_permlane32_swap_b32'):
        for v, t in zip(vs, ts): a(f"v_mov_b32 v{t}, v{v}")
        if n < 3: a(f"s_nop {2-n}")
        for v, t in zip(vs, ts): a(f"{perm} v{t}, v{v}")
        for v, t in zip(vs, ts): a(f"{op} v{v}, v{t}, v{v}")

def rbf(a, v):
    a(f"v_cvt_pk_bf16_f32 v{v}, v{v}, v{v}\nv_and_b32 v{v}, 0xffff0000, v{v}")

def ln_scale(a, vmean, vvar, t):
    rbf(a, vmean)
    a(f"v_max_f32 v{vvar}, 0, v{vvar}")
    rbf(a, vvar)
    a(f"v_add_f32 v{vvar}, 0x3727c5ac, v{vvar}")
    rbf(a, vvar)
    a(f"v_sqrt_f32 v{vvar}, v{vvar}\ns_nop 0")
    rbf(a, vvar)
    a(f"v_rcp_f32 v{vvar}, v{vvar}\ns_nop 0")

def tree_sum(a, regs, op="v_add_f32"):
    regs = list(regs)
    while len(regs) > 1:
        nxt = []
        for i in range(0, len(regs) - 1, 2):
            a(f"{op} v{regs[i]}, v{regs[i]}, v{regs[i+1]}"); nxt.append(regs[i])
        if len(regs) % 2: nxt.append(regs[-1])
        regs = nxt
    return regs[0]

def p0_ln(a, sf='', sid=2, lds0=0):
    srd(a, SRD_A, S_X, 2048*1024*2)
    srd(a, SRD_C, S_WS, 4 << 20, WS_XN)
    a(f"v_and_b32 v1, 7, v0\nv_lshlrev_b32 v2, 11, v1\nv_bfe_u32 v3, v0, 5, 1\nv_lshlrev_b32 v3, 6, v3\nv_add_u32 v2, v2, v3")
    a(f"v_bfe_u32 v4, v0, 3, 2\nv_lshlrev_b32 v3, 3, v4\nv_add_u32 v2, v2, v3\ns_lshl_b32 s{S_T0}, s{S_W4}, 9\nv_add_u32 v2, s{S_T0}, v2")
    a(f"s_lshl_b32 s{S_T1}, s{sid}, 14")
    for j in range(4):
        a(f"buffer_load_dwordx2 v[{16+4*j}:{17+4*j}], v2, s[{SRD_A}:{SRD_A+3}], s{S_T1} offen offset:{j*128}")
        a(f"buffer_load_dwordx2 v[{18+4*j}:{19+4*j}], v2, s[{SRD_A}:{SRD_A+3}], s{S_T1} offen offset:{j*128+32}")
    a(f"v_bfe_u32 v3, v0, 5, 1\nv_lshlrev_b32 v3, 10, v3\nv_lshlrev_b32 v4, 8, v4\nv_add_u32 v3, v3, v4\nv_lshlrev_b32 v4, 4, v1\nv_add_u32 v3, v3, v4")
    a(f"s_and_b32 s{S_T2}, s{sid}, 1\ns_lshl_b32 s{S_T2}, s{S_T2}, 7\ns_lshl_b32 s{S_T0}, s{S_W4}, 13\ns_add_u32 s{S_T2}, s{S_T2}, s{S_T0}\nv_add_u32 v3, s{S_T2}, v3")
    a(f"s_lshr_b32 s{S_T2}, s{sid}, 1\ns_lshl_b32 s{S_T2}, s{S_T2}, 15")
    a(f"v_lshlrev_b32 v5, 4, v1\nv_add_u32 v5, {lds0}, v5\ns_lshl_b32 s{S_T0}, s{S_W4}, 2\nv_add_u32 v6, s{S_T0}, v5")
    a("s_waitcnt vmcnt(0)")
    for k in range(16):
        a(f"v_lshlrev_b32 v{32+2*k}, 16, v{16+k}\nv_and_b32 v{33+2*k}, 0xffff0000, v{16+k}")
    for k in range(16): a(f"v_add_f32 v{64+k}, v{32+2*k}, v{33+2*k}")
    tree_sum(a, range(64, 80))
    def wg_reduce(off):
        a("s_nop 1\nv_add_f32_dpp v64, v64, v64 row_ror:8 row_mask:0xf bank_mask:0xf")
        xor16_32(a, 64, 65, "v_add_f32")
        a(f"ds_write_b32 v6, v64 offset:{off}\ns_waitcnt lgkmcnt(0)\ns_barrier\nds_read_b128 v[68:71], v5 offset:{off}\ns_waitcnt lgkmcnt(0)")
        a("v_add_f32 v68, v68, v69\nv_add_f32 v70, v70, v71\nv_add_f32 v68, v68, v70\nv_mul_f32 v68, 0x3a800000, v68")
    wg_reduce(0)
    a("v_mov_b32 v7, v68")
    for k in range(16):
        a(f"v_sub_f32 v80, v{32+2*k}, v7\nv_sub_f32 v81, v{33+2*k}, v7\nv_mul_f32 v{64+k}, v80, v80\nv_fmac_f32 v{64+k}, v81, v81")
    tree_sum(a, range(64, 80))
    wg_reduce(128)
    a("v_mov_b32 v8, v68")
    ln_scale(a, 7, 8, 9)
    for k in range(16):
        a(f"v_sub_f32 v80, v{32+2*k}, v7\nv_sub_f32 v81, v{33+2*k}, v7\nv_cvt_pk_bf16_f32 v82, v80, v81")
        a(f"v_lshlrev_b32 v80, 16, v82\nv_and_b32 v81, 0xffff0000, v82\nv_mul_f32 v80, v80, v8\nv_mul_f32 v81, v81, v8\nv_cvt_pk_bf16_f32 v{16+k}, v80, v81")
    for j in range(4):
        if j == 2: a(f"s_add_u32 s{S_T2}, s{S_T2}, 4096")
        a(f"buffer_store_dwordx4 v[{16+4*j}:{19+4*j}], v3, s[{SRD_C}:{SRD_C+3}], s{S_T2} offen offset:{(j&1)*2048} {sf}")

def p0_colsum(a, lds0, nbar_extra, sf=''):
    srd(a, SRD_B, S_W1, 1024*3584*2)
    srd(a, SRD_D, S_WS, 1 << 20, WS_CS)
    a("v_cmp_le_u32 vcc, 28, v0\nv_subrev_u32 v2, 28, v0\ns_nop 0\nv_cndmask_b32 v2, v0, v2, vcc\nv_cndmask_b32 v3, 0, 1, vcc")
    a(f"v_mul_u32_u24 v4, 7168, v3\nv_lshlrev_b32 v5, 4, v2\nv_add_u32 v4, v4, v5")
    a(f"s_lshr_b32 s{S_T0}, s2, 4\ns_lshl_b32 s{S_T0}, s{S_T0}, 6\ns_lshl_b32 s{S_T1}, s{S_W4}, 4\ns_add_u32 s{S_T0}, s{S_T0}, s{S_T1}\ns_mul_i32 s{S_T0}, s{S_T0}, 7168")
    a(f"s_and_b32 s{S_T1}, s2, 15\ns_mul_i32 s{S_T2}, s{S_T1}, 448\ns_add_u32 s{S_T0}, s{S_T0}, s{S_T2}")
    a("s_mov_b64 exec, 0x00ffffffffffffff" if False else "s_mov_b32 exec_hi, 0x00ffffff")
    for j in range(8):
        a(f"s_add_u32 s{S_T3}, s{S_T0}, {j*2*7168}\nbuffer_load_dwordx4 v[{16+4*j}:{19+4*j}], v4, s[{SRD_B}:{SRD_B+3}], s{S_T3} offen")
    a(f"s_lshl_b32 s{S_T3}, s{S_W4}, 1\nv_add_u32 v6, s{S_T3}, v3\nv_mul_u32_u24 v6, 896, v6\nv_lshlrev_b32 v5, 5, v2\nv_add_u32 v6, v6, v5")
    for j in range(8):
        a(f"s_waitcnt vmcnt({7-j})")
        for k in range(4):
            s = 16 + 4*j + k
            if j == 0:
                a(f"v_lshlrev_b32 v{48+2*k}, 16, v{s}\nv_and_b32 v{49+2*k}, 0xffff0000, v{s}")
            else:
                a(f"v_lshlrev_b32 v56, 16, v{s}\nv_and_b32 v57, 0xffff0000, v{s}\nv_add_f32 v{48+2*k}, v{48+2*k}, v56\nv_add_f32 v{49+2*k}, v{49+2*k}, v57")
    a(f"ds_write_b128 v6, v[48:51] offset:{lds0}\nds_write_b128 v6, v[52:55] offset:{lds0+16}")
    a("s_mov_b64 exec, -1\ns_waitcnt lgkmcnt(0)\ns_barrier")
    a(f"s_mul_i32 s{S_T3}, s{S_W4}, 224\nv_lshlrev_b32 v7, 2, v0\nv_add_u32 v7, s{S_T3}, v7")
    for k in range(8): a(f"ds_read_b32 v{16+k}, v7 offset:{lds0 + k*896}")
    a(f"s_lshr_b32 s{S_T0}, s2, 4\ns_mul_i32 s{S_T0}, s{S_T0}, {3584*4}\ns_mul_i32 s{S_T1}, s{S_T1}, 896\ns_add_u32 s{S_T0}, s{S_T0}, s{S_T1}")
    a("s_waitcnt lgkmcnt(0)")
    tree_sum(a, range(16, 24))
    a(f"s_mov_b32 exec_hi, 0x00ffffff\nbuffer_store_dword v16, v7, s[{SRD_D}:{SRD_D+3}], s{S_T0} offen {sf}\ns_mov_b64 exec, -1")
    for _ in range(nbar_extra): a("s_barrier")

def make_p1(lead=True):
    ph = Phase(); ph.name = 'P1'; ph.S = 16; ph.NS = 3; ph.stage = 43008; ph.lds0 = 0; ph.lead = lead
    ph.ka_step = 2048; ph.kb_step = 64*6144; ph.aflags = ''; ph.bflags = ''
    ph.nmin = 10
    ph.pieces = []
    for i in range(2):
        ph.pieces.append(('A', 10+i, S_LA, 2048 + i*2048, 0, None))
        ph.pieces.append(('A', 10+i, S_LA, None, 1024, None))
    ph.pieces.append(('A', 18, S_LH, 0, 0, 2))
    for t in range(3):
        for i in range(2):
            ph.pieces.append(('B', 12 + t*2 + i, S_LB, 18432 + t*8192 + i*1024, 0, None))
    ph.addr_regs = [2, 4, 5]
    ph.afr = [(2, i*2048) for i in range(5)]
    ph.a_kb = 1024
    ph.bfr = [(4 + c, t*8192, 2048, 4096) for t in range(3) for c in range(2)]
    ph.va = [16, 36]; ph.vb = [56, 80]; ph.vacc = 112
    mm = []
    for i in range(5):
        row = [(i*2 + c, i, 2 + c, True) for c in range(2)] + [(10 + i*2 + c, i, 4 + c, False) for c in range(2)]
        if i: row += [(20 + (i-1)*2 + c, i, c, True) for c in range(2)]
        mm += row if i % 2 == 0 else row[::-1]
    ph.mm = mm
    return ph

def a_frag_voff(a, rts_shift_or_mul, v, extra_sgpr=None):
    pass

def p1_producer_setup(a, ph):
    srd(a, SRD_A, S_WS, 4 << 20, WS_XN)
    srd(a, SRD_B, S_WQKV, 1024*3072*2)
    a(f"s_lshl_b32 s{S_LA}, s{S_W4}, 12\ns_lshl_b32 s{S_LB}, s{S_W4}, 11\ns_lshl_b32 s{S_LH}, s{S_W4}, 10")
    a(f"s_lshl_b32 s{S_T0}, s{S_RB}, 3\ns_lshl_b32 s{S_T1}, s{S_W4}, 1\ns_add_u32 s{S_T1}, s{S_T0}, s{S_T1}\ns_lshl_b32 s{S_T1}, s{S_T1}, 15")
    a(f"v_lshlrev_b32 v18, 4, v0\nv_add_u32 v10, s{S_T1}, v18\nv_add_u32 v11, 0x8000, v10")
    a(f"s_max_u32 s{S_T0}, s{S_T0}, 1\ns_sub_u32 s{S_T0}, s{S_T0}, 1\ns_lshl_b32 s{S_T0}, s{S_T0}, 15\ns_add_u32 s{S_T0}, s{S_T0}, s{S_LH}\nv_add_u32 v18, s{S_T0}, v18")
    a(f"s_lshl_b32 s{S_T2}, s{S_CB}, 7\ns_mul_i32 s{S_T0}, s{S_W4}, {16*6144}\ns_add_u32 s{S_T2}, s{S_T2}, s{S_T0}")
    dma_b_lane(a, 12, 20, 21, 6144, 128)
    a(f"v_add_u32 v12, s{S_T2}, v12")
    for t in range(3):
        for i in range(2):
            if t or i: a(f"v_add_u32 v{12+t*2+i}, {t*2048 + i*8*6144}, v12")

S_MASK = 64

def p1_consumer_setup(a, ph):
    a(f"s_lshr_b32 s{S_T0}, s{S_W4}, 1\ns_and_b32 s{S_T1}, s{S_W4}, 1")
    a(f"s_lshl_b32 s{S_T2}, s{S_T0}, 13\nv_lshlrev_b32 v2, 4, v0\nv_add_u32 v2, s{S_T2}, v2")
    if ph.lds0: a(f"v_add_u32 v2, {ph.lds0}, v2")
    for c in range(2):
        a(f"s_lshl_b32 s{S_T2}, s{S_T1}, 1\ns_add_u32 s{S_T2}, s{S_T2}, {c}")
        tr_lane_part(a, 4+c, 10, 11, 128, jreg=S_T2)
        a(f"v_add_u32 v{4+c}, {18432 + ph.lds0}, v{4+c}")
    a("v_and_b32 v10, 15, v0\nv_lshrrev_b32 v11, 4, v0\nv_lshlrev_b32 v11, 2, v11\nv_sub_u32 v10, v10, v11\nv_mov_b32 v12, 0xf149f2ca")
    for t in range(2):
        for r in range(4):
            a(f"v_add_u32 v11, {(16 if t == 0 else 0) - r}, v10\nv_and_b32 v11, 0xfffffff1, v11\nv_cmp_eq_u32 vcc, 0, v11\ns_nop 1\nv_cndmask_b32 v{224+4*t+r}, v12, 0, vcc")
    a(f"s_lshl_b32 s{S_T2}, s{S_RB}, 1\ns_add_u32 s{S_T2}, s{S_T2}, s{S_T0}\ns_cmp_eq_u32 s{S_T2}, 0\ns_cselect_b64 vcc, -1, 0")
    for r in range(4): a(f"v_cndmask_b32 v{232+r}, v{224+r}, v12, vcc")

def p1_epilogue(a, ph, sf='', fold=False, mid=None, oing=False):
    acc = lambda n: ph.vacc + 4*n
    if oing: srd(a, SRD_C, S_WS, 16 << 20, WS_G)
    else: srd(a, SRD_C, S_WS, 4 << 20, WS_O)
    RTS = 114688 if oing else 32768
    a(f"s_lshr_b32 s{S_T0}, s{S_W4}, 1\ns_and_b32 s{S_T1}, s{S_W4}, 1\ns_lshl_b32 s{S_T2}, s{S_RB}, 1\ns_add_u32 s{S_T2}, s{S_T2}, s{S_T0}")
    a(f"s_mul_i32 s{S_T2}, s{S_T2}, {4*RTS}")
    if oing: a(f"s_cmp_ge_u32 s{S_CB}, 8\ns_cselect_b32 s{S_T3}, 40960, 0\ns_add_u32 s{S_T2}, s{S_T2}, s{S_T3}")
    a(f"s_lshl_b32 s{S_T3}, s{S_CB}, 1\ns_add_u32 s{S_T3}, s{S_T3}, s{S_T1}\ns_lshl_b32 s{S_T3}, s{S_T3}, 10\ns_add_u32 s{S_T2}, s{S_T2}, s{S_T3}")
    a(f"v_lshlrev_b32 v2, 4, v0\ns_mov_b32 s82, 0x3e8293ee\ns_mov_b32 s83, 0x3e8293ee")
    P = lambda r: f"v[{r}:{r+1}]"
    KP, QP, VP = 16, 36, 52
    for i in range(5):
        for c in range(2):
            for h in range(2):
                a(f"v_cvt_pk_bf16_f32 v{KP+4*i+2*c+h}, v{acc(i*2+c)+2*h}, v{acc(i*2+c)+2*h+1}")
        if i:
            for c in range(2):
                for h in range(2):
                    a(f"v_cvt_pk_bf16_f32 v{QP+4*(i-1)+2*c+h}, v{acc(20+(i-1)*2+c)+2*h}, v{acc(20+(i-1)*2+c)+2*h+1}")
    SS = 72
    a("s_nop 1")
    for i in range(1, 5):
        for t in range(2):
            d = SS + 8*(i-1) + 4*t
            a(f"v_mfma_f32_16x16x32_bf16 v[{d}:{d+3}], v[{KP+4*(i-1+t)}:{KP+4*(i-1+t)+3}], v[{QP+4*(i-1)}:{QP+4*(i-1)+3}], v[{(232 if (i == 1 and t == 0) else 224 + 4*t)}:{(232 if (i == 1 and t == 0) else 224 + 4*t) + 3}]")
    for i in range(5):
        for c in range(2):
            for h in range(2):
                a(f"v_cvt_pk_bf16_f32 v{VP+10*c+2*i+h}, v{acc(10+i*2+c)+2*h}, v{acc(10+i*2+c)+2*h+1}")
    if mid: mid()
    MX = [112, 114, 116, 118]; TT = [113, 115, 117, 119]
    for i in range(4):
        b = SS + 8*i
        a(f"v_max3_f32 v{MX[i]}, v{b}, v{b+1}, v{b+2}\nv_max3_f32 v{TT[i]}, v{b+3}, v{b+4}, v{b+5}")
    for i in range(4):
        b = SS + 8*i
        a(f"v_max3_f32 v{MX[i]}, v{MX[i]}, v{b+6}, v{b+7}")
    for i in range(4): a(f"v_max_f32 v{MX[i]}, v{MX[i]}, v{TT[i]}")
    xor16_32_multi(a, MX, TT, "v_max_f32")
    if fold:
        for i in range(4): a(f"v_mul_f32 v{MX[i]}, v{240+i}, v{MX[i]}")
        for k in range(0, 8, 2):
            for i in range(4): a(f"v_pk_fma_f32 {P(SS+8*i+k)}, {P(SS+8*i+k)}, {P(240 + (i & 2))}, {P(MX[i])} op_sel:[0,{i & 1},0] op_sel_hi:[1,{i & 1},0] neg_lo:[0,0,1] neg_hi:[0,0,1]")
    else:
        for i in range(4): a(f"v_mul_f32 v{MX[i]}, s82, v{MX[i]}")
        for k in range(0, 8, 2):
            for i in range(4): a(f"v_pk_fma_f32 {P(SS+8*i+k)}, {P(SS+8*i+k)}, s[82:83], {P(MX[i])} op_sel_hi:[1,1,0] neg_lo:[0,0,1] neg_hi:[0,0,1]")
    for i in range(4):
        for k in range(8): a(f"v_exp_f32 v{SS+8*i+k}, v{SS+8*i+k}")
    W = 136
    for k in range(2):
        for i in range(4): a(f"v_pk_add_f32 {P(W+4*i+2*k)}, {P(SS+8*i+4*k)}, {P(SS+8*i+4*k+2)}")
    for i in range(4): a(f"v_pk_add_f32 {P(W+4*i)}, {P(W+4*i)}, {P(W+4*i+2)}")
    for i in range(4): a(f"v_add_f32 v{MX[i]}, v{W+4*i}, v{W+4*i+1}")
    xor16_32_multi(a, MX, TT, "v_add_f32")
    for i in range(4): a(f"v_rcp_f32 v{MX[i]}, v{MX[i]}")
    PP = 120
    for k in range(0, 8, 2):
        for i in range(4): a(f"v_pk_mul_f32 {P(SS+8*i+k)}, {P(SS+8*i+k)}, {P(MX[i])} op_sel_hi:[1,0]")
    for i in range(4):
        for k in range(4): a(f"v_cvt_pk_bf16_f32 v{PP+4*i+k}, v{SS+8*i+2*k}, v{SS+8*i+2*k+1}")
    OO = 136
    a("s_nop 1")
    for i in range(4):
        for c in range(2):
            d = OO + 8*i + 4*c
            a(f"v_mfma_f32_16x16x32_bf16 v[{d}:{d+3}], v[{VP+10*c+2*i}:{VP+10*c+2*i+3}], v[{PP+4*i}:{PP+4*i+3}], 0")
    a("s_nop 1")
    for i in range(4):
        if i == 3: a("s_nop 1")
        for k in range(4): a(f"v_cvt_pk_bf16_f32 v{SS+4*i+k}, v{OO+8*i+2*k}, v{OO+8*i+2*k+1}")
        a(f"s_add_u32 s{S_T3}, s{S_T2}, {i*RTS}\nbuffer_store_dwordx4 v[{SS+4*i}:{SS+4*i+3}], v2, s[{SRD_C}:{SRD_C+3}], s{S_T3} offen {sf}")

def map_4x8(a):
    a(f"s_and_b32 s{S_T0}, s2, 3\ns_lshl_b32 s{S_T0}, s{S_T0}, 2\ns_lshr_b32 s{S_T1}, s2, 3\ns_and_b32 s{S_T2}, s{S_T1}, 3\ns_add_u32 s{S_RB}, s{S_T0}, s{S_T2}")
    a(f"s_bfe_u32 s{S_T0}, s2, 0x10002\ns_lshl_b32 s{S_T0}, s{S_T0}, 3\ns_lshr_b32 s{S_T1}, s2, 5\ns_add_u32 s{S_CB}, s{S_T0}, s{S_T1}")
    a(f"s_add_u32 s{S_ROT}, s{S_RB}, s{S_CB}\ns_and_b32 s{S_ROT}, s{S_ROT}, 3")

def make_p2(lead=True):
    ph = Phase(); ph.name = 'P2'; ph.S = 16; ph.NS = 4; ph.stage = 24576; ph.lds0 = 0; ph.lead = lead
    ph.ka_step = 2048; ph.kb_step = 64*2048; ph.aflags = ''; ph.bflags = ''
    ph.nmin = 6
    ph.pieces = []
    for i in range(2):
        ph.pieces.append(('A', 10+i, S_LA, i*2048, 0, None))
        ph.pieces.append(('A', 10+i, S_LA, None, 1024, None))
    for i in range(2):
        ph.pieces.append(('B', 12 + i, S_LB, 16384 + i*1024, 0, None))
    ph.addr_regs = [2, 4, 5, 6, 7]
    ph.afr = [(2, 0), (2, 2048)]
    ph.a_kb = 1024
    ph.bfr = [(4 + j, 0, 2048, 4096) for j in range(4)]
    ph.va = [16, 24]; ph.vb = [32, 48]; ph.vacc = 64
    ph.mm = [(j, 0, j, True) for j in range(4)] + [(4 + j, 1, j, True) for j in range(3, -1, -1)]
    return ph

def p2_producer_setup(a, ph, oing=False):
    if oing: srd(a, SRD_A, S_WS, 16 << 20, WS_G)
    else: srd(a, SRD_A, S_WS, 4 << 20, WS_O)
    RTS = 114688 if oing else 32768
    srd(a, SRD_B, S_WO, 1024*1024*2)
    a(f"s_lshl_b32 s{S_LA}, s{S_W4}, 12\ns_lshl_b32 s{S_LB}, s{S_W4}, 11")
    a(f"s_lshl_b32 s{S_T0}, s{S_RB}, 3\ns_lshl_b32 s{S_T1}, s{S_W4}, 1\ns_add_u32 s{S_T1}, s{S_T0}, s{S_T1}\ns_mul_i32 s{S_T1}, s{S_T1}, {RTS}")
    a(f"v_lshlrev_b32 v10, 4, v0\nv_add_u32 v10, s{S_T1}, v10\nv_add_u32 v11, {RTS}, v10")
    a(f"s_lshl_b32 s{S_T2}, s{S_CB}, 7\ns_lshl_b32 s{S_T0}, s{S_W4}, 15\ns_add_u32 s{S_T2}, s{S_T2}, s{S_T0}")
    dma_b_lane(a, 12, 20, 21, 2048, 128)
    a(f"v_add_u32 v12, s{S_T2}, v12\nv_add_u32 v13, {8*2048}, v12")

P2_X = 200
def p2_res_loads(a):
    srd(a, SRD_D, S_X, 2048*1024*2)
    a(f"v_and_b32 v8, 15, v0\nv_lshlrev_b32 v8, 11, v8\nv_lshrrev_b32 v9, 4, v0\nv_lshlrev_b32 v9, 3, v9\nv_add_u32 v8, v8, v9")
    a(f"s_and_b32 s84, s2, 3\ns_lshl_b32 s84, s84, 20\ns_bfe_u32 s85, s2, 0x20003\ns_lshl_b32 s85, s85, 18\ns_add_u32 s84, s84, s85\ns_lshl_b32 s85, s{S_W4}, 16\ns_add_u32 s84, s84, s85")
    a(f"s_bfe_u32 s85, s2, 0x10002\ns_lshl_b32 s85, s85, 10\ns_add_u32 s84, s84, s85\ns_lshr_b32 s85, s2, 5\ns_lshl_b32 s85, s85, 7\ns_add_u32 s84, s84, s85\ns_add_u32 s85, s84, 32768")
    for i in range(2):
        for j in range(4):
            d = P2_X + 2*(i*4 + j)
            a(f"buffer_load_dwordx2 v[{d}:{d+1}], v8, s[{SRD_D}:{SRD_D+3}], s{84+i} offen offset:{j*32}")

def p2_consumer_setup(a, ph, res=True):
    if res: p2_res_loads(a)
    a(f"s_lshl_b32 s{S_T2}, s{S_W4}, 12\nv_lshlrev_b32 v2, 4, v0\nv_add_u32 v2, s{S_T2}, v2")
    if ph.lds0: a(f"v_add_u32 v2, {ph.lds0}, v2")
    for j in range(4):
        tr_lane_part(a, 4+j, 10, 11, 128, j=j)
        a(f"v_add_u32 v{4+j}, {16384 + ph.lds0}, v{4+j}")

def p2_epilogue(a, ph, sf='', before_stats_store=None):
    acc = ph.vacc
    srd(a, SRD_C, S_WS, 4 << 20, WS_H)
    srd(a, SRD_D, S_WS, 1 << 20, WS_ST)
    a(f"s_lshl_b32 s{S_T0}, s{S_RB}, 3\ns_lshl_b32 s{S_T1}, s{S_W4}, 1\ns_add_u32 s{S_T0}, s{S_T0}, s{S_T1}")
    a(f"s_lshl_b32 s{S_T1}, s{S_T0}, 15\ns_lshl_b32 s{S_T2}, s{S_CB}, 11\ns_add_u32 s{S_T1}, s{S_T1}, s{S_T2}\ns_add_u32 s{S_T2}, s{S_T1}, 32768")
    a(f"s_lshl_b32 s{S_T0}, s{S_T0}, 11\ns_lshl_b32 s{S_T3}, s{S_CB}, 7\ns_add_u32 s{S_T0}, s{S_T0}, s{S_T3}")
    a(f"v_lshlrev_b32 v2, 4, v0\nv_lshlrev_b32 v3, 3, v0")
    P = lambda r: f"v[{r}:{r+1}]"
    a("s_waitcnt vmcnt(0)")
    for n in range(16):
        a(f"v_lshlrev_b32 v{112+2*n}, 16, v{P2_X+n}\nv_and_b32 v{113+2*n}, 0xffff0000, v{P2_X+n}")
    for n in range(16): a(f"v_pk_add_f32 {P(acc+2*n)}, {P(acc+2*n)}, {P(112+2*n)}")
    for i in range(2):
        for p in range(2):
            d = 20 + 8*i + 4*p
            for k in range(4):
                s = acc + 16*i + 8*p + 2*k
                a(f"v_cvt_pk_bf16_f32 v{d+k}, v{s}, v{s+1}")
            a(f"buffer_store_dwordx4 v[{d}:{d+3}], v2, s[{SRD_C}:{SRD_C+3}], s{S_T1+i} offen offset:{p*1024} {sf}")
    for k in range(4):
        for i in range(2): a(f"v_pk_add_f32 {P(112+8*i+2*k)}, {P(acc+16*i+4*k)}, {P(acc+16*i+4*k+2)}")
    for k in range(2):
        for i in range(2): a(f"v_pk_add_f32 {P(112+8*i+4*k)}, {P(112+8*i+4*k)}, {P(112+8*i+4*k+2)}")
    for i in range(2): a(f"v_pk_add_f32 {P(112+8*i)}, {P(112+8*i)}, {P(112+8*i+4)}")
    a("v_add_f32 v40, v112, v113\nv_add_f32 v48, v120, v121")
    xor16_32_multi(a, [40, 48], [41, 49], "v_add_f32")
    a("v_mul_f32 v42, 0x3c800000, v40\nv_mul_f32 v50, 0x3c800000, v48")
    for k in range(8):
        for i in range(2): a(f"v_pk_add_f32 {P(acc+16*i+2*k)}, {P(acc+16*i+2*k)}, {P(42+8*i)} op_sel_hi:[1,0] neg_lo:[0,1] neg_hi:[0,1]")
    for k in range(2):
        for i in range(2): a(f"v_pk_mul_f32 {P(112+8*i+2*k)}, {P(acc+16*i+2*k)}, {P(acc+16*i+2*k)}")
    for k in range(2, 8):
        for i in range(2): a(f"v_pk_fma_f32 {P(112+8*i+2*(k&1))}, {P(acc+16*i+2*k)}, {P(acc+16*i+2*k)}, {P(112+8*i+2*(k&1))}")
    for i in range(2): a(f"v_pk_add_f32 {P(112+8*i)}, {P(112+8*i)}, {P(112+8*i+2)}")
    a("v_add_f32 v41, v112, v113\nv_add_f32 v49, v120, v121")
    xor16_32_multi(a, [41, 49], [43, 51], "v_add_f32")
    if before_stats_store: before_stats_store()
    a("s_mov_b64 exec, 0xffff")
    a(f"buffer_store_dwordx2 v[40:41], v3, s[{SRD_D}:{SRD_D+3}], s{S_T0} offen {sf}")
    a(f"buffer_store_dwordx2 v[48:49], v3, s[{SRD_D}:{SRD_D+3}], s{S_T0} offen offset:2048 {sf}")
    a("s_mov_b64 exec, -1")

P3_CONST = 135168
def p3_const_issue(a, lf=''):
    srd(a, SRD_C, S_WS, 2 << 20, WS_ST)
    srd(a, SRD_D, S_B1, 3584*2)
    Lc = a.lab('cols'); Le = a.lab('cend')
    a(f"s_cmp_ge_u32 s{S_W4}, 2\ns_cbranch_scc1 {Lc}")
    a(f"v_lshrrev_b32 v22, 4, v0\nv_lshlrev_b32 v22, 11, v22\nv_and_b32 v23, 15, v0\nv_lshlrev_b32 v23, 3, v23\nv_add_u32 v22, v22, v23")
    a(f"s_lshl_b32 s{S_T0}, s{S_RB}, 14\ns_lshl_b32 s{S_T1}, s{S_W4}, 13\ns_add_u32 s{S_T0}, s{S_T0}, s{S_T1}")
    for c in range(16):
        a(f"buffer_load_dwordx2 v[{32+2*c}:{33+2*c}], v22, s[{SRD_C}:{SRD_C+3}], s{S_T0} offen offset:{c*128} {lf}")
    a(f"s_branch {Le}\n{Lc}:")
    a(f"s_mul_i32 s{S_T0}, s{S_CB}, 224\ns_and_b32 s{S_T1}, s{S_CB}, 1\ns_lshl_b32 s{S_T2}, s{S_T1}, 5\ns_add_u32 s{S_T2}, s{S_T2}, s{S_T0}")
    a(f"s_cmp_eq_u32 s{S_T1}, 0\ns_cselect_b32 s{S_T1}, 0, 192\ns_sub_u32 s{S_T1}, s{S_T0}, s{S_T1}")
    a(f"s_and_b32 s{S_T0}, s{S_W4}, 1\ns_lshl_b32 s{S_T0}, s{S_T0}, 7\nv_lshlrev_b32 v23, 1, v0\nv_add_u32 v23, s{S_T0}, v23\nv_min_u32 v23, 222, v23")
    a(f"v_cmp_gt_u32 vcc, 192, v23\nv_mov_b32 v24, s{S_T1}\nv_mov_b32 v25, s{S_T2}\nv_cndmask_b32 v24, v24, v25, vcc\nv_add_u32 v24, v24, v23")
    a(f"v_lshlrev_b32 v22, 2, v24\nv_lshlrev_b32 v24, 1, v24")
    for c in range(16):
        a(f"s_mov_b32 s{S_T0}, {(1 << 20) + c*3584*4}\nbuffer_load_dwordx2 v[{32+2*c}:{33+2*c}], v22, s[{SRD_C}:{SRD_C+3}], s{S_T0} offen {lf}")
    a(f"buffer_load_dword v64, v24, s[{SRD_D}:{SRD_D+3}], 0 offen")
    a(f"{Le}:")

def p3_const_finish(a):
    Lc = a.lab('cols'); Le = a.lab('cend')
    a(f"s_cmp_ge_u32 s{S_W4}, 2\ns_cbranch_scc1 {Lc}")
    for c in range(8): a(f"v_add_f32 v{70+c}, v{32+4*c}, v{34+4*c}")
    tree_sum(a, range(70, 78))
    a("v_mul_f32 v70, 0x3a800000, v70")
    for c in range(16):
        a(f"v_fma_f32 v{32+2*c}, v{32+2*c}, 0x3c800000, -v70" if False else f"v_mul_f32 v{32+2*c}, 0x3c800000, v{32+2*c}\nv_sub_f32 v{32+2*c}, v{32+2*c}, v70")
    for c in range(16):
        a(f"v_mul_f32 v{32+2*c}, v{32+2*c}, v{32+2*c}\nv_mul_f32 v{32+2*c}, 0x42800000, v{32+2*c}\nv_add_f32 v{33+2*c}, v{33+2*c}, v{32+2*c}")
    tree_sum(a, range(33, 64, 2))
    a("v_mul_f32 v71, 0x3a800000, v33")
    ln_scale(a, 70, 71, 72)
    a(f"v_mul_f32 v73, v70, v71\nv_mov_b32 v72, v71\ns_lshl_b32 s{S_T0}, s{S_W4}, 9\nv_lshlrev_b32 v22, 3, v0\nv_add_u32 v22, s{S_T0}, v22\nv_add_u32 v22, {P3_CONST}, v22")
    a(f"ds_write_b64 v22, v[72:73]\ns_branch {Le}\n{Lc}:")
    tree_sum(a, range(32, 64, 2)); tree_sum(a, range(33, 64, 2))
    a(f"v_lshlrev_b32 v34, 16, v64\nv_and_b32 v35, 0xffff0000, v64\nv_lshlrev_b32 v23, 2, v23\nv_add_u32 v23, {P3_CONST + 1024}, v23")
    a(f"ds_write_b64 v23, v[32:33]\nds_write_b64 v23, v[34:35] offset:896")
    a(f"{Le}:\ns_waitcnt lgkmcnt(0)")

def p3_epilogue(a, ph, sf='', lvl=False, early=None, early_at=8):
    acc = lambda n: ph.vacc + 4*n
    srd(a, SRD_C, S_WS, 16 << 20, WS_G)
    a(f"s_lshr_b32 s{S_T0}, s{S_W4}, 1\ns_and_b32 s{S_T1}, s{S_W4}, 1")
    a(f"s_lshl_b32 s{S_T2}, s{S_T0}, 9\ns_lshl_b32 s{S_T3}, s{S_T1}, 8\ns_add_u32 s{S_T2}, s{S_T2}, s{S_T3}\ns_add_u32 s{S_T2}, s{S_T2}, {P3_CONST}")
    a(f"v_and_b32 v2, 15, v0\nv_lshlrev_b32 v2, 3, v2\nv_add_u32 v2, s{S_T2}, v2\nv_xor_b32 v3, 0x100, v2")
    for i in range(4): a(f"ds_read_b64 v[{8+2*i}:{9+2*i}], v{2 + (i >> 1)} offset:{(i & 1)*128}")
    a(f"s_mul_i32 s{S_T2}, s{S_T1}, 384\ns_add_u32 s{S_T2}, s{S_T2}, {P3_CONST + 1024}\nv_and_b32 v5, 0x30, v0\nv_add_u32 v4, s{S_T2}, v5\nv_add_u32 v5, {P3_CONST + 1024 + 768}, v5")
    CS, BB = 16, 48
    for c in range(8):
        r, o = (4, c*64) if c < 6 else (5, (c-6)*64)
        a(f"ds_read_b128 v[{CS+4*c}:{CS+4*c+3}], v{r} offset:{o}\nds_read_b128 v[{BB+4*c}:{BB+4*c+3}], v{r} offset:{o+896}")
    a(f"s_lshl_b32 s{S_T2}, s{S_RB}, 3\ns_lshl_b32 s{S_T3}, s{S_T0}, 2\ns_add_u32 s{S_T2}, s{S_T2}, s{S_T3}\ns_lshl_b32 s{S_T3}, s{S_T1}, 1")
    for i in range(4):
        a(f"s_xor_b32 s{84+i}, s{S_T3}, {i}\ns_add_u32 s{84+i}, s{84+i}, s{S_T2}\ns_mul_i32 s{84+i}, s{84+i}, {112*1024}")
    if lvl:
        a(f"s_lshr_b32 s{S_T2}, s{S_CB}, 3\ns_mul_i32 s{S_T2}, s{S_T2}, {28*2048}\ns_and_b32 s{S_T3}, s{S_CB}, 7\ns_lshl_b32 s89, s{S_T3}, 10\ns_add_u32 s89, s89, s{S_T2}\ns_add_u32 s89, s89, {24*2048}")
        a(f"s_lshl_b32 s88, s{S_T3}, 11\ns_add_u32 s88, s88, s{S_T2}\ns_lshl_b32 s{S_T3}, s{S_T1}, 10\ns_add_u32 s88, s88, s{S_T3}")
    else:
        a(f"s_mul_i32 s{S_T2}, s{S_CB}, 7\ns_and_b32 s{S_T3}, s{S_CB}, 1\ns_mul_i32 s88, s{S_T1}, 3\ns_add_u32 s88, s88, s{S_T2}\ns_add_u32 s88, s88, s{S_T3}\ns_lshl_b32 s88, s88, 10")
        a(f"s_cmp_eq_u32 s{S_T3}, 0\ns_cselect_b32 s89, 6, 0\ns_add_u32 s89, s89, s{S_T2}\ns_lshl_b32 s89, s89, 10")
    a(f"v_lshlrev_b32 v6, 4, v0\nv_add_u32 v7, s89, v6\nv_add_u32 v6, s88, v6")
    k2 = -2.0*0.7978845608028654*1.4426950408889634
    import struct
    f2h = lambda x: struct.unpack('<I', struct.pack('<f', x))[0]
    KK, ONE = 224, 226
    a(f"v_mov_b32 v{KK}, {f2h(k2*0.044715):#x}\nv_mov_b32 v{KK+1}, {f2h(k2):#x}\nv_mov_b32 v{ONE}, 1.0\nv_mov_b32 v{ONE+1}, 1.0")
    a("s_waitcnt lgkmcnt(0)")
    units = [(i, p) for p in range(3) for i in range(4)] + [(0, 3), (1, 3)]
    P = lambda r: f"v[{r}:{r+1}]"
    for n, (i, p) in enumerate(units):
        A = acc(i*6 + 2*p) if p < 3 else acc(24 + i*2)
        T = 80 + 16*(n & 1); U = T + 8
        R = 8 + 2*i
        for k in range(0, 8, 2): a(f"v_pk_fma_f32 {P(T+k)}, {P(R)}, {P(CS+8*p+k)}, {P(BB+8*p+k)} op_sel:[1,0,0] op_sel_hi:[1,1,1] neg_lo:[1,0,0] neg_hi:[1,0,0]")
        for k in range(0, 8, 2): a(f"v_pk_fma_f32 {P(A+k)}, {P(R)}, {P(A+k)}, {P(T+k)} op_sel_hi:[0,1,1]")
        for k in range(0, 8, 2): a(f"v_pk_mul_f32 {P(T+k)}, {P(A+k)}, {P(A+k)}")
        for k in range(0, 8, 2): a(f"v_pk_fma_f32 {P(T+k)}, {P(T+k)}, {P(KK)}, {P(KK)} op_sel:[0,0,1] op_sel_hi:[1,0,1]")
        for k in range(0, 8, 2): a(f"v_pk_mul_f32 {P(T+k)}, {P(T+k)}, {P(A+k)}")
        for k in range(8): a(f"v_exp_f32 v{T+k}, v{T+k}")
        for k in range(0, 8, 2): a(f"v_pk_add_f32 {P(T+k)}, {P(T+k)}, {P(ONE)}")
        for k in range(8): a(f"v_rcp_f32 v{T+k}, v{T+k}")
        for k in range(0, 8, 2): a(f"v_pk_mul_f32 {P(A+k)}, {P(A+k)}, {P(T+k)}")
        for k in range(4): a(f"v_cvt_pk_bf16_f32 v{U+k}, v{A+2*k}, v{A+2*k+1}")
        if p < 3 and lvl:
            a(f"buffer_store_dwordx4 v[{U}:{U+3}], v6, s[{SRD_C}:{SRD_C+3}], s{84+i} offen {sf}")
            if i == 3 and p < 2: a(f"v_add_u32 v6, {8*2048}, v6")
        elif p < 3: a(f"buffer_store_dwordx4 v[{U}:{U+3}], v6, s[{SRD_C}:{SRD_C+3}], s{84+i} offen offset:{p*1024} {sf}")
        else: a(f"buffer_store_dwordx4 v[{U}:{U+3}], v7, s[{SRD_C}:{SRD_C+3}], s{84+i} offen {sf}")
        if early and n + 1 == early_at: early(early_at - 4)

def map_p4(a):
    a(f"s_and_b32 s{S_T0}, s2, 3\ns_lshl_b32 s{S_T0}, s{S_T0}, 2\ns_lshr_b32 s{S_T1}, s2, 3\ns_and_b32 s{S_T2}, s{S_T1}, 3\ns_add_u32 s{S_RB}, s{S_T0}, s{S_T2}")
    a(f"s_bfe_u32 s{S_KH}, s2, 0x10002\ns_lshr_b32 s{S_CB}, s2, 5")
    a(f"s_add_u32 s{S_ROT}, s{S_RB}, s{S_CB}\ns_and_b32 s{S_ROT}, s{S_ROT}, 3")

def make_p4(lead=True):
    ph = Phase(); ph.name = 'P4'; ph.S = 28; ph.NS = 3; ph.stage = 32768; ph.lds0 = 0; ph.lead = lead
    ph.ka_step = 2048; ph.kb_step = 64*2048; ph.aflags = ''; ph.bflags = ''
    ph.nmin = 8
    ph.pieces = []
    for i in range(2):
        ph.pieces.append(('A', 10+i, S_LA, i*2048, 0, None))
        ph.pieces.append(('A', 10+i, S_LA, None, 1024, None))
    for t in range(2):
        for i in range(2):
            ph.pieces.append(('B', 12 + 2*t + i, S_LB, 16384 + t*8192 + i*1024, 0, None))
    ph.addr_regs = [2, 4, 5, 6, 7]
    ph.afr = [(2, i*2048) for i in range(4)]
    ph.a_kb = 1024
    ph.bfr = [(4 + c, 0, 2048, 4096) for c in range(4)]
    ph.va = [16, 32]; ph.vb = [48, 64]; ph.vacc = 112
    ph.mm = [(i*4 + c, i, c, True) for i in range(4) for c in (range(4) if i % 2 == 0 else range(3, -1, -1))]
    return ph

def p4_producer_setup(a, ph):
    srd(a, SRD_A, S_WS, 16 << 20, WS_G)
    srd(a, SRD_B, S_W2, 3584*1024*2)
    a(f"s_lshl_b32 s{S_LA}, s{S_W4}, 12\ns_lshl_b32 s{S_LB}, s{S_W4}, 11")
    a(f"s_lshl_b32 s{S_T0}, s{S_RB}, 3\ns_lshl_b32 s{S_T1}, s{S_W4}, 1\ns_add_u32 s{S_T1}, s{S_T0}, s{S_T1}\ns_mul_i32 s{S_T1}, s{S_T1}, {112*1024}")
    a(f"s_mul_i32 s{S_T0}, s{S_KH}, {56*1024}\ns_add_u32 s{S_T1}, s{S_T1}, s{S_T0}")
    a(f"v_lshlrev_b32 v10, 4, v0\nv_add_u32 v10, s{S_T1}, v10\nv_add_u32 v11, {112*1024}, v10")
    a(f"s_lshl_b32 s{S_T2}, s{S_CB}, 8\ns_lshl_b32 s{S_T0}, s{S_W4}, 15\ns_add_u32 s{S_T2}, s{S_T2}, s{S_T0}\ns_mul_i32 s{S_T0}, s{S_KH}, {1792*2048}\ns_add_u32 s{S_T2}, s{S_T2}, s{S_T0}")
    dma_b_lane(a, 12, 20, 21, 2048, 128)
    a(f"v_add_u32 v12, s{S_T2}, v12\nv_add_u32 v13, {8*2048}, v12\nv_add_u32 v14, 128, v12\nv_add_u32 v15, 128, v13")

P4_H = 80
def p4_res_loads(a, lf=''):
    a(f"s_lshl_b32 s84, s82, 15\ns_lshl_b32 s85, s83, 10\ns_add_u32 s84, s84, s85")
    for i in range(4):
        a(f"s_add_u32 s85, s84, {i*32768}\nbuffer_load_dwordx4 v[{P4_H+4*i}:{P4_H+4*i+3}], v3, s[{SRD_C}:{SRD_C+3}], s85 offen {lf}")

def p4_consumer_setup(a, ph, lf='', res=True):
    srd(a, SRD_C, S_WS, 4 << 20, WS_H)
    srd(a, SRD_D, S_B2, 1024*2)
    a(f"s_lshr_b32 s{S_T0}, s{S_W4}, 1\ns_and_b32 s{S_T1}, s{S_W4}, 1")
    a(f"s_lshl_b32 s83, s{S_CB}, 2\ns_lshl_b32 s{S_T2}, s{S_KH}, 1\ns_add_u32 s83, s83, s{S_T2}\ns_add_u32 s83, s83, s{S_T1}")
    a(f"s_lshl_b32 s82, s{S_RB}, 3\ns_lshl_b32 s{S_T2}, s{S_T0}, 2\ns_add_u32 s82, s82, s{S_T2}")
    a(f"v_lshlrev_b32 v3, 4, v0")
    if res: p4_res_loads(a, lf)
    a(f"v_lshrrev_b32 v8, 4, v0\nv_lshlrev_b32 v8, 3, v8\ns_lshl_b32 s{S_T3}, s83, 6")
    a(f"buffer_load_dwordx2 v[96:97], v8, s[{SRD_D}:{SRD_D+3}], s{S_T3} offen\nbuffer_load_dwordx2 v[98:99], v8, s[{SRD_D}:{SRD_D+3}], s{S_T3} offen offset:32")
    a(f"s_lshl_b32 s{S_T2}, s{S_T0}, 13\nv_add_u32 v2, s{S_T2}, v3")
    if ph.lds0: a(f"v_add_u32 v2, {ph.lds0}, v2")
    for c in range(2):
        a(f"s_lshl_b32 s{S_T2}, s{S_T1}, 1\ns_add_u32 s{S_T2}, s{S_T2}, {c}")
        tr_lane_part(a, 4+c, 10, 11, 128, jreg=S_T2)
        a(f"s_lshl_b32 s{S_T2}, s{S_KH}, 13\ns_add_u32 s{S_T2}, s{S_T2}, {16384 + ph.lds0}\nv_add_u32 v{4+c}, s{S_T2}, v{4+c}\nv_xor_b32 v{6+c}, 0x2000, v{4+c}")

def p4_epilogue(a, ph, fval='1', fbase=0):
    acc = lambda n: ph.vacc + 4*n
    srd(a, SRD_C, S_WS, 8 << 20, WS_PX)
    srd(a, SRD_D, S_WS, 1 << 20, WS_FL)
    srd(a, SRD_A, S_OUT, 2048*1024*2)
    a(f"s_lshl_b32 s{S_T0}, s{S_RB}, 3\ns_add_u32 s{S_T0}, s{S_T0}, s{S_CB}\ns_lshl_b32 s{S_T0}, s{S_T0}, 1\ns_add_u32 s{S_T0}, s{S_T0}, s{S_KH}")
    a(f"s_lshl_b32 s{S_T1}, s{S_T0}, 2\ns_add_u32 s{S_T1}, s{S_T1}, s{S_W4}")
    a(f"s_lshl_b32 s84, s{S_T1}, 13\ns_xor_b32 s85, s84, 0x8000")
    a(f"s_lshl_b32 s86, s{S_T1}, 7\ns_add_u32 s86, s86, {fbase}\ns_xor_b32 s87, s86, 0x200")
    for i in range(4):
        for c in range(2):
            n = i*2 + c
            if n == 4: a("s_add_u32 s84, s84, 4096")
            a(f"buffer_store_dwordx4 v[{acc(i*4+2+c)}:{acc(i*4+2+c)+3}], v3, s[{SRD_C}:{SRD_C+3}], s84 offen offset:{(n & 3)*1024} sc1")
    a("s_waitcnt vmcnt(8)")
    for h in range(4):
        a(f"v_lshlrev_b32 v{100+2*h}, 16, v{96+h}\nv_and_b32 v{101+2*h}, 0xffff0000, v{96+h}")
    for i in range(4):
        for h in range(4):
            d = acc(i*4) + 2*h
            a(f"v_lshlrev_b32 v16, 16, v{P4_H+4*i+h}\nv_and_b32 v17, 0xffff0000, v{P4_H+4*i+h}")
            a(f"v_add_f32 v16, v16, v{100+2*h}\nv_add_f32 v17, v17, v{101+2*h}\nv_add_f32 v{d}, v{d}, v16\nv_add_f32 v{d+1}, v{d+1}, v17")
    a(f"v_mov_b32 v18, 0\nv_mov_b32 v19, {fval}\ns_waitcnt vmcnt(0)\ns_mov_b64 exec, 1")
    a(f"buffer_store_dword v19, v18, s[{SRD_D}:{SRD_D+3}], s86 offen sc1")
    L = a.lab('poll')
    a(f"s_mov_b32 s88, 0\n{L}:\ns_add_u32 s88, s88, 1\ns_cmp_gt_u32 s88, 0x40000\ns_cbranch_scc1 {L}_x\nbuffer_load_dword v20, v18, s[{SRD_D}:{SRD_D+3}], s87 offen sc1\ns_waitcnt vmcnt(0)\nv_readfirstlane_b32 s{S_T2}, v20\ns_cmp_lg_u32 s{S_T2}, {fval}\ns_cbranch_scc1 {L}")
    a(f"{L}_x:\ns_mov_b64 exec, -1")
    RX = 24
    for n in range(8):
        if n == 4: a("s_add_u32 s85, s85, 4096")
        a(f"buffer_load_dwordx4 v[{RX+4*n}:{RX+4*n+3}], v3, s[{SRD_C}:{SRD_C+3}], s85 offen offset:{(n & 3)*1024} sc1")
    a("v_and_b32 v4, 15, v0\nv_lshlrev_b32 v4, 11, v4\nv_bfe_u32 v5, v0, 4, 1\nv_lshlrev_b32 v5, 5, v5\nv_add_u32 v4, v4, v5\nv_bfe_u32 v5, v0, 5, 1\nv_lshlrev_b32 v5, 4, v5\nv_add_u32 v4, v4, v5")
    a(f"s_lshl_b32 s{S_T2}, s82, 15\ns_lshl_b32 s{S_T3}, s83, 6\ns_add_u32 s{S_T2}, s{S_T2}, s{S_T3}")
    for i in range(4):
        a(f"s_waitcnt vmcnt({6 - 2*i + i})")
        d = acc(i*4)
        for k in range(8): a(f"v_add_f32 v{d+k}, v{d+k}, v{RX+8*i+k}")
        U = 64 + 4*i
        for k in range(4): a(f"v_cvt_pk_bf16_f32 v{U+k}, v{d+2*k}, v{d+2*k+1}")
        a(f"s_add_u32 s{S_T3}, s{S_T2}, {i*32768}\ns_nop 0\nv_permlane16_swap_b32 v{U}, v{U+2}\nv_permlane16_swap_b32 v{U+1}, v{U+3}")
        a(f"buffer_store_dwordx4 v[{U}:{U+3}], v4, s[{SRD_A}:{SRD_A+3}], s{S_T3} offen")


S_E = 62
S_FO = 63
SRD_F = 96
FL_E, FL_0, FL_1, FL_2, FL_3, FL_C, FL_X = 0, 0x1000, 0x2000, 0x3000, 0x4000, 0x5000, 0x10000

def flag_off(a, dst, base, srow, scol):
    a(f"s_lshl_b32 s{dst}, s{srow}, 7\ns_lshl_b32 s{S_T0}, s{scol}, 2\ns_add_u32 s{dst}, s{dst}, s{S_T0}\ns_add_u32 s{dst}, s{dst}, {base}")

def flag_set(a, soff, only_wave=4):
    L = a.lab('noflag')
    if only_wave is not None: a(f"s_cmp_lg_u32 s{S_WAVE}, {only_wave}\ns_cbranch_scc1 {L}")
    a(f"v_mov_b32 v28, 0\nv_mov_b32 v29, s{S_E}\ns_mov_b64 exec, 1\nbuffer_store_dword v29, v28, s[{SRD_F}:{SRD_F+3}], s{soff} offen sc1\ns_mov_b64 exec, -1")
    a(f"{L}:")

def poll(a, voff, soff, execmask, hook=None):
    L = a.lab('poll')
    a(f"s_mov_b64 exec, {execmask:#x}\ns_mov_b32 s{S_T0}, 0\n{L}:")
    a(f"buffer_load_dword v31, v{voff}, s[{SRD_F}:{SRD_F+3}], s{soff} offen sc1\ns_add_u32 s{S_T0}, s{S_T0}, 1\ns_cmp_gt_u32 s{S_T0}, 0x20000\ns_cbranch_scc1 {L}_x")
    if hook: hook()
    a(f"s_waitcnt vmcnt(0)\nv_cmp_ne_u32 vcc, s{S_E}, v31\ns_cbranch_vccnz {L}\n{L}_x:\ns_waitcnt vmcnt(0)\ns_mov_b64 exec, -1")

def colsum_wave(a, sk, scb, sf='sc1'):
    srd(a, SRD_C, S_W1, 1024*3584*2)
    srd(a, SRD_D, S_WS, 1 << 20, WS_CS)
    a(f"v_lshrrev_b32 v22, 3, v0\nv_mul_u32_u24 v22, 7168, v22\nv_and_b32 v23, 7, v0\nv_min_u32 v23, 6, v23\nv_lshlrev_b32 v24, 4, v23\nv_add_u32 v22, v22, v24")
    a(f"s_mul_i32 s{S_T0}, s{sk}, {64*7168}\ns_mul_i32 s{S_T1}, s{scb}, 448\ns_add_u32 s{S_T0}, s{S_T0}, s{S_T1}\ns_mul_i32 s{S_T1}, s{S_W4}, 112\ns_add_u32 s{S_T0}, s{S_T0}, s{S_T1}")
    for j in range(8):
        a(f"s_add_u32 s{S_T1}, s{S_T0}, {j*8*7168}\nbuffer_load_dwordx4 v[{32+4*j}:{35+4*j}], v22, s[{SRD_C}:{SRD_C+3}], s{S_T1} offen")
    a(f"s_mul_i32 s{S_T0}, s{sk}, {3584*4}\ns_mul_i32 s{S_T1}, s{scb}, 896\ns_add_u32 s{S_T0}, s{S_T0}, s{S_T1}\ns_mul_i32 s{S_T1}, s{S_W4}, 224\ns_add_u32 s{S_T0}, s{S_T0}, s{S_T1}")
    cs_store_voff(a, 23, 23)
    for j in range(8):
        a(f"s_waitcnt vmcnt({7-j})")
        for x in cs_acc(32, j): a(x)
    for x in cs_fold(): a(x)
    a(f"s_mov_b32 exec_lo, 0x007f007f\ns_mov_b32 exec_hi, 0x007f007f\nbuffer_store_dwordx2 v[64:65], v23, s[{SRD_D}:{SRD_D+3}], s{S_T0} offen {sf}\ns_mov_b64 exec, -1")

CNT_LDS = 160256
def publish(a, k, base, srow, scol, cnt=None, younger=0):
    L = a.lab('nopub')
    flag_off(a, S_FO, base, srow, scol)
    a(f"v_mov_b32 v236, {cnt or CNT_LDS + 4*k}\nv_mov_b32 v237, 1\nv_mov_b32 v238, 0\nv_mov_b32 v239, s{S_E}\ns_mov_b64 exec, 1")
    a(f"s_waitcnt vmcnt({younger})\nds_add_rtn_u32 v237, v236, v237\ns_waitcnt lgkmcnt(0)\nv_cmp_ne_u32 vcc, 3, v237\ns_cbranch_vccnz {L}")
    a(f"buffer_store_dword v239, v238, s[{SRD_F}:{SRD_F+3}], s{S_FO} offen sc1\n{L}:\ns_mov_b64 exec, -1")

S_PF = 78
def pf_setup(a, ptr, share, span):
    a(f"s_lshl_b32 s{S_T0}, s2, 2\ns_add_u32 s{S_T0}, s{S_T0}, s{S_W4}\ns_mul_i32 s{S_T0}, s{S_T0}, {share}\ns_min_u32 s{S_T0}, s{S_T0}, {1024*share - span}\ns_add_u32 s{S_PF}, s{ptr}, s{S_T0}\ns_addc_u32 s{S_PF+1}, s{ptr+1}, 0")
def pf_step(a, n):
    a(f"s_waitcnt lgkmcnt({15 - n})")
    for i in range(n): a(f"s_load_dword s64, s[{S_PF}:{S_PF+1}], {i*64}")
    a(f"s_add_u32 s{S_PF}, s{S_PF}, {n*64}\ns_addc_u32 s{S_PF+1}, s{S_PF+1}, 0")
def pf_code(a, nbytes, per):
    L = a.lab('pc')
    a(f"s_getpc_b64 s[{S_PF}:{S_PF+1}]\n{L}:\ns_sub_u32 s{S_PF}, s{S_PF}, {L}-KSTART\ns_subb_u32 s{S_PF+1}, s{S_PF+1}, 0")
    a(f"s_lshr_b32 s{S_T0}, s2, 3\ns_lshl_b32 s{S_T0}, s{S_T0}, 2\ns_add_u32 s{S_T0}, s{S_T0}, s{S_W4}\ns_lshl_b32 s{S_T0}, s{S_T0}, 6")
    for i in range(per):
        a(f"s_add_u32 s{S_T1}, s{S_T0}, {i*8192}\ns_min_u32 s{S_T1}, s{S_T1}, KEND-KSTART-4\ns_load_dword s64, s[{S_PF}:{S_PF+1}], s{S_T1}")

WS_GR = WS_BASE + (30 << 20)
WS_CQ = WS_BASE + (31 << 20)
FL_Q = 0x7000
P1C = 153600

def make_p1x(lead=True):
    ph = make_p1(lead)
    ph.ka_step = 128
    ph.pieces = []
    for i in range(4):
        ph.pieces.append(('A', 6 + i, S_LA, 2048 + i*1024, 0, None))
    ph.pieces.append(('A', 18, S_LH, 0, 0, 2))
    for t in range(3):
        for i in range(2):
            ph.pieces.append(('B', 12 + t*2 + i, S_LB, 18432 + t*8192 + i*1024, 0, None))
    ph.addr_regs = [2, 3, 4, 5]
    ph.afr = [(2, 3, i*2048) for i in range(5)]
    ph.bfr = [(4 + c, t*8192, 512, 4096) for t in range(3) for c in range(2)]
    return ph

def p1x_producer_srds(a):
    srd(a, SRD_A, S_X, 2048*1024*2)
    srd(a, SRD_B, S_WQKV, 1024*3072*2)
def p1x_producer_setup(a, ph, srds=True):
    if srds: p1x_producer_srds(a)
    a(f"s_lshl_b32 s{S_LA}, s{S_W4}, 12\ns_lshl_b32 s{S_LB}, s{S_W4}, 11\ns_lshl_b32 s{S_LH}, s{S_W4}, 10")
    a("v_lshrrev_b32 v20, 3, v0\nv_lshlrev_b32 v20, 11, v20\nv_lshrrev_b32 v21, 4, v0\nv_and_b32 v22, 7, v0\nv_xor_b32 v21, v21, v22\nv_lshlrev_b32 v21, 4, v21\nv_add_u32 v20, v20, v21")
    a(f"s_lshl_b32 s{S_T0}, s{S_RB}, 18\ns_lshl_b32 s{S_T1}, s{S_W4}, 16\ns_add_u32 s{S_T1}, s{S_T1}, s{S_T0}")
    a(f"v_add_u32 v6, s{S_T1}, v20\nv_xor_b32 v21, 64, v20\nv_add_u32 v7, s{S_T1}, v21\nv_add_u32 v7, 0x4000, v7\nv_add_u32 v8, 0x8000, v6\nv_add_u32 v9, 0x8000, v7")
    a(f"s_max_u32 s{S_T0}, s{S_T0}, 0x8000\ns_sub_u32 s{S_T0}, s{S_T0}, 0x8000\ns_lshl_b32 s{S_T1}, s{S_W4}, 14\ns_add_u32 s{S_T0}, s{S_T0}, s{S_T1}")
    a(f"s_lshl_b32 s{S_T1}, s{S_W4}, 6\ns_and_b32 s{S_T1}, s{S_T1}, 64\nv_xor_b32 v18, s{S_T1}, v20\nv_add_u32 v18, s{S_T0}, v18")
    a(f"s_lshl_b32 s{S_T2}, s{S_CB}, 7\ns_mul_i32 s{S_T0}, s{S_W4}, {16*6144}\ns_add_u32 s{S_T2}, s{S_T2}, s{S_T0}")
    a("v_lshrrev_b32 v20, 3, v0\nv_mul_u32_u24 v20, 6144, v20\nv_bfe_u32 v21, v0, 4, 1\nv_lshlrev_b32 v21, 1, v21\nv_xor_b32 v21, v21, v22\nv_lshlrev_b32 v21, 4, v21")
    a(f"v_add_u32 v12, v20, v21\nv_add_u32 v12, s{S_T2}, v12\nv_xor_b32 v21, 64, v21\nv_add_u32 v13, v20, v21\nv_add_u32 v13, s{S_T2}, v13\nv_add_u32 v13, {8*6144}, v13")
    for t in range(1, 3):
        for i in range(2): a(f"v_add_u32 v{12+t*2+i}, {t*2048}, v{12+i}")

def p1x_consumer_setup(a, ph):
    a(f"s_lshr_b32 s{S_T0}, s{S_W4}, 1\ns_and_b32 s{S_T1}, s{S_W4}, 1")
    a(f"s_lshl_b32 s{S_T2}, s{S_T0}, 13\nv_and_b32 v10, 15, v0\nv_lshrrev_b32 v11, 1, v10\nv_lshrrev_b32 v2, 4, v0\nv_xor_b32 v2, v2, v11\nv_lshlrev_b32 v2, 4, v2")
    a(f"v_lshlrev_b32 v10, 7, v10\nv_add_u32 v2, v2, v10\nv_add_u32 v2, s{S_T2}, v2\nv_xor_b32 v3, 64, v2")
    a("v_lshrrev_b32 v10, 4, v0\nv_lshlrev_b32 v10, 10, v10\nv_bfe_u32 v11, v0, 2, 2\nv_lshlrev_b32 v11, 7, v11\nv_add_u32 v10, v10, v11")
    a(f"v_and_b32 v11, 3, v0\nv_lshlrev_b32 v11, 3, v11\nv_add_u32 v10, v10, v11\nv_add_u32 v10, 18432, v10\nv_bfe_u32 v11, v0, 3, 2")
    for c in range(2):
        a(f"s_lshl_b32 s{S_T2}, s{S_T1}, 1\ns_add_u32 s{S_T2}, s{S_T2}, {c}\nv_xor_b32 v{4+c}, s{S_T2}, v11\nv_lshlrev_b32 v{4+c}, 5, v{4+c}\nv_add_u32 v{4+c}, v{4+c}, v10")
    a("v_and_b32 v10, 15, v0\nv_lshrrev_b32 v11, 4, v0\nv_lshlrev_b32 v11, 2, v11\nv_sub_u32 v10, v10, v11\nv_mov_b32 v12, 0xf149f2ca")
    for t in range(2):
        for r in range(4):
            a(f"v_add_u32 v11, {(16 if t == 0 else 0) - r}, v10\nv_and_b32 v11, 0xfffffff1, v11\nv_cmp_eq_u32 vcc, 0, v11\ns_nop 1\nv_cndmask_b32 v{224+4*t+r}, v12, 0, vcc")
    a(f"s_lshl_b32 s{S_T2}, s{S_RB}, 1\ns_add_u32 s{S_T2}, s{S_T2}, s{S_T0}\ns_cmp_eq_u32 s{S_T2}, 0\ns_cselect_b64 vcc, -1, 0")
    for r in range(4): a(f"v_cndmask_b32 v{232+r}, v{224+r}, v12, vcc")

def wave_sum(a, vs, ts):
    def gap():
        if len(vs) < 3: a(f"s_nop {2 - len(vs)}")
    for m in ("quad_perm:[1,0,3,2]", "quad_perm:[2,3,0,1]", "row_half_mirror", "row_mirror"):
        gap()
        for v in vs: a(f"v_add_f32_dpp v{v}, v{v}, v{v} {m} row_mask:0xf bank_mask:0xf")
    xor16_32_multi(a, vs, ts, "v_add_f32")

def row_stats_issue(a, sid):
    srd(a, SRD_A, S_X, 2048*1024*2)
    a(f"v_lshlrev_b32 v1, 4, v0\ns_lshl_b32 s{S_T0}, s{sid}, 14\ns_lshl_b32 s{S_T1}, s{S_W4}, 12\ns_add_u32 s{S_T0}, s{S_T0}, s{S_T1}")
    for j in range(4): a(f"buffer_load_dwordx4 v[{16+4*j}:{19+4*j}], v1, s[{SRD_A}:{SRD_A+3}], s{S_T0} offen offset:{j*1024}")

def row_stats_finish(a, sid):
    P = lambda r: f"v[{r}:{r+1}]"
    srd(a, SRD_C, S_WS, 16384, WS_GR)
    a(f"s_lshl_b32 s{S_T0}, s{sid}, 6\ns_lshl_b32 s{S_T1}, s{S_W4}, 4\ns_add_u32 s{S_T0}, s{S_T0}, s{S_T1}\nv_mov_b32 v1, 0")
    a("s_waitcnt vmcnt(0)")
    for k in range(16): a(f"v_lshlrev_b32 v{32+2*k}, 16, v{16+k}\nv_and_b32 v{33+2*k}, 0xffff0000, v{16+k}")
    def psum(dst, src):
        for k in range(4):
            for r in range(2): a(f"v_pk_add_f32 {P(dst+8*r+2*k)}, {P(src+16*r+4*k)}, {P(src+16*r+4*k+2)}")
        for k in range(2):
            for r in range(2): a(f"v_pk_add_f32 {P(dst+8*r+4*k)}, {P(dst+8*r+4*k)}, {P(dst+8*r+4*k+2)}")
        for r in range(2): a(f"v_pk_add_f32 {P(dst+8*r)}, {P(dst+8*r)}, {P(dst+8*r+4)}")
        for r in range(2): a(f"v_add_f32 v{dst+8*r}, v{dst+8*r}, v{dst+8*r+1}")
        wave_sum(a, [dst, dst+8], [dst+1, dst+9])
        for r in range(2): a(f"v_mul_f32 v{dst+8*r}, 0x3a800000, v{dst+8*r}")
    psum(64, 32)
    for k in range(8):
        for r in range(2): a(f"v_pk_add_f32 {P(32+16*r+2*k)}, {P(32+16*r+2*k)}, {P(64+8*r)} op_sel_hi:[1,0] neg_lo:[0,1] neg_hi:[0,1]")
    for k in range(16): a(f"v_pk_mul_f32 {P(32+2*k)}, {P(32+2*k)}, {P(32+2*k)}")
    psum(80, 32)
    a("v_cvt_pk_bf16_f32 v80, v80, v88\nv_and_b32 v81, 0xffff0000, v80\nv_lshlrev_b32 v80, 16, v80")
    a("v_add_f32 v80, 0x3727c5ac, v80\nv_add_f32 v81, 0x3727c5ac, v81\nv_cvt_pk_bf16_f32 v80, v80, v81\nv_and_b32 v81, 0xffff0000, v80\nv_lshlrev_b32 v80, 16, v80")
    a("v_sqrt_f32 v80, v80\nv_sqrt_f32 v81, v81\ns_nop 0")
    a(f"v_cvt_pk_bf16_f32 v84, v64, v80\nv_cvt_pk_bf16_f32 v86, v72, v81\nv_mov_b32 v85, s{S_E}\nv_mov_b32 v87, s{S_E}")
    a(f"s_mov_b64 exec, 1\nbuffer_store_dwordx4 v[84:87], v1, s[{SRD_C}:{SRD_C+3}], s{S_T0} offen sc1\ns_mov_b64 exec, -1")

def cs_acc(src, j):
    out = []
    for k in range(4):
        s = src + 4*j + k
        if j == 0: out += [f"v_lshlrev_b32 v{64+2*k}, 16, v{s}", f"v_and_b32 v{65+2*k}, 0xffff0000, v{s}"]
        else: out += [f"v_lshlrev_b32 v{72+2*k}, 16, v{s}", f"v_and_b32 v{73+2*k}, 0xffff0000, v{s}"]
    if j:
        for k in range(4): out.append(f"v_pk_add_f32 v[{64+2*k}:{65+2*k}], v[{64+2*k}:{65+2*k}], v[{72+2*k}:{73+2*k}]")
    return out
def cs_fold():
    out = ["s_nop 1"]
    out += [f"v_permlane32_swap_b32 v{64+k}, v{68+k}" for k in range(4)]
    out += [f"v_add_f32 v{64+k}, v{64+k}, v{68+k}" for k in (2, 3, 0, 1)]
    out += ["s_nop 1", "v_permlane16_swap_b32 v64, v66", "v_permlane16_swap_b32 v65, v67", "v_add_f32 v64, v64, v66", "v_add_f32 v65, v65, v67", "s_nop 1"]
    out += [f"v_add_f32_dpp v{64+k}, v{64+k}, v{64+k} row_ror:8 row_mask:0xf bank_mask:0xf" for k in range(2)]
    return out
def cs_store_voff(a, dst, chunk):
    a(f"v_lshlrev_b32 v{dst}, 5, v{chunk}\nv_lshrrev_b32 v25, 4, v0\nv_lshlrev_b32 v25, 3, v25\nv_add_u32 v{dst}, v{dst}, v25")

def skip_w3(a):
    L = a.lab('w3')
    a(f"s_cmp_eq_u32 s{S_W4}, 3\ns_cbranch_scc1 {L}")
    return L

def jq_setup(a):
    a(f"v_lshrrev_b32 v22, 3, v0\nv_mul_u32_u24 v22, 6144, v22\nv_and_b32 v23, 7, v0\nv_lshlrev_b32 v24, 4, v23\nv_add_u32 v22, v22, v24")
    cs_store_voff(a, 23, 23)
    a(f"s_mul_i32 s84, s{S_RB}, {64*6144}\ns_lshl_b32 s{S_T1}, s{S_CB}, 7\ns_add_u32 s84, s84, s{S_T1}\ns_add_u32 s84, s84, s{S_LB}")
    for k in range(32, 64): a(f"v_mov_b32 v{k}, 0")
def jq_issue(a, q, js):
    L = skip_w3(a)
    for j in js:
        a(f"s_add_u32 s{S_T1}, s84, {j*8*6144}\nbuffer_load_dwordx4 v[{32+4*j}:{35+4*j}], v22, s[{SRD_B}:{SRD_B+3}], s{S_T1} offen")
    a(f"{L}:")
def jq_store(a, q):
    L = skip_w3(a)
    srd(a, SRD_D, S_WS, 1 << 20, WS_CQ)
    a(f"s_mul_i32 s{S_T0}, s{S_RB}, {3072*4}\ns_lshl_b32 s{S_T1}, s{S_CB}, 8\ns_add_u32 s{S_T0}, s{S_T0}, s{S_T1}\ns_add_u32 s{S_T0}, s{S_T0}, s{S_LA}")
    a(f"s_mov_b32 exec_lo, 0x00ff00ff\ns_mov_b32 exec_hi, 0x00ff00ff\nbuffer_store_dwordx2 v[64:65], v23, s[{SRD_D}:{SRD_D+3}], s{S_T0} offen sc1\ns_mov_b64 exec, -1")
    a(f"{L}:")
    q.push('jqs', 0)
def jq_flag(a, q):
    L = skip_w3(a)
    q.wait('jqs')
    a(f"s_lshl_b32 s82, s{S_CB}, 8\ns_lshl_b32 s{S_T0}, s{S_RB}, 4\ns_add_u32 s82, s82, s{S_T0}\ns_lshl_b32 s{S_T0}, s{S_W4}, 2\ns_add_u32 s82, s82, s{S_T0}\ns_add_u32 s82, s82, {FL_Q}")
    flag_set(a, 82, only_wave=None)
    a(f"{L}:")

def jg_loads(a):
    Lr = a.lab('rows'); Le = a.lab('gend')
    a(f"s_cmp_eq_u32 s{S_W4}, 3\ns_cbranch_scc1 {Lr}")
    srd(a, SRD_D, S_WS, 1 << 20, WS_CQ)
    a(f"v_and_b32 v22, 15, v0\nv_lshlrev_b32 v22, 4, v22\ns_lshl_b32 s82, s{S_CB}, 8\ns_lshl_b32 s{S_T0}, s{S_W4}, 2\ns_add_u32 s82, s82, s{S_T0}\ns_add_u32 s82, s82, {FL_Q}")
    a(f"buffer_load_dword v48, v22, s[{SRD_F}:{SRD_F+3}], s82 offen sc1")
    a(f"v_lshrrev_b32 v23, 4, v0\nv_mul_u32_u24 v23, {3072*4}, v23\nv_add_u32 v23, v23, v22\ns_lshl_b32 s{S_T0}, s{S_CB}, 8\ns_add_u32 s{S_T0}, s{S_T0}, s{S_LA}")
    for k in range(4):
        a(f"s_add_u32 s{S_T1}, s{S_T0}, {k*4*3072*4}\nbuffer_load_dwordx4 v[{32+4*k}:{35+4*k}], v23, s[{SRD_D}:{SRD_D+3}], s{S_T1} offen sc1")
    a(f"s_branch {Le}\n{Lr}:")
    srd(a, SRD_D, S_WS, 16384, WS_GR)
    a(f"s_lshl_b32 s{S_T0}, s{S_RB}, 7\ns_sub_u32 s{S_T0}, s{S_T0}, 16")
    a(f"v_add_u32 v22, s{S_T0}, v0\nv_add_u32 v23, 16, v22\nv_cmp_gt_i32 vcc, 0, v22\nv_add_u32 v24, 128, v0\nv_min_u32 v24, 143, v24\nv_cndmask_b32 v23, v22, v23, vcc")
    a(f"v_add_u32 v24, s{S_T0}, v24\nv_lshlrev_b32 v23, 3, v23\nv_add_u32 v22, 64, v22\nv_lshlrev_b32 v22, 3, v22\nv_lshlrev_b32 v24, 3, v24")
    a(f"buffer_load_dwordx2 v[32:33], v23, s[{SRD_D}:{SRD_D+3}], 0 offen sc1\nbuffer_load_dwordx2 v[34:35], v22, s[{SRD_D}:{SRD_D+3}], 0 offen sc1\nbuffer_load_dwordx2 v[36:37], v24, s[{SRD_D}:{SRD_D+3}], 0 offen sc1")
    a(f"{Le}:")
def fold4(a, b):
    P = lambda r: f"v[{r}:{r+1}]"
    for h in (0, 2): a(f"v_pk_add_f32 {P(b+h)}, {P(b+h)}, {P(b+4+h)}\nv_pk_add_f32 {P(b+8+h)}, {P(b+8+h)}, {P(b+12+h)}")
    for h in (0, 2): a(f"v_pk_add_f32 {P(b+h)}, {P(b+h)}, {P(b+8+h)}")
    a(f"s_nop 1\nv_permlane32_swap_b32 v{b}, v{b+2}\nv_permlane32_swap_b32 v{b+1}, v{b+3}\nv_add_f32 v{b}, v{b}, v{b+2}\nv_add_f32 v{b+1}, v{b+1}, v{b+3}")
    a(f"s_nop 1\nv_permlane16_swap_b32 v{b}, v{b+1}\nv_add_f32 v{b}, v{b}, v{b+1}")

def jg_issue(a, q):
    jg_loads(a); q.push('jg', 3)
def jg_process(a, q):
    q.wait('jg')
    Lc = a.lab('gchk'); Lr = a.lab('grows'); Lok = a.lab('gok'); Le = a.lab('gdone'); Lt = a.lab('gretry')
    a(f"s_mov_b32 s83, 0\n{Lc}:\ns_cmp_eq_u32 s{S_W4}, 3\ns_cbranch_scc1 {Lr}")
    a(f"v_cmp_ne_u32 vcc, s{S_E}, v48\ns_cbranch_vccnz {Lt}")
    fold4(a, 32)
    a(f"v_bfe_u32 v23, v0, 4, 1\nv_lshrrev_b32 v24, 5, v0\nv_lshl_add_u32 v23, v24, 1, v23\nv_lshl_add_u32 v22, v23, 2, v22")
    a(f"s_lshl_b32 s{S_T0}, s{S_W4}, 8\ns_add_u32 s{S_T0}, s{S_T0}, {P1C}\nv_add_u32 v22, s{S_T0}, v22\nds_write_b32 v22, v32\ns_branch {Le}")
    a(f"{Lt}:\ns_add_u32 s83, s83, 1\ns_cmp_gt_u32 s83, 0x8000\ns_cbranch_scc1 {Le}")
    jg_loads(a)
    a(f"s_waitcnt vmcnt(0)\ns_branch {Lc}")
    a(f"{Lr}:\nv_cmp_ne_u32 vcc, s{S_E}, v33\ns_cbranch_vccnz {Lt}\nv_cmp_ne_u32 vcc, s{S_E}, v35\ns_cbranch_vccnz {Lt}\nv_cmp_ne_u32 vcc, s{S_E}, v37\ns_cbranch_vccnz {Lt}")
    for j in range(3):
        a(f"v_and_b32 v{40+2*j}, 0xffff0000, v{32+2*j}\nv_lshlrev_b32 v{41+2*j}, 16, v{32+2*j}")
    for j in range(3): a(f"v_rcp_f32 v{40+2*j}, v{40+2*j}")
    a(f"v_add_u32 v24, 128, v0\nv_min_u32 v24, 143, v24\nv_lshlrev_b32 v25, 2, v24\nv_lshlrev_b32 v24, 3, v24\nv_lshlrev_b32 v23, 3, v0")
    a(f"v_add_u32 v22, {P1C}, v30\nv_add_u32 v23, {P1C}, v23\nv_add_u32 v24, {P1C}, v24\nv_add_u32 v25, {P1C}, v25")
    a("ds_write_b64 v23, v[40:41] offset:768\nds_write_b64 v23, v[42:43] offset:1280\nds_write_b64 v24, v[44:45] offset:768")
    a("ds_write_b32 v22, v41 offset:1920\nds_write_b32 v22, v43 offset:2176\nds_write_b32 v25, v45 offset:1920")
    a("ds_write_b32 v22, v40 offset:2496\nds_write_b32 v22, v42 offset:2752\nds_write_b32 v25, v44 offset:2496")
    a(f"{Le}:\ns_waitcnt lgkmcnt(0)")

def p1x_fold(a, ph):
    acc = lambda n: ph.vacc + 4*n
    P = lambda r: f"v[{r}:{r+1}]"
    a(f"s_lshr_b32 s{S_T0}, s{S_W4}, 1\ns_and_b32 s{S_T1}, s{S_W4}, 1")
    a(f"s_lshl_b32 s{S_T2}, s{S_T0}, 9\ns_add_u32 s{S_T2}, s{S_T2}, {P1C + 768}\nv_and_b32 v6, 15, v0\nv_lshlrev_b32 v7, 3, v6\nv_add_u32 v7, s{S_T2}, v7")
    a(f"s_lshl_b32 s{S_T2}, s{S_T0}, 8\ns_add_u32 s{S_T2}, s{S_T2}, {P1C + 1920}\nv_and_b32 v8, 0x30, v0\nv_add_u32 v9, s{S_T2}, v8")
    a(f"s_lshl_b32 s{S_T2}, s{S_T1}, 7\ns_add_u32 s{S_T2}, s{S_T2}, {P1C}\nv_add_u32 v8, s{S_T2}, v8\nv_lshlrev_b32 v6, 2, v6\nv_add_u32 v6, s{S_T2}, v6")
    RM, CQ, CK, CV, MV, RV = 16, 28, 36, 44, 48, 68
    for i in range(5): a(f"ds_read_b64 {P(RM+2*i)}, v7 offset:{i*128}")
    for c in range(2): a(f"ds_read_b128 v[{CK+4*c}:{CK+4*c+3}], v8 offset:{256 + c*64}")
    for c in range(2): a(f"ds_read_b128 v[{CQ+4*c}:{CQ+4*c+3}], v8 offset:{c*64}")
    for c in range(2): a(f"ds_read_b32 v{CV+2*c}, v6 offset:{512 + c*64}")
    for i in range(5): a(f"ds_read_b128 v[{MV+4*i}:{MV+4*i+3}], v9 offset:{i*64}")
    a("s_waitcnt lgkmcnt(7)")
    for i in range(5): a(f"ds_read_b128 v[{RV+4*i}:{RV+4*i+3}], v9 offset:{576 + i*64}")
    for i in range(5):
        for c in range(2):
            for h in (0, 2): a(f"v_pk_fma_f32 {P(acc(i*2+c)+h)}, {P(RM+2*i)}, {P(CK+4*c+h)}, {P(acc(i*2+c)+h)} op_sel:[1,0,0] op_sel_hi:[1,1,1] neg_lo:[1,0,0] neg_hi:[1,0,0]")
    for i in range(1, 5):
        for c in range(2):
            for h in (0, 2): a(f"v_pk_fma_f32 {P(acc(20+(i-1)*2+c)+h)}, {P(RM+2*i)}, {P(CQ+4*c+h)}, {P(acc(20+(i-1)*2+c)+h)} op_sel:[1,0,0] op_sel_hi:[1,1,1] neg_lo:[1,0,0] neg_hi:[1,0,0]")
        a(f"v_mul_f32 v{239+i}, 0x3e8293ee, v{RM+2*i}")
    for i in range(5):
        for c in range(2):
            for h in (0, 2): a(f"v_pk_mul_f32 {P(acc(i*2+c)+h)}, {P(acc(i*2+c)+h)}, {P(RM+2*i)} op_sel_hi:[1,0]")
    a("s_waitcnt lgkmcnt(0)")
    for i in range(5):
        for c in range(2):
            for h in (0, 2): a(f"v_pk_fma_f32 {P(acc(10+i*2+c)+h)}, {P(MV+4*i+h)}, {P(CV+2*c)}, {P(acc(10+i*2+c)+h)} op_sel_hi:[1,0,1] neg_lo:[1,0,0] neg_hi:[1,0,0]")
    for i in range(5):
        for c in range(2):
            for h in (0, 2): a(f"v_pk_mul_f32 {P(acc(10+i*2+c)+h)}, {P(acc(10+i*2+c)+h)}, {P(RV+4*i+h)}")

def pf_chunk_setup(a, sk, scb):
    a(f"s_lshl_b32 s{S_T0}, s{sk}, 6\ns_lshl_b32 s{S_T1}, s{S_W4}, 4\ns_add_u32 s{S_T0}, s{S_T0}, s{S_T1}\ns_mul_i32 s{S_T0}, s{S_T0}, 7168\ns_mul_i32 s{S_T1}, s{scb}, 448\ns_add_u32 s{S_T0}, s{S_T0}, s{S_T1}")
    a(f"s_add_u32 s{S_PF}, s{S_W1}, s{S_T0}\ns_addc_u32 s{S_PF+1}, s{S_W1+1}, 0")
def pf_chunk_step(a, extra):
    a(f"s_waitcnt lgkmcnt({15 - 7 - extra})")
    for i in range(7): a(f"s_load_dword s64, s[{S_PF}:{S_PF+1}], {i*64}")
    for i in range(extra): a(f"s_load_dword s64, s[76:77], {i*64}")
    a(f"s_add_u32 s{S_PF}, s{S_PF}, 7168\ns_addc_u32 s{S_PF+1}, s{S_PF+1}, 0")
    if extra: a(f"s_add_u32 s76, s76, {extra*64}\ns_addc_u32 s77, s77, 0")

def p3c_issue(a):
    srd(a, SRD_C, S_WS, 2 << 20, WS_ST)
    srd(a, SRD_D, S_B1, 3584*2)
    a(f"v_lshlrev_b32 v22, 4, v0\ns_lshl_b32 s{S_T0}, s{S_RB}, 14\ns_add_u32 s{S_T0}, s{S_T0}, s{S_LA}")
    for j in range(4): a(f"buffer_load_dwordx4 v[{32+4*j}:{35+4*j}], v22, s[{SRD_C}:{SRD_C+3}], s{S_T0} offen offset:{j*1024} sc1")
    a(f"s_mul_i32 s{S_T0}, s{S_CB}, 224\ns_and_b32 s{S_T1}, s{S_CB}, 1\ns_lshl_b32 s{S_T2}, s{S_T1}, 5\ns_add_u32 s{S_T2}, s{S_T2}, s{S_T0}")
    a(f"s_cmp_eq_u32 s{S_T1}, 0\ns_cselect_b32 s{S_T1}, 0, 192\ns_sub_u32 s{S_T1}, s{S_T0}, s{S_T1}")
    a(f"s_mul_i32 s{S_T0}, s{S_W4}, 14\nv_and_b32 v23, 15, v0\nv_min_u32 v23, 13, v23\nv_add_u32 v23, s{S_T0}, v23\nv_lshlrev_b32 v23, 2, v23")
    a(f"v_cmp_gt_u32 vcc, 192, v23\nv_mov_b32 v24, s{S_T1}\nv_mov_b32 v25, s{S_T2}\nv_cndmask_b32 v24, v24, v25, vcc\nv_add_u32 v24, v24, v23")
    a(f"v_lshrrev_b32 v25, 4, v0\nv_mul_u32_u24 v26, {3584*4}, v25\nv_lshl_add_u32 v26, v24, 2, v26")
    for k in range(4): a(f"s_mov_b32 s{S_T0}, {(1 << 20) + k*4*3584*4}\nbuffer_load_dwordx4 v[{48+4*k}:{51+4*k}], v26, s[{SRD_C}:{SRD_C+3}], s{S_T0} offen sc1")
    a("v_bfe_u32 v25, v0, 4, 1\nv_lshrrev_b32 v26, 5, v0\nv_lshl_add_u32 v25, v26, 1, v25\nv_add_u32 v23, v23, v25\nv_add_u32 v24, v24, v25\nv_lshlrev_b32 v24, 1, v24")
    a(f"buffer_load_ushort v64, v24, s[{SRD_D}:{SRD_D+3}], 0 offen")
    return 9
def allsum3(a, vs, ts):
    for v in vs: a(f"v_add_f32_dpp v{v}, v{v}, v{v} row_ror:8 row_mask:0xf bank_mask:0xf")
    xor16_32_multi(a, vs, ts, "v_add_f32")
def p3c_finish(a, part):
    M = [70, 71, 72, 73]
    V = [80, 81, 82, 83]
    if part == 1: return p3c_finish2(a, M, V)
    a("s_waitcnt vmcnt(0)")
    for t in range(2):
        for r in range(2): a(f"v_add_f32 v{M[2*t+r]}, v{32+8*t+2*r}, v{36+8*t+2*r}")
    fold4(a, 48)
    allsum3(a, M, [74, 75, 76, 77])
    for m in M: a(f"v_mul_f32 v{m}, 0x3a800000, v{m}")
def p3c_finish2(a, M, V):
    a("s_mov_b32 s84, 0x3c800000\ns_mov_b32 s85, 0x42800000")
    for t in range(2):
        for j in range(2):
            for r in range(2): a(f"v_fma_f32 v{32+8*t+4*j+2*r}, v{32+8*t+4*j+2*r}, s84, -v{M[2*t+r]}")
    for t in range(2):
        for j in range(2):
            for r in range(2): a(f"v_mul_f32 v{32+8*t+4*j+2*r}, v{32+8*t+4*j+2*r}, v{32+8*t+4*j+2*r}")
    for t in range(2):
        for j in range(2):
            for r in range(2): a(f"v_fma_f32 v{33+8*t+4*j+2*r}, v{32+8*t+4*j+2*r}, s85, v{33+8*t+4*j+2*r}")
    for t in range(2):
        for r in range(2): a(f"v_add_f32 v{V[2*t+r]}, v{33+8*t+2*r}, v{37+8*t+2*r}")
    a(f"v_lshlrev_b32 v49, 16, v64\nv_lshlrev_b32 v23, 2, v23\nv_add_u32 v23, {P3_CONST + 1024}, v23\nds_write_b32 v23, v48\nds_write_b32 v23, v49 offset:896")
    allsum3(a, V, [74, 75, 76, 77])
    a("v_and_b32 v22, 16, v0\nv_cmp_ne_u32 vcc, 0, v22\nv_and_b32 v22, 32, v0\nv_cmp_ne_u32 s[86:87], 0, v22\ns_nop 0")
    a("v_cndmask_b32 v70, v70, v71, vcc\nv_cndmask_b32 v72, v72, v73, vcc\nv_cndmask_b32 v80, v80, v81, vcc\nv_cndmask_b32 v82, v82, v83, vcc")
    a("v_cndmask_b32 v70, v70, v72, s[86:87]\nv_cndmask_b32 v71, v80, v82, s[86:87]\nv_mul_f32 v71, 0x3a800000, v71")
    ln_scale(a, 70, 71, 72)
    a(f"v_and_b32 v22, 7, v0\nv_lshlrev_b32 v22, 1, v22\nv_bfe_u32 v24, v0, 4, 1\nv_add_u32 v22, v22, v24\nv_lshrrev_b32 v24, 5, v0\nv_lshl_add_u32 v22, v24, 4, v22")
    a(f"s_lshl_b32 s{S_T0}, s{S_W4}, 8\ns_add_u32 s{S_T0}, s{S_T0}, {P3_CONST}\nv_lshlrev_b32 v22, 3, v22\nv_add_u32 v22, s{S_T0}, v22")
    a("v_mul_f32 v73, v70, v71\nv_mov_b32 v72, v71\nds_write_b64 v22, v[72:73]\ns_waitcnt lgkmcnt(0)")

PFN = 37
PFB = 1024*448
def pfe_setup(a):
    a(f"s_lshl_b32 s{S_T0}, s2, 2\ns_add_u32 s{S_T0}, s{S_T0}, s{S_W4}\ns_mul_i32 s73, s{S_T0}, 448\ns_mov_b32 s75, 0\ns_mov_b32 s72, s73")
    a(f"s_mov_b32 s70, s{S_WO}\ns_mov_b32 s71, s{S_WO+1}")
def pfe_try(a, n=2, limit=None):
    L = a.lab('pfs'); T = a.lab('pft')
    if n > 1: a(f"s_mov_b32 s76, {n}\n{T}:")
    a(f"s_getreg_b32 s74, hwreg(HW_REG_IB_STS, 8, 4)\ns_cmp_gt_u32 s74, 8\ns_cbranch_scc1 {L}\ns_cmp_ge_u32 s75, {limit or PFN}\ns_cbranch_scc1 {L}")
    a(f"s_add_u32 s{S_PF}, s70, s72\ns_addc_u32 s{S_PF+1}, s71, 0")
    for i in range(7): a(f"s_load_dword s64, s[{S_PF}:{S_PF+1}], {i*64}")
    a(f"s_add_u32 s75, s75, 1\ns_add_u32 s72, s72, {PFB}")
    a(f"s_cmp_gt_u32 s75, 21\ns_cselect_b32 s74, {7*PFB}, 0\ns_bitcmp1_b32 s75, 0\ns_cselect_b32 s74, {(-8*PFB) & 0xffffffff:#x}, s74\ns_cmp_gt_u32 s75, 21\ns_cselect_b32 s74, s74, 0\ns_add_u32 s72, s72, s74")
    a(f"s_cmp_eq_u32 s75, 4\ns_cselect_b32 s74, {(2 << 20) - 448}, -1\ns_min_u32 s72, s72, s74")
    a(f"s_cmp_eq_u32 s75, 5\ns_cselect_b64 s[70:71], s[{S_W1}:{S_W1+1}], s[70:71]\ns_cselect_b32 s72, s73, s72")
    a(f"s_cmp_eq_u32 s75, 21\ns_cselect_b64 s[70:71], s[{S_W2}:{S_W2+1}], s[70:71]\ns_cselect_b32 s72, s73, s72")
    if n > 1: a(f"s_sub_u32 s76, s76, 1\ns_cmp_lg_u32 s76, 0\ns_cbranch_scc1 {T}")
    a(f"{L}:")
def pf_static(a, ptr, batches):
    a(f"s_lshl_b32 s{S_T0}, s2, 2\ns_add_u32 s{S_T0}, s{S_T0}, s{S_W4}\ns_mul_i32 s{S_T0}, s{S_T0}, 448")
    for b in batches:
        a(f"s_add_u32 s{S_T1}, s{S_T0}, {b*PFB}\ns_add_u32 s{S_PF}, s{ptr}, s{S_T1}\ns_addc_u32 s{S_PF+1}, s{ptr+1}, 0")
        for i in range(7): a(f"s_load_dword s64, s[{S_PF}:{S_PF+1}], {i*64}")

JQ_LDS = 129024
def jm_setup(a, pre, sk):
    a("v_lshrrev_b32 v20, 4, v0\nv_lshlrev_b32 v21, 10, v20\nv_bfe_u32 v22, v0, 2, 2\nv_lshlrev_b32 v22, 7, v22\nv_add_u32 v21, v21, v22")
    a(f"v_and_b32 v22, 3, v0\nv_lshlrev_b32 v22, 3, v22\nv_add_u32 v21, v21, v22\nv_bfe_u32 v22, v0, 3, 2\nv_xor_b32 v22, s{S_W4}, v22\nv_lshlrev_b32 v22, 5, v22")
    a(f"v_add_u32 v40, v21, v22\nv_add_u32 v40, 18432, v40")
    pre()
    for k in range(4): a(f"v_mov_b32 v{44+k}, 0x3f803f80")
    a("v_lshlrev_b32 v41, 12, v20\nv_and_b32 v22, 15, v0\nv_lshl_add_u32 v41, v22, 2, v41\nv_cmp_eq_u32 s[86:87], 1, v20\nv_cmp_eq_u32 s[88:89], 2, v20")
    a(f"v_lshlrev_b32 v22, 4, v22\nv_mul_u32_u24 v42, {3072*4}, v20\nv_add_u32 v42, v42, v22")
    a(f"v_bfe_u32 v23, v0, 4, 1\nv_lshrrev_b32 v24, 5, v0\nv_lshl_add_u32 v23, v24, 1, v23\nv_lshl_add_u32 v43, v23, 2, v22\ns_lshl_b32 s{S_T0}, s{S_W4}, 8\ns_add_u32 s{S_T0}, s{S_T0}, {P1C}\nv_add_u32 v43, s{S_T0}, v43")
    a(f"s_lshl_b32 s{S_T0}, s{S_RB}, 7\ns_sub_u32 s{S_T0}, s{S_T0}, 16")
    a(f"v_add_u32 v22, s{S_T0}, v0\nv_add_u32 v23, 16, v22\nv_cmp_gt_i32 vcc, 0, v22\nv_add_u32 v24, 128, v0\nv_min_u32 v24, 143, v24\nv_cndmask_b32 v23, v22, v23, vcc")
    a(f"v_lshlrev_b32 v49, 3, v23\nv_add_u32 v22, 64, v22\nv_lshlrev_b32 v50, 3, v22\nv_add_u32 v22, s{S_T0}, v24\nv_lshlrev_b32 v51, 3, v22")
    a(f"v_mov_b32 v22, {P1C}\nv_lshl_add_u32 v52, v0, 2, v22\nv_lshl_add_u32 v53, v0, 3, v22\nv_lshl_add_u32 v54, v24, 3, v22\nv_lshl_add_u32 v55, v24, 2, v22")
    a(f"s_mul_i32 s84, s{sk}, {3072*4}\ns_lshl_b32 s91, s{S_CB}, 8\ns_add_u32 s84, s84, s91\ns_lshl_b32 s{S_T0}, s{S_W4}, 6\ns_add_u32 s84, s84, s{S_T0}")
    a(f"s_add_u32 s90, s91, {FL_Q}\ns_lshl_b32 s82, s{sk}, 4\ns_lshl_b32 s{S_T0}, s{S_W4}, 2\ns_add_u32 s82, s82, s{S_T0}\ns_add_u32 s82, s82, s90\ns_add_u32 s91, s91, s{S_LA}")
    srd(a, SRD_D, S_WS, 1 << 20, WS_CQ)
    srd(a, SRD_C, S_WS, 16384, WS_GR)
def jm_issue(a, ph, q):
    a(f"s_mul_i32 s{S_KB}, s{S_RB}, {ph.kb_step}\ns_mov_b32 s{S_LDS}, {JQ_LDS - 18432}")
    emit_stage_loads(a, ph, 'B'); q.push('jm', 6)
def jm_process(a, q, first_use_of_e=False):
    for t in range(3):
        for kb in range(2):
            d = 56 + 8*t + 4*kb
            a(f"ds_read_b64_tr_b16 v[{d}:{d+1}], v40 offset:{t*8192 + kb*4096}\nds_read_b64_tr_b16 v[{d+2}:{d+3}], v40 offset:{t*8192 + kb*4096 + 512}")
    a("s_waitcnt lgkmcnt(0)")
    if first_use_of_e: a(f"s_add_u32 s{S_E}, s{S_E}, 1")
    for kb in range(2):
        for t in range(3):
            d = 56 + 8*t + 4*kb
            a(f"v_mfma_f32_16x16x32_bf16 v[{80+4*t}:{83+4*t}], v[44:47], v[{d}:{d+3}], " + ("0" if kb == 0 else f"v[{80+4*t}:{83+4*t}]"))
    a("s_nop 7\nv_cndmask_b32 v80, v80, v84, s[86:87]\nv_cndmask_b32 v80, v80, v88, s[88:89]")
    a(f"s_mov_b32 exec_hi, 0xffff\nbuffer_store_dword v80, v41, s[{SRD_D}:{SRD_D+3}], s84 offen sc1\ns_mov_b64 exec, -1")
    q.push('jms', 1)
def jm_flag(a, q):
    q.wait('jms')
    flag_set(a, 82, only_wave=None); q.push('jmf', 1)
def jg2_loads(a):
    Lr = a.lab('rows'); Le = a.lab('gend')
    a(f"s_cmp_eq_u32 s{S_W4}, 3\ns_cbranch_scc1 {Lr}")
    a(f"buffer_load_dword v48, v30, s[{SRD_F}:{SRD_F+3}], s90 offen sc1")
    for k in range(4):
        a(f"s_add_u32 s{S_T1}, s91, {k*4*3072*4}\nbuffer_load_dwordx4 v[{56+4*k}:{59+4*k}], v42, s[{SRD_D}:{SRD_D+3}], s{S_T1} offen sc1")
    a(f"s_branch {Le}\n{Lr}:")
    for j in range(3): a(f"buffer_load_dwordx2 v[{56+2*j}:{57+2*j}], v{49+j}, s[{SRD_C}:{SRD_C+3}], 0 offen sc1")
    a(f"{Le}:")
def jg2_issue(a, q):
    jg2_loads(a); q.push('jg', 3)
def jg2_process(a, q):
    q.wait('jg')
    Lc = a.lab('gchk'); Lr = a.lab('grows'); Le = a.lab('gdone'); Lt = a.lab('gretry')
    a(f"s_mov_b32 s83, 0\n{Lc}:\ns_cmp_eq_u32 s{S_W4}, 3\ns_cbranch_scc1 {Lr}")
    a(f"v_cmp_ne_u32 vcc, s{S_E}, v48\ns_cbranch_vccnz {Lt}")
    fold4(a, 56)
    a(f"ds_write_b32 v43, v56\ns_branch {Le}")
    a(f"{Lt}:\ns_add_u32 s83, s83, 1\ns_cmp_gt_u32 s83, 0x8000\ns_cbranch_scc1 {Le}")
    jg2_loads(a)
    a(f"s_waitcnt vmcnt(0)\ns_branch {Lc}")
    a(f"{Lr}:\nv_cmp_ne_u32 vcc, s{S_E}, v57\ns_cbranch_vccnz {Lt}\nv_cmp_ne_u32 vcc, s{S_E}, v59\ns_cbranch_vccnz {Lt}\nv_cmp_ne_u32 vcc, s{S_E}, v61\ns_cbranch_vccnz {Lt}")
    for j in range(3): a(f"v_and_b32 v{64+2*j}, 0xffff0000, v{56+2*j}")
    for j in range(3): a(f"v_rcp_f32 v{64+2*j}, v{64+2*j}")
    for j in range(3): a(f"v_lshlrev_b32 v{65+2*j}, 16, v{56+2*j}")
    a("ds_write_b64 v53, v[64:65] offset:768\nds_write_b64 v53, v[66:67] offset:1280\nds_write_b64 v54, v[68:69] offset:768")
    a("ds_write_b32 v52, v65 offset:1920\nds_write_b32 v52, v67 offset:2176\nds_write_b32 v55, v69 offset:1920")
    a("ds_write_b32 v52, v64 offset:2496\nds_write_b32 v52, v66 offset:2752\nds_write_b32 v55, v68 offset:2496")
    a(f"{Le}:\ns_waitcnt lgkmcnt(0)")

class NoQ:
    def push(self, *x): pass
    def wait(self, *x): pass

def jm_issue_l(a, ph, ldsbase):
    a(f"s_mov_b32 s85, s{S_LDS}\ns_mul_i32 s{S_KB}, s{S_RB}, {ph.kb_step}\ns_mov_b32 s{S_LDS}, {ldsbase}")
    emit_stage_loads(a, ph, 'B')
    a(f"s_mov_b32 s{S_LDS}, s85")
def jm_flag_l(a, n):
    a(f"s_waitcnt vmcnt({n})")
    flag_set(a, 82, only_wave=None)

J3_LDS = 135168
def j3_setup(a, pre, sk):
    tr_lane_part(a, 40, 20, 21, 128, jreg=S_W4)
    a(f"v_add_u32 v40, 16384, v40\ns_and_b32 s{S_T0}, s{S_W4}, 1")
    tr_lane_part(a, 39, 20, 21, 64, jreg=S_T0)
    a(f"v_add_u32 v39, 40960, v39")
    pre()
    a(f"s_and_b32 s{S_T0}, s{S_W4}, 1")
    for k in range(4): a(f"v_mov_b32 v{44+k}, 0x3f803f80")
    a(f"s_mul_i32 s{S_T1}, s{S_CB}, 224\ns_and_b32 s{S_T2}, s{S_CB}, 1\ns_lshl_b32 s{S_T3}, s{S_T2}, 5\ns_add_u32 s{S_T3}, s{S_T3}, s{S_T1}\ns_lshl_b32 s84, s{S_W4}, 4\ns_add_u32 s{S_T3}, s{S_T3}, s84")
    a(f"s_cmp_eq_u32 s{S_T2}, 0\ns_cselect_b32 s{S_T2}, 192, 0\ns_add_u32 s{S_T2}, s{S_T2}, s{S_T1}\ns_lshl_b32 s{S_T0}, s{S_T0}, 4\ns_add_u32 s{S_T2}, s{S_T2}, s{S_T0}")
    a(f"v_lshrrev_b32 v20, 4, v0\nv_lshlrev_b32 v41, 6, v20\nv_add_u32 v41, s{S_T3}, v41\nv_mov_b32 v21, s{S_T2}")
    a("v_cmp_eq_u32 s[86:87], 1, v20\nv_cmp_eq_u32 s[88:89], 2, v20\nv_cmp_eq_u32 s[90:91], 3, v20\nv_and_b32 v22, 15, v0\ns_nop 0\nv_cndmask_b32 v41, v41, v21, s[90:91]\nv_add_lshl_u32 v41, v41, v22, 2")
    a(f"s_mul_i32 s84, s{sk}, {3584*4}\ns_add_u32 s84, s84, {1 << 20}")
    a(f"s_lshl_b32 s83, s{S_CB}, 8\ns_add_u32 s83, s83, {FL_C}\ns_lshl_b32 s82, s{sk}, 4\ns_lshl_b32 s{S_T0}, s{S_W4}, 2\ns_add_u32 s82, s82, s{S_T0}\ns_add_u32 s82, s82, s83")
    srd(a, SRD_C, S_WS, 2 << 20, WS_ST)
    srd(a, SRD_D, S_B1, 3584*2)
    a(f"v_lshlrev_b32 v22, 4, v0\ns_lshl_b32 s80, s{S_RB}, 14\ns_add_u32 s80, s80, s{S_LA}")
    a(f"s_mul_i32 s{S_T0}, s{S_CB}, 224\ns_and_b32 s{S_T1}, s{S_CB}, 1\ns_lshl_b32 s{S_T2}, s{S_T1}, 5\ns_add_u32 s{S_T2}, s{S_T2}, s{S_T0}")
    a(f"s_cmp_eq_u32 s{S_T1}, 0\ns_cselect_b32 s{S_T1}, 0, 192\ns_sub_u32 s{S_T1}, s{S_T0}, s{S_T1}")
    a(f"s_mul_i32 s{S_T0}, s{S_W4}, 14\nv_and_b32 v23, 15, v0\nv_min_u32 v23, 13, v23\nv_add_u32 v23, s{S_T0}, v23\nv_lshlrev_b32 v23, 2, v23")
    a(f"v_cmp_gt_u32 vcc, 192, v23\nv_mov_b32 v24, s{S_T1}\nv_mov_b32 v25, s{S_T2}\nv_cndmask_b32 v24, v24, v25, vcc\nv_add_u32 v24, v24, v23")
    a(f"v_mul_u32_u24 v26, {3584*4}, v20\nv_lshl_add_u32 v26, v24, 2, v26")
    a("v_bfe_u32 v25, v0, 4, 1\nv_lshrrev_b32 v21, 5, v0\nv_lshl_add_u32 v27, v21, 1, v25\nv_add_u32 v23, v23, v27\nv_add_lshl_u32 v24, v24, v27, 1")
    a(f"v_lshlrev_b32 v23, 2, v23\nv_add_u32 v23, {P3_CONST + 1024}, v23")
    a(f"v_and_b32 v27, 7, v0\nv_lshl_add_u32 v27, v27, 1, v25\nv_lshl_add_u32 v27, v21, 4, v27\ns_lshl_b32 s{S_T0}, s{S_W4}, 8\ns_add_u32 s{S_T0}, s{S_T0}, {P3_CONST}\nv_lshlrev_b32 v27, 3, v27\nv_add_u32 v27, s{S_T0}, v27")
    a("v_cmp_ne_u32 s[70:71], 0, v25\nv_cmp_ne_u32 s[72:73], 0, v21")
def j3_process(a):
    for t in range(4):
        for kb in range(2):
            d = 56 + 8*t + 4*kb
            r, o, h = (40, t*8192 + kb*4096, 2048) if t < 3 else (39, kb*2048, 1024)
            a(f"ds_read_b64_tr_b16 v[{d}:{d+1}], v{r} offset:{o}\nds_read_b64_tr_b16 v[{d+2}:{d+3}], v{r} offset:{o + h}")
    a("s_waitcnt lgkmcnt(0)")
    for kb in range(2):
        for t in range(4):
            d = 56 + 8*t + 4*kb
            a(f"v_mfma_f32_16x16x32_bf16 v[{88+4*t}:{91+4*t}], v[44:47], v[{d}:{d+3}], " + ("0" if kb == 0 else f"v[{88+4*t}:{91+4*t}]"))
    a("s_nop 6\nv_cndmask_b32 v88, v88, v92, s[86:87]\nv_cndmask_b32 v88, v88, v96, s[88:89]\nv_cndmask_b32 v88, v88, v100, s[90:91]")
    a(f"buffer_store_dword v88, v41, s[{SRD_C}:{SRD_C+3}], s84 offen sc1")
def j3_cols(a):
    a(f"buffer_load_dword v65, v30, s[{SRD_F}:{SRD_F+3}], s83 offen sc1")
    for k in range(4): a(f"s_mov_b32 s{S_T0}, {(1 << 20) + k*4*3584*4}\nbuffer_load_dwordx4 v[{48+4*k}:{51+4*k}], v26, s[{SRD_C}:{SRD_C+3}], s{S_T0} offen sc1")
def j3_stats(a):
    a(f"buffer_load_dword v66, v30, s[{SRD_F}:{SRD_F+3}], s68 offen sc1")
    for j in range(4): a(f"buffer_load_dwordx4 v[{72+4*j}:{75+4*j}], v22, s[{SRD_C}:{SRD_C+3}], s80 offen offset:{j*1024} sc1")
def j3_issue(a, sflag=False):
    if sflag:
        a(f"s_lshl_b32 s68, s{S_RB}, 8\ns_add_u32 s68, s68, {FL_S}")
        j3_stats(a)
        a(f"buffer_load_ushort v64, v24, s[{SRD_D}:{SRD_D+3}], 0 offen")
        j3_cols(a)
        return 11
    for j in range(4): a(f"buffer_load_dwordx4 v[{72+4*j}:{75+4*j}], v22, s[{SRD_C}:{SRD_C+3}], s80 offen offset:{j*1024} sc1")
    a(f"buffer_load_ushort v64, v24, s[{SRD_D}:{SRD_D+3}], 0 offen")
    j3_cols(a)
    return 10
def j3_finish(a, part, sflag=False):
    B = 72
    M = [88, 89, 90, 91]; V = [96, 97, 98, 99]; T = [92, 93, 94, 95]
    if part == 0:
        a("s_waitcnt vmcnt(0)")
        if sflag:
            Lc = a.lab('s3chk'); Lo = a.lab('s3ok')
            a(f"s_mov_b32 s81, 0\n{Lc}:\nv_cmp_ne_u32 vcc, s{S_E}, v66\ns_cbranch_vccz {Lo}\ns_add_u32 s81, s81, 1\ns_cmp_gt_u32 s81, 0x8000\ns_cbranch_scc1 {Lo}")
            j3_stats(a)
            a(f"s_waitcnt vmcnt(0)\ns_branch {Lc}\n{Lo}:")
        for t in range(2):
            for r in range(2): a(f"v_add_f32 v{M[2*t+r]}, v{B+8*t+2*r}, v{B+4+8*t+2*r}")
        a("s_mov_b32 s84, 0x3c800000\ns_mov_b32 s85, 0x42800000")
        allsum3(a, M, T)
        for m in M: a(f"v_mul_f32 v{m}, 0x3a800000, v{m}")
        return
    Lc = a.lab('c3chk'); Lo = a.lab('c3ok')
    a(f"s_mov_b32 s81, 0\n{Lc}:\nv_cmp_ne_u32 vcc, s{S_E}, v65\ns_cbranch_vccz {Lo}\ns_add_u32 s81, s81, 1\ns_cmp_gt_u32 s81, 0x8000\ns_cbranch_scc1 {Lo}")
    j3_cols(a)
    a(f"s_waitcnt vmcnt(0)\ns_branch {Lc}\n{Lo}:")
    idx = [(t, j, r) for t in range(2) for j in range(2) for r in range(2)]
    for (t, j, r) in idx: a(f"v_fma_f32 v{B+8*t+4*j+2*r}, v{B+8*t+4*j+2*r}, s84, -v{M[2*t+r]}")
    for (t, j, r) in idx: a(f"v_mul_f32 v{B+8*t+4*j+2*r}, v{B+8*t+4*j+2*r}, v{B+8*t+4*j+2*r}")
    for (t, j, r) in idx: a(f"v_fma_f32 v{B+1+8*t+4*j+2*r}, v{B+8*t+4*j+2*r}, s85, v{B+1+8*t+4*j+2*r}")
    for t in range(2):
        for r in range(2): a(f"v_add_f32 v{V[2*t+r]}, v{B+1+8*t+2*r}, v{B+5+8*t+2*r}")
    fold4(a, 48)
    a(f"v_lshlrev_b32 v49, 16, v64\nds_write_b32 v23, v48\nds_write_b32 v23, v49 offset:896")
    allsum3(a, V, T)
    a("v_cndmask_b32 v88, v88, v89, s[70:71]\nv_cndmask_b32 v90, v90, v91, s[70:71]\nv_cndmask_b32 v96, v96, v97, s[70:71]\nv_cndmask_b32 v98, v98, v99, s[70:71]")
    a("v_cndmask_b32 v88, v88, v90, s[72:73]\nv_cndmask_b32 v89, v96, v98, s[72:73]\nv_mul_f32 v89, 0x3a800000, v89")
    ln_scale(a, 88, 89, 90)
    a(f"v_mul_f32 v91, v88, v89\nv_mov_b32 v90, v89\nds_write_b64 v27, v[90:91]")
    a(f"v_mov_b32 v20, {P3_CONST + 2816}\nv_mov_b32 v21, 0\nds_write_b32 v20, v21\nds_write_b32 v20, v21 offset:4\ns_waitcnt lgkmcnt(0)")

def vec_prefetch(a, ptr, first, n, dst):
    srd(a, SRD_A, ptr, 1024*3584*2)
    a(f"s_lshl_b32 s{S_T0}, s2, 2\ns_add_u32 s{S_T0}, s{S_T0}, s{S_W4}\ns_mul_i32 s{S_T0}, s{S_T0}, 7168\ns_add_u32 s{S_T0}, s{S_T0}, {first*1024}\nv_lshlrev_b32 v1, 4, v0")
    for i in range(n): a(f"buffer_load_dwordx4 v[{dst+4*i}:{dst+4*i+3}], v1, s[{SRD_A}:{SRD_A+3}], s{S_T0} offen offset:{i*1024}")

def cs1_issue(a):
    srd(a, SRD_C, S_W1, 1024*3584*2)
    srd(a, SRD_D, S_WS, 1 << 20, WS_CS)
    a(f"v_lshrrev_b32 v22, 3, v0\nv_mul_u32_u24 v22, 7168, v22\nv_and_b32 v23, 7, v0\nv_min_u32 v23, 6, v23\nv_lshlrev_b32 v24, 4, v23\nv_add_u32 v22, v22, v24")
    a(f"s_mul_i32 s{S_T0}, s{S_RB}, {64*7168}\ns_mul_i32 s{S_T1}, s{S_CB}, 448\ns_add_u32 s{S_T0}, s{S_T0}, s{S_T1}\ns_mul_i32 s{S_T1}, s{S_W4}, 112\ns_add_u32 s{S_T0}, s{S_T0}, s{S_T1}")
    for j in range(8):
        a(f"s_add_u32 s{S_T1}, s{S_T0}, {j*8*7168}\nbuffer_load_dwordx4 v[{32+4*j}:{35+4*j}], v22, s[{SRD_C}:{SRD_C+3}], s{S_T1} offen")
def cs1_finish(a, younger):
    a(f"s_mul_i32 s{S_T0}, s{S_RB}, {3584*4}\ns_mul_i32 s{S_T1}, s{S_CB}, 896\ns_add_u32 s{S_T0}, s{S_T0}, s{S_T1}\ns_mul_i32 s{S_T1}, s{S_W4}, 224\ns_add_u32 s{S_T0}, s{S_T0}, s{S_T1}")
    cs_store_voff(a, 23, 23)
    for j in range(8):
        a(f"s_waitcnt vmcnt({7 - j + younger})")
        for x in cs_acc(32, j): a(x)
    for x in cs_fold(): a(x)
    a(f"s_mov_b32 exec_lo, 0x007f007f\ns_mov_b32 exec_hi, 0x007f007f\nbuffer_store_dwordx2 v[64:65], v23, s[{SRD_D}:{SRD_D+3}], s{S_T0} offen sc1\ns_mov_b64 exec, -1")
    a(f"s_lshl_b32 s82, s{S_CB}, 8\ns_lshl_b32 s{S_T0}, s{S_RB}, 4\ns_add_u32 s82, s82, s{S_T0}\ns_lshl_b32 s{S_T0}, s{S_W4}, 2\ns_add_u32 s82, s82, s{S_T0}\ns_add_u32 s82, s82, {FL_C}")
    a(f"v_mov_b32 v240, 0\nv_mov_b32 v241, s{S_E}")
def cs1_flag(a):
    a(f"s_waitcnt vmcnt(0)\ns_mov_b64 exec, 1\nbuffer_store_dword v241, v240, s[{SRD_F}:{SRD_F+3}], s82 offen sc1\ns_mov_b64 exec, -1")

S_RDY = 77
def need_flags(a, mask, p4=False, sleep=0):
    L = a.lab('nd'); K = a.lab('rdy')
    if p4:
        a(f"s_mul_i32 s{S_T1}, s{S_T0}, 294\ns_add_u32 s{S_T2}, s{S_T1}, 147\ns_lshr_b32 s{S_T1}, s{S_T1}, 10\ns_lshr_b32 s{S_T2}, s{S_T2}, 10")
        a(f"s_lshl_b32 s{S_T1}, 1, s{S_T1}\ns_lshl_b32 s{S_T2}, 1, s{S_T2}\ns_or_b32 s{S_T1}, s{S_T1}, s{S_T2}")
    else:
        a(f"s_lshl_b32 s{S_T1}, 1, s{S_T0}")
    a(f"s_andn2_b32 s{S_T2}, s{S_T1}, s{S_RDY}\ns_cbranch_scc0 {K}")
    a(f"s_mov_b64 exec, {mask:#x}\ns_mov_b32 s{S_T3}, 0\n{L}:")
    if sleep: a(f"s_sleep {sleep}")
    a(f"buffer_load_dword v31, v30, s[{SRD_F}:{SRD_F+3}], s{S_FO} offen sc1\ns_add_u32 s{S_T3}, s{S_T3}, 1\ns_waitcnt vmcnt(0)\nv_cmp_eq_u32 vcc, s{S_E}, v31\ns_nop 1")
    a(f"s_cmp_gt_u32 s{S_T3}, 0x20000\ns_cselect_b32 s{S_RDY}, -1, vcc_lo\ns_andn2_b32 s{S_T2}, s{S_T1}, s{S_RDY}\ns_cbranch_scc1 {L}\ns_mov_b64 exec, -1\n{K}:")

def duty_stage(a, ph, sduty, dst):
    L = a.lab('ds'); K = a.lab('dk')
    a(f"s_mov_b32 s{dst}, 0\ns_mov_b64 s[{S_T1}:{S_T1+1}], s[{S_SEQ}:{S_SEQ+1}]\n{L}:\ns_and_b32 s{S_T0}, s{S_T1}, 15\ns_cmp_eq_u32 s{S_T0}, s{sduty}\ns_cbranch_scc1 {K}")
    a(f"s_lshr_b64 s[{S_T1}:{S_T1+1}], s[{S_T1}:{S_T1+1}], 4\ns_add_u32 s{dst}, s{dst}, 1\ns_cmp_lt_u32 s{dst}, 15\ns_cbranch_scc1 {L}\n{K}:")

S_DT = 69
def duty_setup(a, ph, sidx, regs, sflag_base, skrow):
    duty_stage(a, ph, sidx, S_DT)
    a(f"s_mul_i32 s{S_T0}, s{S_DT}, 43\ns_lshr_b32 s{S_T0}, s{S_T0}, 7\ns_mul_i32 s{S_T0}, s{S_T0}, 3\ns_sub_u32 s{S_T0}, s{S_DT}, s{S_T0}\ns_mul_i32 s{S_T0}, s{S_T0}, {ph.stage}")
    for r in regs: a(f"v_add_u32 v{r}, s{S_T0}, v{r}")
    a(f"s_add_u32 s{S_DT}, s{S_DT}, 2\ns_add_u32 s{skrow}, s{sidx}, s{S_XR}\ns_and_b32 s{skrow}, s{skrow}, 15")
def duty_hook(a, process, n):
    L = a.lab('nd1'); M = a.lab('nd2')
    a(f"s_cmp_lg_u32 s{S_T}, s{S_DT}\ns_cbranch_scc1 {L}")
    process()
    a(f"s_branch {M}\n{L}:\ns_add_u32 s{S_T0}, s{S_DT}, 1\ns_cmp_lg_u32 s{S_T}, s{S_T0}\ns_cbranch_scc1 {M}")
    jm_flag_l(a, n)
    a(f"{M}:")

def lp_setup(a):
    a(f"s_lshl_b32 s74, s2, 2\ns_add_u32 s74, s74, s{S_W4}\ns_mul_i32 s74, s74, 448\ns_mov_b32 s75, {8*PFB}")
def lp_step(a, ptr, steps, duty=False):
    if not steps: return
    L = a.lab('lp')
    m = sum(1 << t for t in steps)
    a(f"s_bitcmp1_b32 {m:#x}, s{S_T}\ns_cbranch_scc0 {L}\ns_getreg_b32 s{S_T0}, hwreg(HW_REG_IB_STS, 8, 4)\ns_cmp_gt_u32 s{S_T0}, 8\ns_cbranch_scc1 {L}")
    a(f"s_cmp_ge_u32 s74, {16*PFB}\ns_cbranch_scc1 {L}")
    if duty: a(f"s_add_u32 s{S_T0}, s{S_T}, 1\ns_cmp_eq_u32 s{S_T0}, s{S_DT}\ns_cbranch_scc1 {L}")
    a(f"s_add_u32 s{S_PF}, s{ptr}, s74\ns_addc_u32 s{S_PF+1}, s{ptr+1}, 0")
    a(f"s_load_dwordx2 s[66:67], s[{S_PF}:{S_PF+1}], 60\ns_load_dwordx2 s[66:67], s[{S_PF}:{S_PF+1}], 188\ns_load_dwordx2 s[66:67], s[{S_PF}:{S_PF+1}], 316\ns_load_dword s66, s[{S_PF}:{S_PF+1}], 384")
    a(f"s_add_u32 s74, s74, s75\ns_sub_u32 s75, {PFB}, s75\n{L}:")

def warm_flags(a):
    a(f"s_lshl_b32 s{S_T0}, s2, 2\ns_add_u32 s{S_T0}, s{S_T0}, s{S_W4}\ns_lshl_b32 s{S_T1}, s{S_T0}, 7\ns_add_u32 s{S_T1}, s{S_T1}, {FL_X}\ns_and_b32 s{S_T0}, s{S_T0}, 0x3ff\ns_lshl_b32 s{S_T0}, s{S_T0}, 6")
    a(f"s_load_dword s66, s[{SRD_F}:{SRD_F+1}], s{S_T0}\ns_load_dword s66, s[{SRD_F}:{SRD_F+1}], s{S_T1}")

P2XL = 122880
def p2x_dma(a, thr):
    srd(a, SRD_C, S_X, 2048*1024*2)
    a("v_lshrrev_b32 v20, 3, v0\nv_lshlrev_b32 v20, 11, v20\nv_lshrrev_b32 v21, 4, v0\nv_and_b32 v22, 7, v0\nv_xor_b32 v21, v21, v22\nv_lshl_add_u32 v6, v21, 4, v20\nv_xor_b32 v7, 64, v6")
    a(f"s_lshl_b32 s{S_T0}, s{S_RB}, 18\ns_lshl_b32 s{S_T1}, s{S_W4}, 16\ns_add_u32 s{S_T0}, s{S_T0}, s{S_T1}\ns_lshl_b32 s{S_T1}, s{S_CB}, 7\ns_add_u32 s{S_T0}, s{S_T0}, s{S_T1}")
    for i in range(4):
        a(f"s_add_u32 m0, s{S_LA}, {P2XL + i*1024}\ns_add_u32 s{S_T1}, s{S_T0}, {i*16384}\ns_waitcnt vmcnt({thr})\nbuffer_load_dwordx4 v{6 + (i & 1)}, s[{SRD_C}:{SRD_C+3}], s{S_T1} offen lds")
def p2x_read(a):
    a(f"v_and_b32 v8, 15, v0\nv_lshrrev_b32 v9, 1, v8\nv_lshrrev_b32 v10, 5, v0\nv_xor_b32 v9, v9, v10\nv_lshlrev_b32 v9, 4, v9\nv_lshl_add_u32 v8, v8, 7, v9")
    a(f"v_bfe_u32 v9, v0, 4, 1\nv_lshl_add_u32 v8, v9, 3, v8\ns_lshl_b32 s84, s{S_W4}, 12\ns_add_u32 s84, s84, {P2XL}\nv_add_u32 v8, s84, v8")
    for j in range(1, 4): a(f"v_xor_b32 v{8+j}, {32*j}, v8")
    for i in range(2):
        for j in range(4):
            d = P2_X + 2*(i*4 + j)
            a(f"ds_read_b64 v[{d}:{d+1}], v{8+j} offset:{i*2048}")

import copy
def make_p4t(d, lead=1):
    pa = make_p4(lead); pa.S = 28 - d; pa.wrap = False; pa.aflags = 'sc1'
    pb = copy.copy(pa); pb.name = 'P4b'; pb.S = 2*d; pb.linear = True
    pb.pieces = [x for x in pa.pieces if x[0] == 'A'] + [('B', 16 + i, S_LH, 16384 + i*1024, 0, None) for i in range(2)]
    pb.addr_regs = [2, 4, 5]
    pb.bfr = pa.bfr[:2]
    pb.mm = [m for m in pa.mm if m[2] < 2]
    return pa, pb

def p4t_producer_setup(a, d):
    srd(a, SRD_A, S_WS, 16 << 20, WS_G)
    srd(a, SRD_B, S_W2, 3584*1024*2)
    a(f"s_lshl_b32 s{S_LA}, s{S_W4}, 12\ns_lshl_b32 s{S_LB}, s{S_W4}, 11\ns_lshl_b32 s{S_LH}, s{S_KH}, 13\ns_add_u32 s{S_LH}, s{S_LH}, s{S_LB}")
    a(f"s_lshl_b32 s{S_T0}, s{S_RB}, 3\ns_lshl_b32 s{S_T1}, s{S_W4}, 1\ns_add_u32 s{S_T1}, s{S_T0}, s{S_T1}\ns_mul_i32 s{S_T1}, s{S_T1}, {112*1024}")
    a(f"v_lshlrev_b32 v10, 4, v0\nv_add_u32 v10, s{S_T1}, v10\nv_add_u32 v11, {112*1024}, v10")
    a(f"s_lshl_b32 s{S_T2}, s{S_CB}, 8\ns_lshl_b32 s{S_T0}, s{S_W4}, 15\ns_add_u32 s{S_T2}, s{S_T2}, s{S_T0}")
    dma_b_lane(a, 12, 20, 21, 2048, 128)
    a(f"v_add_u32 v12, s{S_T2}, v12\nv_add_u32 v13, {8*2048}, v12\nv_add_u32 v14, 128, v12\nv_add_u32 v15, 128, v13")
    a(f"s_lshl_b32 s{S_T0}, s{S_KH}, 7\nv_add_u32 v16, s{S_T0}, v12\nv_add_u32 v17, s{S_T0}, v13")
    a(f"s_mul_i32 s{S_XR}, s{S_KH}, {28 + d}\ns_sub_u32 s{S_XR}, s{S_XR}, 1")

def p4t_setup_exchange(a, fbase):
    srd(a, SRD_B, S_WS, 8 << 20, WS_PX)
    srd(a, SRD_A, S_OUT, 2048*1024*2)
    a(f"s_lshl_b32 s{S_T0}, s{S_RB}, 3\ns_add_u32 s{S_T0}, s{S_T0}, s{S_CB}\ns_lshl_b32 s{S_T0}, s{S_T0}, 1\ns_add_u32 s{S_T0}, s{S_T0}, s{S_KH}")
    a(f"s_lshl_b32 s{S_T3}, s{S_T0}, 2\ns_add_u32 s{S_T3}, s{S_T3}, s{S_W4}")
    a(f"s_lshl_b32 s86, s{S_T3}, 13\ns_add_u32 s87, s86, 4096\ns_xor_b32 s88, s86, 0x8000\ns_xor_b32 s89, s87, 0x8000")
    a(f"s_lshl_b32 s90, s{S_T3}, 7\ns_add_u32 s90, s90, {fbase}\ns_xor_b32 s91, s90, 0x200")
    a(f"v_mov_b32 v8, 0\nv_mov_b32 v9, s{S_E}")
    a("v_and_b32 v10, 15, v0\nv_lshlrev_b32 v10, 11, v10\nv_bfe_u32 v11, v0, 4, 1\nv_lshl_add_u32 v10, v11, 5, v10\nv_bfe_u32 v11, v0, 5, 1\nv_lshl_add_u32 v10, v11, 4, v10")
    a(f"s_lshl_b32 s80, s82, 15\ns_lshl_b32 s81, s83, 6\ns_add_u32 s80, s80, s81")

P4_HB, P4_RX = 176, 208
def p4t_extras(a, ph, d, t_flag, t_poll):
    acc = lambda n: ph.vacc + 4*n
    ex = {}
    ex[(0, 1)] = [f"buffer_store_dwordx4 v[{acc(i*4+2+c)}:{acc(i*4+2+c)+3}], v3, s[{SRD_B}:{SRD_B+3}], s{86 + ((i*2+c) >> 2)} offen offset:{((i*2+c) & 3)*1024} sc1" for i in range(4) for c in range(2)]
    hb = ["s_waitcnt vmcnt(8)"]
    for h in range(4): hb += [f"v_lshlrev_b32 v{100+2*h}, 16, v{96+h}", f"v_and_b32 v{101+2*h}, 0xffff0000, v{96+h}"]
    ex[(1, 0)] = hb
    rest = []
    for i in range(4):
        for h in range(4):
            dd = P4_HB + 8*i + 2*h
            rest += [f"v_lshlrev_b32 v{dd}, 16, v{P4_H+4*i+h}", f"v_and_b32 v{dd+1}, 0xffff0000, v{P4_H+4*i+h}", f"v_pk_add_f32 v[{dd}:{dd+1}], v[{dd}:{dd+1}], v[{100+2*h}:{101+2*h}]"]
    slots = [(t, hf) for t in range(1, 2*d) for hf in range(2)][1:5]
    for k, sl in enumerate(slots): ex.setdefault(sl, []).extend(rest[12*k:12*k+12])
    ex.setdefault((t_flag, 0), []).append(f"s_waitcnt vmcnt(0)\ns_mov_b64 exec, 1\nbuffer_store_dword v9, v8, s[{SRD_F}:{SRD_F+3}], s90 offen sc1\ns_mov_b64 exec, -1")
    ex.setdefault((t_poll, 0), []).append(f"buffer_load_dword v12, v8, s[{SRD_F}:{SRD_F+3}], s91 offen sc1")
    L = a.lab('xp')
    chk = [f"s_mov_b32 s81, 0\n{L}:\ns_waitcnt vmcnt(0)\nv_cmp_eq_u32 vcc, s{S_E}, v12\ns_cbranch_vccnz {L}_k\ns_add_u32 s81, s81, 1\ns_cmp_gt_u32 s81, 0x20000\ns_cbranch_scc1 {L}_k\n"
           f"buffer_load_dword v12, v8, s[{SRD_F}:{SRD_F+3}], s91 offen sc1\ns_branch {L}\n{L}_k:"]
    chk += [f"buffer_load_dwordx4 v[{P4_RX+4*n}:{P4_RX+4*n+3}], v3, s[{SRD_B}:{SRD_B+3}], s{88 + (n >> 2)} offen offset:{(n & 3)*1024} sc1" for n in range(8)]
    ex.setdefault((t_poll + 1, 0), []).extend(chk)
    return ex

def p4t_epilogue(a, ph, sf=''):
    acc = lambda n: ph.vacc + 4*n
    P = lambda r: f"v[{r}:{r+1}]"
    a("s_nop 3")
    for i in range(4):
        for k in range(0, 8, 2): a(f"v_pk_add_f32 {P(acc(i*4)+k)}, {P(acc(i*4)+k)}, {P(P4_HB+8*i+k)}")
    for i in range(4):
        a(f"s_waitcnt vmcnt({6 - i})")
        dd = acc(i*4)
        for k in range(0, 8, 2): a(f"v_pk_add_f32 {P(dd+k)}, {P(dd+k)}, {P(P4_RX+8*i+k)}")
        U = 64 + 4*i
        for k in range(4): a(f"v_cvt_pk_bf16_f32 v{U+k}, v{dd+2*k}, v{dd+2*k+1}")
        a(f"s_add_u32 s81, s80, {i*32768}\ns_nop 0\nv_permlane16_swap_b32 v{U}, v{U+2}\nv_permlane16_swap_b32 v{U+1}, v{U+3}")
        a(f"buffer_store_dwordx4 v[{U}:{U+3}], v10, s[{SRD_A}:{SRD_A+3}], s81 offen {sf}")

def p4x_setup(a):
    srd(a, SRD_B, S_WS, 8 << 20, WS_PX)
    srd(a, SRD_A, S_OUT, 2048*1024*2)
    a(f"s_lshl_b32 s{S_T0}, s{S_RB}, 3\ns_add_u32 s{S_T0}, s{S_T0}, s{S_CB}\ns_lshl_b32 s{S_T0}, s{S_T0}, 1\ns_add_u32 s{S_T0}, s{S_T0}, s{S_KH}")
    a(f"s_lshl_b32 s{S_T3}, s{S_T0}, 2\ns_add_u32 s{S_T3}, s{S_T3}, s{S_W4}")
    a(f"s_lshl_b32 s86, s{S_T3}, 13\ns_add_u32 s87, s86, 4096\ns_xor_b32 s88, s86, 0x8000\ns_xor_b32 s89, s87, 0x8000")
    a(f"v_mov_b32 v12, s{S_E}\nv_lshrrev_b32 v13, 8, v12\nv_lshrrev_b32 v14, 16, v12\nv_lshrrev_b32 v15, 24, v12\ns_movk_i32 s90, 0xff\ns_mov_b32 s91, 0x0c0c0400")
    a("v_and_b32 v10, 15, v0\nv_lshlrev_b32 v10, 11, v10\nv_bfe_u32 v11, v0, 4, 1\nv_lshl_add_u32 v10, v11, 5, v10\nv_bfe_u32 v11, v0, 5, 1\nv_lshl_add_u32 v10, v11, 4, v10")
    a(f"s_lshl_b32 s80, s82, 15\ns_lshl_b32 s81, s83, 6\ns_add_u32 s80, s80, s81")

def p4x_epilogue(a, ph, sf='', spin_first=True):
    acc = lambda n: ph.vacc + 4*n
    P = lambda r: f"v[{r}:{r+1}]"
    RX = 24
    for i in range(4):
        for c in range(2):
            n = i*2 + c; s = acc(i*4 + 2 + c)
            for k in range(4): a(f"v_bfi_b32 v{s+k}, s90, v{12+k}, v{s+k}")
            a(f"buffer_store_dwordx4 v[{s}:{s+3}], v3, s[{SRD_B}:{SRD_B+3}], s{86 + (n >> 2)} offen offset:{(n & 3)*1024} sc1")
    a("s_waitcnt vmcnt(8)")
    for h in range(4): a(f"v_lshlrev_b32 v{100+2*h}, 16, v{96+h}\nv_and_b32 v{101+2*h}, 0xffff0000, v{96+h}")
    for i in range(4):
        for h in range(4):
            a(f"v_lshlrev_b32 v{56+2*h}, 16, v{P4_H+4*i+h}\nv_and_b32 v{57+2*h}, 0xffff0000, v{P4_H+4*i+h}")
        for h in range(4): a(f"v_pk_add_f32 {P(56+2*h)}, {P(56+2*h)}, {P(100+2*h)}")
        for h in range(4): a(f"v_pk_add_f32 {P(acc(i*4)+2*h)}, {P(acc(i*4)+2*h)}, {P(56+2*h)}")
    def load(n): a(f"buffer_load_dwordx4 v[{RX+4*n}:{RX+4*n+3}], v3, s[{SRD_B}:{SRD_B+3}], s{88 + (n >> 2)} offen offset:{(n & 3)*1024} sc1")
    def tags(n, first):
        r = RX + 4*n
        a(f"v_perm_b32 v16, v{r+1}, v{r}, s91\nv_perm_b32 v17, v{r+3}, v{r+2}, s91\nv_lshl_or_b32 v16, v17, 16, v16")
        a(f"v_xor_b32 v18, v16, v12" if first else f"v_xor_b32 v16, v16, v12\nv_or_b32 v18, v18, v16")
    L = a.lab('xs'); K = a.lab('xa')
    a("s_mov_b32 s81, 0")
    if not spin_first: a(f"s_branch {K}")
    a(f"{L}:\ns_add_u32 s81, s81, 1\ns_cmp_gt_u32 s81, 0x20000\ns_cbranch_scc1 {K}_x")
    load(7); a("s_waitcnt vmcnt(0)"); tags(7, True)
    a(f"v_cmp_ne_u32 vcc, 0, v18\ns_cbranch_vccnz {L}\n{K}:")
    for n in range(8): load(n)
    for n in range(8):
        a(f"s_waitcnt vmcnt({7-n})"); tags(n, n == 0)
    a(f"v_cmp_ne_u32 vcc, 0, v18\ns_cbranch_vccnz {L}\n{K}_x:")
    for i in range(4):
        dd = acc(i*4)
        for k in range(0, 8, 2): a(f"v_pk_add_f32 {P(dd+k)}, {P(dd+k)}, {P(RX+8*i+k)}")
        U = 64 + 4*i
        for k in range(4): a(f"v_cvt_pk_bf16_f32 v{U+k}, v{dd+2*k}, v{dd+2*k+1}")
        a(f"s_add_u32 s81, s80, {i*32768}\ns_nop 0\nv_permlane16_swap_b32 v{U}, v{U+2}\nv_permlane16_swap_b32 v{U+1}, v{U+3}")
        a(f"buffer_store_dwordx4 v[{U}:{U+3}], v10, s[{SRD_A}:{SRD_A+3}], s81 offen {sf}")

def p4b_setup(a, fbase):
    srd(a, SRD_B, S_WS, 8 << 20, WS_PX)
    srd(a, SRD_A, S_OUT, 2048*1024*2)
    a(f"s_lshl_b32 s{S_T0}, s{S_RB}, 3\ns_add_u32 s{S_T0}, s{S_T0}, s{S_CB}\ns_lshl_b32 s{S_T0}, s{S_T0}, 1\ns_add_u32 s{S_T0}, s{S_T0}, s{S_KH}")
    a(f"s_lshl_b32 s{S_T3}, s{S_T0}, 2\ns_add_u32 s{S_T3}, s{S_T3}, s{S_W4}")
    a(f"s_lshl_b32 s86, s{S_T3}, 12\ns_xor_b32 s88, s86, 0x4000")
    a(f"s_lshl_b32 s90, s{S_T3}, 7\ns_add_u32 s90, s90, {fbase}\ns_xor_b32 s91, s90, 0x200")
    a(f"v_mov_b32 v8, 0\nv_mov_b32 v9, s{S_E}")
    a("v_and_b32 v10, 15, v0\nv_lshlrev_b32 v10, 11, v10\nv_bfe_u32 v11, v0, 4, 1\nv_lshl_add_u32 v10, v11, 5, v10\nv_bfe_u32 v11, v0, 5, 1\nv_lshl_add_u32 v10, v11, 4, v10")
    a(f"s_lshl_b32 s80, s82, 15\ns_lshl_b32 s81, s83, 6\ns_add_u32 s80, s80, s81")

def p4b_epilogue(a, ph, sf=''):
    acc = lambda n: ph.vacc + 4*n
    P = lambda r: f"v[{r}:{r+1}]"
    RX = 24
    for i in range(4):
        s = acc(i*4 + 2)
        for k in range(4): a(f"v_cvt_pk_bf16_f32 v{64+4*i+k}, v{s+2*k}, v{s+2*k+1}")
        a(f"buffer_store_dwordx4 v[{64+4*i}:{67+4*i}], v3, s[{SRD_B}:{SRD_B+3}], s86 offen offset:{i*1024} sc1")
    a("s_waitcnt vmcnt(4)")
    for h in range(4): a(f"v_lshlrev_b32 v{100+2*h}, 16, v{96+h}\nv_and_b32 v{101+2*h}, 0xffff0000, v{96+h}")
    for i in range(4):
        for h in range(4):
            a(f"v_lshlrev_b32 v{56+2*h}, 16, v{P4_H+4*i+h}\nv_and_b32 v{57+2*h}, 0xffff0000, v{P4_H+4*i+h}")
        for h in range(4): a(f"v_pk_add_f32 {P(56+2*h)}, {P(56+2*h)}, {P(100+2*h)}")
        for h in range(4): a(f"v_pk_add_f32 {P(acc(i*4)+2*h)}, {P(acc(i*4)+2*h)}, {P(56+2*h)}")
    L = a.lab('xp')
    a(f"s_waitcnt vmcnt(0)\ns_mov_b64 exec, 1\nbuffer_store_dword v9, v8, s[{SRD_F}:{SRD_F+3}], s90 offen sc1\ns_mov_b32 s81, 0")
    a(f"{L}:\nbuffer_load_dword v12, v8, s[{SRD_F}:{SRD_F+3}], s91 offen sc1\ns_add_u32 s81, s81, 1\ns_cmp_gt_u32 s81, 0x20000\ns_cbranch_scc1 {L}_x\ns_waitcnt vmcnt(0)\nv_cmp_ne_u32 vcc, s{S_E}, v12\ns_cbranch_vccnz {L}\n{L}_x:\ns_mov_b64 exec, -1")
    for n in range(4): a(f"buffer_load_dwordx4 v[{RX+4*n}:{RX+4*n+3}], v3, s[{SRD_B}:{SRD_B+3}], s88 offen offset:{n*1024} sc1")
    for i in range(4):
        a(f"s_waitcnt vmcnt(3)")
        dd = acc(i*4)
        for k in range(4): a(f"v_lshlrev_b32 v{56+2*k}, 16, v{RX+4*i+k}\nv_and_b32 v{57+2*k}, 0xffff0000, v{RX+4*i+k}")
        for k in range(4): a(f"v_pk_add_f32 {P(dd+2*k)}, {P(dd+2*k)}, {P(56+2*k)}")
        U = 64 + 4*i
        for k in range(4): a(f"v_cvt_pk_bf16_f32 v{U+k}, v{dd+2*k}, v{dd+2*k+1}")
        a(f"s_add_u32 s81, s80, {i*32768}\ns_nop 0\nv_permlane16_swap_b32 v{U}, v{U+2}\nv_permlane16_swap_b32 v{U+1}, v{U+3}")
        a(f"buffer_store_dwordx4 v[{U}:{U+3}], v10, s[{SRD_A}:{SRD_A+3}], s81 offen {sf}")

FL_S = 0x8000
def stats_flag_setup(a):
    a(f"s_lshl_b32 s79, s{S_RB}, 8\ns_lshl_b32 s78, s{S_CB}, 4\ns_add_u32 s79, s79, s78\ns_lshl_b32 s78, s{S_W4}, 2\ns_add_u32 s79, s79, s78\ns_add_u32 s79, s79, {FL_S}")
def stats_flag(a):
    a(f"v_mov_b32 v240, 0\nv_mov_b32 v241, s{S_E}\ns_waitcnt vmcnt(0)\ns_mov_b64 exec, 1\nbuffer_store_dword v241, v240, s[{SRD_F}:{SRD_F+3}], s79 offen sc1\ns_mov_b64 exec, -1")

def code_touch(a, at=None):
    L = a.lab('ct'); K = a.lab('pc')
    if at is not None: a(f"s_cmp_lg_u32 s{S_T}, {at}\ns_cbranch_scc1 {L}")
    a(f"s_getpc_b64 s[{S_PF}:{S_PF+1}]\n{K}:\ns_sub_u32 s{S_PF}, s{S_PF}, {K}-KSTART-60\ns_subb_u32 s{S_PF+1}, s{S_PF+1}, 0")
    a(f"s_lshr_b32 s{S_T0}, s2, 3\ns_lshl_b32 s{S_T0}, s{S_T0}, 2\ns_add_u32 s{S_T0}, s{S_T0}, s{S_W4}\ns_lshl_b32 s{S_T0}, s{S_T0}, 7")
    for i in range(3):
        a(f"s_add_u32 s{S_T1}, s{S_T0}, {i*16384}\ns_min_u32 s{S_T1}, s{S_T1}, KEND-KSTART-68\ns_load_dwordx2 s[66:67], s[{S_PF}:{S_PF+1}], s{S_T1}")
    a(f"{L}:")

def p2_kfn(a):
    a(f"s_lshl_b32 s{S_KA}, s{S_T0}, 11\ns_cmp_ge_u32 s{S_T0}, 8\ns_cselect_b32 s{S_T1}, 40960, 0\ns_add_u32 s{S_KA}, s{S_KA}, s{S_T1}\ns_lshl_b32 s{S_KB}, s{S_T0}, 17")

def kb_of_u(a, su, skh8, swhich, dst, t1, t2):
    a(f"s_and_b32 s{t1}, s{su}, 7\ns_add_u32 s{t1}, s{t1}, s{skh8}\ns_mul_i32 s{dst}, s{t1}, 7\ns_and_b32 s{t1}, s{t1}, 1\ns_add_u32 s{dst}, s{dst}, s{t1}")
    a(f"s_lshr_b32 s{t1}, s{su}, 3\ns_add_u32 s{dst}, s{dst}, s{t1}\ns_mul_i32 s{t1}, s{swhich}, 3\ns_add_u32 s{dst}, s{dst}, s{t1}")
    a(f"s_and_b32 s{t1}, s{su}, 3\ns_lshl_b32 s{t1}, s{t1}, 1\ns_add_u32 s{t1}, s{t1}, s{skh8}\ns_mul_i32 s{t1}, s{t1}, 7\ns_add_u32 s{t1}, s{t1}, s{swhich}\ns_add_u32 s{t1}, s{t1}, 6")
    a(f"s_cmp_ge_u32 s{su}, 24\ns_cselect_b32 s{dst}, s{t1}, s{dst}")
def p4_kfn(a):
    kb_of_u(a, S_T0, 80, 81, S_KB, S_T1, S_T2)
    a(f"s_lshl_b32 s{S_KB}, s{S_KB}, 16\ns_lshl_b32 s{S_KA}, s{S_T0}, 11")
def p4l_producer_setup(a):
    srd(a, SRD_A, S_WS, 16 << 20, WS_G)
    srd(a, SRD_B, S_W2, 3584*1024*2)
    a(f"s_lshl_b32 s{S_LA}, s{S_W4}, 12\ns_lshl_b32 s{S_LB}, s{S_W4}, 11\ns_lshl_b32 s80, s{S_KH}, 3\ns_lshr_b32 s81, s{S_W4}, 1")
    a(f"s_lshl_b32 s{S_T0}, s{S_RB}, 3\ns_lshl_b32 s{S_T1}, s{S_W4}, 1\ns_add_u32 s{S_T1}, s{S_T0}, s{S_T1}\ns_mul_i32 s{S_T1}, s{S_T1}, {112*1024}")
    a(f"s_mul_i32 s{S_T0}, s{S_KH}, {56*1024}\ns_add_u32 s{S_T1}, s{S_T1}, s{S_T0}")
    a(f"v_lshlrev_b32 v10, 4, v0\nv_add_u32 v10, s{S_T1}, v10\nv_add_u32 v11, {112*1024}, v10")
    a(f"s_lshl_b32 s{S_T2}, s{S_CB}, 8\ns_and_b32 s{S_T0}, s{S_W4}, 1\ns_lshl_b32 s{S_T0}, s{S_T0}, 15\ns_add_u32 s{S_T2}, s{S_T2}, s{S_T0}")
    dma_b_lane(a, 12, 20, 21, 2048, 128)
    a(f"v_add_u32 v12, s{S_T2}, v12\nv_add_u32 v13, {8*2048}, v12\nv_add_u32 v14, 128, v12\nv_add_u32 v15, 128, v13")
    a(f"v_bfe_u32 v20, v0, 4, 1\nv_and_b32 v27, 15, v0\nv_lshlrev_b32 v27, 2, v27\nv_lshl_add_u32 v27, v20, 11, v27")
def need_flags_l(a):
    L = a.lab('nd'); K = a.lab('rdy')
    a(f"s_and_b32 s{S_T1}, s{S_T0}, 7\ns_add_u32 s{S_T1}, s{S_T1}, s80\ns_cmp_lt_u32 s{S_T0}, 8\ns_cselect_b32 s{S_T2}, 16, 0\ns_add_u32 s{S_T1}, s{S_T1}, s{S_T2}\ns_lshl_b32 s{S_T1}, 1, s{S_T1}")
    a(f"s_and_b32 s{S_T2}, s{S_T0}, 3\ns_lshl_b32 s{S_T2}, s{S_T2}, 1\ns_add_u32 s{S_T2}, s{S_T2}, s80\ns_lshl_b32 s{S_T2}, 3, s{S_T2}\ns_cmp_ge_u32 s{S_T0}, 24\ns_cselect_b32 s{S_T1}, s{S_T2}, s{S_T1}")
    a(f"s_andn2_b32 s{S_T2}, s{S_T1}, s{S_RDY}\ns_cbranch_scc0 {K}")
    a(f"s_mov_b32 exec_hi, 0\ns_mov_b32 s{S_T3}, 0\n{L}:")
    a(f"buffer_load_dword v31, v27, s[{SRD_F}:{SRD_F+3}], s{S_FO} offen sc1\ns_add_u32 s{S_T3}, s{S_T3}, 1\ns_waitcnt vmcnt(0)\nv_cmp_eq_u32 vcc, s{S_E}, v31\ns_nop 1")
    a(f"s_cmp_gt_u32 s{S_T3}, 0x20000\ns_cselect_b32 s{S_RDY}, -1, vcc_lo\ns_andn2_b32 s{S_T2}, s{S_T1}, s{S_RDY}\ns_cbranch_scc1 {L}\ns_mov_b64 exec, -1\n{K}:")

def lw2_setup(a):
    a(f"s_lshl_b32 s{S_T0}, s2, 2\ns_add_u32 s{S_T0}, s{S_T0}, s{S_W4}\ns_and_b32 s74, s{S_T0}, 127\ns_lshl_b32 s74, s74, 9\ns_lshr_b32 s75, s{S_T0}, 9")
    a(f"s_bfe_u32 s60, s{S_T0}, 0x10007\ns_bfe_u32 s61, s{S_T0}, 0x10008\ns_lshl_b32 s61, s61, 3")
def lw2_step(a, steps, duty=False):
    if not steps: return
    L = a.lab('lp')
    m = sum(1 << t for t in steps)
    a(f"s_bitcmp1_b32 {m:#x}, s{S_T}\ns_cbranch_scc0 {L}\ns_getreg_b32 s{S_T0}, hwreg(HW_REG_IB_STS, 8, 4)\ns_cmp_gt_u32 s{S_T0}, 7\ns_cbranch_scc1 {L}")
    a(f"s_cmp_ge_u32 s75, 28\ns_cbranch_scc1 {L}")
    if duty: a(f"s_add_u32 s{S_T0}, s{S_T}, 1\ns_cmp_eq_u32 s{S_T0}, s{S_DT}\ns_cbranch_scc1 {L}")
    kb_of_u(a, 75, 61, 60, S_T0, S_T1, S_T2)
    a(f"s_lshl_b32 s{S_T0}, s{S_T0}, 16\ns_add_u32 s{S_T0}, s{S_T0}, s74\ns_add_u32 s{S_PF}, s{S_W2}, s{S_T0}\ns_addc_u32 s{S_PF+1}, s{S_W2+1}, 0")
    for k in range(4): a(f"s_load_dwordx2 s[66:67], s[{S_PF}:{S_PF+1}], {60 + 128*k}")
    a(f"s_add_u32 s75, s75, 2\n{L}:")

S_NM = 68
def need_mask(a):
    a(f"s_lshl_b32 s{S_NM}, 1, s{S_T0}")
def need_mask_p4(a):
    a(f"s_mul_i32 s{S_T1}, s{S_T0}, 294\ns_add_u32 s{S_T2}, s{S_T1}, 147\ns_lshr_b32 s{S_T1}, s{S_T1}, 10\ns_lshr_b32 s{S_T2}, s{S_T2}, 10")
    a(f"s_lshl_b32 s{S_T1}, 1, s{S_T1}\ns_lshl_b32 s{S_T2}, 1, s{S_T2}\ns_or_b32 s{S_NM}, s{S_T1}, s{S_T2}")
def need_mask_l(a):
    a(f"s_and_b32 s{S_T1}, s{S_T0}, 7\ns_add_u32 s{S_T1}, s{S_T1}, s80\ns_cmp_lt_u32 s{S_T0}, 8\ns_cselect_b32 s{S_T2}, 16, 0\ns_add_u32 s{S_T1}, s{S_T1}, s{S_T2}\ns_lshl_b32 s{S_T1}, 1, s{S_T1}")
    a(f"s_and_b32 s{S_T2}, s{S_T0}, 3\ns_lshl_b32 s{S_T2}, s{S_T2}, 1\ns_add_u32 s{S_T2}, s{S_T2}, s80\ns_lshl_b32 s{S_T2}, 3, s{S_T2}\ns_cmp_ge_u32 s{S_T0}, 24\ns_cselect_b32 s{S_NM}, s{S_T2}, s{S_T1}")
def need_check(a, mask, voff):
    L = a.lab('nd'); K = a.lab('rdy')
    a(f"s_andn2_b32 s{S_T2}, s{S_NM}, s{S_RDY}\ns_cbranch_scc0 {K}")
    a(f"s_mov_b32 exec_lo, {mask:#x}\ns_mov_b32 exec_hi, 0\ns_mov_b32 s{S_T3}, 0\n{L}:")
    a(f"buffer_load_dword v31, v{voff}, s[{SRD_F}:{SRD_F+3}], s{S_FO} offen sc1\ns_add_u32 s{S_T3}, s{S_T3}, 1\ns_waitcnt vmcnt(0)\nv_cmp_eq_u32 vcc, s{S_E}, v31\ns_nop 1")
    a(f"s_cmp_gt_u32 s{S_T3}, 0x20000\ns_cselect_b32 s{S_RDY}, -1, vcc_lo\ns_andn2_b32 s{S_T2}, s{S_NM}, s{S_RDY}\ns_cbranch_scc1 {L}\ns_mov_b64 exec, -1\n{K}:")

def code_touch0(a):
    K = a.lab('pc')
    a(f"s_getpc_b64 s[{S_PF}:{S_PF+1}]\n{K}:\ns_sub_u32 s{S_PF}, s{S_PF}, {K}-KSTART-60\ns_subb_u32 s{S_PF+1}, s{S_PF+1}, 0")
    a(f"s_lshr_b32 s{S_T0}, s2, 3\ns_lshl_b32 s{S_T0}, s{S_T0}, 3\ns_add_u32 s{S_T0}, s{S_T0}, s{S_WAVE}\ns_lshl_b32 s{S_T0}, s{S_T0}, 7")
    for i in range(2):
        a(f"s_add_u32 s{S_T1}, s{S_T0}, {i*32768}\ns_min_u32 s{S_T1}, s{S_T1}, KEND-KSTART-68\ns_load_dwordx2 s[66:67], s[{S_PF}:{S_PF+1}], s{S_T1}")
```

```python
import math

class Asm:
    def __init__(self):
        self.l = []; self.nlab = 0
    def __call__(self, s):
        for x in s.split('\n'):
            x = x.strip()
            if x: self.l.append(('' if x.endswith(':') else '    ') + x)
    def lab(self, base='L'):
        self.nlab += 1
        return f"{base}_{self.nlab}"
    def c(self, s): self.l.append('    ; ' + s)
    def text(self): return '\n'.join(self.l)

def vr(b, n=1): return f"v{b}" if n == 1 else f"v[{b}:{b+n-1}]"
def sr(b, n=1): return f"s{b}" if n == 1 else f"s[{b}:{b+n-1}]"

S_X, S_WQKV, S_WO, S_BX, S_W1, S_B1, S_W2, S_B2, S_OUT, S_DBG, S_WS = 4, 6, 8, 10, 12, 14, 16, 18, 20, 22, 24
S_WAVE = 26
S_W4 = 27
SRD_A, SRD_B, SRD_C, SRD_D = 28, 32, 36, 40
S_RB, S_CB, S_KH, S_ROT = 44, 45, 46, 47
S_T, S_KA, S_KB, S_LDS, S_CNT = 48, 49, 50, 51, 52
S_T0, S_T1, S_T2, S_T3 = 53, 54, 55, 56
S_TIME = 60
WS_BYTES = 268435456

def srd(a, dst, ptr, nbytes, off=0):
    if off:
        a(f"s_add_u32 s{dst}, s{ptr}, {off}\ns_addc_u32 s{dst+1}, s{ptr+1}, 0")
    else:
        a(f"s_mov_b32 s{dst}, s{ptr}\ns_mov_b32 s{dst+1}, s{ptr+1}")
    a(f"s_mov_b32 s{dst+2}, {nbytes}\ns_mov_b32 s{dst+3}, 0x20000")

def prologue(a, done):
    a(f"s_cmp_ge_u32 s2, 256\ns_cbranch_scc1 {done}")
    a("s_load_dwordx16 s[4:19], s[0:1], 0\ns_load_dwordx4 s[20:23], s[0:1], 64\ns_load_dwordx2 s[24:25], s[0:1], 80")
    a(f"v_lshrrev_b32 v1, 6, v0\nv_and_b32 v0, 63, v0\ns_nop 0\nv_readfirstlane_b32 s{S_WAVE}, v1")
    a(f"s_and_b32 s{S_W4}, s{S_WAVE}, 3")

S_SEQ = 100
def lead_seq(S, G, D, r, rot=0):
    out = [None]*S
    for s in range(S):
        if s % G == r:
            p = max(0, s - D)
            while out[p] is not None: p += 1
            out[p] = s
    it = iter([s for s in range(S) if s % G != r])
    for t in range(S):
        if out[t] is None: out[t] = next(it)
    return [(x + rot) % S for x in out]
def seq_setup(a, ph):
    nrot = 2 if getattr(ph, 'rot2', False) else 1
    for k in range(4*nrot):
        q = lead_seq(ph.S, 4, ph.lead, k & 3, (k >> 2)*(ph.S//2))
        if getattr(ph, 'base', None): q = [ph.base[x] for x in q]
        v = 0
        for t, x in enumerate(q):
            if ph.S <= 16: v |= x << (4*t)
            else:
                assert 0 <= x - t + 1 <= 3
                v |= (x - t + 1) << (2*t)
        if k == 0: a(f"s_mov_b32 s{S_SEQ}, {v & 0xffffffff:#x}\ns_mov_b32 s{S_SEQ+1}, {v >> 32:#x}")
        else: a(f"s_cmp_eq_u32 s{S_ROT}, {k}\ns_cselect_b32 s{S_SEQ}, {v & 0xffffffff:#x}, s{S_SEQ}\ns_cselect_b32 s{S_SEQ+1}, {v >> 32:#x}, s{S_SEQ+1}")
S_XR = 65
S_SL = 66
def slice_of_t(a, S, lead, wrap=True):
    if S <= 16:
        a(f"s_lshl_b32 s{S_T0}, s{S_T}, 2\ns_lshr_b64 s[{S_T1}:{S_T1+1}], s[{S_SEQ}:{S_SEQ+1}], s{S_T0}\ns_add_u32 s{S_T0}, s{S_T1}, s{S_XR}\ns_and_b32 s{S_T0}, s{S_T0}, 15")
    else:
        a(f"s_lshl_b32 s{S_T0}, s{S_T}, 1\ns_lshr_b64 s[{S_T1}:{S_T1+1}], s[{S_SEQ}:{S_SEQ+1}], s{S_T0}\ns_and_b32 s{S_T0}, s{S_T1}, 3\ns_add_u32 s{S_T0}, s{S_T0}, s{S_T}\ns_add_u32 s{S_T0}, s{S_T0}, s{S_XR}")
        if wrap: a(f"s_sub_u32 s{S_T1}, s{S_T0}, {S}\ns_min_u32 s{S_T0}, s{S_T0}, s{S_T1}")

class Phase:
    pass

def emit_stage_loads(a, ph, which='AB', throttle=None, fill=None):
    last = [None, False]
    fill = list(fill or []); npc = len([p for p in ph.pieces if p[0] in which]); per = -(-len(fill) // npc)
    for (kind, voff, sldsw, ldsoff, imm, cond) in ph.pieces:
        if kind not in which: continue
        skip = None
        if cond is not None:
            skip = a.lab('skip')
            a(f"s_cmp_ge_u32 s{S_W4}, {cond}\ns_cbranch_scc1 {skip}")
        if ldsoff is not None:
            if last[0] != sldsw or skip or last[1]: a(f"s_add_u32 s{S_T3}, s{S_LDS}, s{sldsw}")
            last[0] = sldsw; last[1] = bool(skip) or bool(fill)
            a(f"s_add_u32 m0, s{S_T3}, {ldsoff}" + ("" if throttle is not None else "\ns_nop 0"))
        if throttle is not None: a(f"s_waitcnt vmcnt({throttle})")
        srdn, sk = (SRD_A, S_KA) if kind == 'A' else (SRD_B, S_KB)
        fl = ph.aflags if kind == 'A' else ph.bflags
        a(f"buffer_load_dwordx4 v{voff}, s[{srdn}:{srdn+3}], s{sk} offen" + (f" offset:{imm}" if imm else "") + (" " + fl if fl else "") + " lds")
        if skip: a(f"{skip}:")
        for x in fill[:per]: a(x)
        fill = fill[per:]

def set_stage_k(a, ph, need=None):
    if getattr(ph, 'linear', False): a(f"s_add_u32 s{S_T0}, s{S_T}, s{S_XR}")
    else: slice_of_t(a, ph.S, ph.lead, getattr(ph, 'wrap', True))
    if need: need[0]()
    if getattr(ph, 'kfn', None): ph.kfn(a)
    else: a(f"s_mul_i32 s{S_KA}, s{S_T0}, {ph.ka_step}\ns_mul_i32 s{S_KB}, s{S_T0}, {ph.kb_step}")

def next_slot(a, ph):
    a(f"s_add_u32 s{S_LDS}, s{S_LDS}, {ph.stage}\ns_cmp_ge_u32 s{S_LDS}, {ph.lds0 + ph.NS*ph.stage}\ns_cselect_b32 s{S_LDS}, {ph.lds0}, s{S_LDS}")

def producer_gemm(a, ph, after_first=None, opt={}):
    seq_setup(a, ph)
    n = ph.nmin
    bar = "" if opt.get('nobar') else "s_barrier"
    a.c(f"--- producer {ph.name}: prologue")
    a(f"s_mov_b32 s{S_T}, 0\ns_mov_b32 s{S_LDS}, {ph.lds0}")
    def stage():
        set_stage_k(a, ph)
        emit_stage_loads(a, ph)
        next_slot(a, ph)
        a(f"s_add_u32 s{S_T}, s{S_T}, 1")
    pre = ph.NS - 1
    for s in range(pre): stage()
    a(f"s_waitcnt vmcnt({min(63, (pre-1)*n)})\ns_barrier")
    stage()
    if after_first: after_first()
    L = a.lab('ploop')
    a(f"{L}:")
    a(f"s_waitcnt vmcnt({min(63, (ph.NS-2)*n)})\n{bar}")
    stage()
    a(f"s_cmp_lt_u32 s{S_T}, {ph.S}\ns_cbranch_scc1 {L}")
    for s in range(ph.S - ph.NS, ph.S - 1):
        left = (ph.S - 1) - (s + 1)
        a(f"s_waitcnt vmcnt({min(63, left*n)})\n{bar}")

def producer_fused(a, ph, handoff, extras=None, nextra=0, finish=None, preA=2, loop_hook=None, thr=6, mid=None, tail=None, peel_hook=None, need=None, PB=None, late=None, first_hook=None, post_seq=None, cont=None, lean=None):
    seq_setup(a, ph)
    if post_seq: post_seq()
    NS, S = ph.NS, ph.S
    nA = sum(1 for p in ph.pieces if p[0] == 'A' and p[5] is None)
    nB = sum(1 for p in ph.pieces if p[0] == 'B' and p[5] is None)
    n = nA + nB
    def issue(t, which, throttle=None):
        a(f"s_mov_b32 s{S_T}, {t}\ns_mov_b32 s{S_LDS}, {ph.lds0 + (t % NS)*ph.stage}")
        set_stage_k(a, ph, (lambda: need[0](a), None) if need and 'A' in which else None)
        if need and 'A' in which: need[1]()
        emit_stage_loads(a, ph, which, throttle)
    a.c(f"--- producer {ph.name}: B prefill")
    PB = NS if PB is None else PB
    late = PB if late is None else late
    for t in range(PB):
        if t == late: mid()
        issue(t, 'B', thr)
    if late >= PB and mid: mid()
    rest = lambda t: ('A', nA) if t < PB else ('AB', n)
    handoff()
    q = []
    def wait(t):
        last = max(i for i, x in enumerate(q) if x[0] == t)
        a(f"s_waitcnt vmcnt({min(63, sum(x[1] for x in q[last+1:]))})")
    for t in range(preA):
        issue(t, rest(t)[0]); q.append((t, rest(t)[1]))
    wait(0); a("s_barrier")
    nxtA = preA
    s = 0
    while True:
        for _ in range(2):
            if nxtA < NS:
                issue(nxtA, rest(nxtA)[0]); q.append((nxtA, rest(nxtA)[1])); nxtA += 1
        if s == 0 and first_hook: first_hook()
        if extras and nxtA >= NS:
            extras(); q.append((-1, nextra)); extras = None
        if s >= NS - 1 and nxtA >= NS: break
        wait(s + 1); a("s_barrier")
        issue(s + NS, 'AB'); q.append((s + NS, n))
        if peel_hook: peel_hook()
        s += 1
    t0 = s + NS
    a(f"s_mov_b32 s{S_T}, {t0}\ns_mov_b32 s{S_LDS}, {ph.lds0 + (t0 % NS)*ph.stage}")
    first = True
    if finish:
        a(f"s_waitcnt vmcnt({min(63, (NS-2)*n)})\ns_barrier")
        set_stage_k(a, ph); emit_stage_loads(a, ph); next_slot(a, ph)
        a(f"s_add_u32 s{S_T}, s{S_T}, 1")
        finish()
    if lean:
        tl, allready, kcalc, looped = lean
        if tl > t0: tight_loop(a, ph, n, need, loop_hook, tl)
        else: set_stage_k(a, ph)
        allready()
        lean_steps(a, ph, n, tl, S - tl, kcalc, looped)
    else:
        tight_loop(a, ph, n, need, loop_hook)
    if cont:
        ph2, switch = cont
        n2 = sum(1 for p in ph2.pieces if p[5] is None)
        switch()
        cnt = [n]*(NS - 1)
        for t in range(ph2.S):
            a(f"s_waitcnt vmcnt({sum(cnt[1:])})\ns_barrier\ns_mov_b32 s{S_T}, {t}")
            set_stage_k(a, ph2, need); emit_stage_loads(a, ph2); next_slot(a, ph2)
            cnt = cnt[1:] + [n2]
        n = n2
    ex = 0
    if tail: ex = tail[0]()
    for s in range(S - NS, S - 1):
        left = (S - 1) - (s + 1)
        a(f"s_waitcnt vmcnt({min(63, left*n + ex)})\ns_barrier")
        k = s - (S - NS) + 1
        if tail and k < len(tail) and tail[k]: ex += tail[k]() or 0
    a("s_barrier")

import re
S_TN, S_KA2, S_KB2, S_MB = 52, 3, 64, 47
def tight_loop(a, ph, n, need=None, hook=None, end=None):
    NS, S = ph.NS, ph.S
    def knext():
        t = Asm(); t.nlab = a.nlab
        sub = (lambda: need[0](t), None) if need else None
        set_stage_k(t, ph, sub)
        a.nlab = t.nlab
        out = []
        for l in t.l:
            l = re.sub(rf"\bs{S_T}\b", f"s{S_TN}", l); l = re.sub(rf"\bs{S_KA}\b", f"s{S_KA2}", l); l = re.sub(rf"\bs{S_KB}\b", f"s{S_KB2}", l)
            out.append(l.strip())
        return out
    set_stage_k(a, ph, (lambda: need[0](a), None) if need else None)
    p0 = ph.pieces[0]
    pre0 = f"s_add_u32 s{S_MB}, s{S_LDS}, s{p0[2]}\ns_add_u32 m0, s{S_MB}, {p0[3]}"
    a(pre0)
    if getattr(ph, 'prio', 0): a(f"s_setprio {ph.prio}")
    L = a.lab('ploop')
    a(f"{L}:\ns_waitcnt vmcnt({min(63, (NS-2)*n)})\ns_barrier")
    if need: need[1]()
    K = [f"s_add_u32 s{S_TN}, s{S_T}, 1"] + knext()
    groups = [p[2] for p in ph.pieces if p[3] is not None]
    lastg = max(i for i, p in enumerate(ph.pieces) if p[3] is not None and (i == 0 or p[2] != [q for q in ph.pieces[:i] if q[3] is not None][-1][2] or p[5] is not None or ph.pieces[i-1][5] is not None))
    npc = len(ph.pieces)
    hook_at = getattr(ph, 'hook_at', 1)
    slots = [i for i in range(npc) if i > hook_at] or [i for i in range(1, npc - 1)]
    per = -(-len(K) // len(slots))
    cur = p0[2]
    for i, (kind, voff, sldsw, ldsoff, imm, cond) in enumerate(ph.pieces):
        skip = None
        if cond is not None:
            skip = a.lab('skip')
            a(f"s_cmp_ge_u32 s{S_W4}, {cond}\ns_cbranch_scc1 {skip}")
        if ldsoff is not None and i:
            if cur != sldsw: a(f"s_add_u32 s{S_MB}, s{S_LDS}, s{sldsw}")
            cur = None if skip else sldsw
            a(f"s_add_u32 m0, s{S_MB}, {ldsoff}")
            if i in slots and K and not skip and not K[0].startswith(('s_cselect', 's_addc')): a(K.pop(0))
            else: a("s_nop 0")
        srdn, sk = (SRD_A, S_KA) if kind == 'A' else (SRD_B, S_KB)
        fl = ph.aflags if kind == 'A' else ph.bflags
        a(f"buffer_load_dwordx4 v{voff}, s[{srdn}:{srdn+3}], s{sk} offen" + (f" offset:{imm}" if imm else "") + (" " + fl if fl else "") + " lds")
        if skip: a(f"{skip}:")
        if i == hook_at and hook:
            if i == npc - 1:
                while K: a(K.pop(0))
            hook()
        if i in slots:
            k = 0
            while K and (k < per - 1 or K[0].startswith(('s_cselect', 's_addc'))):
                a(K.pop(0)); k += 1
    for x in K: a(x)
    next_slot(a, ph)
    a(f"s_mov_b32 s{S_KA}, s{S_KA2}\ns_mov_b32 s{S_KB}, s{S_KB2}\ns_mov_b32 s{S_T}, s{S_TN}")
    a(pre0)
    a(f"s_cmp_lt_u32 s{S_T}, {end or S}\ns_cbranch_scc1 {L}")
    if getattr(ph, 'prio', 0): a("s_setprio 0")

def lean_steps(a, ph, n, t0, nsteps, kcalc, looped):
    NS = ph.NS
    body = NS if NS % 2 == 0 else 2*NS
    regs = [(S_KA, S_KB), (S_KA2, S_KB2)]
    def m0(t, p): return f"s_add_u32 m0, s{p[2]}, {ph.lds0 + (t % NS)*ph.stage + p[3]}"
    def step(t, par, last):
        ka, kb = regs[par]
        K = [] if last else kcalc(*regs[1 - par])
        a(f"s_waitcnt vmcnt({min(63, (NS-2)*n)})\ns_barrier")
        for i, p in enumerate(ph.pieces):
            (kind, voff, sldsw, ldsoff, imm, cond) = p
            assert cond is None
            if ldsoff is not None and i:
                a(m0(t, p))
                if K and not K[0].startswith('s_cselect'): a(K.pop(0))
                else: a("s_nop 0")
            srdn, sk = (SRD_A, ka) if kind == 'A' else (SRD_B, kb)
            fl = ph.aflags if kind == 'A' else ph.bflags
            a(f"buffer_load_dwordx4 v{voff}, s[{srdn}:{srdn+3}], s{sk} offen" + (f" offset:{imm}" if imm else "") + (" " + fl if fl else "") + " lds")
            while K and K[0].startswith('s_cselect'): a(K.pop(0))
        for x in K: a(x)
        if not last: a(m0(t + 1, ph.pieces[0]))
    a(m0(t0, ph.pieces[0]))
    t = t0; par = 0
    if looped:
        reps = (nsteps - 1) // body
        if reps > 1:
            L = a.lab('lean')
            a(f"s_mov_b32 s{S_TN}, {reps}\n{L}:")
            for k in range(body): step(t + k, k & 1, False)
            a(f"s_sub_u32 s{S_TN}, s{S_TN}, 1\ns_cmp_lg_u32 s{S_TN}, 0\ns_cbranch_scc1 {L}")
            t += reps*body
    while t < t0 + nsteps:
        step(t, par, t == t0 + nsteps - 1); t += 1; par ^= 1

class Q:
    def __init__(self, a): self.a = a; self.q = []
    def push(self, tag, n): self.q.append((tag, n))
    def wait(self, tag):
        last = max(i for i, x in enumerate(self.q) if x[0] == tag)
        self.a(f"s_waitcnt vmcnt({min(63, sum(x[1] for x in self.q[last+1:]))})")

def producer_unrolled(a, ph, jobs, pre_first=None, fills={}):
    seq_setup(a, ph)
    NS, S = ph.NS, ph.S
    n = sum(1 for p in ph.pieces if p[5] is None)
    q = Q(a)
    def issue(t, fill=None):
        a(f"s_mov_b32 s{S_T}, {t}\ns_mov_b32 s{S_LDS}, {ph.lds0 + (t % NS)*ph.stage}")
        set_stage_k(a, ph); emit_stage_loads(a, ph, fill=fill); q.push(t, n)
    for t in range(NS - 1): issue(t)
    if pre_first: pre_first()
    q.wait(0); a("s_barrier")
    issue(NS - 1)
    for f in jobs.get(-1, []): f(q)
    for s in range(S - 1):
        q.wait(s + 1); a("s_barrier")
        if s + NS < S: issue(s + NS, fills.get(s))
        else:
            for x in fills.get(s, []): a(x)
        for f in jobs.get(s, []): f(q)
    a("s_barrier")

def cond_jobs(a, jobs):
    for t, f in sorted(jobs.items()):
        L = a.lab('nj')
        a(f"s_cmp_lg_u32 s{S_T}, {t}\ns_cbranch_scc1 {L}")
        f()
        a(f"{L}:")

def producer_first(a, ph, pre_first, loop_hook, tail, peel_hook=None, early1=True, split=None):
    NS, S = ph.NS, ph.S
    n = sum(1 for p in ph.pieces if p[5] is None)
    a(f"s_mov_b32 s{S_T}, 0\ns_mov_b32 s{S_LDS}, {ph.lds0}")
    def stage():
        set_stage_k(a, ph); emit_stage_loads(a, ph); next_slot(a, ph)
    stage(); a(f"s_add_u32 s{S_T}, s{S_T}, 1")
    pre_first()
    if early1:
        stage(); a(f"s_add_u32 s{S_T}, s{S_T}, 1")
        a(f"s_waitcnt vmcnt({n})\ns_barrier")
    else:
        a(f"s_waitcnt vmcnt(0)\ns_barrier")
        stage(); a(f"s_add_u32 s{S_T}, s{S_T}, 1")
    stage()
    if peel_hook: peel_hook()
    a(f"s_add_u32 s{S_T}, s{S_T}, 1")
    if split:
        tight_loop(a, ph, n, None, loop_hook, split[0])
        tight_loop(a, ph, n, None, split[1])
    else: tight_loop(a, ph, n, None, loop_hook)
    ex = (tail[0]() or 0) if tail[0] else 0
    for s in range(S - NS, S - 1):
        left = (S - 1) - (s + 1)
        a(f"s_waitcnt vmcnt({min(63, left*n + ex)})\ns_barrier")
        k = s - (S - NS) + 1
        if k < len(tail) and tail[k]: ex += tail[k]() or 0
    a("s_barrier")

def reads(a, ph, st, kb):
    out = []
    A = []
    for i, e in enumerate(ph.afr):
        d = ph.va[st] + 4*i
        if len(e) == 3: A.append(f"ds_read_b128 {vr(d,4)}, v{e[kb]} offset:{e[2]}")
        else: A.append(f"ds_read_b128 {vr(d,4)}, v{e[0]} offset:{e[1] + kb*ph.a_kb}")
    B = []
    for i, (breg, off, half, kbs) in enumerate(ph.bfr):
        d = ph.vb[st] + 4*i
        B.append(f"ds_read_b64_tr_b16 {vr(d,2)}, v{breg} offset:{off + kb*kbs}")
        B.append(f"ds_read_b64_tr_b16 {vr(d+2,2)}, v{breg} offset:{off + kb*kbs + half}")
    return A + B

def mfmas(ph, st, first=False):
    out = []
    for (acc, ai, bi, swap) in ph.mm:
        A = vr(ph.va[st] + 4*ai, 4); B = vr(ph.vb[st] + 4*bi, 4)
        D = vr(ph.vacc + 4*acc, 4)
        C = "0" if first else D
        x, y = (B, A) if swap else (A, B)
        out.append(f"v_mfma_f32_16x16x32_bf16 {D}, {x}, {y}, {C}")
    return out

def interleave(a, M, R, lead=0, extra=None):
    R = list(R)
    per = max(1, math.ceil(len(R) / max(1, len(M) - lead - ph_tail(M, R))))
    for i, m in enumerate(M):
        a(m)
        if i >= lead:
            for _ in range(per):
                if R: a(R.pop(0))
    for r in R: a(r)

def ph_tail(M, R):
    return min(6, max(0, len(M) - len(R)))

def addr_update(a, ph):
    out = []
    out.append(f"s_add_u32 s{S_LDS}, s{S_LDS}, {ph.stage}")
    out.append(f"s_cmp_ge_u32 s{S_LDS}, {ph.NS*ph.stage}")
    out.append(f"s_cselect_b32 s{S_LDS}, 0, s{S_LDS}")
    out.append(f"s_cselect_b32 s{S_T0}, {(-(ph.NS-1)*ph.stage) & 0xffffffff:#x}, {ph.stage}" if False else f"s_cselect_b32 s{S_T0}, s{S_T1}, s{S_T2}")
    for cur in ph.addr_regs:
        out.append(f"v_add_u32 v{cur}, s{S_T0}, v{cur}")
    return out

def spread(a, M, F, start=0, end=None):
    end = len(M) if end is None else end
    n = max(1, end - start)
    F = list(F); k = 0
    for i, m in enumerate(M):
        a(m)
        if start <= i < end:
            want = ((i - start + 1) * len(F) + n - 1) // n
            while k < want: a(F[k]); k += 1
    while k < len(F): a(F[k]); k += 1

def merge(A, B):
    out = []; i = j = 0
    while i < len(A) or j < len(B):
        if j >= len(B) or (i < len(A) and i*len(B) <= j*len(A)): out.append(A[i]); i += 1
        else: out.append(B[j]); j += 1
    return out

def consumer_gemm(a, ph, opt={}, after_first=None, final_bar=False, sbase=0, after_half=None, cont=None, at_iter=None, last=None):
    a.c(f"--- consumer {ph.name}")
    bar = "" if opt.get('nobar') else "s_barrier"
    tail = opt.get('tail', 6)
    if opt.get('prio'): a(f"s_setprio {opt['prio']}")
    a(f"s_mov_b32 s{S_LDS}, 0\ns_mov_b32 s{S_CNT}, {ph.S - 2}")
    a(f"s_mov_b32 s{S_T1}, {(-(ph.NS-1)*ph.stage) & 0xffffffff:#x}\ns_mov_b32 s{S_T2}, {ph.stage}")
    a("s_barrier")
    if opt.get('stamp'): a("s_memtime s[68:69]")
    stamp(a, sbase + 2)
    for r in reads(a, ph, 0, 0): a(r)
    if after_first: after_first()
    a("s_waitcnt lgkmcnt(0)")
    nm = len(ph.mm)
    xf = opt.get('xf') or (lambda st: [])
    upd = addr_update(a, ph)
    early = opt.get('early', False)
    def half_a(first):
        M = mfmas(ph, 0, first=first)
        R = merge(reads(a, ph, 1, 1), xf(0))
        if early:
            e = max(1, nm - tail - 4)
            spread(a, M[:e], R)
            spread(a, M[e:], upd, 0, max(1, len(M[e:]) - 1))
        else:
            spread(a, M, R, 0, max(1, nm - tail))
    half_a(True)
    if after_half: after_half()
    L = a.lab('cloop')
    if opt.get('align'): a(f".p2align {opt['align']}")
    a(f"{L}:")
    pre = opt.get('pre', 0)
    a("s_waitcnt lgkmcnt(0)")
    M = mfmas(ph, 1)
    for m in M[:pre]: a(m)
    a(bar)
    F = merge(([] if early else upd) + reads(a, ph, 0, 0), xf(1))
    spread(a, M[pre:], F, 0, max(1, nm - pre - tail))
    a(f"s_waitcnt lgkmcnt(0)")
    half_a(False)
    if at_iter:
        K = a.lab('ni')
        a(f"s_cmp_lg_u32 s{S_CNT}, {ph.S - 2 - at_iter[0]}\ns_cbranch_scc1 {K}")
        at_iter[1]()
        a(f"{K}:")
    a(f"s_sub_u32 s{S_CNT}, s{S_CNT}, 1")
    a(f"s_cbranch_scc0 {L}")
    if cont:
        ph2, order_last, ex = cont
        M = order_last(mfmas(ph, 1))
        for t in range(ph2.S):
            a("s_waitcnt lgkmcnt(0)")
            for m in M[:pre]: a(m)
            a("s_barrier")
            spread(a, M[pre:], addr_update(a, ph2) + reads(a, ph2, 0, 0) + ex.get((t, 0), []))
            a("s_waitcnt lgkmcnt(0)")
            spread(a, mfmas(ph2, 0), reads(a, ph2, 1, 1) + ex.get((t, 1), []))
            M = mfmas(ph2, 1)
        ph = ph2
    a("s_waitcnt lgkmcnt(0)")
    M = mfmas(ph, 1)
    if last: M = last[0](M)
    for m in M[:pre]: a(m)
    if final_bar: a("s_barrier")
    spread(a, M[pre:], xf(1) + (last[1] if last else []), 0, max(1, len(M) - pre - (3 if last else 0)))

STAMP = {'on': False}
def stamp(a, i, prod=False):
    if STAMP['on'] and not (prod and STAMP.get('noprod')):
        a(f"s_memrealtime s[92:93]\ns_waitcnt lgkmcnt(0)\nv_writelane_b32 v255, s92, {i}\ns_memtime s[92:93]\ns_waitcnt lgkmcnt(0)\nv_writelane_b32 v255, s92, {32+i}")
def stamp_flush(a, k, ws_tm):
    if STAMP['on']:
        srd(a, SRD_D, S_WS, 4 << 20, ws_tm)
        a(f"s_mov_b64 exec, -1\ns_lshl_b32 s{S_T0}, s2, 11\ns_lshl_b32 s{S_T1}, s{S_WAVE}, 8\ns_add_u32 s{S_T0}, s{S_T0}, s{S_T1}\ns_add_u32 s{S_T0}, s{S_T0}, {k*524288}")
        a(f"v_lshlrev_b32 v254, 2, v0\nbuffer_store_dword v255, v254, s[{SRD_D}:{SRD_D+3}], s{S_T0} offen")

def kernel_desc(name, vg=256, sg=102):
    return f""".p2align 6
.amdhsa_kernel {name}
  .amdhsa_next_free_vgpr {vg}
  .amdhsa_next_free_sgpr {sg}
  .amdhsa_accum_offset {(vg+3)//4*4}
  .amdhsa_group_segment_fixed_size 0
  .amdhsa_kernarg_size 88
  .amdhsa_user_sgpr_count 2
  .amdhsa_user_sgpr_kernarg_segment_ptr 1
  .amdhsa_system_sgpr_workgroup_id_x 1
  .amdhsa_float_denorm_mode_32 3
.end_amdhsa_kernel"""
```

```python
from gcore import *

import os
WS_BASE = int(os.environ.get('WSB', 0)) << 20
WS_XN = WS_BASE + 0
WS_O  = WS_BASE + (4 << 20)
WS_H  = WS_BASE + (8 << 20)
WS_G  = WS_BASE + (12 << 20)
WS_ST = WS_BASE + (28 << 20)
WS_CS = WS_BASE + (29 << 20)
WS_PX = WS_BASE + (32 << 20)
WS_FL = WS_BASE + (48 << 20)
WS_TM = 64 << 20

def map_8x4(a):
    a(f"s_and_b32 s{S_T0}, s2, 1\ns_lshl_b32 s{S_T0}, s{S_T0}, 3\ns_lshr_b32 s{S_T1}, s2, 3\ns_and_b32 s{S_T2}, s{S_T1}, 7\ns_add_u32 s{S_RB}, s{S_T0}, s{S_T2}")
    a(f"s_and_b32 s{S_T0}, s2, 7\ns_lshr_b32 s{S_T0}, s{S_T0}, 1\ns_lshl_b32 s{S_T0}, s{S_T0}, 2\ns_lshr_b32 s{S_T1}, s2, 6\ns_add_u32 s{S_CB}, s{S_T0}, s{S_T1}")
    a(f"s_add_u32 s{S_ROT}, s{S_RB}, s{S_CB}\ns_and_b32 s{S_ROT}, s{S_ROT}, 3")

def tr_lane_part(a, dst, t0, t1, pitch, jreg=None, j=0):
    a(f"v_lshrrev_b32 v{t0}, 2, v0")
    if pitch == 128:
        a(f"v_bfe_u32 v{t1}, v0, 3, 2")
    else:
        a(f"v_bfe_u32 v{t1}, v0, 4, 1")
    if jreg is not None: a(f"v_xor_b32 v{t1}, s{jreg}, v{t1}")
    else: a(f"v_xor_b32 v{t1}, {j}, v{t1}")
    a(f"v_lshlrev_b32 v{t1}, 5, v{t1}")
    a(f"v_lshlrev_b32 v{t0}, {int(math.log2(pitch))}, v{t0}")
    a(f"v_add_u32 v{dst}, v{t0}, v{t1}")
    a(f"v_and_b32 v{t0}, 3, v0\nv_lshlrev_b32 v{t0}, 3, v{t0}\nv_add_u32 v{dst}, v{dst}, v{t0}")

def dma_b_lane(a, dst, t0, t1, ldb, width):
    if width == 128:
        a(f"v_lshrrev_b32 v{t0}, 3, v0\nv_bfe_u32 v{t1}, v0, 4, 2\nv_lshlrev_b32 v{t1}, 1, v{t1}\nv_and_b32 v{dst}, 7, v0")
    else:
        a(f"v_lshrrev_b32 v{t0}, 2, v0\nv_bfe_u32 v{t1}, v0, 4, 1\nv_lshlrev_b32 v{t1}, 1, v{t1}\nv_and_b32 v{dst}, 3, v0")
    a(f"v_xor_b32 v{dst}, v{dst}, v{t1}\nv_lshlrev_b32 v{dst}, 4, v{dst}")
    a(f"v_mul_u32_u24 v{t0}, {ldb}, v{t0}\nv_add_u32 v{dst}, v{dst}, v{t0}")

S_LA, S_LB, S_LH = 57, 58, 59

def make_p3(lead=True, NS=3):
    ph = Phase(); ph.name = 'P3'; ph.S = 16; ph.NS = NS; ph.stage = 45056; ph.lds0 = 0; ph.lead = lead
    ph.ka_step = 2048; ph.kb_step = 64*7168; ph.aflags = ''; ph.bflags = ''
    ph.nmin = 11
    ph.pieces = []
    for i in range(2):
        ph.pieces.append(('A', 10+i, S_LA, i*2048, 0, None))
        ph.pieces.append(('A', 10+i, S_LA, None, 1024, None))
    for t in range(3):
        for i in range(2):
            ph.pieces.append(('B', 12 + t*2 + i, S_LB, 16384 + t*8192 + i*1024, 0, None))
    ph.pieces.append(('B', 18, S_LH, 40960, 0, None))
    ph.addr_regs = list(range(2, 10))
    ph.afr = [(2, 0), (2, 2048), (3, 0), (3, 2048)]
    ph.a_kb = 1024
    ph.bfr = [(4 + (c & 3), (c >> 2)*8192, 2048, 4096) for c in range(6)] + [(8, 0, 1024, 2048), (9, 0, 1024, 2048)]
    ph.va = [16, 32]; ph.vb = [48, 80]; ph.vacc = 112
    ph.mm = [(i*6 + c, i, c, True) for i in range(4) for c in range(6)] + [(24 + i*2 + c, i, 6 + c, True) for i in range(2) for c in range(2)]
    return ph

def p3_producer_setup(a, ph):
    srd(a, SRD_A, S_WS, 4 << 20, WS_H)
    srd(a, SRD_B, S_W1, 1024*3584*2)
    a(f"s_lshl_b32 s{S_LA}, s{S_W4}, 12\ns_lshl_b32 s{S_LB}, s{S_W4}, 11\ns_lshl_b32 s{S_LH}, s{S_W4}, 10")
    a(f"s_lshl_b32 s{S_T0}, s{S_RB}, 3\ns_lshl_b32 s{S_T1}, s{S_W4}, 1\ns_add_u32 s{S_T0}, s{S_T0}, s{S_T1}\ns_lshl_b32 s{S_T0}, s{S_T0}, 15")
    a(f"v_lshlrev_b32 v10, 4, v0\nv_add_u32 v10, s{S_T0}, v10\nv_add_u32 v11, 0x8000, v10")
    a(f"s_mul_i32 s{S_T0}, s{S_CB}, 448\ns_and_b32 s{S_T1}, s{S_CB}, 1\ns_lshl_b32 s{S_T2}, s{S_T1}, 6\ns_add_u32 s{S_T2}, s{S_T2}, s{S_T0}")
    a(f"s_cmp_eq_u32 s{S_T1}, 0\ns_cselect_b32 s{S_T1}, 384, 0\ns_add_u32 s{S_T1}, s{S_T1}, s{S_T0}")
    a(f"s_mul_i32 s{S_T0}, s{S_W4}, {16*7168}\ns_add_u32 s{S_T2}, s{S_T2}, s{S_T0}\ns_add_u32 s{S_T1}, s{S_T1}, s{S_T0}")
    dma_b_lane(a, 12, 20, 21, 7168, 128)
    a(f"v_add_u32 v12, s{S_T2}, v12")
    for t in range(3):
        for i in range(2):
            if t or i: a(f"v_add_u32 v{12+t*2+i}, {t*128 + i*8*7168}, v12")
    dma_b_lane(a, 18, 20, 21, 7168, 64)
    a(f"v_add_u32 v18, s{S_T1}, v18")

def p3_consumer_setup(a, ph):
    a(f"s_lshr_b32 s{S_T0}, s{S_W4}, 1\ns_and_b32 s{S_T1}, s{S_W4}, 1")
    a(f"s_lshl_b32 s{S_T2}, s{S_T0}, 13\ns_lshl_b32 s{S_T3}, s{S_T1}, 12\ns_add_u32 s{S_T3}, s{S_T3}, s{S_T2}")
    if ph.lds0: a(f"s_add_u32 s{S_T3}, s{S_T3}, {ph.lds0}")
    a(f"v_lshlrev_b32 v2, 4, v0\nv_add_u32 v2, s{S_T3}, v2\nv_xor_b32 v3, 0x1000, v2" if ph.lds0 % 8192 == 0 else "ERR")
    for k in range(4):
        a(f"s_lshl_b32 s{S_T2}, s{S_T1}, 1\ns_add_u32 s{S_T2}, s{S_T2}, {k}\ns_and_b32 s{S_T2}, s{S_T2}, 3")
        tr_lane_part(a, 4+k, 10, 11, 128, jreg=S_T2)
        a(f"s_mul_i32 s{S_T2}, s{S_T1}, {8192*(2 if k >= 2 else 1)}\ns_add_u32 s{S_T2}, s{S_T2}, {16384 + ph.lds0}\nv_add_u32 v{4+k}, s{S_T2}, v{4+k}")
    for j in range(2):
        tr_lane_part(a, 8+j, 10, 11, 64, j=j)
        a(f"v_add_u32 v{8+j}, {40960 + ph.lds0}, v{8+j}")

def xor16_32(a, v, t, op):
    a(f"v_mov_b32 v{t}, v{v}\ns_nop 1\nv_permlane16_swap_b32 v{t}, v{v}\ns_nop 0\n{op} v{v}, v{t}, v{v}")
    a(f"v_mov_b32 v{t}, v{v}\ns_nop 1\nv_permlane32_swap_b32 v{t}, v{v}\ns_nop 0\n{op} v{v}, v{t}, v{v}")

def xor16_32_multi(a, vs, ts, op):
    n = len(vs)
    for perm in ('v_permlane16_swap_b32', 'v_permlane32_swap_b32'):
        for v, t in zip(vs, ts): a(f"v_mov_b32 v{t}, v{v}")
        if n < 3: a(f"s_nop {2-n}")
        for v, t in zip(vs, ts): a(f"{perm} v{t}, v{v}")
        for v, t in zip(vs, ts): a(f"{op} v{v}, v{t}, v{v}")

def rbf(a, v):
    a(f"v_cvt_pk_bf16_f32 v{v}, v{v}, v{v}\nv_and_b32 v{v}, 0xffff0000, v{v}")

def ln_scale(a, vmean, vvar, t):
    rbf(a, vmean)
    a(f"v_max_f32 v{vvar}, 0, v{vvar}")
    rbf(a, vvar)
    a(f"v_add_f32 v{vvar}, 0x3727c5ac, v{vvar}")
    rbf(a, vvar)
    a(f"v_sqrt_f32 v{vvar}, v{vvar}\ns_nop 0")
    rbf(a, vvar)
    a(f"v_rcp_f32 v{vvar}, v{vvar}\ns_nop 0")

def tree_sum(a, regs, op="v_add_f32"):
    regs = list(regs)
    while len(regs) > 1:
        nxt = []
        for i in range(0, len(regs) - 1, 2):
            a(f"{op} v{regs[i]}, v{regs[i]}, v{regs[i+1]}"); nxt.append(regs[i])
        if len(regs) % 2: nxt.append(regs[-1])
        regs = nxt
    return regs[0]

def p0_ln(a, sf='', sid=2, lds0=0):
    srd(a, SRD_A, S_X, 2048*1024*2)
    srd(a, SRD_C, S_WS, 4 << 20, WS_XN)
    a(f"v_and_b32 v1, 7, v0\nv_lshlrev_b32 v2, 11, v1\nv_bfe_u32 v3, v0, 5, 1\nv_lshlrev_b32 v3, 6, v3\nv_add_u32 v2, v2, v3")
    a(f"v_bfe_u32 v4, v0, 3, 2\nv_lshlrev_b32 v3, 3, v4\nv_add_u32 v2, v2, v3\ns_lshl_b32 s{S_T0}, s{S_W4}, 9\nv_add_u32 v2, s{S_T0}, v2")
    a(f"s_lshl_b32 s{S_T1}, s{sid}, 14")
    for j in range(4):
        a(f"buffer_load_dwordx2 v[{16+4*j}:{17+4*j}], v2, s[{SRD_A}:{SRD_A+3}], s{S_T1} offen offset:{j*128}")
        a(f"buffer_load_dwordx2 v[{18+4*j}:{19+4*j}], v2, s[{SRD_A}:{SRD_A+3}], s{S_T1} offen offset:{j*128+32}")
    a(f"v_bfe_u32 v3, v0, 5, 1\nv_lshlrev_b32 v3, 10, v3\nv_lshlrev_b32 v4, 8, v4\nv_add_u32 v3, v3, v4\nv_lshlrev_b32 v4, 4, v1\nv_add_u32 v3, v3, v4")
    a(f"s_and_b32 s{S_T2}, s{sid}, 1\ns_lshl_b32 s{S_T2}, s{S_T2}, 7\ns_lshl_b32 s{S_T0}, s{S_W4}, 13\ns_add_u32 s{S_T2}, s{S_T2}, s{S_T0}\nv_add_u32 v3, s{S_T2}, v3")
    a(f"s_lshr_b32 s{S_T2}, s{sid}, 1\ns_lshl_b32 s{S_T2}, s{S_T2}, 15")
    a(f"v_lshlrev_b32 v5, 4, v1\nv_add_u32 v5, {lds0}, v5\ns_lshl_b32 s{S_T0}, s{S_W4}, 2\nv_add_u32 v6, s{S_T0}, v5")
    a("s_waitcnt vmcnt(0)")
    for k in range(16):
        a(f"v_lshlrev_b32 v{32+2*k}, 16, v{16+k}\nv_and_b32 v{33+2*k}, 0xffff0000, v{16+k}")
    for k in range(16): a(f"v_add_f32 v{64+k}, v{32+2*k}, v{33+2*k}")
    tree_sum(a, range(64, 80))
    def wg_reduce(off):
        a("s_nop 1\nv_add_f32_dpp v64, v64, v64 row_ror:8 row_mask:0xf bank_mask:0xf")
        xor16_32(a, 64, 65, "v_add_f32")
        a(f"ds_write_b32 v6, v64 offset:{off}\ns_waitcnt lgkmcnt(0)\ns_barrier\nds_read_b128 v[68:71], v5 offset:{off}\ns_waitcnt lgkmcnt(0)")
        a("v_add_f32 v68, v68, v69\nv_add_f32 v70, v70, v71\nv_add_f32 v68, v68, v70\nv_mul_f32 v68, 0x3a800000, v68")
    wg_reduce(0)
    a("v_mov_b32 v7, v68")
    for k in range(16):
        a(f"v_sub_f32 v80, v{32+2*k}, v7\nv_sub_f32 v81, v{33+2*k}, v7\nv_mul_f32 v{64+k}, v80, v80\nv_fmac_f32 v{64+k}, v81, v81")
    tree_sum(a, range(64, 80))
    wg_reduce(128)
    a("v_mov_b32 v8, v68")
    ln_scale(a, 7, 8, 9)
    for k in range(16):
        a(f"v_sub_f32 v80, v{32+2*k}, v7\nv_sub_f32 v81, v{33+2*k}, v7\nv_cvt_pk_bf16_f32 v82, v80, v81")
        a(f"v_lshlrev_b32 v80, 16, v82\nv_and_b32 v81, 0xffff0000, v82\nv_mul_f32 v80, v80, v8\nv_mul_f32 v81, v81, v8\nv_cvt_pk_bf16_f32 v{16+k}, v80, v81")
    for j in range(4):
        if j == 2: a(f"s_add_u32 s{S_T2}, s{S_T2}, 4096")
        a(f"buffer_store_dwordx4 v[{16+4*j}:{19+4*j}], v3, s[{SRD_C}:{SRD_C+3}], s{S_T2} offen offset:{(j&1)*2048} {sf}")

def p0_colsum(a, lds0, nbar_extra, sf=''):
    srd(a, SRD_B, S_W1, 1024*3584*2)
    srd(a, SRD_D, S_WS, 1 << 20, WS_CS)
    a("v_cmp_le_u32 vcc, 28, v0\nv_subrev_u32 v2, 28, v0\ns_nop 0\nv_cndmask_b32 v2, v0, v2, vcc\nv_cndmask_b32 v3, 0, 1, vcc")
    a(f"v_mul_u32_u24 v4, 7168, v3\nv_lshlrev_b32 v5, 4, v2\nv_add_u32 v4, v4, v5")
    a(f"s_lshr_b32 s{S_T0}, s2, 4\ns_lshl_b32 s{S_T0}, s{S_T0}, 6\ns_lshl_b32 s{S_T1}, s{S_W4}, 4\ns_add_u32 s{S_T0}, s{S_T0}, s{S_T1}\ns_mul_i32 s{S_T0}, s{S_T0}, 7168")
    a(f"s_and_b32 s{S_T1}, s2, 15\ns_mul_i32 s{S_T2}, s{S_T1}, 448\ns_add_u32 s{S_T0}, s{S_T0}, s{S_T2}")
    a("s_mov_b64 exec, 0x00ffffffffffffff" if False else "s_mov_b32 exec_hi, 0x00ffffff")
    for j in range(8):
        a(f"s_add_u32 s{S_T3}, s{S_T0}, {j*2*7168}\nbuffer_load_dwordx4 v[{16+4*j}:{19+4*j}], v4, s[{SRD_B}:{SRD_B+3}], s{S_T3} offen")
    a(f"s_lshl_b32 s{S_T3}, s{S_W4}, 1\nv_add_u32 v6, s{S_T3}, v3\nv_mul_u32_u24 v6, 896, v6\nv_lshlrev_b32 v5, 5, v2\nv_add_u32 v6, v6, v5")
    for j in range(8):
        a(f"s_waitcnt vmcnt({7-j})")
        for k in range(4):
            s = 16 + 4*j + k
            if j == 0:
                a(f"v_lshlrev_b32 v{48+2*k}, 16, v{s}\nv_and_b32 v{49+2*k}, 0xffff0000, v{s}")
            else:
                a(f"v_lshlrev_b32 v56, 16, v{s}\nv_and_b32 v57, 0xffff0000, v{s}\nv_add_f32 v{48+2*k}, v{48+2*k}, v56\nv_add_f32 v{49+2*k}, v{49+2*k}, v57")
    a(f"ds_write_b128 v6, v[48:51] offset:{lds0}\nds_write_b128 v6, v[52:55] offset:{lds0+16}")
    a("s_mov_b64 exec, -1\ns_waitcnt lgkmcnt(0)\ns_barrier")
    a(f"s_mul_i32 s{S_T3}, s{S_W4}, 224\nv_lshlrev_b32 v7, 2, v0\nv_add_u32 v7, s{S_T3}, v7")
    for k in range(8): a(f"ds_read_b32 v{16+k}, v7 offset:{lds0 + k*896}")
    a(f"s_lshr_b32 s{S_T0}, s2, 4\ns_mul_i32 s{S_T0}, s{S_T0}, {3584*4}\ns_mul_i32 s{S_T1}, s{S_T1}, 896\ns_add_u32 s{S_T0}, s{S_T0}, s{S_T1}")
    a("s_waitcnt lgkmcnt(0)")
    tree_sum(a, range(16, 24))
    a(f"s_mov_b32 exec_hi, 0x00ffffff\nbuffer_store_dword v16, v7, s[{SRD_D}:{SRD_D+3}], s{S_T0} offen {sf}\ns_mov_b64 exec, -1")
    for _ in range(nbar_extra): a("s_barrier")

def make_p1(lead=True):
    ph = Phase(); ph.name = 'P1'; ph.S = 16; ph.NS = 3; ph.stage = 43008; ph.lds0 = 0; ph.lead = lead
    ph.ka_step = 2048; ph.kb_step = 64*6144; ph.aflags = ''; ph.bflags = ''
    ph.nmin = 10
    ph.pieces = []
    for i in range(2):
        ph.pieces.append(('A', 10+i, S_LA, 2048 + i*2048, 0, None))
        ph.pieces.append(('A', 10+i, S_LA, None, 1024, None))
    ph.pieces.append(('A', 18, S_LH, 0, 0, 2))
    for t in range(3):
        for i in range(2):
            ph.pieces.append(('B', 12 + t*2 + i, S_LB, 18432 + t*8192 + i*1024, 0, None))
    ph.addr_regs = [2, 4, 5]
    ph.afr = [(2, i*2048) for i in range(5)]
    ph.a_kb = 1024
    ph.bfr = [(4 + c, t*8192, 2048, 4096) for t in range(3) for c in range(2)]
    ph.va = [16, 36]; ph.vb = [56, 80]; ph.vacc = 112
    mm = []
    for i in range(5):
        row = [(i*2 + c, i, 2 + c, True) for c in range(2)] + [(10 + i*2 + c, i, 4 + c, False) for c in range(2)]
        if i: row += [(20 + (i-1)*2 + c, i, c, True) for c in range(2)]
        mm += row if i % 2 == 0 else row[::-1]
    ph.mm = mm
    return ph

def a_frag_voff(a, rts_shift_or_mul, v, extra_sgpr=None):
    pass

def p1_producer_setup(a, ph):
    srd(a, SRD_A, S_WS, 4 << 20, WS_XN)
    srd(a, SRD_B, S_WQKV, 1024*3072*2)
    a(f"s_lshl_b32 s{S_LA}, s{S_W4}, 12\ns_lshl_b32 s{S_LB}, s{S_W4}, 11\ns_lshl_b32 s{S_LH}, s{S_W4}, 10")
    a(f"s_lshl_b32 s{S_T0}, s{S_RB}, 3\ns_lshl_b32 s{S_T1}, s{S_W4}, 1\ns_add_u32 s{S_T1}, s{S_T0}, s{S_T1}\ns_lshl_b32 s{S_T1}, s{S_T1}, 15")
    a(f"v_lshlrev_b32 v18, 4, v0\nv_add_u32 v10, s{S_T1}, v18\nv_add_u32 v11, 0x8000, v10")
    a(f"s_max_u32 s{S_T0}, s{S_T0}, 1\ns_sub_u32 s{S_T0}, s{S_T0}, 1\ns_lshl_b32 s{S_T0}, s{S_T0}, 15\ns_add_u32 s{S_T0}, s{S_T0}, s{S_LH}\nv_add_u32 v18, s{S_T0}, v18")
    a(f"s_lshl_b32 s{S_T2}, s{S_CB}, 7\ns_mul_i32 s{S_T0}, s{S_W4}, {16*6144}\ns_add_u32 s{S_T2}, s{S_T2}, s{S_T0}")
    dma_b_lane(a, 12, 20, 21, 6144, 128)
    a(f"v_add_u32 v12, s{S_T2}, v12")
    for t in range(3):
        for i in range(2):
            if t or i: a(f"v_add_u32 v{12+t*2+i}, {t*2048 + i*8*6144}, v12")

S_MASK = 64

def p1_consumer_setup(a, ph):
    a(f"s_lshr_b32 s{S_T0}, s{S_W4}, 1\ns_and_b32 s{S_T1}, s{S_W4}, 1")
    a(f"s_lshl_b32 s{S_T2}, s{S_T0}, 13\nv_lshlrev_b32 v2, 4, v0\nv_add_u32 v2, s{S_T2}, v2")
    if ph.lds0: a(f"v_add_u32 v2, {ph.lds0}, v2")
    for c in range(2):
        a(f"s_lshl_b32 s{S_T2}, s{S_T1}, 1\ns_add_u32 s{S_T2}, s{S_T2}, {c}")
        tr_lane_part(a, 4+c, 10, 11, 128, jreg=S_T2)
        a(f"v_add_u32 v{4+c}, {18432 + ph.lds0}, v{4+c}")
    a("v_and_b32 v10, 15, v0\nv_lshrrev_b32 v11, 4, v0\nv_lshlrev_b32 v11, 2, v11\nv_sub_u32 v10, v10, v11\nv_mov_b32 v12, 0xf149f2ca")
    for t in range(2):
        for r in range(4):
            a(f"v_add_u32 v11, {(16 if t == 0 else 0) - r}, v10\nv_and_b32 v11, 0xfffffff1, v11\nv_cmp_eq_u32 vcc, 0, v11\ns_nop 1\nv_cndmask_b32 v{224+4*t+r}, v12, 0, vcc")
    a(f"s_lshl_b32 s{S_T2}, s{S_RB}, 1\ns_add_u32 s{S_T2}, s{S_T2}, s{S_T0}\ns_cmp_eq_u32 s{S_T2}, 0\ns_cselect_b64 vcc, -1, 0")
    for r in range(4): a(f"v_cndmask_b32 v{232+r}, v{224+r}, v12, vcc")

def p1_epilogue(a, ph, sf='', fold=False, mid=None, oing=False):
    acc = lambda n: ph.vacc + 4*n
    if oing: srd(a, SRD_C, S_WS, 16 << 20, WS_G)
    else: srd(a, SRD_C, S_WS, 4 << 20, WS_O)
    RTS = 114688 if oing else 32768
    a(f"s_lshr_b32 s{S_T0}, s{S_W4}, 1\ns_and_b32 s{S_T1}, s{S_W4}, 1\ns_lshl_b32 s{S_T2}, s{S_RB}, 1\ns_add_u32 s{S_T2}, s{S_T2}, s{S_T0}")
    a(f"s_mul_i32 s{S_T2}, s{S_T2}, {4*RTS}")
    if oing: a(f"s_cmp_ge_u32 s{S_CB}, 8\ns_cselect_b32 s{S_T3}, 40960, 0\ns_add_u32 s{S_T2}, s{S_T2}, s{S_T3}")
    a(f"s_lshl_b32 s{S_T3}, s{S_CB}, 1\ns_add_u32 s{S_T3}, s{S_T3}, s{S_T1}\ns_lshl_b32 s{S_T3}, s{S_T3}, 10\ns_add_u32 s{S_T2}, s{S_T2}, s{S_T3}")
    a(f"v_lshlrev_b32 v2, 4, v0\ns_mov_b32 s82, 0x3e8293ee\ns_mov_b32 s83, 0x3e8293ee")
    P = lambda r: f"v[{r}:{r+1}]"
    KP, QP, VP = 16, 36, 52
    for i in range(5):
        for c in range(2):
            for h in range(2):
                a(f"v_cvt_pk_bf16_f32 v{KP+4*i+2*c+h}, v{acc(i*2+c)+2*h}, v{acc(i*2+c)+2*h+1}")
        if i:
            for c in range(2):
                for h in range(2):
                    a(f"v_cvt_pk_bf16_f32 v{QP+4*(i-1)+2*c+h}, v{acc(20+(i-1)*2+c)+2*h}, v{acc(20+(i-1)*2+c)+2*h+1}")
    SS = 72
    a("s_nop 1")
    for i in range(1, 5):
        for t in range(2):
            d = SS + 8*(i-1) + 4*t
            a(f"v_mfma_f32_16x16x32_bf16 v[{d}:{d+3}], v[{KP+4*(i-1+t)}:{KP+4*(i-1+t)+3}], v[{QP+4*(i-1)}:{QP+4*(i-1)+3}], v[{(232 if (i == 1 and t == 0) else 224 + 4*t)}:{(232 if (i == 1 and t == 0) else 224 + 4*t) + 3}]")
    for i in range(5):
        for c in range(2):
            for h in range(2):
                a(f"v_cvt_pk_bf16_f32 v{VP+10*c+2*i+h}, v{acc(10+i*2+c)+2*h}, v{acc(10+i*2+c)+2*h+1}")
    if mid: mid()
    MX = [112, 114, 116, 118]; TT = [113, 115, 117, 119]
    for i in range(4):
        b = SS + 8*i
        a(f"v_max3_f32 v{MX[i]}, v{b}, v{b+1}, v{b+2}\nv_max3_f32 v{TT[i]}, v{b+3}, v{b+4}, v{b+5}")
    for i in range(4):
        b = SS + 8*i
        a(f"v_max3_f32 v{MX[i]}, v{MX[i]}, v{b+6}, v{b+7}")
    for i in range(4): a(f"v_max_f32 v{MX[i]}, v{MX[i]}, v{TT[i]}")
    xor16_32_multi(a, MX, TT, "v_max_f32")
    if fold:
        for i in range(4): a(f"v_mul_f32 v{MX[i]}, v{240+i}, v{MX[i]}")
        for k in range(0, 8, 2):
            for i in range(4): a(f"v_pk_fma_f32 {P(SS+8*i+k)}, {P(SS+8*i+k)}, {P(240 + (i & 2))}, {P(MX[i])} op_sel:[0,{i & 1},0] op_sel_hi:[1,{i & 1},0] neg_lo:[0,0,1] neg_hi:[0,0,1]")
    else:
        for i in range(4): a(f"v_mul_f32 v{MX[i]}, s82, v{MX[i]}")
        for k in range(0, 8, 2):
            for i in range(4): a(f"v_pk_fma_f32 {P(SS+8*i+k)}, {P(SS+8*i+k)}, s[82:83], {P(MX[i])} op_sel_hi:[1,1,0] neg_lo:[0,0,1] neg_hi:[0,0,1]")
    for i in range(4):
        for k in range(8): a(f"v_exp_f32 v{SS+8*i+k}, v{SS+8*i+k}")
    W = 136
    for k in range(2):
        for i in range(4): a(f"v_pk_add_f32 {P(W+4*i+2*k)}, {P(SS+8*i+4*k)}, {P(SS+8*i+4*k+2)}")
    for i in range(4): a(f"v_pk_add_f32 {P(W+4*i)}, {P(W+4*i)}, {P(W+4*i+2)}")
    for i in range(4): a(f"v_add_f32 v{MX[i]}, v{W+4*i}, v{W+4*i+1}")
    xor16_32_multi(a, MX, TT, "v_add_f32")
    for i in range(4): a(f"v_rcp_f32 v{MX[i]}, v{MX[i]}")
    PP = 120
    for k in range(0, 8, 2):
        for i in range(4): a(f"v_pk_mul_f32 {P(SS+8*i+k)}, {P(SS+8*i+k)}, {P(MX[i])} op_sel_hi:[1,0]")
    for i in range(4):
        for k in range(4): a(f"v_cvt_pk_bf16_f32 v{PP+4*i+k}, v{SS+8*i+2*k}, v{SS+8*i+2*k+1}")
    OO = 136
    a("s_nop 1")
    for i in range(4):
        for c in range(2):
            d = OO + 8*i + 4*c
            a(f"v_mfma_f32_16x16x32_bf16 v[{d}:{d+3}], v[{VP+10*c+2*i}:{VP+10*c+2*i+3}], v[{PP+4*i}:{PP+4*i+3}], 0")
    a("s_nop 1")
    for i in range(4):
        if i == 3: a("s_nop 1")
        for k in range(4): a(f"v_cvt_pk_bf16_f32 v{SS+4*i+k}, v{OO+8*i+2*k}, v{OO+8*i+2*k+1}")
        a(f"s_add_u32 s{S_T3}, s{S_T2}, {i*RTS}\nbuffer_store_dwordx4 v[{SS+4*i}:{SS+4*i+3}], v2, s[{SRD_C}:{SRD_C+3}], s{S_T3} offen {sf}")

def map_4x8(a):
    a(f"s_and_b32 s{S_T0}, s2, 3\ns_lshl_b32 s{S_T0}, s{S_T0}, 2\ns_lshr_b32 s{S_T1}, s2, 3\ns_and_b32 s{S_T2}, s{S_T1}, 3\ns_add_u32 s{S_RB}, s{S_T0}, s{S_T2}")
    a(f"s_bfe_u32 s{S_T0}, s2, 0x10002\ns_lshl_b32 s{S_T0}, s{S_T0}, 3\ns_lshr_b32 s{S_T1}, s2, 5\ns_add_u32 s{S_CB}, s{S_T0}, s{S_T1}")
    a(f"s_add_u32 s{S_ROT}, s{S_RB}, s{S_CB}\ns_and_b32 s{S_ROT}, s{S_ROT}, 3")

def make_p2(lead=True):
    ph = Phase(); ph.name = 'P2'; ph.S = 16; ph.NS = 4; ph.stage = 24576; ph.lds0 = 0; ph.lead = lead
    ph.ka_step = 2048; ph.kb_step = 64*2048; ph.aflags = ''; ph.bflags = ''
    ph.nmin = 6
    ph.pieces = []
    for i in range(2):
        ph.pieces.append(('A', 10+i, S_LA, i*2048, 0, None))
        ph.pieces.append(('A', 10+i, S_LA, None, 1024, None))
    for i in range(2):
        ph.pieces.append(('B', 12 + i, S_LB, 16384 + i*1024, 0, None))
    ph.addr_regs = [2, 4, 5, 6, 7]
    ph.afr = [(2, 0), (2, 2048)]
    ph.a_kb = 1024
    ph.bfr = [(4 + j, 0, 2048, 4096) for j in range(4)]
    ph.va = [16, 24]; ph.vb = [32, 48]; ph.vacc = 64
    ph.mm = [(j, 0, j, True) for j in range(4)] + [(4 + j, 1, j, True) for j in range(3, -1, -1)]
    return ph

def p2_producer_setup(a, ph, oing=False):
    if oing: srd(a, SRD_A, S_WS, 16 << 20, WS_G)
    else: srd(a, SRD_A, S_WS, 4 << 20, WS_O)
    RTS = 114688 if oing else 32768
    srd(a, SRD_B, S_WO, 1024*1024*2)
    a(f"s_lshl_b32 s{S_LA}, s{S_W4}, 12\ns_lshl_b32 s{S_LB}, s{S_W4}, 11")
    a(f"s_lshl_b32 s{S_T0}, s{S_RB}, 3\ns_lshl_b32 s{S_T1}, s{S_W4}, 1\ns_add_u32 s{S_T1}, s{S_T0}, s{S_T1}\ns_mul_i32 s{S_T1}, s{S_T1}, {RTS}")
    a(f"v_lshlrev_b32 v10, 4, v0\nv_add_u32 v10, s{S_T1}, v10\nv_add_u32 v11, {RTS}, v10")
    a(f"s_lshl_b32 s{S_T2}, s{S_CB}, 7\ns_lshl_b32 s{S_T0}, s{S_W4}, 15\ns_add_u32 s{S_T2}, s{S_T2}, s{S_T0}")
    dma_b_lane(a, 12, 20, 21, 2048, 128)
    a(f"v_add_u32 v12, s{S_T2}, v12\nv_add_u32 v13, {8*2048}, v12")

P2_X = 200
def p2_res_loads(a):
    srd(a, SRD_D, S_X, 2048*1024*2)
    a(f"v_and_b32 v8, 15, v0\nv_lshlrev_b32 v8, 11, v8\nv_lshrrev_b32 v9, 4, v0\nv_lshlrev_b32 v9, 3, v9\nv_add_u32 v8, v8, v9")
    a(f"s_and_b32 s84, s2, 3\ns_lshl_b32 s84, s84, 20\ns_bfe_u32 s85, s2, 0x20003\ns_lshl_b32 s85, s85, 18\ns_add_u32 s84, s84, s85\ns_lshl_b32 s85, s{S_W4}, 16\ns_add_u32 s84, s84, s85")
    a(f"s_bfe_u32 s85, s2, 0x10002\ns_lshl_b32 s85, s85, 10\ns_add_u32 s84, s84, s85\ns_lshr_b32 s85, s2, 5\ns_lshl_b32 s85, s85, 7\ns_add_u32 s84, s84, s85\ns_add_u32 s85, s84, 32768")
    for i in range(2):
        for j in range(4):
            d = P2_X + 2*(i*4 + j)
            a(f"buffer_load_dwordx2 v[{d}:{d+1}], v8, s[{SRD_D}:{SRD_D+3}], s{84+i} offen offset:{j*32}")

def p2_consumer_setup(a, ph, res=True):
    if res: p2_res_loads(a)
    a(f"s_lshl_b32 s{S_T2}, s{S_W4}, 12\nv_lshlrev_b32 v2, 4, v0\nv_add_u32 v2, s{S_T2}, v2")
    if ph.lds0: a(f"v_add_u32 v2, {ph.lds0}, v2")
    for j in range(4):
        tr_lane_part(a, 4+j, 10, 11, 128, j=j)
        a(f"v_add_u32 v{4+j}, {16384 + ph.lds0}, v{4+j}")

def p2_epilogue(a, ph, sf='', before_stats_store=None):
    acc = ph.vacc
    srd(a, SRD_C, S_WS, 4 << 20, WS_H)
    srd(a, SRD_D, S_WS, 1 << 20, WS_ST)
    a(f"s_lshl_b32 s{S_T0}, s{S_RB}, 3\ns_lshl_b32 s{S_T1}, s{S_W4}, 1\ns_add_u32 s{S_T0}, s{S_T0}, s{S_T1}")
    a(f"s_lshl_b32 s{S_T1}, s{S_T0}, 15\ns_lshl_b32 s{S_T2}, s{S_CB}, 11\ns_add_u32 s{S_T1}, s{S_T1}, s{S_T2}\ns_add_u32 s{S_T2}, s{S_T1}, 32768")
    a(f"s_lshl_b32 s{S_T0}, s{S_T0}, 11\ns_lshl_b32 s{S_T3}, s{S_CB}, 7\ns_add_u32 s{S_T0}, s{S_T0}, s{S_T3}")
    a(f"v_lshlrev_b32 v2, 4, v0\nv_lshlrev_b32 v3, 3, v0")
    P = lambda r: f"v[{r}:{r+1}]"
    a("s_waitcnt vmcnt(0)")
    for n in range(16):
        a(f"v_lshlrev_b32 v{112+2*n}, 16, v{P2_X+n}\nv_and_b32 v{113+2*n}, 0xffff0000, v{P2_X+n}")
    for n in range(16): a(f"v_pk_add_f32 {P(acc+2*n)}, {P(acc+2*n)}, {P(112+2*n)}")
    for i in range(2):
        for p in range(2):
            d = 20 + 8*i + 4*p
            for k in range(4):
                s = acc + 16*i + 8*p + 2*k
                a(f"v_cvt_pk_bf16_f32 v{d+k}, v{s}, v{s+1}")
            a(f"buffer_store_dwordx4 v[{d}:{d+3}], v2, s[{SRD_C}:{SRD_C+3}], s{S_T1+i} offen offset:{p*1024} {sf}")
    for k in range(4):
        for i in range(2): a(f"v_pk_add_f32 {P(112+8*i+2*k)}, {P(acc+16*i+4*k)}, {P(acc+16*i+4*k+2)}")
    for k in range(2):
        for i in range(2): a(f"v_pk_add_f32 {P(112+8*i+4*k)}, {P(112+8*i+4*k)}, {P(112+8*i+4*k+2)}")
    for i in range(2): a(f"v_pk_add_f32 {P(112+8*i)}, {P(112+8*i)}, {P(112+8*i+4)}")
    a("v_add_f32 v40, v112, v113\nv_add_f32 v48, v120, v121")
    xor16_32_multi(a, [40, 48], [41, 49], "v_add_f32")
    a("v_mul_f32 v42, 0x3c800000, v40\nv_mul_f32 v50, 0x3c800000, v48")
    for k in range(8):
        for i in range(2): a(f"v_pk_add_f32 {P(acc+16*i+2*k)}, {P(acc+16*i+2*k)}, {P(42+8*i)} op_sel_hi:[1,0] neg_lo:[0,1] neg_hi:[0,1]")
    for k in range(2):
        for i in range(2): a(f"v_pk_mul_f32 {P(112+8*i+2*k)}, {P(acc+16*i+2*k)}, {P(acc+16*i+2*k)}")
    for k in range(2, 8):
        for i in range(2): a(f"v_pk_fma_f32 {P(112+8*i+2*(k&1))}, {P(acc+16*i+2*k)}, {P(acc+16*i+2*k)}, {P(112+8*i+2*(k&1))}")
    for i in range(2): a(f"v_pk_add_f32 {P(112+8*i)}, {P(112+8*i)}, {P(112+8*i+2)}")
    a("v_add_f32 v41, v112, v113\nv_add_f32 v49, v120, v121")
    xor16_32_multi(a, [41, 49], [43, 51], "v_add_f32")
    if before_stats_store: before_stats_store()
    a("s_mov_b64 exec, 0xffff")
    a(f"buffer_store_dwordx2 v[40:41], v3, s[{SRD_D}:{SRD_D+3}], s{S_T0} offen {sf}")
    a(f"buffer_store_dwordx2 v[48:49], v3, s[{SRD_D}:{SRD_D+3}], s{S_T0} offen offset:2048 {sf}")
    a("s_mov_b64 exec, -1")

P3_CONST = 135168
def p3_const_issue(a, lf=''):
    srd(a, SRD_C, S_WS, 2 << 20, WS_ST)
    srd(a, SRD_D, S_B1, 3584*2)
    Lc = a.lab('cols'); Le = a.lab('cend')
    a(f"s_cmp_ge_u32 s{S_W4}, 2\ns_cbranch_scc1 {Lc}")
    a(f"v_lshrrev_b32 v22, 4, v0\nv_lshlrev_b32 v22, 11, v22\nv_and_b32 v23, 15, v0\nv_lshlrev_b32 v23, 3, v23\nv_add_u32 v22, v22, v23")
    a(f"s_lshl_b32 s{S_T0}, s{S_RB}, 14\ns_lshl_b32 s{S_T1}, s{S_W4}, 13\ns_add_u32 s{S_T0}, s{S_T0}, s{S_T1}")
    for c in range(16):
        a(f"buffer_load_dwordx2 v[{32+2*c}:{33+2*c}], v22, s[{SRD_C}:{SRD_C+3}], s{S_T0} offen offset:{c*128} {lf}")
    a(f"s_branch {Le}\n{Lc}:")
    a(f"s_mul_i32 s{S_T0}, s{S_CB}, 224\ns_and_b32 s{S_T1}, s{S_CB}, 1\ns_lshl_b32 s{S_T2}, s{S_T1}, 5\ns_add_u32 s{S_T2}, s{S_T2}, s{S_T0}")
    a(f"s_cmp_eq_u32 s{S_T1}, 0\ns_cselect_b32 s{S_T1}, 0, 192\ns_sub_u32 s{S_T1}, s{S_T0}, s{S_T1}")
    a(f"s_and_b32 s{S_T0}, s{S_W4}, 1\ns_lshl_b32 s{S_T0}, s{S_T0}, 7\nv_lshlrev_b32 v23, 1, v0\nv_add_u32 v23, s{S_T0}, v23\nv_min_u32 v23, 222, v23")
    a(f"v_cmp_gt_u32 vcc, 192, v23\nv_mov_b32 v24, s{S_T1}\nv_mov_b32 v25, s{S_T2}\nv_cndmask_b32 v24, v24, v25, vcc\nv_add_u32 v24, v24, v23")
    a(f"v_lshlrev_b32 v22, 2, v24\nv_lshlrev_b32 v24, 1, v24")
    for c in range(16):
        a(f"s_mov_b32 s{S_T0}, {(1 << 20) + c*3584*4}\nbuffer_load_dwordx2 v[{32+2*c}:{33+2*c}], v22, s[{SRD_C}:{SRD_C+3}], s{S_T0} offen {lf}")
    a(f"buffer_load_dword v64, v24, s[{SRD_D}:{SRD_D+3}], 0 offen")
    a(f"{Le}:")

def p3_const_finish(a):
    Lc = a.lab('cols'); Le = a.lab('cend')
    a(f"s_cmp_ge_u32 s{S_W4}, 2\ns_cbranch_scc1 {Lc}")
    for c in range(8): a(f"v_add_f32 v{70+c}, v{32+4*c}, v{34+4*c}")
    tree_sum(a, range(70, 78))
    a("v_mul_f32 v70, 0x3a800000, v70")
    for c in range(16):
        a(f"v_fma_f32 v{32+2*c}, v{32+2*c}, 0x3c800000, -v70" if False else f"v_mul_f32 v{32+2*c}, 0x3c800000, v{32+2*c}\nv_sub_f32 v{32+2*c}, v{32+2*c}, v70")
    for c in range(16):
        a(f"v_mul_f32 v{32+2*c}, v{32+2*c}, v{32+2*c}\nv_mul_f32 v{32+2*c}, 0x42800000, v{32+2*c}\nv_add_f32 v{33+2*c}, v{33+2*c}, v{32+2*c}")
    tree_sum(a, range(33, 64, 2))
    a("v_mul_f32 v71, 0x3a800000, v33")
    ln_scale(a, 70, 71, 72)
    a(f"v_mul_f32 v73, v70, v71\nv_mov_b32 v72, v71\ns_lshl_b32 s{S_T0}, s{S_W4}, 9\nv_lshlrev_b32 v22, 3, v0\nv_add_u32 v22, s{S_T0}, v22\nv_add_u32 v22, {P3_CONST}, v22")
    a(f"ds_write_b64 v22, v[72:73]\ns_branch {Le}\n{Lc}:")
    tree_sum(a, range(32, 64, 2)); tree_sum(a, range(33, 64, 2))
    a(f"v_lshlrev_b32 v34, 16, v64\nv_and_b32 v35, 0xffff0000, v64\nv_lshlrev_b32 v23, 2, v23\nv_add_u32 v23, {P3_CONST + 1024}, v23")
    a(f"ds_write_b64 v23, v[32:33]\nds_write_b64 v23, v[34:35] offset:896")
    a(f"{Le}:\ns_waitcnt lgkmcnt(0)")

def p3_epilogue(a, ph, sf='', lvl=False, early=None, early_at=8):
    acc = lambda n: ph.vacc + 4*n
    srd(a, SRD_C, S_WS, 16 << 20, WS_G)
    a(f"s_lshr_b32 s{S_T0}, s{S_W4}, 1\ns_and_b32 s{S_T1}, s{S_W4}, 1")
    a(f"s_lshl_b32 s{S_T2}, s{S_T0}, 9\ns_lshl_b32 s{S_T3}, s{S_T1}, 8\ns_add_u32 s{S_T2}, s{S_T2}, s{S_T3}\ns_add_u32 s{S_T2}, s{S_T2}, {P3_CONST}")
    a(f"v_and_b32 v2, 15, v0\nv_lshlrev_b32 v2, 3, v2\nv_add_u32 v2, s{S_T2}, v2\nv_xor_b32 v3, 0x100, v2")
    for i in range(4): a(f"ds_read_b64 v[{8+2*i}:{9+2*i}], v{2 + (i >> 1)} offset:{(i & 1)*128}")
    a(f"s_mul_i32 s{S_T2}, s{S_T1}, 384\ns_add_u32 s{S_T2}, s{S_T2}, {P3_CONST + 1024}\nv_and_b32 v5, 0x30, v0\nv_add_u32 v4, s{S_T2}, v5\nv_add_u32 v5, {P3_CONST + 1024 + 768}, v5")
    CS, BB = 16, 48
    for c in range(8):
        r, o = (4, c*64) if c < 6 else (5, (c-6)*64)
        a(f"ds_read_b128 v[{CS+4*c}:{CS+4*c+3}], v{r} offset:{o}\nds_read_b128 v[{BB+4*c}:{BB+4*c+3}], v{r} offset:{o+896}")
    a(f"s_lshl_b32 s{S_T2}, s{S_RB}, 3\ns_lshl_b32 s{S_T3}, s{S_T0}, 2\ns_add_u32 s{S_T2}, s{S_T2}, s{S_T3}\ns_lshl_b32 s{S_T3}, s{S_T1}, 1")
    for i in range(4):
        a(f"s_xor_b32 s{84+i}, s{S_T3}, {i}\ns_add_u32 s{84+i}, s{84+i}, s{S_T2}\ns_mul_i32 s{84+i}, s{84+i}, {112*1024}")
    if lvl:
        a(f"s_lshr_b32 s{S_T2}, s{S_CB}, 3\ns_mul_i32 s{S_T2}, s{S_T2}, {28*2048}\ns_and_b32 s{S_T3}, s{S_CB}, 7\ns_lshl_b32 s89, s{S_T3}, 10\ns_add_u32 s89, s89, s{S_T2}\ns_add_u32 s89, s89, {24*2048}")
        a(f"s_lshl_b32 s88, s{S_T3}, 11\ns_add_u32 s88, s88, s{S_T2}\ns_lshl_b32 s{S_T3}, s{S_T1}, 10\ns_add_u32 s88, s88, s{S_T3}")
    else:
        a(f"s_mul_i32 s{S_T2}, s{S_CB}, 7\ns_and_b32 s{S_T3}, s{S_CB}, 1\ns_mul_i32 s88, s{S_T1}, 3\ns_add_u32 s88, s88, s{S_T2}\ns_add_u32 s88, s88, s{S_T3}\ns_lshl_b32 s88, s88, 10")
        a(f"s_cmp_eq_u32 s{S_T3}, 0\ns_cselect_b32 s89, 6, 0\ns_add_u32 s89, s89, s{S_T2}\ns_lshl_b32 s89, s89, 10")
    a(f"v_lshlrev_b32 v6, 4, v0\nv_add_u32 v7, s89, v6\nv_add_u32 v6, s88, v6")
    k2 = -2.0*0.7978845608028654*1.4426950408889634
    import struct
    f2h = lambda x: struct.unpack('<I', struct.pack('<f', x))[0]
    KK, ONE = 224, 226
    a(f"v_mov_b32 v{KK}, {f2h(k2*0.044715):#x}\nv_mov_b32 v{KK+1}, {f2h(k2):#x}\nv_mov_b32 v{ONE}, 1.0\nv_mov_b32 v{ONE+1}, 1.0")
    a("s_waitcnt lgkmcnt(0)")
    units = [(i, p) for p in range(3) for i in range(4)] + [(0, 3), (1, 3)]
    P = lambda r: f"v[{r}:{r+1}]"
    for n, (i, p) in enumerate(units):
        A = acc(i*6 + 2*p) if p < 3 else acc(24 + i*2)
        T = 80 + 16*(n & 1); U = T + 8
        R = 8 + 2*i
        for k in range(0, 8, 2): a(f"v_pk_fma_f32 {P(T+k)}, {P(R)}, {P(CS+8*p+k)}, {P(BB+8*p+k)} op_sel:[1,0,0] op_sel_hi:[1,1,1] neg_lo:[1,0,0] neg_hi:[1,0,0]")
        for k in range(0, 8, 2): a(f"v_pk_fma_f32 {P(A+k)}, {P(R)}, {P(A+k)}, {P(T+k)} op_sel_hi:[0,1,1]")
        for k in range(0, 8, 2): a(f"v_pk_mul_f32 {P(T+k)}, {P(A+k)}, {P(A+k)}")
        for k in range(0, 8, 2): a(f"v_pk_fma_f32 {P(T+k)}, {P(T+k)}, {P(KK)}, {P(KK)} op_sel:[0,0,1] op_sel_hi:[1,0,1]")
        for k in range(0, 8, 2): a(f"v_pk_mul_f32 {P(T+k)}, {P(T+k)}, {P(A+k)}")
        for k in range(8): a(f"v_exp_f32 v{T+k}, v{T+k}")
        for k in range(0, 8, 2): a(f"v_pk_add_f32 {P(T+k)}, {P(T+k)}, {P(ONE)}")
        for k in range(8): a(f"v_rcp_f32 v{T+k}, v{T+k}")
        for k in range(0, 8, 2): a(f"v_pk_mul_f32 {P(A+k)}, {P(A+k)}, {P(T+k)}")
        for k in range(4): a(f"v_cvt_pk_bf16_f32 v{U+k}, v{A+2*k}, v{A+2*k+1}")
        if p < 3 and lvl:
            a(f"buffer_store_dwordx4 v[{U}:{U+3}], v6, s[{SRD_C}:{SRD_C+3}], s{84+i} offen {sf}")
            if i == 3 and p < 2: a(f"v_add_u32 v6, {8*2048}, v6")
        elif p < 3: a(f"buffer_store_dwordx4 v[{U}:{U+3}], v6, s[{SRD_C}:{SRD_C+3}], s{84+i} offen offset:{p*1024} {sf}")
        else: a(f"buffer_store_dwordx4 v[{U}:{U+3}], v7, s[{SRD_C}:{SRD_C+3}], s{84+i} offen {sf}")
        if early and n + 1 == early_at: early(early_at - 4)

def map_p4(a):
    a(f"s_and_b32 s{S_T0}, s2, 3\ns_lshl_b32 s{S_T0}, s{S_T0}, 2\ns_lshr_b32 s{S_T1}, s2, 3\ns_and_b32 s{S_T2}, s{S_T1}, 3\ns_add_u32 s{S_RB}, s{S_T0}, s{S_T2}")
    a(f"s_bfe_u32 s{S_KH}, s2, 0x10002\ns_lshr_b32 s{S_CB}, s2, 5")
    a(f"s_add_u32 s{S_ROT}, s{S_RB}, s{S_CB}\ns_and_b32 s{S_ROT}, s{S_ROT}, 3")

def make_p4(lead=True):
    ph = Phase(); ph.name = 'P4'; ph.S = 28; ph.NS = 3; ph.stage = 32768; ph.lds0 = 0; ph.lead = lead
    ph.ka_step = 2048; ph.kb_step = 64*2048; ph.aflags = ''; ph.bflags = ''
    ph.nmin = 8
    ph.pieces = []
    for i in range(2):
        ph.pieces.append(('A', 10+i, S_LA, i*2048, 0, None))
        ph.pieces.append(('A', 10+i, S_LA, None, 1024, None))
    for t in range(2):
        for i in range(2):
            ph.pieces.append(('B', 12 + 2*t + i, S_LB, 16384 + t*8192 + i*1024, 0, None))
    ph.addr_regs = [2, 4, 5, 6, 7]
    ph.afr = [(2, i*2048) for i in range(4)]
    ph.a_kb = 1024
    ph.bfr = [(4 + c, 0, 2048, 4096) for c in range(4)]
    ph.va = [16, 32]; ph.vb = [48, 64]; ph.vacc = 112
    ph.mm = [(i*4 + c, i, c, True) for i in range(4) for c in (range(4) if i % 2 == 0 else range(3, -1, -1))]
    return ph

def p4_producer_setup(a, ph):
    srd(a, SRD_A, S_WS, 16 << 20, WS_G)
    srd(a, SRD_B, S_W2, 3584*1024*2)
    a(f"s_lshl_b32 s{S_LA}, s{S_W4}, 12\ns_lshl_b32 s{S_LB}, s{S_W4}, 11")
    a(f"s_lshl_b32 s{S_T0}, s{S_RB}, 3\ns_lshl_b32 s{S_T1}, s{S_W4}, 1\ns_add_u32 s{S_T1}, s{S_T0}, s{S_T1}\ns_mul_i32 s{S_T1}, s{S_T1}, {112*1024}")
    a(f"s_mul_i32 s{S_T0}, s{S_KH}, {56*1024}\ns_add_u32 s{S_T1}, s{S_T1}, s{S_T0}")
    a(f"v_lshlrev_b32 v10, 4, v0\nv_add_u32 v10, s{S_T1}, v10\nv_add_u32 v11, {112*1024}, v10")
    a(f"s_lshl_b32 s{S_T2}, s{S_CB}, 8\ns_lshl_b32 s{S_T0}, s{S_W4}, 15\ns_add_u32 s{S_T2}, s{S_T2}, s{S_T0}\ns_mul_i32 s{S_T0}, s{S_KH}, {1792*2048}\ns_add_u32 s{S_T2}, s{S_T2}, s{S_T0}")
    dma_b_lane(a, 12, 20, 21, 2048, 128)
    a(f"v_add_u32 v12, s{S_T2}, v12\nv_add_u32 v13, {8*2048}, v12\nv_add_u32 v14, 128, v12\nv_add_u32 v15, 128, v13")

P4_H = 80
def p4_res_loads(a, lf=''):
    a(f"s_lshl_b32 s84, s82, 15\ns_lshl_b32 s85, s83, 10\ns_add_u32 s84, s84, s85")
    for i in range(4):
        a(f"s_add_u32 s85, s84, {i*32768}\nbuffer_load_dwordx4 v[{P4_H+4*i}:{P4_H+4*i+3}], v3, s[{SRD_C}:{SRD_C+3}], s85 offen {lf}")

def p4_consumer_setup(a, ph, lf='', res=True):
    srd(a, SRD_C, S_WS, 4 << 20, WS_H)
    srd(a, SRD_D, S_B2, 1024*2)
    a(f"s_lshr_b32 s{S_T0}, s{S_W4}, 1\ns_and_b32 s{S_T1}, s{S_W4}, 1")
    a(f"s_lshl_b32 s83, s{S_CB}, 2\ns_lshl_b32 s{S_T2}, s{S_KH}, 1\ns_add_u32 s83, s83, s{S_T2}\ns_add_u32 s83, s83, s{S_T1}")
    a(f"s_lshl_b32 s82, s{S_RB}, 3\ns_lshl_b32 s{S_T2}, s{S_T0}, 2\ns_add_u32 s82, s82, s{S_T2}")
    a(f"v_lshlrev_b32 v3, 4, v0")
    if res: p4_res_loads(a, lf)
    a(f"v_lshrrev_b32 v8, 4, v0\nv_lshlrev_b32 v8, 3, v8\ns_lshl_b32 s{S_T3}, s83, 6")
    a(f"buffer_load_dwordx2 v[96:97], v8, s[{SRD_D}:{SRD_D+3}], s{S_T3} offen\nbuffer_load_dwordx2 v[98:99], v8, s[{SRD_D}:{SRD_D+3}], s{S_T3} offen offset:32")
    a(f"s_lshl_b32 s{S_T2}, s{S_T0}, 13\nv_add_u32 v2, s{S_T2}, v3")
    if ph.lds0: a(f"v_add_u32 v2, {ph.lds0}, v2")
    for c in range(2):
        a(f"s_lshl_b32 s{S_T2}, s{S_T1}, 1\ns_add_u32 s{S_T2}, s{S_T2}, {c}")
        tr_lane_part(a, 4+c, 10, 11, 128, jreg=S_T2)
        a(f"s_lshl_b32 s{S_T2}, s{S_KH}, 13\ns_add_u32 s{S_T2}, s{S_T2}, {16384 + ph.lds0}\nv_add_u32 v{4+c}, s{S_T2}, v{4+c}\nv_xor_b32 v{6+c}, 0x2000, v{4+c}")

def p4_epilogue(a, ph, fval='1', fbase=0):
    acc = lambda n: ph.vacc + 4*n
    srd(a, SRD_C, S_WS, 8 << 20, WS_PX)
    srd(a, SRD_D, S_WS, 1 << 20, WS_FL)
    srd(a, SRD_A, S_OUT, 2048*1024*2)
    a(f"s_lshl_b32 s{S_T0}, s{S_RB}, 3\ns_add_u32 s{S_T0}, s{S_T0}, s{S_CB}\ns_lshl_b32 s{S_T0}, s{S_T0}, 1\ns_add_u32 s{S_T0}, s{S_T0}, s{S_KH}")
    a(f"s_lshl_b32 s{S_T1}, s{S_T0}, 2\ns_add_u32 s{S_T1}, s{S_T1}, s{S_W4}")
    a(f"s_lshl_b32 s84, s{S_T1}, 13\ns_xor_b32 s85, s84, 0x8000")
    a(f"s_lshl_b32 s86, s{S_T1}, 7\ns_add_u32 s86, s86, {fbase}\ns_xor_b32 s87, s86, 0x200")
    for i in range(4):
        for c in range(2):
            n = i*2 + c
            if n == 4: a("s_add_u32 s84, s84, 4096")
            a(f"buffer_store_dwordx4 v[{acc(i*4+2+c)}:{acc(i*4+2+c)+3}], v3, s[{SRD_C}:{SRD_C+3}], s84 offen offset:{(n & 3)*1024} sc1")
    a("s_waitcnt vmcnt(8)")
    for h in range(4):
        a(f"v_lshlrev_b32 v{100+2*h}, 16, v{96+h}\nv_and_b32 v{101+2*h}, 0xffff0000, v{96+h}")
    for i in range(4):
        for h in range(4):
            d = acc(i*4) + 2*h
            a(f"v_lshlrev_b32 v16, 16, v{P4_H+4*i+h}\nv_and_b32 v17, 0xffff0000, v{P4_H+4*i+h}")
            a(f"v_add_f32 v16, v16, v{100+2*h}\nv_add_f32 v17, v17, v{101+2*h}\nv_add_f32 v{d}, v{d}, v16\nv_add_f32 v{d+1}, v{d+1}, v17")
    a(f"v_mov_b32 v18, 0\nv_mov_b32 v19, {fval}\ns_waitcnt vmcnt(0)\ns_mov_b64 exec, 1")
    a(f"buffer_store_dword v19, v18, s[{SRD_D}:{SRD_D+3}], s86 offen sc1")
    L = a.lab('poll')
    a(f"s_mov_b32 s88, 0\n{L}:\ns_add_u32 s88, s88, 1\ns_cmp_gt_u32 s88, 0x40000\ns_cbranch_scc1 {L}_x\nbuffer_load_dword v20, v18, s[{SRD_D}:{SRD_D+3}], s87 offen sc1\ns_waitcnt vmcnt(0)\nv_readfirstlane_b32 s{S_T2}, v20\ns_cmp_lg_u32 s{S_T2}, {fval}\ns_cbranch_scc1 {L}")
    a(f"{L}_x:\ns_mov_b64 exec, -1")
    RX = 24
    for n in range(8):
        if n == 4: a("s_add_u32 s85, s85, 4096")
        a(f"buffer_load_dwordx4 v[{RX+4*n}:{RX+4*n+3}], v3, s[{SRD_C}:{SRD_C+3}], s85 offen offset:{(n & 3)*1024} sc1")
    a("v_and_b32 v4, 15, v0\nv_lshlrev_b32 v4, 11, v4\nv_bfe_u32 v5, v0, 4, 1\nv_lshlrev_b32 v5, 5, v5\nv_add_u32 v4, v4, v5\nv_bfe_u32 v5, v0, 5, 1\nv_lshlrev_b32 v5, 4, v5\nv_add_u32 v4, v4, v5")
    a(f"s_lshl_b32 s{S_T2}, s82, 15\ns_lshl_b32 s{S_T3}, s83, 6\ns_add_u32 s{S_T2}, s{S_T2}, s{S_T3}")
    for i in range(4):
        a(f"s_waitcnt vmcnt({6 - 2*i + i})")
        d = acc(i*4)
        for k in range(8): a(f"v_add_f32 v{d+k}, v{d+k}, v{RX+8*i+k}")
        U = 64 + 4*i
        for k in range(4): a(f"v_cvt_pk_bf16_f32 v{U+k}, v{d+2*k}, v{d+2*k+1}")
        a(f"s_add_u32 s{S_T3}, s{S_T2}, {i*32768}\ns_nop 0\nv_permlane16_swap_b32 v{U}, v{U+2}\nv_permlane16_swap_b32 v{U+1}, v{U+3}")
        a(f"buffer_store_dwordx4 v[{U}:{U+3}], v4, s[{SRD_A}:{SRD_A+3}], s{S_T3} offen")


S_E = 62
S_FO = 63
SRD_F = 96
FL_E, FL_0, FL_1, FL_2, FL_3, FL_C, FL_X = 0, 0x1000, 0x2000, 0x3000, 0x4000, 0x5000, 0x10000

def flag_off(a, dst, base, srow, scol):
    a(f"s_lshl_b32 s{dst}, s{srow}, 7\ns_lshl_b32 s{S_T0}, s{scol}, 2\ns_add_u32 s{dst}, s{dst}, s{S_T0}\ns_add_u32 s{dst}, s{dst}, {base}")

def flag_set(a, soff, only_wave=4):
    L = a.lab('noflag')
    if only_wave is not None: a(f"s_cmp_lg_u32 s{S_WAVE}, {only_wave}\ns_cbranch_scc1 {L}")
    a(f"v_mov_b32 v28, 0\nv_mov_b32 v29, s{S_E}\ns_mov_b64 exec, 1\nbuffer_store_dword v29, v28, s[{SRD_F}:{SRD_F+3}], s{soff} offen sc1\ns_mov_b64 exec, -1")
    a(f"{L}:")

def poll(a, voff, soff, execmask, hook=None):
    L = a.lab('poll')
    a(f"s_mov_b64 exec, {execmask:#x}\ns_mov_b32 s{S_T0}, 0\n{L}:")
    a(f"buffer_load_dword v31, v{voff}, s[{SRD_F}:{SRD_F+3}], s{soff} offen sc1\ns_add_u32 s{S_T0}, s{S_T0}, 1\ns_cmp_gt_u32 s{S_T0}, 0x20000\ns_cbranch_scc1 {L}_x")
    if hook: hook()
    a(f"s_waitcnt vmcnt(0)\nv_cmp_ne_u32 vcc, s{S_E}, v31\ns_cbranch_vccnz {L}\n{L}_x:\ns_waitcnt vmcnt(0)\ns_mov_b64 exec, -1")

def colsum_wave(a, sk, scb, sf='sc1'):
    srd(a, SRD_C, S_W1, 1024*3584*2)
    srd(a, SRD_D, S_WS, 1 << 20, WS_CS)
    a(f"v_lshrrev_b32 v22, 3, v0\nv_mul_u32_u24 v22, 7168, v22\nv_and_b32 v23, 7, v0\nv_min_u32 v23, 6, v23\nv_lshlrev_b32 v24, 4, v23\nv_add_u32 v22, v22, v24")
    a(f"s_mul_i32 s{S_T0}, s{sk}, {64*7168}\ns_mul_i32 s{S_T1}, s{scb}, 448\ns_add_u32 s{S_T0}, s{S_T0}, s{S_T1}\ns_mul_i32 s{S_T1}, s{S_W4}, 112\ns_add_u32 s{S_T0}, s{S_T0}, s{S_T1}")
    for j in range(8):
        a(f"s_add_u32 s{S_T1}, s{S_T0}, {j*8*7168}\nbuffer_load_dwordx4 v[{32+4*j}:{35+4*j}], v22, s[{SRD_C}:{SRD_C+3}], s{S_T1} offen")
    a(f"s_mul_i32 s{S_T0}, s{sk}, {3584*4}\ns_mul_i32 s{S_T1}, s{scb}, 896\ns_add_u32 s{S_T0}, s{S_T0}, s{S_T1}\ns_mul_i32 s{S_T1}, s{S_W4}, 224\ns_add_u32 s{S_T0}, s{S_T0}, s{S_T1}")
    cs_store_voff(a, 23, 23)
    for j in range(8):
        a(f"s_waitcnt vmcnt({7-j})")
        for x in cs_acc(32, j): a(x)
    for x in cs_fold(): a(x)
    a(f"s_mov_b32 exec_lo, 0x007f007f\ns_mov_b32 exec_hi, 0x007f007f\nbuffer_store_dwordx2 v[64:65], v23, s[{SRD_D}:{SRD_D+3}], s{S_T0} offen {sf}\ns_mov_b64 exec, -1")

CNT_LDS = 160256
def publish(a, k, base, srow, scol, cnt=None, younger=0):
    L = a.lab('nopub')
    flag_off(a, S_FO, base, srow, scol)
    a(f"v_mov_b32 v236, {cnt or CNT_LDS + 4*k}\nv_mov_b32 v237, 1\nv_mov_b32 v238, 0\nv_mov_b32 v239, s{S_E}\ns_mov_b64 exec, 1")
    a(f"s_waitcnt vmcnt({younger})\nds_add_rtn_u32 v237, v236, v237\ns_waitcnt lgkmcnt(0)\nv_cmp_ne_u32 vcc, 3, v237\ns_cbranch_vccnz {L}")
    a(f"buffer_store_dword v239, v238, s[{SRD_F}:{SRD_F+3}], s{S_FO} offen sc1\n{L}:\ns_mov_b64 exec, -1")

S_PF = 78
def pf_setup(a, ptr, share, span):
    a(f"s_lshl_b32 s{S_T0}, s2, 2\ns_add_u32 s{S_T0}, s{S_T0}, s{S_W4}\ns_mul_i32 s{S_T0}, s{S_T0}, {share}\ns_min_u32 s{S_T0}, s{S_T0}, {1024*share - span}\ns_add_u32 s{S_PF}, s{ptr}, s{S_T0}\ns_addc_u32 s{S_PF+1}, s{ptr+1}, 0")
def pf_step(a, n):
    a(f"s_waitcnt lgkmcnt({15 - n})")
    for i in range(n): a(f"s_load_dword s64, s[{S_PF}:{S_PF+1}], {i*64}")
    a(f"s_add_u32 s{S_PF}, s{S_PF}, {n*64}\ns_addc_u32 s{S_PF+1}, s{S_PF+1}, 0")
def pf_code(a, nbytes, per):
    L = a.lab('pc')
    a(f"s_getpc_b64 s[{S_PF}:{S_PF+1}]\n{L}:\ns_sub_u32 s{S_PF}, s{S_PF}, {L}-KSTART\ns_subb_u32 s{S_PF+1}, s{S_PF+1}, 0")
    a(f"s_lshr_b32 s{S_T0}, s2, 3\ns_lshl_b32 s{S_T0}, s{S_T0}, 2\ns_add_u32 s{S_T0}, s{S_T0}, s{S_W4}\ns_lshl_b32 s{S_T0}, s{S_T0}, 6")
    for i in range(per):
        a(f"s_add_u32 s{S_T1}, s{S_T0}, {i*8192}\ns_min_u32 s{S_T1}, s{S_T1}, KEND-KSTART-4\ns_load_dword s64, s[{S_PF}:{S_PF+1}], s{S_T1}")

WS_GR = WS_BASE + (30 << 20)
WS_CQ = WS_BASE + (31 << 20)
FL_Q = 0x7000
P1C = 153600

def make_p1x(lead=True):
    ph = make_p1(lead)
    ph.ka_step = 128
    ph.pieces = []
    for i in range(4):
        ph.pieces.append(('A', 6 + i, S_LA, 2048 + i*1024, 0, None))
    ph.pieces.append(('A', 18, S_LH, 0, 0, 2))
    for t in range(3):
        for i in range(2):
            ph.pieces.append(('B', 12 + t*2 + i, S_LB, 18432 + t*8192 + i*1024, 0, None))
    ph.addr_regs = [2, 3, 4, 5]
    ph.afr = [(2, 3, i*2048) for i in range(5)]
    ph.bfr = [(4 + c, t*8192, 512, 4096) for t in range(3) for c in range(2)]
    return ph

def p1x_producer_srds(a):
    srd(a, SRD_A, S_X, 2048*1024*2)
    srd(a, SRD_B, S_WQKV, 1024*3072*2)
def p1x_producer_setup(a, ph, srds=True):
    if srds: p1x_producer_srds(a)
    a(f"s_lshl_b32 s{S_LA}, s{S_W4}, 12\ns_lshl_b32 s{S_LB}, s{S_W4}, 11\ns_lshl_b32 s{S_LH}, s{S_W4}, 10")
    a("v_lshrrev_b32 v20, 3, v0\nv_lshlrev_b32 v20, 11, v20\nv_lshrrev_b32 v21, 4, v0\nv_and_b32 v22, 7, v0\nv_xor_b32 v21, v21, v22\nv_lshlrev_b32 v21, 4, v21\nv_add_u32 v20, v20, v21")
    a(f"s_lshl_b32 s{S_T0}, s{S_RB}, 18\ns_lshl_b32 s{S_T1}, s{S_W4}, 16\ns_add_u32 s{S_T1}, s{S_T1}, s{S_T0}")
    a(f"v_add_u32 v6, s{S_T1}, v20\nv_xor_b32 v21, 64, v20\nv_add_u32 v7, s{S_T1}, v21\nv_add_u32 v7, 0x4000, v7\nv_add_u32 v8, 0x8000, v6\nv_add_u32 v9, 0x8000, v7")
    a(f"s_max_u32 s{S_T0}, s{S_T0}, 0x8000\ns_sub_u32 s{S_T0}, s{S_T0}, 0x8000\ns_lshl_b32 s{S_T1}, s{S_W4}, 14\ns_add_u32 s{S_T0}, s{S_T0}, s{S_T1}")
    a(f"s_lshl_b32 s{S_T1}, s{S_W4}, 6\ns_and_b32 s{S_T1}, s{S_T1}, 64\nv_xor_b32 v18, s{S_T1}, v20\nv_add_u32 v18, s{S_T0}, v18")
    a(f"s_lshl_b32 s{S_T2}, s{S_CB}, 7\ns_mul_i32 s{S_T0}, s{S_W4}, {16*6144}\ns_add_u32 s{S_T2}, s{S_T2}, s{S_T0}")
    a("v_lshrrev_b32 v20, 3, v0\nv_mul_u32_u24 v20, 6144, v20\nv_bfe_u32 v21, v0, 4, 1\nv_lshlrev_b32 v21, 1, v21\nv_xor_b32 v21, v21, v22\nv_lshlrev_b32 v21, 4, v21")
    a(f"v_add_u32 v12, v20, v21\nv_add_u32 v12, s{S_T2}, v12\nv_xor_b32 v21, 64, v21\nv_add_u32 v13, v20, v21\nv_add_u32 v13, s{S_T2}, v13\nv_add_u32 v13, {8*6144}, v13")
    for t in range(1, 3):
        for i in range(2): a(f"v_add_u32 v{12+t*2+i}, {t*2048}, v{12+i}")

def p1x_consumer_setup(a, ph):
    a(f"s_lshr_b32 s{S_T0}, s{S_W4}, 1\ns_and_b32 s{S_T1}, s{S_W4}, 1")
    a(f"s_lshl_b32 s{S_T2}, s{S_T0}, 13\nv_and_b32 v10, 15, v0\nv_lshrrev_b32 v11, 1, v10\nv_lshrrev_b32 v2, 4, v0\nv_xor_b32 v2, v2, v11\nv_lshlrev_b32 v2, 4, v2")
    a(f"v_lshlrev_b32 v10, 7, v10\nv_add_u32 v2, v2, v10\nv_add_u32 v2, s{S_T2}, v2\nv_xor_b32 v3, 64, v2")
    a("v_lshrrev_b32 v10, 4, v0\nv_lshlrev_b32 v10, 10, v10\nv_bfe_u32 v11, v0, 2, 2\nv_lshlrev_b32 v11, 7, v11\nv_add_u32 v10, v10, v11")
    a(f"v_and_b32 v11, 3, v0\nv_lshlrev_b32 v11, 3, v11\nv_add_u32 v10, v10, v11\nv_add_u32 v10, 18432, v10\nv_bfe_u32 v11, v0, 3, 2")
    for c in range(2):
        a(f"s_lshl_b32 s{S_T2}, s{S_T1}, 1\ns_add_u32 s{S_T2}, s{S_T2}, {c}\nv_xor_b32 v{4+c}, s{S_T2}, v11\nv_lshlrev_b32 v{4+c}, 5, v{4+c}\nv_add_u32 v{4+c}, v{4+c}, v10")
    a("v_and_b32 v10, 15, v0\nv_lshrrev_b32 v11, 4, v0\nv_lshlrev_b32 v11, 2, v11\nv_sub_u32 v10, v10, v11\nv_mov_b32 v12, 0xf149f2ca")
    for t in range(2):
        for r in range(4):
            a(f"v_add_u32 v11, {(16 if t == 0 else 0) - r}, v10\nv_and_b32 v11, 0xfffffff1, v11\nv_cmp_eq_u32 vcc, 0, v11\ns_nop 1\nv_cndmask_b32 v{224+4*t+r}, v12, 0, vcc")
    a(f"s_lshl_b32 s{S_T2}, s{S_RB}, 1\ns_add_u32 s{S_T2}, s{S_T2}, s{S_T0}\ns_cmp_eq_u32 s{S_T2}, 0\ns_cselect_b64 vcc, -1, 0")
    for r in range(4): a(f"v_cndmask_b32 v{232+r}, v{224+r}, v12, vcc")

def wave_sum(a, vs, ts):
    def gap():
        if len(vs) < 3: a(f"s_nop {2 - len(vs)}")
    for m in ("quad_perm:[1,0,3,2]", "quad_perm:[2,3,0,1]", "row_half_mirror", "row_mirror"):
        gap()
        for v in vs: a(f"v_add_f32_dpp v{v}, v{v}, v{v} {m} row_mask:0xf bank_mask:0xf")
    xor16_32_multi(a, vs, ts, "v_add_f32")

def row_stats_issue(a, sid):
    srd(a, SRD_A, S_X, 2048*1024*2)
    a(f"v_lshlrev_b32 v1, 4, v0\ns_lshl_b32 s{S_T0}, s{sid}, 14\ns_lshl_b32 s{S_T1}, s{S_W4}, 12\ns_add_u32 s{S_T0}, s{S_T0}, s{S_T1}")
    for j in range(4): a(f"buffer_load_dwordx4 v[{16+4*j}:{19+4*j}], v1, s[{SRD_A}:{SRD_A+3}], s{S_T0} offen offset:{j*1024}")

def row_stats_finish(a, sid):
    P = lambda r: f"v[{r}:{r+1}]"
    srd(a, SRD_C, S_WS, 16384, WS_GR)
    a(f"s_lshl_b32 s{S_T0}, s{sid}, 6\ns_lshl_b32 s{S_T1}, s{S_W4}, 4\ns_add_u32 s{S_T0}, s{S_T0}, s{S_T1}\nv_mov_b32 v1, 0")
    a("s_waitcnt vmcnt(0)")
    for k in range(16): a(f"v_lshlrev_b32 v{32+2*k}, 16, v{16+k}\nv_and_b32 v{33+2*k}, 0xffff0000, v{16+k}")
    def psum(dst, src):
        for k in range(4):
            for r in range(2): a(f"v_pk_add_f32 {P(dst+8*r+2*k)}, {P(src+16*r+4*k)}, {P(src+16*r+4*k+2)}")
        for k in range(2):
            for r in range(2): a(f"v_pk_add_f32 {P(dst+8*r+4*k)}, {P(dst+8*r+4*k)}, {P(dst+8*r+4*k+2)}")
        for r in range(2): a(f"v_pk_add_f32 {P(dst+8*r)}, {P(dst+8*r)}, {P(dst+8*r+4)}")
        for r in range(2): a(f"v_add_f32 v{dst+8*r}, v{dst+8*r}, v{dst+8*r+1}")
        wave_sum(a, [dst, dst+8], [dst+1, dst+9])
        for r in range(2): a(f"v_mul_f32 v{dst+8*r}, 0x3a800000, v{dst+8*r}")
    psum(64, 32)
    for k in range(8):
        for r in range(2): a(f"v_pk_add_f32 {P(32+16*r+2*k)}, {P(32+16*r+2*k)}, {P(64+8*r)} op_sel_hi:[1,0] neg_lo:[0,1] neg_hi:[0,1]")
    for k in range(16): a(f"v_pk_mul_f32 {P(32+2*k)}, {P(32+2*k)}, {P(32+2*k)}")
    psum(80, 32)
    a("v_cvt_pk_bf16_f32 v80, v80, v88\nv_and_b32 v81, 0xffff0000, v80\nv_lshlrev_b32 v80, 16, v80")
    a("v_add_f32 v80, 0x3727c5ac, v80\nv_add_f32 v81, 0x3727c5ac, v81\nv_cvt_pk_bf16_f32 v80, v80, v81\nv_and_b32 v81, 0xffff0000, v80\nv_lshlrev_b32 v80, 16, v80")
    a("v_sqrt_f32 v80, v80\nv_sqrt_f32 v81, v81\ns_nop 0")
    a(f"v_cvt_pk_bf16_f32 v84, v64, v80\nv_cvt_pk_bf16_f32 v86, v72, v81\nv_mov_b32 v85, s{S_E}\nv_mov_b32 v87, s{S_E}")
    a(f"s_mov_b64 exec, 1\nbuffer_store_dwordx4 v[84:87], v1, s[{SRD_C}:{SRD_C+3}], s{S_T0} offen sc1\ns_mov_b64 exec, -1")

def cs_acc(src, j):
    out = []
    for k in range(4):
        s = src + 4*j + k
        if j == 0: out += [f"v_lshlrev_b32 v{64+2*k}, 16, v{s}", f"v_and_b32 v{65+2*k}, 0xffff0000, v{s}"]
        else: out += [f"v_lshlrev_b32 v{72+2*k}, 16, v{s}", f"v_and_b32 v{73+2*k}, 0xffff0000, v{s}"]
    if j:
        for k in range(4): out.append(f"v_pk_add_f32 v[{64+2*k}:{65+2*k}], v[{64+2*k}:{65+2*k}], v[{72+2*k}:{73+2*k}]")
    return out
def cs_fold():
    out = ["s_nop 1"]
    out += [f"v_permlane32_swap_b32 v{64+k}, v{68+k}" for k in range(4)]
    out += [f"v_add_f32 v{64+k}, v{64+k}, v{68+k}" for k in (2, 3, 0, 1)]
    out += ["s_nop 1", "v_permlane16_swap_b32 v64, v66", "v_permlane16_swap_b32 v65, v67", "v_add_f32 v64, v64, v66", "v_add_f32 v65, v65, v67", "s_nop 1"]
    out += [f"v_add_f32_dpp v{64+k}, v{64+k}, v{64+k} row_ror:8 row_mask:0xf bank_mask:0xf" for k in range(2)]
    return out
def cs_store_voff(a, dst, chunk):
    a(f"v_lshlrev_b32 v{dst}, 5, v{chunk}\nv_lshrrev_b32 v25, 4, v0\nv_lshlrev_b32 v25, 3, v25\nv_add_u32 v{dst}, v{dst}, v25")

def skip_w3(a):
    L = a.lab('w3')
    a(f"s_cmp_eq_u32 s{S_W4}, 3\ns_cbranch_scc1 {L}")
    return L

def jq_setup(a):
    a(f"v_lshrrev_b32 v22, 3, v0\nv_mul_u32_u24 v22, 6144, v22\nv_and_b32 v23, 7, v0\nv_lshlrev_b32 v24, 4, v23\nv_add_u32 v22, v22, v24")
    cs_store_voff(a, 23, 23)
    a(f"s_mul_i32 s84, s{S_RB}, {64*6144}\ns_lshl_b32 s{S_T1}, s{S_CB}, 7\ns_add_u32 s84, s84, s{S_T1}\ns_add_u32 s84, s84, s{S_LB}")
    for k in range(32, 64): a(f"v_mov_b32 v{k}, 0")
def jq_issue(a, q, js):
    L = skip_w3(a)
    for j in js:
        a(f"s_add_u32 s{S_T1}, s84, {j*8*6144}\nbuffer_load_dwordx4 v[{32+4*j}:{35+4*j}], v22, s[{SRD_B}:{SRD_B+3}], s{S_T1} offen")
    a(f"{L}:")
def jq_store(a, q):
    L = skip_w3(a)
    srd(a, SRD_D, S_WS, 1 << 20, WS_CQ)
    a(f"s_mul_i32 s{S_T0}, s{S_RB}, {3072*4}\ns_lshl_b32 s{S_T1}, s{S_CB}, 8\ns_add_u32 s{S_T0}, s{S_T0}, s{S_T1}\ns_add_u32 s{S_T0}, s{S_T0}, s{S_LA}")
    a(f"s_mov_b32 exec_lo, 0x00ff00ff\ns_mov_b32 exec_hi, 0x00ff00ff\nbuffer_store_dwordx2 v[64:65], v23, s[{SRD_D}:{SRD_D+3}], s{S_T0} offen sc1\ns_mov_b64 exec, -1")
    a(f"{L}:")
    q.push('jqs', 0)
def jq_flag(a, q):
    L = skip_w3(a)
    q.wait('jqs')
    a(f"s_lshl_b32 s82, s{S_CB}, 8\ns_lshl_b32 s{S_T0}, s{S_RB}, 4\ns_add_u32 s82, s82, s{S_T0}\ns_lshl_b32 s{S_T0}, s{S_W4}, 2\ns_add_u32 s82, s82, s{S_T0}\ns_add_u32 s82, s82, {FL_Q}")
    flag_set(a, 82, only_wave=None)
    a(f"{L}:")

def jg_loads(a):
    Lr = a.lab('rows'); Le = a.lab('gend')
    a(f"s_cmp_eq_u32 s{S_W4}, 3\ns_cbranch_scc1 {Lr}")
    srd(a, SRD_D, S_WS, 1 << 20, WS_CQ)
    a(f"v_and_b32 v22, 15, v0\nv_lshlrev_b32 v22, 4, v22\ns_lshl_b32 s82, s{S_CB}, 8\ns_lshl_b32 s{S_T0}, s{S_W4}, 2\ns_add_u32 s82, s82, s{S_T0}\ns_add_u32 s82, s82, {FL_Q}")
    a(f"buffer_load_dword v48, v22, s[{SRD_F}:{SRD_F+3}], s82 offen sc1")
    a(f"v_lshrrev_b32 v23, 4, v0\nv_mul_u32_u24 v23, {3072*4}, v23\nv_add_u32 v23, v23, v22\ns_lshl_b32 s{S_T0}, s{S_CB}, 8\ns_add_u32 s{S_T0}, s{S_T0}, s{S_LA}")
    for k in range(4):
        a(f"s_add_u32 s{S_T1}, s{S_T0}, {k*4*3072*4}\nbuffer_load_dwordx4 v[{32+4*k}:{35+4*k}], v23, s[{SRD_D}:{SRD_D+3}], s{S_T1} offen sc1")
    a(f"s_branch {Le}\n{Lr}:")
    srd(a, SRD_D, S_WS, 16384, WS_GR)
    a(f"s_lshl_b32 s{S_T0}, s{S_RB}, 7\ns_sub_u32 s{S_T0}, s{S_T0}, 16")
    a(f"v_add_u32 v22, s{S_T0}, v0\nv_add_u32 v23, 16, v22\nv_cmp_gt_i32 vcc, 0, v22\nv_add_u32 v24, 128, v0\nv_min_u32 v24, 143, v24\nv_cndmask_b32 v23, v22, v23, vcc")
    a(f"v_add_u32 v24, s{S_T0}, v24\nv_lshlrev_b32 v23, 3, v23\nv_add_u32 v22, 64, v22\nv_lshlrev_b32 v22, 3, v22\nv_lshlrev_b32 v24, 3, v24")
    a(f"buffer_load_dwordx2 v[32:33], v23, s[{SRD_D}:{SRD_D+3}], 0 offen sc1\nbuffer_load_dwordx2 v[34:35], v22, s[{SRD_D}:{SRD_D+3}], 0 offen sc1\nbuffer_load_dwordx2 v[36:37], v24, s[{SRD_D}:{SRD_D+3}], 0 offen sc1")
    a(f"{Le}:")
def fold4(a, b):
    P = lambda r: f"v[{r}:{r+1}]"
    for h in (0, 2): a(f"v_pk_add_f32 {P(b+h)}, {P(b+h)}, {P(b+4+h)}\nv_pk_add_f32 {P(b+8+h)}, {P(b+8+h)}, {P(b+12+h)}")
    for h in (0, 2): a(f"v_pk_add_f32 {P(b+h)}, {P(b+h)}, {P(b+8+h)}")
    a(f"s_nop 1\nv_permlane32_swap_b32 v{b}, v{b+2}\nv_permlane32_swap_b32 v{b+1}, v{b+3}\nv_add_f32 v{b}, v{b}, v{b+2}\nv_add_f32 v{b+1}, v{b+1}, v{b+3}")
    a(f"s_nop 1\nv_permlane16_swap_b32 v{b}, v{b+1}\nv_add_f32 v{b}, v{b}, v{b+1}")

def jg_issue(a, q):
    jg_loads(a); q.push('jg', 3)
def jg_process(a, q):
    q.wait('jg')
    Lc = a.lab('gchk'); Lr = a.lab('grows'); Lok = a.lab('gok'); Le = a.lab('gdone'); Lt = a.lab('gretry')
    a(f"s_mov_b32 s83, 0\n{Lc}:\ns_cmp_eq_u32 s{S_W4}, 3\ns_cbranch_scc1 {Lr}")
    a(f"v_cmp_ne_u32 vcc, s{S_E}, v48\ns_cbranch_vccnz {Lt}")
    fold4(a, 32)
    a(f"v_bfe_u32 v23, v0, 4, 1\nv_lshrrev_b32 v24, 5, v0\nv_lshl_add_u32 v23, v24, 1, v23\nv_lshl_add_u32 v22, v23, 2, v22")
    a(f"s_lshl_b32 s{S_T0}, s{S_W4}, 8\ns_add_u32 s{S_T0}, s{S_T0}, {P1C}\nv_add_u32 v22, s{S_T0}, v22\nds_write_b32 v22, v32\ns_branch {Le}")
    a(f"{Lt}:\ns_add_u32 s83, s83, 1\ns_cmp_gt_u32 s83, 0x8000\ns_cbranch_scc1 {Le}")
    jg_loads(a)
    a(f"s_waitcnt vmcnt(0)\ns_branch {Lc}")
    a(f"{Lr}:\nv_cmp_ne_u32 vcc, s{S_E}, v33\ns_cbranch_vccnz {Lt}\nv_cmp_ne_u32 vcc, s{S_E}, v35\ns_cbranch_vccnz {Lt}\nv_cmp_ne_u32 vcc, s{S_E}, v37\ns_cbranch_vccnz {Lt}")
    for j in range(3):
        a(f"v_and_b32 v{40+2*j}, 0xffff0000, v{32+2*j}\nv_lshlrev_b32 v{41+2*j}, 16, v{32+2*j}")
    for j in range(3): a(f"v_rcp_f32 v{40+2*j}, v{40+2*j}")
    a(f"v_add_u32 v24, 128, v0\nv_min_u32 v24, 143, v24\nv_lshlrev_b32 v25, 2, v24\nv_lshlrev_b32 v24, 3, v24\nv_lshlrev_b32 v23, 3, v0")
    a(f"v_add_u32 v22, {P1C}, v30\nv_add_u32 v23, {P1C}, v23\nv_add_u32 v24, {P1C}, v24\nv_add_u32 v25, {P1C}, v25")
    a("ds_write_b64 v23, v[40:41] offset:768\nds_write_b64 v23, v[42:43] offset:1280\nds_write_b64 v24, v[44:45] offset:768")
    a("ds_write_b32 v22, v41 offset:1920\nds_write_b32 v22, v43 offset:2176\nds_write_b32 v25, v45 offset:1920")
    a("ds_write_b32 v22, v40 offset:2496\nds_write_b32 v22, v42 offset:2752\nds_write_b32 v25, v44 offset:2496")
    a(f"{Le}:\ns_waitcnt lgkmcnt(0)")

def p1x_fold(a, ph):
    acc = lambda n: ph.vacc + 4*n
    P = lambda r: f"v[{r}:{r+1}]"
    a(f"s_lshr_b32 s{S_T0}, s{S_W4}, 1\ns_and_b32 s{S_T1}, s{S_W4}, 1")
    a(f"s_lshl_b32 s{S_T2}, s{S_T0}, 9\ns_add_u32 s{S_T2}, s{S_T2}, {P1C + 768}\nv_and_b32 v6, 15, v0\nv_lshlrev_b32 v7, 3, v6\nv_add_u32 v7, s{S_T2}, v7")
    a(f"s_lshl_b32 s{S_T2}, s{S_T0}, 8\ns_add_u32 s{S_T2}, s{S_T2}, {P1C + 1920}\nv_and_b32 v8, 0x30, v0\nv_add_u32 v9, s{S_T2}, v8")
    a(f"s_lshl_b32 s{S_T2}, s{S_T1}, 7\ns_add_u32 s{S_T2}, s{S_T2}, {P1C}\nv_add_u32 v8, s{S_T2}, v8\nv_lshlrev_b32 v6, 2, v6\nv_add_u32 v6, s{S_T2}, v6")
    RM, CQ, CK, CV, MV, RV = 16, 28, 36, 44, 48, 68
    for i in range(5): a(f"ds_read_b64 {P(RM+2*i)}, v7 offset:{i*128}")
    for c in range(2): a(f"ds_read_b128 v[{CK+4*c}:{CK+4*c+3}], v8 offset:{256 + c*64}")
    for c in range(2): a(f"ds_read_b128 v[{CQ+4*c}:{CQ+4*c+3}], v8 offset:{c*64}")
    for c in range(2): a(f"ds_read_b32 v{CV+2*c}, v6 offset:{512 + c*64}")
    for i in range(5): a(f"ds_read_b128 v[{MV+4*i}:{MV+4*i+3}], v9 offset:{i*64}")
    a("s_waitcnt lgkmcnt(7)")
    for i in range(5): a(f"ds_read_b128 v[{RV+4*i}:{RV+4*i+3}], v9 offset:{576 + i*64}")
    for i in range(5):
        for c in range(2):
            for h in (0, 2): a(f"v_pk_fma_f32 {P(acc(i*2+c)+h)}, {P(RM+2*i)}, {P(CK+4*c+h)}, {P(acc(i*2+c)+h)} op_sel:[1,0,0] op_sel_hi:[1,1,1] neg_lo:[1,0,0] neg_hi:[1,0,0]")
    for i in range(1, 5):
        for c in range(2):
            for h in (0, 2): a(f"v_pk_fma_f32 {P(acc(20+(i-1)*2+c)+h)}, {P(RM+2*i)}, {P(CQ+4*c+h)}, {P(acc(20+(i-1)*2+c)+h)} op_sel:[1,0,0] op_sel_hi:[1,1,1] neg_lo:[1,0,0] neg_hi:[1,0,0]")
        a(f"v_mul_f32 v{239+i}, 0x3e8293ee, v{RM+2*i}")
    for i in range(5):
        for c in range(2):
            for h in (0, 2): a(f"v_pk_mul_f32 {P(acc(i*2+c)+h)}, {P(acc(i*2+c)+h)}, {P(RM+2*i)} op_sel_hi:[1,0]")
    a("s_waitcnt lgkmcnt(0)")
    for i in range(5):
        for c in range(2):
            for h in (0, 2): a(f"v_pk_fma_f32 {P(acc(10+i*2+c)+h)}, {P(MV+4*i+h)}, {P(CV+2*c)}, {P(acc(10+i*2+c)+h)} op_sel_hi:[1,0,1] neg_lo:[1,0,0] neg_hi:[1,0,0]")
    for i in range(5):
        for c in range(2):
            for h in (0, 2): a(f"v_pk_mul_f32 {P(acc(10+i*2+c)+h)}, {P(acc(10+i*2+c)+h)}, {P(RV+4*i+h)}")

def pf_chunk_setup(a, sk, scb):
    a(f"s_lshl_b32 s{S_T0}, s{sk}, 6\ns_lshl_b32 s{S_T1}, s{S_W4}, 4\ns_add_u32 s{S_T0}, s{S_T0}, s{S_T1}\ns_mul_i32 s{S_T0}, s{S_T0}, 7168\ns_mul_i32 s{S_T1}, s{scb}, 448\ns_add_u32 s{S_T0}, s{S_T0}, s{S_T1}")
    a(f"s_add_u32 s{S_PF}, s{S_W1}, s{S_T0}\ns_addc_u32 s{S_PF+1}, s{S_W1+1}, 0")
def pf_chunk_step(a, extra):
    a(f"s_waitcnt lgkmcnt({15 - 7 - extra})")
    for i in range(7): a(f"s_load_dword s64, s[{S_PF}:{S_PF+1}], {i*64}")
    for i in range(extra): a(f"s_load_dword s64, s[76:77], {i*64}")
    a(f"s_add_u32 s{S_PF}, s{S_PF}, 7168\ns_addc_u32 s{S_PF+1}, s{S_PF+1}, 0")
    if extra: a(f"s_add_u32 s76, s76, {extra*64}\ns_addc_u32 s77, s77, 0")

def p3c_issue(a):
    srd(a, SRD_C, S_WS, 2 << 20, WS_ST)
    srd(a, SRD_D, S_B1, 3584*2)
    a(f"v_lshlrev_b32 v22, 4, v0\ns_lshl_b32 s{S_T0}, s{S_RB}, 14\ns_add_u32 s{S_T0}, s{S_T0}, s{S_LA}")
    for j in range(4): a(f"buffer_load_dwordx4 v[{32+4*j}:{35+4*j}], v22, s[{SRD_C}:{SRD_C+3}], s{S_T0} offen offset:{j*1024} sc1")
    a(f"s_mul_i32 s{S_T0}, s{S_CB}, 224\ns_and_b32 s{S_T1}, s{S_CB}, 1\ns_lshl_b32 s{S_T2}, s{S_T1}, 5\ns_add_u32 s{S_T2}, s{S_T2}, s{S_T0}")
    a(f"s_cmp_eq_u32 s{S_T1}, 0\ns_cselect_b32 s{S_T1}, 0, 192\ns_sub_u32 s{S_T1}, s{S_T0}, s{S_T1}")
    a(f"s_mul_i32 s{S_T0}, s{S_W4}, 14\nv_and_b32 v23, 15, v0\nv_min_u32 v23, 13, v23\nv_add_u32 v23, s{S_T0}, v23\nv_lshlrev_b32 v23, 2, v23")
    a(f"v_cmp_gt_u32 vcc, 192, v23\nv_mov_b32 v24, s{S_T1}\nv_mov_b32 v25, s{S_T2}\nv_cndmask_b32 v24, v24, v25, vcc\nv_add_u32 v24, v24, v23")
    a(f"v_lshrrev_b32 v25, 4, v0\nv_mul_u32_u24 v26, {3584*4}, v25\nv_lshl_add_u32 v26, v24, 2, v26")
    for k in range(4): a(f"s_mov_b32 s{S_T0}, {(1 << 20) + k*4*3584*4}\nbuffer_load_dwordx4 v[{48+4*k}:{51+4*k}], v26, s[{SRD_C}:{SRD_C+3}], s{S_T0} offen sc1")
    a("v_bfe_u32 v25, v0, 4, 1\nv_lshrrev_b32 v26, 5, v0\nv_lshl_add_u32 v25, v26, 1, v25\nv_add_u32 v23, v23, v25\nv_add_u32 v24, v24, v25\nv_lshlrev_b32 v24, 1, v24")
    a(f"buffer_load_ushort v64, v24, s[{SRD_D}:{SRD_D+3}], 0 offen")
    return 9
def allsum3(a, vs, ts):
    for v in vs: a(f"v_add_f32_dpp v{v}, v{v}, v{v} row_ror:8 row_mask:0xf bank_mask:0xf")
    xor16_32_multi(a, vs, ts, "v_add_f32")
def p3c_finish(a, part):
    M = [70, 71, 72, 73]
    V = [80, 81, 82, 83]
    if part == 1: return p3c_finish2(a, M, V)
    a("s_waitcnt vmcnt(0)")
    for t in range(2):
        for r in range(2): a(f"v_add_f32 v{M[2*t+r]}, v{32+8*t+2*r}, v{36+8*t+2*r}")
    fold4(a, 48)
    allsum3(a, M, [74, 75, 76, 77])
    for m in M: a(f"v_mul_f32 v{m}, 0x3a800000, v{m}")
def p3c_finish2(a, M, V):
    a("s_mov_b32 s84, 0x3c800000\ns_mov_b32 s85, 0x42800000")
    for t in range(2):
        for j in range(2):
            for r in range(2): a(f"v_fma_f32 v{32+8*t+4*j+2*r}, v{32+8*t+4*j+2*r}, s84, -v{M[2*t+r]}")
    for t in range(2):
        for j in range(2):
            for r in range(2): a(f"v_mul_f32 v{32+8*t+4*j+2*r}, v{32+8*t+4*j+2*r}, v{32+8*t+4*j+2*r}")
    for t in range(2):
        for j in range(2):
            for r in range(2): a(f"v_fma_f32 v{33+8*t+4*j+2*r}, v{32+8*t+4*j+2*r}, s85, v{33+8*t+4*j+2*r}")
    for t in range(2):
        for r in range(2): a(f"v_add_f32 v{V[2*t+r]}, v{33+8*t+2*r}, v{37+8*t+2*r}")
    a(f"v_lshlrev_b32 v49, 16, v64\nv_lshlrev_b32 v23, 2, v23\nv_add_u32 v23, {P3_CONST + 1024}, v23\nds_write_b32 v23, v48\nds_write_b32 v23, v49 offset:896")
    allsum3(a, V, [74, 75, 76, 77])
    a("v_and_b32 v22, 16, v0\nv_cmp_ne_u32 vcc, 0, v22\nv_and_b32 v22, 32, v0\nv_cmp_ne_u32 s[86:87], 0, v22\ns_nop 0")
    a("v_cndmask_b32 v70, v70, v71, vcc\nv_cndmask_b32 v72, v72, v73, vcc\nv_cndmask_b32 v80, v80, v81, vcc\nv_cndmask_b32 v82, v82, v83, vcc")
    a("v_cndmask_b32 v70, v70, v72, s[86:87]\nv_cndmask_b32 v71, v80, v82, s[86:87]\nv_mul_f32 v71, 0x3a800000, v71")
    ln_scale(a, 70, 71, 72)
    a(f"v_and_b32 v22, 7, v0\nv_lshlrev_b32 v22, 1, v22\nv_bfe_u32 v24, v0, 4, 1\nv_add_u32 v22, v22, v24\nv_lshrrev_b32 v24, 5, v0\nv_lshl_add_u32 v22, v24, 4, v22")
    a(f"s_lshl_b32 s{S_T0}, s{S_W4}, 8\ns_add_u32 s{S_T0}, s{S_T0}, {P3_CONST}\nv_lshlrev_b32 v22, 3, v22\nv_add_u32 v22, s{S_T0}, v22")
    a("v_mul_f32 v73, v70, v71\nv_mov_b32 v72, v71\nds_write_b64 v22, v[72:73]\ns_waitcnt lgkmcnt(0)")

PFN = 37
PFB = 1024*448
def pfe_setup(a):
    a(f"s_lshl_b32 s{S_T0}, s2, 2\ns_add_u32 s{S_T0}, s{S_T0}, s{S_W4}\ns_mul_i32 s73, s{S_T0}, 448\ns_mov_b32 s75, 0\ns_mov_b32 s72, s73")
    a(f"s_mov_b32 s70, s{S_WO}\ns_mov_b32 s71, s{S_WO+1}")
def pfe_try(a, n=2, limit=None):
    L = a.lab('pfs'); T = a.lab('pft')
    if n > 1: a(f"s_mov_b32 s76, {n}\n{T}:")
    a(f"s_getreg_b32 s74, hwreg(HW_REG_IB_STS, 8, 4)\ns_cmp_gt_u32 s74, 8\ns_cbranch_scc1 {L}\ns_cmp_ge_u32 s75, {limit or PFN}\ns_cbranch_scc1 {L}")
    a(f"s_add_u32 s{S_PF}, s70, s72\ns_addc_u32 s{S_PF+1}, s71, 0")
    for i in range(7): a(f"s_load_dword s64, s[{S_PF}:{S_PF+1}], {i*64}")
    a(f"s_add_u32 s75, s75, 1\ns_add_u32 s72, s72, {PFB}")
    a(f"s_cmp_gt_u32 s75, 21\ns_cselect_b32 s74, {7*PFB}, 0\ns_bitcmp1_b32 s75, 0\ns_cselect_b32 s74, {(-8*PFB) & 0xffffffff:#x}, s74\ns_cmp_gt_u32 s75, 21\ns_cselect_b32 s74, s74, 0\ns_add_u32 s72, s72, s74")
    a(f"s_cmp_eq_u32 s75, 4\ns_cselect_b32 s74, {(2 << 20) - 448}, -1\ns_min_u32 s72, s72, s74")
    a(f"s_cmp_eq_u32 s75, 5\ns_cselect_b64 s[70:71], s[{S_W1}:{S_W1+1}], s[70:71]\ns_cselect_b32 s72, s73, s72")
    a(f"s_cmp_eq_u32 s75, 21\ns_cselect_b64 s[70:71], s[{S_W2}:{S_W2+1}], s[70:71]\ns_cselect_b32 s72, s73, s72")
    if n > 1: a(f"s_sub_u32 s76, s76, 1\ns_cmp_lg_u32 s76, 0\ns_cbranch_scc1 {T}")
    a(f"{L}:")
def pf_static(a, ptr, batches):
    a(f"s_lshl_b32 s{S_T0}, s2, 2\ns_add_u32 s{S_T0}, s{S_T0}, s{S_W4}\ns_mul_i32 s{S_T0}, s{S_T0}, 448")
    for b in batches:
        a(f"s_add_u32 s{S_T1}, s{S_T0}, {b*PFB}\ns_add_u32 s{S_PF}, s{ptr}, s{S_T1}\ns_addc_u32 s{S_PF+1}, s{ptr+1}, 0")
        for i in range(7): a(f"s_load_dword s64, s[{S_PF}:{S_PF+1}], {i*64}")

JQ_LDS = 129024
def jm_setup(a, pre, sk):
    a("v_lshrrev_b32 v20, 4, v0\nv_lshlrev_b32 v21, 10, v20\nv_bfe_u32 v22, v0, 2, 2\nv_lshlrev_b32 v22, 7, v22\nv_add_u32 v21, v21, v22")
    a(f"v_and_b32 v22, 3, v0\nv_lshlrev_b32 v22, 3, v22\nv_add_u32 v21, v21, v22\nv_bfe_u32 v22, v0, 3, 2\nv_xor_b32 v22, s{S_W4}, v22\nv_lshlrev_b32 v22, 5, v22")
    a(f"v_add_u32 v40, v21, v22\nv_add_u32 v40, 18432, v40")
    pre()
    for k in range(4): a(f"v_mov_b32 v{44+k}, 0x3f803f80")
    a("v_lshlrev_b32 v41, 12, v20\nv_and_b32 v22, 15, v0\nv_lshl_add_u32 v41, v22, 2, v41\nv_cmp_eq_u32 s[86:87], 1, v20\nv_cmp_eq_u32 s[88:89], 2, v20")
    a(f"v_lshlrev_b32 v22, 4, v22\nv_mul_u32_u24 v42, {3072*4}, v20\nv_add_u32 v42, v42, v22")
    a(f"v_bfe_u32 v23, v0, 4, 1\nv_lshrrev_b32 v24, 5, v0\nv_lshl_add_u32 v23, v24, 1, v23\nv_lshl_add_u32 v43, v23, 2, v22\ns_lshl_b32 s{S_T0}, s{S_W4}, 8\ns_add_u32 s{S_T0}, s{S_T0}, {P1C}\nv_add_u32 v43, s{S_T0}, v43")
    a(f"s_lshl_b32 s{S_T0}, s{S_RB}, 7\ns_sub_u32 s{S_T0}, s{S_T0}, 16")
    a(f"v_add_u32 v22, s{S_T0}, v0\nv_add_u32 v23, 16, v22\nv_cmp_gt_i32 vcc, 0, v22\nv_add_u32 v24, 128, v0\nv_min_u32 v24, 143, v24\nv_cndmask_b32 v23, v22, v23, vcc")
    a(f"v_lshlrev_b32 v49, 3, v23\nv_add_u32 v22, 64, v22\nv_lshlrev_b32 v50, 3, v22\nv_add_u32 v22, s{S_T0}, v24\nv_lshlrev_b32 v51, 3, v22")
    a(f"v_mov_b32 v22, {P1C}\nv_lshl_add_u32 v52, v0, 2, v22\nv_lshl_add_u32 v53, v0, 3, v22\nv_lshl_add_u32 v54, v24, 3, v22\nv_lshl_add_u32 v55, v24, 2, v22")
    a(f"s_mul_i32 s84, s{sk}, {3072*4}\ns_lshl_b32 s91, s{S_CB}, 8\ns_add_u32 s84, s84, s91\ns_lshl_b32 s{S_T0}, s{S_W4}, 6\ns_add_u32 s84, s84, s{S_T0}")
    a(f"s_add_u32 s90, s91, {FL_Q}\ns_lshl_b32 s82, s{sk}, 4\ns_lshl_b32 s{S_T0}, s{S_W4}, 2\ns_add_u32 s82, s82, s{S_T0}\ns_add_u32 s82, s82, s90\ns_add_u32 s91, s91, s{S_LA}")
    srd(a, SRD_D, S_WS, 1 << 20, WS_CQ)
    srd(a, SRD_C, S_WS, 16384, WS_GR)
def jm_issue(a, ph, q):
    a(f"s_mul_i32 s{S_KB}, s{S_RB}, {ph.kb_step}\ns_mov_b32 s{S_LDS}, {JQ_LDS - 18432}")
    emit_stage_loads(a, ph, 'B'); q.push('jm', 6)
def jm_process(a, q, first_use_of_e=False):
    for t in range(3):
        for kb in range(2):
            d = 56 + 8*t + 4*kb
            a(f"ds_read_b64_tr_b16 v[{d}:{d+1}], v40 offset:{t*8192 + kb*4096}\nds_read_b64_tr_b16 v[{d+2}:{d+3}], v40 offset:{t*8192 + kb*4096 + 512}")
    a("s_waitcnt lgkmcnt(0)")
    if first_use_of_e: a(f"s_add_u32 s{S_E}, s{S_E}, 1")
    for kb in range(2):
        for t in range(3):
            d = 56 + 8*t + 4*kb
            a(f"v_mfma_f32_16x16x32_bf16 v[{80+4*t}:{83+4*t}], v[44:47], v[{d}:{d+3}], " + ("0" if kb == 0 else f"v[{80+4*t}:{83+4*t}]"))
    a("s_nop 7\nv_cndmask_b32 v80, v80, v84, s[86:87]\nv_cndmask_b32 v80, v80, v88, s[88:89]")
    a(f"s_mov_b32 exec_hi, 0xffff\nbuffer_store_dword v80, v41, s[{SRD_D}:{SRD_D+3}], s84 offen sc1\ns_mov_b64 exec, -1")
    q.push('jms', 1)
def jm_flag(a, q):
    q.wait('jms')
    flag_set(a, 82, only_wave=None); q.push('jmf', 1)
def jg2_loads(a):
    Lr = a.lab('rows'); Le = a.lab('gend')
    a(f"s_cmp_eq_u32 s{S_W4}, 3\ns_cbranch_scc1 {Lr}")
    a(f"buffer_load_dword v48, v30, s[{SRD_F}:{SRD_F+3}], s90 offen sc1")
    for k in range(4):
        a(f"s_add_u32 s{S_T1}, s91, {k*4*3072*4}\nbuffer_load_dwordx4 v[{56+4*k}:{59+4*k}], v42, s[{SRD_D}:{SRD_D+3}], s{S_T1} offen sc1")
    a(f"s_branch {Le}\n{Lr}:")
    for j in range(3): a(f"buffer_load_dwordx2 v[{56+2*j}:{57+2*j}], v{49+j}, s[{SRD_C}:{SRD_C+3}], 0 offen sc1")
    a(f"{Le}:")
def jg2_issue(a, q):
    jg2_loads(a); q.push('jg', 3)
def jg2_process(a, q):
    q.wait('jg')
    Lc = a.lab('gchk'); Lr = a.lab('grows'); Le = a.lab('gdone'); Lt = a.lab('gretry')
    a(f"s_mov_b32 s83, 0\n{Lc}:\ns_cmp_eq_u32 s{S_W4}, 3\ns_cbranch_scc1 {Lr}")
    a(f"v_cmp_ne_u32 vcc, s{S_E}, v48\ns_cbranch_vccnz {Lt}")
    fold4(a, 56)
    a(f"ds_write_b32 v43, v56\ns_branch {Le}")
    a(f"{Lt}:\ns_add_u32 s83, s83, 1\ns_cmp_gt_u32 s83, 0x8000\ns_cbranch_scc1 {Le}")
    jg2_loads(a)
    a(f"s_waitcnt vmcnt(0)\ns_branch {Lc}")
    a(f"{Lr}:\nv_cmp_ne_u32 vcc, s{S_E}, v57\ns_cbranch_vccnz {Lt}\nv_cmp_ne_u32 vcc, s{S_E}, v59\ns_cbranch_vccnz {Lt}\nv_cmp_ne_u32 vcc, s{S_E}, v61\ns_cbranch_vccnz {Lt}")
    for j in range(3): a(f"v_and_b32 v{64+2*j}, 0xffff0000, v{56+2*j}")
    for j in range(3): a(f"v_rcp_f32 v{64+2*j}, v{64+2*j}")
    for j in range(3): a(f"v_lshlrev_b32 v{65+2*j}, 16, v{56+2*j}")
    a("ds_write_b64 v53, v[64:65] offset:768\nds_write_b64 v53, v[66:67] offset:1280\nds_write_b64 v54, v[68:69] offset:768")
    a("ds_write_b32 v52, v65 offset:1920\nds_write_b32 v52, v67 offset:2176\nds_write_b32 v55, v69 offset:1920")
    a("ds_write_b32 v52, v64 offset:2496\nds_write_b32 v52, v66 offset:2752\nds_write_b32 v55, v68 offset:2496")
    a(f"{Le}:\ns_waitcnt lgkmcnt(0)")

class NoQ:
    def push(self, *x): pass
    def wait(self, *x): pass

def jm_issue_l(a, ph, ldsbase):
    a(f"s_mov_b32 s85, s{S_LDS}\ns_mul_i32 s{S_KB}, s{S_RB}, {ph.kb_step}\ns_mov_b32 s{S_LDS}, {ldsbase}")
    emit_stage_loads(a, ph, 'B')
    a(f"s_mov_b32 s{S_LDS}, s85")
def jm_flag_l(a, n, sflag=82):
    a(f"s_waitcnt vmcnt({n})")
    flag_set(a, sflag, only_wave=None)

J3_LDS = 135168
def j3_setup(a, pre, sk):
    tr_lane_part(a, 40, 20, 21, 128, jreg=S_W4)
    a(f"v_add_u32 v40, 16384, v40\ns_and_b32 s{S_T0}, s{S_W4}, 1")
    tr_lane_part(a, 39, 20, 21, 64, jreg=S_T0)
    a(f"v_add_u32 v39, 40960, v39")
    pre()
    a(f"s_and_b32 s{S_T0}, s{S_W4}, 1")
    for k in range(4): a(f"v_mov_b32 v{44+k}, 0x3f803f80")
    a(f"s_mul_i32 s{S_T1}, s{S_CB}, 224\ns_and_b32 s{S_T2}, s{S_CB}, 1\ns_lshl_b32 s{S_T3}, s{S_T2}, 5\ns_add_u32 s{S_T3}, s{S_T3}, s{S_T1}\ns_lshl_b32 s84, s{S_W4}, 4\ns_add_u32 s{S_T3}, s{S_T3}, s84")
    a(f"s_cmp_eq_u32 s{S_T2}, 0\ns_cselect_b32 s{S_T2}, 192, 0\ns_add_u32 s{S_T2}, s{S_T2}, s{S_T1}\ns_lshl_b32 s{S_T0}, s{S_T0}, 4\ns_add_u32 s{S_T2}, s{S_T2}, s{S_T0}")
    a(f"v_lshrrev_b32 v20, 4, v0\nv_lshlrev_b32 v41, 6, v20\nv_add_u32 v41, s{S_T3}, v41\nv_mov_b32 v21, s{S_T2}")
    a("v_cmp_eq_u32 s[86:87], 1, v20\nv_cmp_eq_u32 s[88:89], 2, v20\nv_cmp_eq_u32 s[90:91], 3, v20\nv_and_b32 v22, 15, v0\ns_nop 0\nv_cndmask_b32 v41, v41, v21, s[90:91]\nv_add_lshl_u32 v41, v41, v22, 2")
    a(f"s_mul_i32 s84, s{sk}, {3584*4}\ns_add_u32 s84, s84, {1 << 20}")
    a(f"s_lshl_b32 s83, s{S_CB}, 8\ns_add_u32 s83, s83, {FL_C}\ns_lshl_b32 s82, s{sk}, 4\ns_lshl_b32 s{S_T0}, s{S_W4}, 2\ns_add_u32 s82, s82, s{S_T0}\ns_add_u32 s82, s82, s83")
    srd(a, SRD_C, S_WS, 2 << 20, WS_ST)
    srd(a, SRD_D, S_B1, 3584*2)
    a(f"v_lshlrev_b32 v22, 4, v0\ns_lshl_b32 s80, s{S_RB}, 14\ns_add_u32 s80, s80, s{S_LA}")
    a(f"s_mul_i32 s{S_T0}, s{S_CB}, 224\ns_and_b32 s{S_T1}, s{S_CB}, 1\ns_lshl_b32 s{S_T2}, s{S_T1}, 5\ns_add_u32 s{S_T2}, s{S_T2}, s{S_T0}")
    a(f"s_cmp_eq_u32 s{S_T1}, 0\ns_cselect_b32 s{S_T1}, 0, 192\ns_sub_u32 s{S_T1}, s{S_T0}, s{S_T1}")
    a(f"s_mul_i32 s{S_T0}, s{S_W4}, 14\nv_and_b32 v23, 15, v0\nv_min_u32 v23, 13, v23\nv_add_u32 v23, s{S_T0}, v23\nv_lshlrev_b32 v23, 2, v23")
    a(f"v_cmp_gt_u32 vcc, 192, v23\nv_mov_b32 v24, s{S_T1}\nv_mov_b32 v25, s{S_T2}\nv_cndmask_b32 v24, v24, v25, vcc\nv_add_u32 v24, v24, v23")
    a(f"v_mul_u32_u24 v26, {3584*4}, v20\nv_lshl_add_u32 v26, v24, 2, v26")
    a("v_bfe_u32 v25, v0, 4, 1\nv_lshrrev_b32 v21, 5, v0\nv_lshl_add_u32 v27, v21, 1, v25\nv_add_u32 v23, v23, v27\nv_add_lshl_u32 v24, v24, v27, 1")
    a(f"v_lshlrev_b32 v23, 2, v23\nv_add_u32 v23, {P3_CONST + 1024}, v23")
    a(f"v_and_b32 v27, 7, v0\nv_lshl_add_u32 v27, v27, 1, v25\nv_lshl_add_u32 v27, v21, 4, v27\ns_lshl_b32 s{S_T0}, s{S_W4}, 8\ns_add_u32 s{S_T0}, s{S_T0}, {P3_CONST}\nv_lshlrev_b32 v27, 3, v27\nv_add_u32 v27, s{S_T0}, v27")
    a("v_cmp_ne_u32 s[70:71], 0, v25\nv_cmp_ne_u32 s[72:73], 0, v21")
def j3_process(a):
    for t in range(4):
        for kb in range(2):
            d = 56 + 8*t + 4*kb
            r, o, h = (40, t*8192 + kb*4096, 2048) if t < 3 else (39, kb*2048, 1024)
            a(f"ds_read_b64_tr_b16 v[{d}:{d+1}], v{r} offset:{o}\nds_read_b64_tr_b16 v[{d+2}:{d+3}], v{r} offset:{o + h}")
    a("s_waitcnt lgkmcnt(0)")
    for kb in range(2):
        for t in range(4):
            d = 56 + 8*t + 4*kb
            a(f"v_mfma_f32_16x16x32_bf16 v[{88+4*t}:{91+4*t}], v[44:47], v[{d}:{d+3}], " + ("0" if kb == 0 else f"v[{88+4*t}:{91+4*t}]"))
    a("s_nop 6\nv_cndmask_b32 v88, v88, v92, s[86:87]\nv_cndmask_b32 v88, v88, v96, s[88:89]\nv_cndmask_b32 v88, v88, v100, s[90:91]")
    a(f"buffer_store_dword v88, v41, s[{SRD_C}:{SRD_C+3}], s84 offen sc1")
def j3_cols(a):
    a(f"buffer_load_dword v65, v30, s[{SRD_F}:{SRD_F+3}], s83 offen sc1")
    for k in range(4): a(f"s_mov_b32 s{S_T0}, {(1 << 20) + k*4*3584*4}\nbuffer_load_dwordx4 v[{48+4*k}:{51+4*k}], v26, s[{SRD_C}:{SRD_C+3}], s{S_T0} offen sc1")
def j3_stats(a):
    a(f"buffer_load_dword v66, v30, s[{SRD_F}:{SRD_F+3}], s68 offen sc1")
    for j in range(4): a(f"buffer_load_dwordx4 v[{72+4*j}:{75+4*j}], v22, s[{SRD_C}:{SRD_C+3}], s80 offen offset:{j*1024} sc1")
def j3_issue(a, sflag=False):
    if sflag:
        a(f"s_lshl_b32 s68, s{S_RB}, 8\ns_add_u32 s68, s68, {FL_S}")
        j3_stats(a)
        a(f"buffer_load_ushort v64, v24, s[{SRD_D}:{SRD_D+3}], 0 offen")
        j3_cols(a)
        return 11
    for j in range(4): a(f"buffer_load_dwordx4 v[{72+4*j}:{75+4*j}], v22, s[{SRD_C}:{SRD_C+3}], s80 offen offset:{j*1024} sc1")
    a(f"buffer_load_ushort v64, v24, s[{SRD_D}:{SRD_D+3}], 0 offen")
    j3_cols(a)
    return 10
def j3_finish(a, part, sflag=False):
    B = 72
    M = [88, 89, 90, 91]; V = [96, 97, 98, 99]; T = [92, 93, 94, 95]
    if part == 0:
        a("s_waitcnt vmcnt(0)")
        if sflag:
            Lc = a.lab('s3chk'); Lo = a.lab('s3ok')
            a(f"s_mov_b32 s81, 0\n{Lc}:\nv_cmp_ne_u32 vcc, s{S_E}, v66\ns_cbranch_vccz {Lo}\ns_add_u32 s81, s81, 1\ns_cmp_gt_u32 s81, 0x8000\ns_cbranch_scc1 {Lo}")
            j3_stats(a)
            a(f"s_waitcnt vmcnt(0)\ns_branch {Lc}\n{Lo}:")
        for t in range(2):
            for r in range(2): a(f"v_add_f32 v{M[2*t+r]}, v{B+8*t+2*r}, v{B+4+8*t+2*r}")
        a("s_mov_b32 s84, 0x3c800000\ns_mov_b32 s85, 0x42800000")
        allsum3(a, M, T)
        for m in M: a(f"v_mul_f32 v{m}, 0x3a800000, v{m}")
        return
    Lc = a.lab('c3chk'); Lo = a.lab('c3ok')
    a(f"s_mov_b32 s81, 0\n{Lc}:\nv_cmp_ne_u32 vcc, s{S_E}, v65\ns_cbranch_vccz {Lo}\ns_add_u32 s81, s81, 1\ns_cmp_gt_u32 s81, 0x8000\ns_cbranch_scc1 {Lo}")
    j3_cols(a)
    a(f"s_waitcnt vmcnt(0)\ns_branch {Lc}\n{Lo}:")
    idx = [(t, j, r) for t in range(2) for j in range(2) for r in range(2)]
    for (t, j, r) in idx: a(f"v_fma_f32 v{B+8*t+4*j+2*r}, v{B+8*t+4*j+2*r}, s84, -v{M[2*t+r]}")
    for (t, j, r) in idx: a(f"v_mul_f32 v{B+8*t+4*j+2*r}, v{B+8*t+4*j+2*r}, v{B+8*t+4*j+2*r}")
    for (t, j, r) in idx: a(f"v_fma_f32 v{B+1+8*t+4*j+2*r}, v{B+8*t+4*j+2*r}, s85, v{B+1+8*t+4*j+2*r}")
    for t in range(2):
        for r in range(2): a(f"v_add_f32 v{V[2*t+r]}, v{B+1+8*t+2*r}, v{B+5+8*t+2*r}")
    fold4(a, 48)
    a(f"v_lshlrev_b32 v49, 16, v64\nds_write_b32 v23, v48\nds_write_b32 v23, v49 offset:896")
    allsum3(a, V, T)
    a("v_cndmask_b32 v88, v88, v89, s[70:71]\nv_cndmask_b32 v90, v90, v91, s[70:71]\nv_cndmask_b32 v96, v96, v97, s[70:71]\nv_cndmask_b32 v98, v98, v99, s[70:71]")
    a("v_cndmask_b32 v88, v88, v90, s[72:73]\nv_cndmask_b32 v89, v96, v98, s[72:73]\nv_mul_f32 v89, 0x3a800000, v89")
    ln_scale(a, 88, 89, 90)
    a(f"v_mul_f32 v91, v88, v89\nv_mov_b32 v90, v89\nds_write_b64 v27, v[90:91]")
    a(f"v_mov_b32 v20, {P3_CONST + 2816}\nv_mov_b32 v21, 0\nds_write_b32 v20, v21\nds_write_b32 v20, v21 offset:4\ns_waitcnt lgkmcnt(0)")

def vec_prefetch(a, ptr, first, n, dst):
    srd(a, SRD_A, ptr, 1024*3584*2)
    a(f"s_lshl_b32 s{S_T0}, s2, 2\ns_add_u32 s{S_T0}, s{S_T0}, s{S_W4}\ns_mul_i32 s{S_T0}, s{S_T0}, 7168\ns_add_u32 s{S_T0}, s{S_T0}, {first*1024}\nv_lshlrev_b32 v1, 4, v0")
    for i in range(n): a(f"buffer_load_dwordx4 v[{dst+4*i}:{dst+4*i+3}], v1, s[{SRD_A}:{SRD_A+3}], s{S_T0} offen offset:{i*1024}")

def cs1_issue(a):
    srd(a, SRD_C, S_W1, 1024*3584*2)
    srd(a, SRD_D, S_WS, 1 << 20, WS_CS)
    a(f"v_lshrrev_b32 v22, 3, v0\nv_mul_u32_u24 v22, 7168, v22\nv_and_b32 v23, 7, v0\nv_min_u32 v23, 6, v23\nv_lshlrev_b32 v24, 4, v23\nv_add_u32 v22, v22, v24")
    a(f"s_mul_i32 s{S_T0}, s{S_RB}, {64*7168}\ns_mul_i32 s{S_T1}, s{S_CB}, 448\ns_add_u32 s{S_T0}, s{S_T0}, s{S_T1}\ns_mul_i32 s{S_T1}, s{S_W4}, 112\ns_add_u32 s{S_T0}, s{S_T0}, s{S_T1}")
    for j in range(8):
        a(f"s_add_u32 s{S_T1}, s{S_T0}, {j*8*7168}\nbuffer_load_dwordx4 v[{32+4*j}:{35+4*j}], v22, s[{SRD_C}:{SRD_C+3}], s{S_T1} offen")
def cs1_finish(a, younger):
    a(f"s_mul_i32 s{S_T0}, s{S_RB}, {3584*4}\ns_mul_i32 s{S_T1}, s{S_CB}, 896\ns_add_u32 s{S_T0}, s{S_T0}, s{S_T1}\ns_mul_i32 s{S_T1}, s{S_W4}, 224\ns_add_u32 s{S_T0}, s{S_T0}, s{S_T1}")
    cs_store_voff(a, 23, 23)
    for j in range(8):
        a(f"s_waitcnt vmcnt({7 - j + younger})")
        for x in cs_acc(32, j): a(x)
    for x in cs_fold(): a(x)
    a(f"s_mov_b32 exec_lo, 0x007f007f\ns_mov_b32 exec_hi, 0x007f007f\nbuffer_store_dwordx2 v[64:65], v23, s[{SRD_D}:{SRD_D+3}], s{S_T0} offen sc1\ns_mov_b64 exec, -1")
    a(f"s_lshl_b32 s82, s{S_CB}, 8\ns_lshl_b32 s{S_T0}, s{S_RB}, 4\ns_add_u32 s82, s82, s{S_T0}\ns_lshl_b32 s{S_T0}, s{S_W4}, 2\ns_add_u32 s82, s82, s{S_T0}\ns_add_u32 s82, s82, {FL_C}")
    a(f"v_mov_b32 v240, 0\nv_mov_b32 v241, s{S_E}")
def cs1_flag(a):
    a(f"s_waitcnt vmcnt(0)\ns_mov_b64 exec, 1\nbuffer_store_dword v241, v240, s[{SRD_F}:{SRD_F+3}], s82 offen sc1\ns_mov_b64 exec, -1")

S_RDY = 77
def need_flags(a, mask, p4=False, sleep=0):
    L = a.lab('nd'); K = a.lab('rdy')
    if p4:
        a(f"s_mul_i32 s{S_T1}, s{S_T0}, 294\ns_add_u32 s{S_T2}, s{S_T1}, 147\ns_lshr_b32 s{S_T1}, s{S_T1}, 10\ns_lshr_b32 s{S_T2}, s{S_T2}, 10")
        a(f"s_lshl_b32 s{S_T1}, 1, s{S_T1}\ns_lshl_b32 s{S_T2}, 1, s{S_T2}\ns_or_b32 s{S_T1}, s{S_T1}, s{S_T2}")
    else:
        a(f"s_lshl_b32 s{S_T1}, 1, s{S_T0}")
    a(f"s_andn2_b32 s{S_T2}, s{S_T1}, s{S_RDY}\ns_cbranch_scc0 {K}")
    a(f"s_mov_b64 exec, {mask:#x}\ns_mov_b32 s{S_T3}, 0\n{L}:")
    if sleep: a(f"s_sleep {sleep}")
    a(f"buffer_load_dword v31, v30, s[{SRD_F}:{SRD_F+3}], s{S_FO} offen sc1\ns_add_u32 s{S_T3}, s{S_T3}, 1\ns_waitcnt vmcnt(0)\nv_cmp_eq_u32 vcc, s{S_E}, v31\ns_nop 1")
    a(f"s_cmp_gt_u32 s{S_T3}, 0x20000\ns_cselect_b32 s{S_RDY}, -1, vcc_lo\ns_andn2_b32 s{S_T2}, s{S_T1}, s{S_RDY}\ns_cbranch_scc1 {L}\ns_mov_b64 exec, -1\n{K}:")

def duty_stage(a, ph, sduty, dst):
    L = a.lab('ds'); K = a.lab('dk')
    a(f"s_mov_b32 s{dst}, 0\ns_mov_b64 s[{S_T1}:{S_T1+1}], s[{S_SEQ}:{S_SEQ+1}]\n{L}:\ns_and_b32 s{S_T0}, s{S_T1}, 15\ns_cmp_eq_u32 s{S_T0}, s{sduty}\ns_cbranch_scc1 {K}")
    a(f"s_lshr_b64 s[{S_T1}:{S_T1+1}], s[{S_T1}:{S_T1+1}], 4\ns_add_u32 s{dst}, s{dst}, 1\ns_cmp_lt_u32 s{dst}, 15\ns_cbranch_scc1 {L}\n{K}:")

S_DT = 69
def duty_setup(a, ph, sidx, regs, sflag_base, skrow, S_DT=69):
    duty_stage(a, ph, sidx, S_DT)
    a(f"s_mul_i32 s{S_T0}, s{S_DT}, 43\ns_lshr_b32 s{S_T0}, s{S_T0}, 7\ns_mul_i32 s{S_T0}, s{S_T0}, 3\ns_sub_u32 s{S_T0}, s{S_DT}, s{S_T0}\ns_mul_i32 s{S_T0}, s{S_T0}, {ph.stage}")
    for r in regs: a(f"v_add_u32 v{r}, s{S_T0}, v{r}")
    a(f"s_add_u32 s{S_DT}, s{S_DT}, 2\ns_add_u32 s{skrow}, s{sidx}, s{S_XR}\ns_and_b32 s{skrow}, s{skrow}, 15")
def duty_hook(a, process, n, S_DT=69, sflag=82):
    L = a.lab('nd1'); M = a.lab('nd2')
    a(f"s_cmp_lg_u32 s{S_T}, s{S_DT}\ns_cbranch_scc1 {L}")
    process()
    a(f"s_branch {M}\n{L}:\ns_add_u32 s{S_T0}, s{S_DT}, 1\ns_cmp_lg_u32 s{S_T}, s{S_T0}\ns_cbranch_scc1 {M}")
    jm_flag_l(a, n, sflag)
    a(f"{M}:")

def lp_setup(a):
    a(f"s_lshl_b32 s74, s2, 2\ns_add_u32 s74, s74, s{S_W4}\ns_mul_i32 s74, s74, 448\ns_mov_b32 s75, {8*PFB}")
def lp_step(a, ptr, steps, duty=False):
    if not steps: return
    L = a.lab('lp')
    m = sum(1 << t for t in steps)
    a(f"s_bitcmp1_b32 {m:#x}, s{S_T}\ns_cbranch_scc0 {L}\ns_getreg_b32 s{S_T0}, hwreg(HW_REG_IB_STS, 8, 4)\ns_cmp_gt_u32 s{S_T0}, 8\ns_cbranch_scc1 {L}")
    a(f"s_cmp_ge_u32 s74, {16*PFB}\ns_cbranch_scc1 {L}")
    if duty: a(f"s_add_u32 s{S_T0}, s{S_T}, 1\ns_cmp_eq_u32 s{S_T0}, s{S_DT}\ns_cbranch_scc1 {L}")
    if duty == 2: a(f"s_cmp_eq_u32 s{S_T0}, s{S_DR}\ns_cbranch_scc1 {L}")
    a(f"s_add_u32 s{S_PF}, s{ptr}, s74\ns_addc_u32 s{S_PF+1}, s{ptr+1}, 0")
    a(f"s_load_dwordx2 s[66:67], s[{S_PF}:{S_PF+1}], 60\ns_load_dwordx2 s[66:67], s[{S_PF}:{S_PF+1}], 188\ns_load_dwordx2 s[66:67], s[{S_PF}:{S_PF+1}], 316\ns_load_dword s66, s[{S_PF}:{S_PF+1}], 384")
    a(f"s_add_u32 s74, s74, s75\ns_sub_u32 s75, {PFB}, s75\n{L}:")

def warm_flags(a):
    a(f"s_lshl_b32 s{S_T0}, s2, 2\ns_add_u32 s{S_T0}, s{S_T0}, s{S_W4}\ns_lshl_b32 s{S_T1}, s{S_T0}, 7\ns_add_u32 s{S_T1}, s{S_T1}, {FL_X}\ns_and_b32 s{S_T0}, s{S_T0}, 0x3ff\ns_lshl_b32 s{S_T0}, s{S_T0}, 6")
    a(f"s_load_dword s66, s[{SRD_F}:{SRD_F+1}], s{S_T0}\ns_load_dword s66, s[{SRD_F}:{SRD_F+1}], s{S_T1}")

P2XL = 122880
def p2x_dma(a, thr):
    srd(a, SRD_C, S_X, 2048*1024*2)
    a("v_lshrrev_b32 v20, 3, v0\nv_lshlrev_b32 v20, 11, v20\nv_lshrrev_b32 v21, 4, v0\nv_and_b32 v22, 7, v0\nv_xor_b32 v21, v21, v22\nv_lshl_add_u32 v6, v21, 4, v20\nv_xor_b32 v7, 64, v6")
    a(f"s_lshl_b32 s{S_T0}, s{S_RB}, 18\ns_lshl_b32 s{S_T1}, s{S_W4}, 16\ns_add_u32 s{S_T0}, s{S_T0}, s{S_T1}\ns_lshl_b32 s{S_T1}, s{S_CB}, 7\ns_add_u32 s{S_T0}, s{S_T0}, s{S_T1}")
    for i in range(4):
        a(f"s_add_u32 m0, s{S_LA}, {P2XL + i*1024}\ns_add_u32 s{S_T1}, s{S_T0}, {i*16384}\ns_waitcnt vmcnt({thr})\nbuffer_load_dwordx4 v{6 + (i & 1)}, s[{SRD_C}:{SRD_C+3}], s{S_T1} offen lds")
def p2x_read(a):
    a(f"v_and_b32 v8, 15, v0\nv_lshrrev_b32 v9, 1, v8\nv_lshrrev_b32 v10, 5, v0\nv_xor_b32 v9, v9, v10\nv_lshlrev_b32 v9, 4, v9\nv_lshl_add_u32 v8, v8, 7, v9")
    a(f"v_bfe_u32 v9, v0, 4, 1\nv_lshl_add_u32 v8, v9, 3, v8\ns_lshl_b32 s84, s{S_W4}, 12\ns_add_u32 s84, s84, {P2XL}\nv_add_u32 v8, s84, v8")
    for j in range(1, 4): a(f"v_xor_b32 v{8+j}, {32*j}, v8")
    for i in range(2):
        for j in range(4):
            d = P2_X + 2*(i*4 + j)
            a(f"ds_read_b64 v[{d}:{d+1}], v{8+j} offset:{i*2048}")

import copy
def make_p4t(d, lead=1):
    pa = make_p4(lead); pa.S = 28 - d; pa.wrap = False; pa.aflags = 'sc1'
    pb = copy.copy(pa); pb.name = 'P4b'; pb.S = 2*d; pb.linear = True
    pb.pieces = [x for x in pa.pieces if x[0] == 'A'] + [('B', 16 + i, S_LH, 16384 + i*1024, 0, None) for i in range(2)]
    pb.addr_regs = [2, 4, 5]
    pb.bfr = pa.bfr[:2]
    pb.mm = [m for m in pa.mm if m[2] < 2]
    return pa, pb

def p4t_producer_setup(a, d):
    srd(a, SRD_A, S_WS, 16 << 20, WS_G)
    srd(a, SRD_B, S_W2, 3584*1024*2)
    a(f"s_lshl_b32 s{S_LA}, s{S_W4}, 12\ns_lshl_b32 s{S_LB}, s{S_W4}, 11\ns_lshl_b32 s{S_LH}, s{S_KH}, 13\ns_add_u32 s{S_LH}, s{S_LH}, s{S_LB}")
    a(f"s_lshl_b32 s{S_T0}, s{S_RB}, 3\ns_lshl_b32 s{S_T1}, s{S_W4}, 1\ns_add_u32 s{S_T1}, s{S_T0}, s{S_T1}\ns_mul_i32 s{S_T1}, s{S_T1}, {112*1024}")
    a(f"v_lshlrev_b32 v10, 4, v0\nv_add_u32 v10, s{S_T1}, v10\nv_add_u32 v11, {112*1024}, v10")
    a(f"s_lshl_b32 s{S_T2}, s{S_CB}, 8\ns_lshl_b32 s{S_T0}, s{S_W4}, 15\ns_add_u32 s{S_T2}, s{S_T2}, s{S_T0}")
    dma_b_lane(a, 12, 20, 21, 2048, 128)
    a(f"v_add_u32 v12, s{S_T2}, v12\nv_add_u32 v13, {8*2048}, v12\nv_add_u32 v14, 128, v12\nv_add_u32 v15, 128, v13")
    a(f"s_lshl_b32 s{S_T0}, s{S_KH}, 7\nv_add_u32 v16, s{S_T0}, v12\nv_add_u32 v17, s{S_T0}, v13")
    a(f"s_mul_i32 s{S_XR}, s{S_KH}, {28 + d}\ns_sub_u32 s{S_XR}, s{S_XR}, 1")

def p4t_setup_exchange(a, fbase):
    srd(a, SRD_B, S_WS, 8 << 20, WS_PX)
    srd(a, SRD_A, S_OUT, 2048*1024*2)
    a(f"s_lshl_b32 s{S_T0}, s{S_RB}, 3\ns_add_u32 s{S_T0}, s{S_T0}, s{S_CB}\ns_lshl_b32 s{S_T0}, s{S_T0}, 1\ns_add_u32 s{S_T0}, s{S_T0}, s{S_KH}")
    a(f"s_lshl_b32 s{S_T3}, s{S_T0}, 2\ns_add_u32 s{S_T3}, s{S_T3}, s{S_W4}")
    a(f"s_lshl_b32 s86, s{S_T3}, 13\ns_add_u32 s87, s86, 4096\ns_xor_b32 s88, s86, 0x8000\ns_xor_b32 s89, s87, 0x8000")
    a(f"s_lshl_b32 s90, s{S_T3}, 7\ns_add_u32 s90, s90, {fbase}\ns_xor_b32 s91, s90, 0x200")
    a(f"v_mov_b32 v8, 0\nv_mov_b32 v9, s{S_E}")
    a("v_and_b32 v10, 15, v0\nv_lshlrev_b32 v10, 11, v10\nv_bfe_u32 v11, v0, 4, 1\nv_lshl_add_u32 v10, v11, 5, v10\nv_bfe_u32 v11, v0, 5, 1\nv_lshl_add_u32 v10, v11, 4, v10")
    a(f"s_lshl_b32 s80, s82, 15\ns_lshl_b32 s81, s83, 6\ns_add_u32 s80, s80, s81")

P4_HB, P4_RX = 176, 208
def p4t_extras(a, ph, d, t_flag, t_poll):
    acc = lambda n: ph.vacc + 4*n
    ex = {}
    ex[(0, 1)] = [f"buffer_store_dwordx4 v[{acc(i*4+2+c)}:{acc(i*4+2+c)+3}], v3, s[{SRD_B}:{SRD_B+3}], s{86 + ((i*2+c) >> 2)} offen offset:{((i*2+c) & 3)*1024} sc1" for i in range(4) for c in range(2)]
    hb = ["s_waitcnt vmcnt(8)"]
    for h in range(4): hb += [f"v_lshlrev_b32 v{100+2*h}, 16, v{96+h}", f"v_and_b32 v{101+2*h}, 0xffff0000, v{96+h}"]
    ex[(1, 0)] = hb
    rest = []
    for i in range(4):
        for h in range(4):
            dd = P4_HB + 8*i + 2*h
            rest += [f"v_lshlrev_b32 v{dd}, 16, v{P4_H+4*i+h}", f"v_and_b32 v{dd+1}, 0xffff0000, v{P4_H+4*i+h}", f"v_pk_add_f32 v[{dd}:{dd+1}], v[{dd}:{dd+1}], v[{100+2*h}:{101+2*h}]"]
    slots = [(t, hf) for t in range(1, 2*d) for hf in range(2)][1:5]
    for k, sl in enumerate(slots): ex.setdefault(sl, []).extend(rest[12*k:12*k+12])
    ex.setdefault((t_flag, 0), []).append(f"s_waitcnt vmcnt(0)\ns_mov_b64 exec, 1\nbuffer_store_dword v9, v8, s[{SRD_F}:{SRD_F+3}], s90 offen sc1\ns_mov_b64 exec, -1")
    ex.setdefault((t_poll, 0), []).append(f"buffer_load_dword v12, v8, s[{SRD_F}:{SRD_F+3}], s91 offen sc1")
    L = a.lab('xp')
    chk = [f"s_mov_b32 s81, 0\n{L}:\ns_waitcnt vmcnt(0)\nv_cmp_eq_u32 vcc, s{S_E}, v12\ns_cbranch_vccnz {L}_k\ns_add_u32 s81, s81, 1\ns_cmp_gt_u32 s81, 0x20000\ns_cbranch_scc1 {L}_k\n"
           f"buffer_load_dword v12, v8, s[{SRD_F}:{SRD_F+3}], s91 offen sc1\ns_branch {L}\n{L}_k:"]
    chk += [f"buffer_load_dwordx4 v[{P4_RX+4*n}:{P4_RX+4*n+3}], v3, s[{SRD_B}:{SRD_B+3}], s{88 + (n >> 2)} offen offset:{(n & 3)*1024} sc1" for n in range(8)]
    ex.setdefault((t_poll + 1, 0), []).extend(chk)
    return ex

def p4t_epilogue(a, ph, sf=''):
    acc = lambda n: ph.vacc + 4*n
    P = lambda r: f"v[{r}:{r+1}]"
    a("s_nop 3")
    for i in range(4):
        for k in range(0, 8, 2): a(f"v_pk_add_f32 {P(acc(i*4)+k)}, {P(acc(i*4)+k)}, {P(P4_HB+8*i+k)}")
    for i in range(4):
        a(f"s_waitcnt vmcnt({6 - i})")
        dd = acc(i*4)
        for k in range(0, 8, 2): a(f"v_pk_add_f32 {P(dd+k)}, {P(dd+k)}, {P(P4_RX+8*i+k)}")
        U = 64 + 4*i
        for k in range(4): a(f"v_cvt_pk_bf16_f32 v{U+k}, v{dd+2*k}, v{dd+2*k+1}")
        a(f"s_add_u32 s81, s80, {i*32768}\ns_nop 0\nv_permlane16_swap_b32 v{U}, v{U+2}\nv_permlane16_swap_b32 v{U+1}, v{U+3}")
        a(f"buffer_store_dwordx4 v[{U}:{U+3}], v10, s[{SRD_A}:{SRD_A+3}], s81 offen {sf}")

def p4x_setup(a):
    srd(a, SRD_B, S_WS, 8 << 20, WS_PX)
    srd(a, SRD_A, S_OUT, 2048*1024*2)
    a(f"s_lshl_b32 s{S_T0}, s{S_RB}, 3\ns_add_u32 s{S_T0}, s{S_T0}, s{S_CB}\ns_lshl_b32 s{S_T0}, s{S_T0}, 1\ns_add_u32 s{S_T0}, s{S_T0}, s{S_KH}")
    a(f"s_lshl_b32 s{S_T3}, s{S_T0}, 2\ns_add_u32 s{S_T3}, s{S_T3}, s{S_W4}")
    a(f"s_lshl_b32 s86, s{S_T3}, 13\ns_add_u32 s87, s86, 4096\ns_xor_b32 s88, s86, 0x8000\ns_xor_b32 s89, s87, 0x8000")
    a(f"v_mov_b32 v12, s{S_E}\nv_lshrrev_b32 v13, 8, v12\nv_lshrrev_b32 v14, 16, v12\nv_lshrrev_b32 v15, 24, v12\ns_movk_i32 s90, 0xff\ns_mov_b32 s91, 0x0c0c0400")
    a("v_and_b32 v10, 15, v0\nv_lshlrev_b32 v10, 11, v10\nv_bfe_u32 v11, v0, 4, 1\nv_lshl_add_u32 v10, v11, 5, v10\nv_bfe_u32 v11, v0, 5, 1\nv_lshl_add_u32 v10, v11, 4, v10")
    a(f"s_lshl_b32 s80, s82, 15\ns_lshl_b32 s81, s83, 6\ns_add_u32 s80, s80, s81")

def p4x_epilogue(a, ph, sf='', spin_first=True):
    acc = lambda n: ph.vacc + 4*n
    P = lambda r: f"v[{r}:{r+1}]"
    RX = 24
    for i in range(4):
        for c in range(2):
            n = i*2 + c; s = acc(i*4 + 2 + c)
            for k in range(4): a(f"v_bfi_b32 v{s+k}, s90, v{12+k}, v{s+k}")
            a(f"buffer_store_dwordx4 v[{s}:{s+3}], v3, s[{SRD_B}:{SRD_B+3}], s{86 + (n >> 2)} offen offset:{(n & 3)*1024} sc1")
    a("s_waitcnt vmcnt(8)")
    for h in range(4): a(f"v_lshlrev_b32 v{100+2*h}, 16, v{96+h}\nv_and_b32 v{101+2*h}, 0xffff0000, v{96+h}")
    for i in range(4):
        for h in range(4):
            a(f"v_lshlrev_b32 v{56+2*h}, 16, v{P4_H+4*i+h}\nv_and_b32 v{57+2*h}, 0xffff0000, v{P4_H+4*i+h}")
        for h in range(4): a(f"v_pk_add_f32 {P(56+2*h)}, {P(56+2*h)}, {P(100+2*h)}")
        for h in range(4): a(f"v_pk_add_f32 {P(acc(i*4)+2*h)}, {P(acc(i*4)+2*h)}, {P(56+2*h)}")
    def load(n): a(f"buffer_load_dwordx4 v[{RX+4*n}:{RX+4*n+3}], v3, s[{SRD_B}:{SRD_B+3}], s{88 + (n >> 2)} offen offset:{(n & 3)*1024} sc1")
    def tags(n, first):
        r = RX + 4*n
        a(f"v_perm_b32 v16, v{r+1}, v{r}, s91\nv_perm_b32 v17, v{r+3}, v{r+2}, s91\nv_lshl_or_b32 v16, v17, 16, v16")
        a(f"v_xor_b32 v18, v16, v12" if first else f"v_xor_b32 v16, v16, v12\nv_or_b32 v18, v18, v16")
    L = a.lab('xs'); K = a.lab('xa')
    a("s_mov_b32 s81, 0")
    if not spin_first: a(f"s_branch {K}")
    a(f"{L}:\ns_add_u32 s81, s81, 1\ns_cmp_gt_u32 s81, 0x20000\ns_cbranch_scc1 {K}_x")
    load(7); a("s_waitcnt vmcnt(0)"); tags(7, True)
    a(f"v_cmp_ne_u32 vcc, 0, v18\ns_cbranch_vccnz {L}\n{K}:")
    for n in range(8): load(n)
    for n in range(8):
        a(f"s_waitcnt vmcnt({7-n})"); tags(n, n == 0)
    a(f"v_cmp_ne_u32 vcc, 0, v18\ns_cbranch_vccnz {L}\n{K}_x:")
    for i in range(4):
        dd = acc(i*4)
        for k in range(0, 8, 2): a(f"v_pk_add_f32 {P(dd+k)}, {P(dd+k)}, {P(RX+8*i+k)}")
        U = 64 + 4*i
        for k in range(4): a(f"v_cvt_pk_bf16_f32 v{U+k}, v{dd+2*k}, v{dd+2*k+1}")
        a(f"s_add_u32 s81, s80, {i*32768}\ns_nop 0\nv_permlane16_swap_b32 v{U}, v{U+2}\nv_permlane16_swap_b32 v{U+1}, v{U+3}")
        a(f"buffer_store_dwordx4 v[{U}:{U+3}], v10, s[{SRD_A}:{SRD_A+3}], s81 offen {sf}")

def p4b_setup(a, fbase):
    srd(a, SRD_B, S_WS, 8 << 20, WS_PX)
    srd(a, SRD_A, S_OUT, 2048*1024*2)
    a(f"s_lshl_b32 s{S_T0}, s{S_RB}, 3\ns_add_u32 s{S_T0}, s{S_T0}, s{S_CB}\ns_lshl_b32 s{S_T0}, s{S_T0}, 1\ns_add_u32 s{S_T0}, s{S_T0}, s{S_KH}")
    a(f"s_lshl_b32 s{S_T3}, s{S_T0}, 2\ns_add_u32 s{S_T3}, s{S_T3}, s{S_W4}")
    a(f"s_lshl_b32 s86, s{S_T3}, 12\ns_xor_b32 s88, s86, 0x4000")
    a(f"s_lshl_b32 s90, s{S_T3}, 7\ns_add_u32 s90, s90, {fbase}\ns_xor_b32 s91, s90, 0x200")
    a(f"v_mov_b32 v8, 0\nv_mov_b32 v9, s{S_E}")
    a("v_and_b32 v10, 15, v0\nv_lshlrev_b32 v10, 11, v10\nv_bfe_u32 v11, v0, 4, 1\nv_lshl_add_u32 v10, v11, 5, v10\nv_bfe_u32 v11, v0, 5, 1\nv_lshl_add_u32 v10, v11, 4, v10")
    a(f"s_lshl_b32 s80, s82, 15\ns_lshl_b32 s81, s83, 6\ns_add_u32 s80, s80, s81")

def p4b_epilogue(a, ph, sf=''):
    acc = lambda n: ph.vacc + 4*n
    P = lambda r: f"v[{r}:{r+1}]"
    RX = 24
    for i in range(4):
        s = acc(i*4 + 2)
        for k in range(4): a(f"v_cvt_pk_bf16_f32 v{64+4*i+k}, v{s+2*k}, v{s+2*k+1}")
        a(f"buffer_store_dwordx4 v[{64+4*i}:{67+4*i}], v3, s[{SRD_B}:{SRD_B+3}], s86 offen offset:{i*1024} sc1")
    a("s_waitcnt vmcnt(4)")
    for h in range(4): a(f"v_lshlrev_b32 v{100+2*h}, 16, v{96+h}\nv_and_b32 v{101+2*h}, 0xffff0000, v{96+h}")
    for i in range(4):
        for h in range(4):
            a(f"v_lshlrev_b32 v{56+2*h}, 16, v{P4_H+4*i+h}\nv_and_b32 v{57+2*h}, 0xffff0000, v{P4_H+4*i+h}")
        for h in range(4): a(f"v_pk_add_f32 {P(56+2*h)}, {P(56+2*h)}, {P(100+2*h)}")
        for h in range(4): a(f"v_pk_add_f32 {P(acc(i*4)+2*h)}, {P(acc(i*4)+2*h)}, {P(56+2*h)}")
    L = a.lab('xp')
    a(f"s_waitcnt vmcnt(0)\ns_mov_b64 exec, 1\nbuffer_store_dword v9, v8, s[{SRD_F}:{SRD_F+3}], s90 offen sc1\ns_mov_b32 s81, 0")
    a(f"{L}:\nbuffer_load_dword v12, v8, s[{SRD_F}:{SRD_F+3}], s91 offen sc1\ns_add_u32 s81, s81, 1\ns_cmp_gt_u32 s81, 0x20000\ns_cbranch_scc1 {L}_x\ns_waitcnt vmcnt(0)\nv_cmp_ne_u32 vcc, s{S_E}, v12\ns_cbranch_vccnz {L}\n{L}_x:\ns_mov_b64 exec, -1")
    for n in range(4): a(f"buffer_load_dwordx4 v[{RX+4*n}:{RX+4*n+3}], v3, s[{SRD_B}:{SRD_B+3}], s88 offen offset:{n*1024} sc1")
    for i in range(4):
        a(f"s_waitcnt vmcnt(3)")
        dd = acc(i*4)
        for k in range(4): a(f"v_lshlrev_b32 v{56+2*k}, 16, v{RX+4*i+k}\nv_and_b32 v{57+2*k}, 0xffff0000, v{RX+4*i+k}")
        for k in range(4): a(f"v_pk_add_f32 {P(dd+2*k)}, {P(dd+2*k)}, {P(56+2*k)}")
        U = 64 + 4*i
        for k in range(4): a(f"v_cvt_pk_bf16_f32 v{U+k}, v{dd+2*k}, v{dd+2*k+1}")
        a(f"s_add_u32 s81, s80, {i*32768}\ns_nop 0\nv_permlane16_swap_b32 v{U}, v{U+2}\nv_permlane16_swap_b32 v{U+1}, v{U+3}")
        a(f"buffer_store_dwordx4 v[{U}:{U+3}], v10, s[{SRD_A}:{SRD_A+3}], s81 offen {sf}")

FL_S = 0x8000
def stats_flag_setup(a):
    a(f"s_lshl_b32 s79, s{S_RB}, 8\ns_lshl_b32 s78, s{S_CB}, 4\ns_add_u32 s79, s79, s78\ns_lshl_b32 s78, s{S_W4}, 2\ns_add_u32 s79, s79, s78\ns_add_u32 s79, s79, {FL_S}")
def stats_flag(a):
    a(f"v_mov_b32 v240, 0\nv_mov_b32 v241, s{S_E}\ns_waitcnt vmcnt(0)\ns_mov_b64 exec, 1\nbuffer_store_dword v241, v240, s[{SRD_F}:{SRD_F+3}], s79 offen sc1\ns_mov_b64 exec, -1")

def code_touch(a, at=None):
    L = a.lab('ct'); K = a.lab('pc')
    if at is not None: a(f"s_cmp_lg_u32 s{S_T}, {at}\ns_cbranch_scc1 {L}")
    a(f"s_getpc_b64 s[{S_PF}:{S_PF+1}]\n{K}:\ns_sub_u32 s{S_PF}, s{S_PF}, {K}-KSTART-60\ns_subb_u32 s{S_PF+1}, s{S_PF+1}, 0")
    a(f"s_lshr_b32 s{S_T0}, s2, 3\ns_lshl_b32 s{S_T0}, s{S_T0}, 2\ns_add_u32 s{S_T0}, s{S_T0}, s{S_W4}\ns_lshl_b32 s{S_T0}, s{S_T0}, 7")
    for i in range(3):
        a(f"s_add_u32 s{S_T1}, s{S_T0}, {i*16384}\ns_min_u32 s{S_T1}, s{S_T1}, KEND-KSTART-68\ns_load_dwordx2 s[66:67], s[{S_PF}:{S_PF+1}], s{S_T1}")
    a(f"{L}:")

def p2_kfn(a):
    a(f"s_lshl_b32 s{S_KA}, s{S_T0}, 11\ns_cmp_ge_u32 s{S_T0}, 8\ns_cselect_b32 s{S_T1}, 40960, 0\ns_add_u32 s{S_KA}, s{S_KA}, s{S_T1}\ns_lshl_b32 s{S_KB}, s{S_T0}, 17")

def kb_of_u(a, su, skh8, swhich, dst, t1, t2):
    a(f"s_and_b32 s{t1}, s{su}, 7\ns_add_u32 s{t1}, s{t1}, s{skh8}\ns_mul_i32 s{dst}, s{t1}, 7\ns_and_b32 s{t1}, s{t1}, 1\ns_add_u32 s{dst}, s{dst}, s{t1}")
    a(f"s_lshr_b32 s{t1}, s{su}, 3\ns_add_u32 s{dst}, s{dst}, s{t1}\ns_mul_i32 s{t1}, s{swhich}, 3\ns_add_u32 s{dst}, s{dst}, s{t1}")
    a(f"s_and_b32 s{t1}, s{su}, 3\ns_lshl_b32 s{t1}, s{t1}, 1\ns_add_u32 s{t1}, s{t1}, s{skh8}\ns_mul_i32 s{t1}, s{t1}, 7\ns_add_u32 s{t1}, s{t1}, s{swhich}\ns_add_u32 s{t1}, s{t1}, 6")
    a(f"s_cmp_ge_u32 s{su}, 24\ns_cselect_b32 s{dst}, s{t1}, s{dst}")
def p4_kfn(a):
    kb_of_u(a, S_T0, 80, 81, S_KB, S_T1, S_T2)
    a(f"s_lshl_b32 s{S_KB}, s{S_KB}, 16\ns_lshl_b32 s{S_KA}, s{S_T0}, 11")
def p4l_producer_setup(a):
    srd(a, SRD_A, S_WS, 16 << 20, WS_G)
    srd(a, SRD_B, S_W2, 3584*1024*2)
    a(f"s_lshl_b32 s{S_LA}, s{S_W4}, 12\ns_lshl_b32 s{S_LB}, s{S_W4}, 11\ns_lshl_b32 s80, s{S_KH}, 3\ns_lshr_b32 s81, s{S_W4}, 1")
    a(f"s_lshl_b32 s{S_T0}, s{S_RB}, 3\ns_lshl_b32 s{S_T1}, s{S_W4}, 1\ns_add_u32 s{S_T1}, s{S_T0}, s{S_T1}\ns_mul_i32 s{S_T1}, s{S_T1}, {112*1024}")
    a(f"s_mul_i32 s{S_T0}, s{S_KH}, {56*1024}\ns_add_u32 s{S_T1}, s{S_T1}, s{S_T0}")
    a(f"v_lshlrev_b32 v10, 4, v0\nv_add_u32 v10, s{S_T1}, v10\nv_add_u32 v11, {112*1024}, v10")
    a(f"s_lshl_b32 s{S_T2}, s{S_CB}, 8\ns_and_b32 s{S_T0}, s{S_W4}, 1\ns_lshl_b32 s{S_T0}, s{S_T0}, 15\ns_add_u32 s{S_T2}, s{S_T2}, s{S_T0}")
    dma_b_lane(a, 12, 20, 21, 2048, 128)
    a(f"v_add_u32 v12, s{S_T2}, v12\nv_add_u32 v13, {8*2048}, v12\nv_add_u32 v14, 128, v12\nv_add_u32 v15, 128, v13")
    a(f"v_bfe_u32 v20, v0, 4, 1\nv_and_b32 v27, 15, v0\nv_lshlrev_b32 v27, 2, v27\nv_lshl_add_u32 v27, v20, 11, v27")
def need_flags_l(a):
    L = a.lab('nd'); K = a.lab('rdy')
    a(f"s_and_b32 s{S_T1}, s{S_T0}, 7\ns_add_u32 s{S_T1}, s{S_T1}, s80\ns_cmp_lt_u32 s{S_T0}, 8\ns_cselect_b32 s{S_T2}, 16, 0\ns_add_u32 s{S_T1}, s{S_T1}, s{S_T2}\ns_lshl_b32 s{S_T1}, 1, s{S_T1}")
    a(f"s_and_b32 s{S_T2}, s{S_T0}, 3\ns_lshl_b32 s{S_T2}, s{S_T2}, 1\ns_add_u32 s{S_T2}, s{S_T2}, s80\ns_lshl_b32 s{S_T2}, 3, s{S_T2}\ns_cmp_ge_u32 s{S_T0}, 24\ns_cselect_b32 s{S_T1}, s{S_T2}, s{S_T1}")
    a(f"s_andn2_b32 s{S_T2}, s{S_T1}, s{S_RDY}\ns_cbranch_scc0 {K}")
    a(f"s_mov_b32 exec_hi, 0\ns_mov_b32 s{S_T3}, 0\n{L}:")
    a(f"buffer_load_dword v31, v27, s[{SRD_F}:{SRD_F+3}], s{S_FO} offen sc1\ns_add_u32 s{S_T3}, s{S_T3}, 1\ns_waitcnt vmcnt(0)\nv_cmp_eq_u32 vcc, s{S_E}, v31\ns_nop 1")
    a(f"s_cmp_gt_u32 s{S_T3}, 0x20000\ns_cselect_b32 s{S_RDY}, -1, vcc_lo\ns_andn2_b32 s{S_T2}, s{S_T1}, s{S_RDY}\ns_cbranch_scc1 {L}\ns_mov_b64 exec, -1\n{K}:")

def lw2_setup(a):
    a(f"s_lshl_b32 s{S_T0}, s2, 2\ns_add_u32 s{S_T0}, s{S_T0}, s{S_W4}\ns_and_b32 s74, s{S_T0}, 127\ns_lshl_b32 s74, s74, 9\ns_lshr_b32 s75, s{S_T0}, 9")
    a(f"s_bfe_u32 s60, s{S_T0}, 0x10007\ns_bfe_u32 s61, s{S_T0}, 0x10008\ns_lshl_b32 s61, s61, 3")
def lw2_step(a, steps, duty=False):
    if not steps: return
    L = a.lab('lp')
    m = sum(1 << t for t in steps)
    a(f"s_bitcmp1_b32 {m:#x}, s{S_T}\ns_cbranch_scc0 {L}\ns_getreg_b32 s{S_T0}, hwreg(HW_REG_IB_STS, 8, 4)\ns_cmp_gt_u32 s{S_T0}, 7\ns_cbranch_scc1 {L}")
    a(f"s_cmp_ge_u32 s75, 28\ns_cbranch_scc1 {L}")
    if duty: a(f"s_add_u32 s{S_T0}, s{S_T}, 1\ns_cmp_eq_u32 s{S_T0}, s{S_DT}\ns_cbranch_scc1 {L}")
    kb_of_u(a, 75, 61, 60, S_T0, S_T1, S_T2)
    a(f"s_lshl_b32 s{S_T0}, s{S_T0}, 16\ns_add_u32 s{S_T0}, s{S_T0}, s74\ns_add_u32 s{S_PF}, s{S_W2}, s{S_T0}\ns_addc_u32 s{S_PF+1}, s{S_W2+1}, 0")
    for k in range(4): a(f"s_load_dwordx2 s[66:67], s[{S_PF}:{S_PF+1}], {60 + 128*k}")
    a(f"s_add_u32 s75, s75, 2\n{L}:")

S_NM = 68
def need_mask(a):
    a(f"s_lshl_b32 s{S_NM}, 1, s{S_T0}")
def need_mask_p4(a):
    a(f"s_mul_i32 s{S_T1}, s{S_T0}, 294\ns_add_u32 s{S_T2}, s{S_T1}, 147\ns_lshr_b32 s{S_T1}, s{S_T1}, 10\ns_lshr_b32 s{S_T2}, s{S_T2}, 10")
    a(f"s_lshl_b32 s{S_T1}, 1, s{S_T1}\ns_lshl_b32 s{S_T2}, 1, s{S_T2}\ns_or_b32 s{S_NM}, s{S_T1}, s{S_T2}")
def need_mask_l(a):
    a(f"s_and_b32 s{S_T1}, s{S_T0}, 7\ns_add_u32 s{S_T1}, s{S_T1}, s80\ns_cmp_lt_u32 s{S_T0}, 8\ns_cselect_b32 s{S_T2}, 16, 0\ns_add_u32 s{S_T1}, s{S_T1}, s{S_T2}\ns_lshl_b32 s{S_T1}, 1, s{S_T1}")
    a(f"s_and_b32 s{S_T2}, s{S_T0}, 3\ns_lshl_b32 s{S_T2}, s{S_T2}, 1\ns_add_u32 s{S_T2}, s{S_T2}, s80\ns_lshl_b32 s{S_T2}, 3, s{S_T2}\ns_cmp_ge_u32 s{S_T0}, 24\ns_cselect_b32 s{S_NM}, s{S_T2}, s{S_T1}")
def need_check(a, mask, voff):
    L = a.lab('nd'); K = a.lab('rdy')
    a(f"s_andn2_b32 s{S_T2}, s{S_NM}, s{S_RDY}\ns_cbranch_scc0 {K}")
    if STAMP.get('cnt'): a("s_add_u32 s95, s95, 1")
    a(f"s_mov_b32 exec_lo, {mask:#x}\ns_mov_b32 exec_hi, 0\ns_mov_b32 s{S_T3}, 0\n{L}:")
    a(f"buffer_load_dword v31, v{voff}, s[{SRD_F}:{SRD_F+3}], s{S_FO} offen sc1\ns_add_u32 s{S_T3}, s{S_T3}, 1\ns_waitcnt vmcnt(0)\nv_cmp_eq_u32 vcc, s{S_E}, v31\ns_nop 1")
    a(f"s_cmp_gt_u32 s{S_T3}, 0x20000\ns_cselect_b32 s{S_RDY}, -1, vcc_lo\ns_andn2_b32 s{S_T2}, s{S_NM}, s{S_RDY}\ns_cbranch_scc1 {L}\ns_mov_b64 exec, -1\n{K}:")

def code_touch0(a):
    K = a.lab('pc')
    a(f"s_getpc_b64 s[{S_PF}:{S_PF+1}]\n{K}:\ns_sub_u32 s{S_PF}, s{S_PF}, {K}-KSTART-60\ns_subb_u32 s{S_PF+1}, s{S_PF+1}, 0")
    a(f"s_lshr_b32 s{S_T0}, s2, 3\ns_lshl_b32 s{S_T0}, s{S_T0}, 3\ns_add_u32 s{S_T0}, s{S_T0}, s{S_WAVE}\ns_lshl_b32 s{S_T0}, s{S_T0}, 7")
    for i in range(2):
        a(f"s_add_u32 s{S_T1}, s{S_T0}, {i*32768}\ns_min_u32 s{S_T1}, s{S_T1}, KEND-KSTART-68\ns_load_dwordx2 s[66:67], s[{S_PF}:{S_PF+1}], s{S_T1}")

def rdy_refresh(a, mask, voff):
    K = a.lab('rf')
    a(f"s_cmp_eq_u32 s{S_RDY}, {mask:#x}\ns_cbranch_scc1 {K}\ns_bitcmp1_b32 s{S_T}, 0\ns_cbranch_scc1 {K}")
    a(f"s_mov_b32 exec_lo, {mask:#x}\ns_mov_b32 exec_hi, 0\nv_cmp_eq_u32 vcc, s{S_E}, v31\nbuffer_load_dword v31, v{voff}, s[{SRD_F}:{SRD_F+3}], s{S_FO} offen sc1\ns_or_b32 s{S_RDY}, s{S_RDY}, vcc_lo\ns_mov_b64 exec, -1\n{K}:")

WS_RS = WS_BASE + (30 << 20)
FL_R = 0x9000
S_DR = 68
def fold8(b):
    out = ["s_nop 1"]
    out += [f"v_permlane32_swap_b32 v{b+k}, v{b+4+k}" for k in range(4)]
    out += [f"v_add_f32 v{b+k}, v{b+k}, v{b+4+k}" for k in (2, 3, 0, 1)]
    out += ["s_nop 1", f"v_permlane16_swap_b32 v{b}, v{b+2}", f"v_permlane16_swap_b32 v{b+1}, v{b+3}", f"v_add_f32 v{b}, v{b}, v{b+2}", f"v_add_f32 v{b+1}, v{b+1}, v{b+3}", "s_nop 1"]
    out += [f"v_add_f32_dpp v{b+k}, v{b+k}, v{b+k} row_ror:8 row_mask:0xf bank_mask:0xf" for k in range(2)]
    return out
def jr_setup(a, ph, wide=False):
    a(f"v_and_b32 v20, 15, v0\nv_lshrrev_b32 v21, 1, v20\nv_lshrrev_b32 v36, 4, v0\nv_xor_b32 v36, v36, v21\nv_lshlrev_b32 v36, 4, v36\nv_lshl_add_u32 v36, v20, 7, v36")
    a(f"s_add_u32 s{S_T0}, s{S_LA}, 2048\nv_add_u32 v36, s{S_T0}, v36\nv_lshlrev_b32 v38, 3, v20\ns_and_b32 s81, s{S_CB}, 3")
    if wide: a(f"s_lshr_b32 s{S_T0}, s{S_CB}, 3\ns_lshl_b32 s{S_T0}, s{S_T0}, 2\ns_add_u32 s81, s81, s{S_T0}")
    duty_setup(a, ph, 81, [36], None, 76, S_DR)
    a("v_xor_b32 v37, 64, v36\nv_and_b32 v21, 3, v0\nv_cmp_eq_u32 s[70:71], 1, v21\nv_cmp_eq_u32 s[72:73], 2, v21\nv_cmp_eq_u32 s[60:61], 3, v21")
    a(f"s_lshl_b32 s77, s{S_RB}, 14\ns_max_u32 s83, s77, 2048\ns_sub_u32 s83, s83, 2048\ns_add_u32 s77, s77, s{S_LA}\ns_lshl_b32 s85, s76, 7\ns_add_u32 s85, s85, s77")
    a(f"s_lshl_b32 s81, s{S_RB}, 8\ns_add_u32 s81, s81, {FL_R}\ns_lshl_b32 s76, s76, 4\ns_lshl_b32 s{S_T0}, s{S_W4}, 2\ns_add_u32 s76, s76, s{S_T0}\ns_add_u32 s76, s76, s81")
    a(f"s_max_u32 s46, s{S_RB}, 1\ns_sub_u32 s46, s46, 1\ns_lshl_b32 s46, s46, 8\ns_add_u32 s46, s46, {FL_R}")
    srd(a, SRD_C, S_WS, 1 << 18, WS_RS)
    a(f"v_lshlrev_b32 v39, 4, v0\nv_and_b32 v20, 7, v0\nv_bfe_u32 v21, v0, 4, 1\nv_lshl_add_u32 v20, v20, 1, v21\nv_mov_b32 v22, {P1C}")
    a(f"v_lshl_add_u32 v49, v20, 3, v22\nv_lshl_add_u32 v50, v20, 2, v22\nv_lshrrev_b32 v21, 5, v0\nv_lshl_add_u32 v20, v21, 4, v20\ns_lshl_b32 s{S_T0}, s{S_W4}, 5\ns_add_u32 s{S_T0}, s{S_T0}, 16\nv_add_u32 v20, s{S_T0}, v20")
    a(f"v_lshl_add_u32 v51, v20, 3, v22\nv_lshl_add_u32 v52, v20, 2, v22")
def jr_process(a):
    for t in range(2):
        for kb in range(2): a(f"ds_read_b128 v[{56+8*t+4*kb}:{59+8*t+4*kb}], v{36+kb} offset:{t*2048}")
    a("s_waitcnt lgkmcnt(0)")
    for kb in range(2):
        for t in range(2):
            f = f"v[{56+8*t+4*kb}:{59+8*t+4*kb}]"
            for q, B in ((0, "v[44:47]"), (1, f)):
                d = f"v[{72+8*t+4*q}:{75+8*t+4*q}]"
                a(f"v_mfma_f32_16x16x32_bf16 {d}, {f}, {B}, " + ("0" if kb == 0 else d))
    a("s_nop 4")
    for k, m in ((1, "s[70:71]"), (2, "s[72:73]"), (3, "s[60:61]")):
        for n in range(4):
            dst = 88 + n if k == 3 else 72 + 4*n
            a(f"v_cndmask_b32 v{dst}, v{72+4*n}, v{72+4*n+k}, {m}")
    a(f"s_mov_b32 exec_lo, 0x00f0000f\ns_mov_b32 exec_hi, 0xf0000f00")
    a(f"buffer_store_dwordx2 v[88:89], v38, s[{SRD_C}:{SRD_C+3}], s85 offen sc1\nbuffer_store_dwordx2 v[90:91], v38, s[{SRD_C}:{SRD_C+3}], s85 offen offset:2048 sc1\ns_mov_b64 exec, -1")
def jg3_rows(a):
    a(f"buffer_load_dword v53, v30, s[{SRD_F}:{SRD_F+3}], s81 offen sc1")
    for j in range(4): a(f"buffer_load_dwordx4 v[{72+4*j}:{75+4*j}], v39, s[{SRD_C}:{SRD_C+3}], s77 offen offset:{j*1024} sc1")
def jg3_other(a):
    Lr = a.lab('rows'); Le = a.lab('gend')
    a(f"s_cmp_eq_u32 s{S_W4}, 3\ns_cbranch_scc1 {Lr}")
    a(f"buffer_load_dword v48, v30, s[{SRD_F}:{SRD_F+3}], s90 offen sc1")
    for k in range(4):
        a(f"s_add_u32 s{S_T1}, s91, {k*4*3072*4}\nbuffer_load_dwordx4 v[{56+4*k}:{59+4*k}], v42, s[{SRD_D}:{SRD_D+3}], s{S_T1} offen sc1")
    a(f"s_branch {Le}\n{Lr}:\nbuffer_load_dword v48, v30, s[{SRD_F}:{SRD_F+3}], s46 offen sc1")
    for j in range(2): a(f"buffer_load_dwordx4 v[{56+4*j}:{59+4*j}], v39, s[{SRD_C}:{SRD_C+3}], s83 offen offset:{j*1024} sc1")
    a(f"{Le}:")
def checked(a, vflag, reload):
    Lc = a.lab('chk'); Lo = a.lab('ok')
    a(f"s_mov_b32 s{S_T3}, 0\n{Lc}:\nv_cmp_ne_u32 vcc, s{S_E}, v{vflag}\ns_cbranch_vccz {Lo}\ns_add_u32 s{S_T3}, s{S_T3}, 1\ns_cmp_gt_u32 s{S_T3}, 0x8000\ns_cbranch_scc1 {Lo}")
    reload(a)
    a(f"s_waitcnt vmcnt(0)\ns_branch {Lc}\n{Lo}:")
def row_finish(a, b, v8, v4):
    a(f"v_mul_f32 v{b}, 0x3a800000, v{b}\nv_mul_f32 v{b+2}, v{b}, v{b}\nv_fma_f32 v{b+1}, v{b+1}, s{S_T2}, -v{b+2}")
    ln_scale(a, b, b+1, b+2)
    a(f"v_mov_b32 v{b+2}, v{b+1}\nv_mov_b32 v{b+3}, v{b}\nds_write_b64 v{v8}, v[{b+2}:{b+3}] offset:768\nds_write_b32 v{v4}, v{b} offset:1920\nds_write_b32 v{v4}, v{b+1} offset:2496")
def jg3_part(a, part):
    P = lambda r: f"v[{r}:{r+1}]"
    if part == 0:
        checked(a, 53, jg3_rows)
        for h in (0, 2): a(f"v_pk_add_f32 {P(72+h)}, {P(72+h)}, {P(76+h)}")
        for h in (0, 2): a(f"v_pk_add_f32 {P(76+h)}, {P(80+h)}, {P(84+h)}")
        for x in fold8(72): a(x)
        a(f"s_mov_b32 s{S_T2}, 0x3a800000")
        row_finish(a, 72, 51, 52)
        return
    Lr = a.lab('halo'); Le = a.lab('gdone')
    checked(a, 48, jg3_other)
    a(f"s_cmp_eq_u32 s{S_W4}, 3\ns_cbranch_scc1 {Lr}")
    fold4(a, 56)
    a(f"ds_write_b32 v43, v56\ns_branch {Le}\n{Lr}:")
    for h in (0, 2): a(f"v_pk_add_f32 {P(56+h)}, {P(56+h)}, {P(60+h)}")
    for x in fold8(56): a(x)
    a(f"s_mov_b32 s{S_T2}, 0x3a800000\ns_mov_b32 exec_hi, 0")
    row_finish(a, 56, 49, 50)
    a(f"s_mov_b64 exec, -1\n{Le}:\ns_waitcnt lgkmcnt(0)")

P1X = 139264
XFL = CNT_LDS + 16
def make_p1z(rh, lead=1):
    ph = make_p1x(lead)
    mm = []
    for i in range(5):
        row = []
        if rh == 0 or i: row += [(i*2 + c, i, 2 + c, True) for c in range(2)] + [(10 + i*2 + c, i, 4 + c, False) for c in range(2)]
        if rh == 1 and i == 0: row += [(c, 0, c, True) for c in range(2)]
        if i and (rh == 1 or i < 4): row += [(20 + (i-1)*2 + c, i, c, True) for c in range(2)]
        mm += row if i % 2 == 0 else row[::-1]
    ph.mm = mm
    assert len(mm) == 26
    return ph
Z_RM = [10, 12, 14, 104, 106]; Z_CK = [108, 244]; Z_CQ = [248, 76]; Z_CV = [236, 238]; Z_MV = 16; Z_RV = 56
Z_KP, Z_QP, Z_VP, Z_TMP = 36, 80, 16, 96
def p1z_setup(a):
    a(f"s_lshr_b32 s{S_T0}, s{S_W4}, 1\ns_and_b32 s{S_T1}, s{S_W4}, 1")
    a(f"s_lshl_b32 s{S_T2}, s{S_T0}, 9\ns_add_u32 s{S_T2}, s{S_T2}, {P1C + 768}\nv_and_b32 v6, 15, v0\nv_lshlrev_b32 v7, 3, v6\nv_add_u32 v7, s{S_T2}, v7")
    a(f"s_lshl_b32 s{S_T2}, s{S_T0}, 8\ns_add_u32 s{S_T2}, s{S_T2}, {P1C + 1920}\nv_and_b32 v8, 0x30, v0\nv_add_u32 v9, s{S_T2}, v8")
    a(f"s_lshl_b32 s{S_T2}, s{S_T1}, 7\ns_add_u32 s{S_T2}, s{S_T2}, {P1C}\nv_add_u32 v8, s{S_T2}, v8\nv_lshlrev_b32 v6, 2, v6\nv_add_u32 v6, s{S_T2}, v6")
    a(f"s_mul_i32 s84, s{S_T1}, 3072\ns_add_u32 s84, s84, {P1X}\ns_lshl_b32 s85, s{S_W4}, 2\ns_add_u32 s85, s85, {XFL}\ns_xor_b32 s86, s85, 8")
    a(f"s_lshl_b32 s87, s{S_RB}, 1\ns_add_u32 s87, s87, s{S_T0}\ns_lshl_b32 s87, s87, 17\ns_lshl_b32 s{S_T3}, s{S_CB}, 1\ns_add_u32 s{S_T3}, s{S_T3}, s{S_T1}\ns_lshl_b32 s{S_T3}, s{S_T3}, 10\ns_add_u32 s87, s87, s{S_T3}")
def p1z_last(ph, rh):
    first = {8, 9, 18, 19} if rh == 0 else {0, 1}
    idx = lambda m: (int(m.split('v[')[1].split(':')[0]) - ph.vacc)//4
    order = lambda M: [m for m in M if idx(m) in first] + [m for m in M if idx(m) not in first]
    P = lambda r: f"v[{r}:{r+1}]"
    tiles = range(5); vt = range(5) if rh == 0 else range(1, 5)
    F = [f"ds_read_b64 {P(Z_RM[i])}, v7 offset:{i*128}" for i in tiles]
    F += [f"ds_read_b128 v[{Z_CK[c]}:{Z_CK[c]+3}], v8 offset:{256 + c*64}" for c in range(2)]
    F += [f"ds_read_b128 v[{Z_CQ[c]}:{Z_CQ[c]+3}], v8 offset:{c*64}" for c in range(2)]
    F += [f"ds_read_b32 v{Z_CV[c]}, v6 offset:{512 + c*64}" for c in range(2)]
    F += [f"ds_read_b128 v[{Z_MV+4*i}:{Z_MV+4*i+3}], v9 offset:{i*64}" for i in vt]
    F += [f"ds_read_b128 v[{Z_RV+4*i}:{Z_RV+4*i+3}], v9 offset:{576 + i*64}" for i in vt]
    return (order, F)
def p1z_role(a, ph, rh):
    acc = lambda n: ph.vacc + 4*n
    P = lambda r: f"v[{r}:{r+1}]"
    NEG = "op_sel:[1,0,0] op_sel_hi:[1,1,1] neg_lo:[1,0,0] neg_hi:[1,0,0]"
    def sub(n0, tiles, C):
        for (n, i) in tiles:
            for c in range(2):
                for h in (0, 2): a(f"v_pk_fma_f32 {P(acc(n+c)+h)}, {P(Z_RM[i])}, {P(C[c]+h)}, {P(acc(n+c)+h)} {NEG}")
    def scale(tiles):
        for (n, i) in tiles:
            for c in range(2):
                for h in (0, 2): a(f"v_pk_mul_f32 {P(acc(n+c)+h)}, {P(acc(n+c)+h)}, {P(Z_RM[i])} op_sel_hi:[1,0]")
    def vfold(tiles):
        for i in tiles:
            for c in range(2):
                for h in (0, 2): a(f"v_pk_fma_f32 {P(acc(10+i*2+c)+h)}, {P(Z_MV+4*i+h)}, {P(Z_CV[c])}, {P(acc(10+i*2+c)+h)} op_sel_hi:[1,0,1] neg_lo:[1,0,0] neg_hi:[1,0,0]")
        for i in tiles:
            for c in range(2):
                for h in (0, 2): a(f"v_pk_mul_f32 {P(acc(10+i*2+c)+h)}, {P(acc(10+i*2+c)+h)}, {P(Z_RV+4*i+h)}")
    def pack(d, n):
        for k in range(4): a(f"v_cvt_pk_bf16_f32 v{d+k}, v{acc(n)+2*k}, v{acc(n)+2*k+1}")
    def signal(): a(f"v_mov_b32 v4, s85\nv_mov_b32 v5, 1\ns_waitcnt lgkmcnt(0)\nds_write_b32 v4, v5")
    def await_():
        L = a.lab('xw')
        a(f"v_mov_b32 v4, s86\n{L}:\nds_read_b32 v5, v4\ns_waitcnt lgkmcnt(0)\nv_cmp_ne_u32 vcc, 1, v5\ns_cbranch_vccnz {L}")
    a(f"v_lshlrev_b32 v2, 4, v0\nv_add_u32 v3, s84, v2\ns_waitcnt lgkmcnt(0)")
    if rh == 0:
        sub(0, [(8, 4)], Z_CK); vfold([4]); scale([(8, 4)])
        pack(Z_TMP, 18); pack(Z_KP + 16, 8)
        a(f"ds_write_b128 v3, v[{Z_TMP}:{Z_TMP+3}] offset:1024\nds_write_b128 v3, v[{Z_KP+16}:{Z_KP+19}]")
        sub(0, [(2*i, i) for i in range(2)], Z_CK)
        signal()
        sub(0, [(2*i, i) for i in range(2, 4)], Z_CK); sub(0, [(20 + 2*(i-1), i) for i in range(1, 4)], Z_CQ); scale([(2*i, i) for i in range(4)])
        for i in range(1, 5): a(f"v_mul_f32 v{239+i}, 0x3e8293ee, v{Z_RM[i]}")
        for i in range(4): pack(Z_KP + 4*i, 2*i)
        for i in range(3): pack(Z_QP + 4*i, 20 + 2*i)
        vfold(range(4))
        for c in range(2):
            for h in range(2): a(f"v_cvt_pk_bf16_f32 v{Z_VP+10*c+h}, v{acc(10+c)+2*h}, v{acc(10+c)+2*h+1}")
        await_()
        a(f"ds_read_b128 v[{Z_QP+12}:{Z_QP+15}], v3 offset:2048")
    else:
        sub(0, [(0, 0)], Z_CQ)
        sub(0, [(2, 1)], Z_CK)
        pack(Z_TMP, 0)
        a(f"ds_write_b128 v3, v[{Z_TMP}:{Z_TMP+3}] offset:2048")
        sub(0, [(4, 2)], Z_CK)
        signal()
        sub(0, [(2*i, i) for i in range(3, 5)], Z_CK); sub(0, [(20 + 2*(i-1), i) for i in range(1, 5)], Z_CQ); scale([(2*i, i) for i in range(1, 5)])
        for i in range(1, 5): a(f"v_mul_f32 v{239+i}, 0x3e8293ee, v{Z_RM[i]}")
        for i in range(1, 5): pack(Z_KP + 4*i, 2*i)
        for i in range(4): pack(Z_QP + 4*i, 20 + 2*i)
        vfold(range(1, 5))
        await_()
        a(f"ds_read_b128 v[{Z_KP}:{Z_KP+3}], v3\nds_read_b64 {P(Z_VP)}, v3 offset:1024\nds_read_b64 {P(Z_VP+10)}, v3 offset:1032")
def p1z_attention(a, ph, sf):
    acc = lambda n: ph.vacc + 4*n
    P = lambda r: f"v[{r}:{r+1}]"
    KP, QP, VP = Z_KP, Z_QP, Z_VP
    SS = 112; MX = [144, 146, 148, 150]; TT = [145, 147, 149, 151]; W = 192; PP = 208; OO = 152
    srd(a, SRD_C, S_WS, 4 << 20, WS_O)
    a("s_waitcnt lgkmcnt(0)")
    for i in (2, 3, 1, 4):
        for t in range(2):
            d = SS + 8*(i-1) + 4*t; m = 232 if (i == 1 and t == 0) else 224 + 4*t
            a(f"v_mfma_f32_16x16x32_bf16 v[{d}:{d+3}], v[{KP+4*(i-1+t)}:{KP+4*(i-1+t)+3}], v[{QP+4*(i-1)}:{QP+4*(i-1)+3}], v[{m}:{m+3}]")
    for i in range(1, 5):
        for c in range(2):
            for h in range(2): a(f"v_cvt_pk_bf16_f32 v{VP+10*c+2*i+h}, v{acc(10+i*2+c)+2*h}, v{acc(10+i*2+c)+2*h+1}")
    for i in range(4):
        b = SS + 8*i
        a(f"v_max3_f32 v{MX[i]}, v{b}, v{b+1}, v{b+2}\nv_max3_f32 v{TT[i]}, v{b+3}, v{b+4}, v{b+5}")
    for i in range(4): a(f"v_max3_f32 v{MX[i]}, v{MX[i]}, v{SS+8*i+6}, v{SS+8*i+7}")
    for i in range(4): a(f"v_max_f32 v{MX[i]}, v{MX[i]}, v{TT[i]}")
    xor16_32_multi(a, MX, TT, "v_max_f32")
    for i in range(4): a(f"v_mul_f32 v{MX[i]}, v{240+i}, v{MX[i]}")
    for k in range(0, 8, 2):
        for i in range(4): a(f"v_pk_fma_f32 {P(SS+8*i+k)}, {P(SS+8*i+k)}, {P(240 + (i & 2))}, {P(MX[i])} op_sel:[0,{i & 1},0] op_sel_hi:[1,{i & 1},0] neg_lo:[0,0,1] neg_hi:[0,0,1]")
    for i in range(4):
        for k in range(8): a(f"v_exp_f32 v{SS+8*i+k}, v{SS+8*i+k}")
    for k in range(2):
        for i in range(4): a(f"v_pk_add_f32 {P(W+4*i+2*k)}, {P(SS+8*i+4*k)}, {P(SS+8*i+4*k+2)}")
    for i in range(4): a(f"v_pk_add_f32 {P(W+4*i)}, {P(W+4*i)}, {P(W+4*i+2)}")
    for i in range(4): a(f"v_add_f32 v{MX[i]}, v{W+4*i}, v{W+4*i+1}")
    xor16_32_multi(a, MX, TT, "v_add_f32")
    for i in range(4): a(f"v_rcp_f32 v{MX[i]}, v{MX[i]}")
    for i in range(4):
        for k in range(0, 8, 2): a(f"v_pk_mul_f32 {P(SS+8*i+k)}, {P(SS+8*i+k)}, {P(MX[i])} op_sel_hi:[1,0]")
        for k in range(4): a(f"v_cvt_pk_bf16_f32 v{PP+4*i+k}, v{SS+8*i+2*k}, v{SS+8*i+2*k+1}")
        if i:
            for c in range(2):
                d = OO + 8*(i-1) + 4*c
                a(f"v_mfma_f32_16x16x32_bf16 v[{d}:{d+3}], v[{VP+10*c+2*(i-1)}:{VP+10*c+2*(i-1)+3}], v[{PP+4*(i-1)}:{PP+4*(i-1)+3}], 0")
    a("s_nop 1")
    for c in range(2):
        d = OO + 24 + 4*c
        a(f"v_mfma_f32_16x16x32_bf16 v[{d}:{d+3}], v[{VP+10*c+6}:{VP+10*c+9}], v[{PP+12}:{PP+15}], 0")
    for i in range(4):
        for k in range(4): a(f"v_cvt_pk_bf16_f32 v{SS+4*i+k}, v{OO+8*i+2*k}, v{OO+8*i+2*k+1}")
        a(f"s_add_u32 s{S_T3}, s87, {i*32768}\nbuffer_store_dwordx4 v[{SS+4*i}:{SS+4*i+3}], v2, s[{SRD_C}:{SRD_C+3}], s{S_T3} offen {sf}")
```

```python
import sys
from phases import *
import hazard
STAMP['on'] = '--stamp' in sys.argv; STAMP['noprod'] = '--noprod' in sys.argv; STAMP['cnt'] = STAMP['on']
O = dict(kv.split('=') for kv in sys.argv[1:] if '=' in kv)
gi = lambda k, d: int(O[k]) if k in O else d
NAME = 'sequential_preLN__sliding_local_dilated__dense_activation_gelu__prompt_kernel'
LDS = 163840
OPT = dict(early=1, pre=4, tail=4)
p1, p2, p3, p4 = make_p1x(), make_p2(), make_p3(), make_p4()
p2.NS = 5; p4.wrap = False; p4.NS = gi('p4ns', 3)
for ph, k in ((p1, 'd1'), (p2, 'd2'), (p3, 'd3'), (p4, 'd4')): ph.lead = gi(k, 1)
for ph in (p2, p3, p4): ph.aflags = 'sc1'
THR = gi('thr', 6)
for ph, k in ((p1, 1), (p2, 2), (p3, 3), (p4, 4)): ph.prio = gi(f'pr{k}', gi('pr', 0))
HL = gi('hl', 1)
if HL: p1.hook_at = len(p1.pieces) - 1; p3.hook_at = len(p3.pieces) - 1
M3 = gi('m3', 0)
map_p3 = map_4x8 if M3 else map_8x4
a = Asm()
a('KSTART:')
if STAMP['on']: a("s_memrealtime s[94:95]")
prologue(a, 'L_done')
if gi('ct0', 0): code_touch0(a)
map_8x4(a)
def after_kernarg():
    a("s_waitcnt lgkmcnt(0)")
    a(f"s_add_u32 s{SRD_F}, s{S_WS}, {WS_FL}\ns_addc_u32 s{SRD_F+1}, s{S_WS+1}, 0\ns_mov_b32 s{SRD_F+2}, {1 << 20}\ns_mov_b32 s{SRD_F+3}, 0x20000")
    if STAMP['on']: a("v_writelane_b32 v255, s94, 0\nv_writelane_b32 v255, s94, 30\ns_memrealtime s[92:93]\ns_waitcnt lgkmcnt(0)\nv_writelane_b32 v255, s92, 31")
def load_epoch(): a(f"s_load_dword s{S_E}, s[{SRD_F}:{SRD_F+1}], 0")
a(f"s_cmp_ge_u32 s{S_WAVE}, 4\ns_cbranch_scc1 L_prod")
RD = gi('rd', 0)
if RD:
    p1x_consumer_setup(a, p1)
    after_kernarg()
    load_epoch()
    a(f"s_waitcnt lgkmcnt(0)\ns_add_u32 s{S_E}, s{S_E}, 1")
else:
    a(f"s_lshl_b32 s61, s{S_RB}, 4\ns_add_u32 s61, s61, s{S_CB}")
    after_kernarg()
    row_stats_issue(a, 61)
    load_epoch()
    p1x_consumer_setup(a, p1)
    a(f"s_waitcnt lgkmcnt(0)\ns_add_u32 s{S_E}, s{S_E}, 1")
    row_stats_finish(a, 61)
stamp(a, 1)
if gi('z', 1):
    p1z_setup(a)
    a(f"s_cmp_ge_u32 s{S_W4}, 2\ns_cbranch_scc1 L_rh1")
    for rh in range(2):
        pz = make_p1z(rh, p1.lead)
        if rh: a("L_rh1:")
        consumer_gemm(a, pz, OPT, final_bar=True, sbase=0, last=p1z_last(pz, rh))
        stamp(a, 3)
        p1z_role(a, pz, rh)
        if rh == 0: a("s_branch L_att")
    a("L_att:")
    p1z_attention(a, pz, 'sc1')
else:
    consumer_gemm(a, p1, OPT, final_bar=True, sbase=0)
    if RD and gi('cb1', 1): a('s_barrier')
    stamp(a, 3)
    p1x_fold(a, p1)
    p1_epilogue(a, p1, 'sc1', fold=True)
stamp(a, 4)
publish(a, 1, FL_1, S_RB, S_CB)
stamp(a, 5)
a('s_barrier')
map_4x8(a)
p2_consumer_setup(a, p2, res=False)
consumer_gemm(a, p2, dict(early=gi('e2', 1), pre=gi('pre2', 0), tail=gi('tail2', 1)), final_bar=True, sbase=4, after_first=lambda: p2x_read(a))
stamp(a, 7)
SF = gi('sf', 1)
if SF:
    stats_flag_setup(a)
    p2_epilogue(a, p2, 'sc1', before_stats_store=lambda: (a(f"s_mov_b32 s77, s{S_T0}"), stamp(a, 8), publish(a, 2, FL_2, S_RB, S_CB), a(f"s_mov_b32 s{S_T0}, s77")))
else:
    p2_epilogue(a, p2, 'sc1')
    stamp(a, 8)
    publish(a, 2, FL_2, S_RB, S_CB)
stamp(a, 9)
a('s_barrier')
map_p3(a)
p3_consumer_setup(a, p3)
consumer_gemm(a, p3, OPT, final_bar=True, sbase=8, after_half=(lambda: stats_flag(a)) if SF else None)
a('s_barrier')
stamp(a, 11)
p3_epilogue(a, p3, ['sc1', 'sc1 nt', 'sc0 sc1', 'sc0 sc1 nt'][gi('gs', 0)])
stamp(a, 12)
publish(a, 3, FL_3, S_RB, S_CB, cnt=P3_CONST + 2816)
stamp(a, 13)
a('s_barrier')
map_p4(a)
p4_consumer_setup(a, p4, res=False)
consumer_gemm(a, p4, dict(early=gi('e4', 1), pre=gi('pre4', 2), tail=gi('tail4', 2)), after_first=lambda: (p4_res_loads(a, 'sc1'), p4b_setup(a, FL_X) if gi('xb', 1) else None), final_bar=True, sbase=12)
stamp(a, 15)
if gi('xb', 1): a("s_nop 7"); p4b_epilogue(a, p4, ['', 'nt', 'sc1', 'sc0 sc1'][gi('outnt', 0)])
else: p4_epilogue(a, p4, fval=f"s{S_E}", fbase=FL_X)
stamp(a, 16)
if STAMP['on']: a("s_waitcnt vmcnt(0)")
stamp(a, 17)
stamp_flush(a, 0, WS_TM)
a("s_endpgm")
a("L_prod:")
p1x_producer_setup(a, p1, srds=False)
R1 = gi('r1', 1)
a(f"s_lshr_b32 s{S_T0}, s{S_RB}, 3\ns_lshl_b32 s{S_XR}, s{S_T0}, 3")
if R1 == 2: a(f"s_lshl_b32 s{S_T1}, s{S_CB}, 1\ns_and_b32 s{S_T1}, s{S_T1}, 8\ns_xor_b32 s{S_XR}, s{S_XR}, s{S_T1}")
elif R1: a(f"s_and_b32 s{S_T1}, s{S_CB}, 12\ns_add_u32 s{S_XR}, s{S_XR}, s{S_T1}\ns_and_b32 s{S_XR}, s{S_XR}, 15")
seq_setup(a, p1)
after_kernarg()
p1x_producer_srds(a)
stamp(a, 2, True)
def pre_first():
    load_epoch()
    stamp(a, 0, True)
    if gi('pfcode', 1): code_touch(a)
    if gi('warm', 1): warm_flags(a)
    a(f"v_mov_b32 v28, {CNT_LDS}\nv_mov_b32 v32, 0\nv_mov_b32 v33, 0\nv_mov_b32 v34, 0\nv_mov_b32 v35, 0\nds_write_b128 v28, v[32:35]\nds_write_b128 v28, v[32:35] offset:16")
    a(f"v_lshlrev_b32 v30, 2, v0\ns_and_b32 s81, s{S_RB}, 7")
    lp_setup(a)
    jm_setup(a, lambda: duty_setup(a, p1, 81, [40], None, 80), 80)
    if RD: jr_setup(a, p1, R1 == 2)
    stamp(a, 1, True)
PF = gi('pf', 1)
def stepstamp(ph):
    if gi('ss', 0) == ph and STAMP['on']:
        a(f"s_memtime s[92:93]\ns_waitcnt lgkmcnt(0)\ns_add_u32 s{S_T0}, s{S_T}, 32\ns_mov_b32 s93, m0\ns_mov_b32 m0, s{S_T0}\nv_writelane_b32 v255, s92, m0\ns_mov_b32 m0, s93")
h1 = lambda n=10: (duty_hook(a, lambda: jm_process(a, NoQ(), not RD), n), RD and duty_hook(a, lambda: jr_process(a), n, S_DR, 76))
CT = gi('ct', 1)
h1l = lambda: (stepstamp(1), h1(10 if HL else 2), CT and code_touch(a, gi('ct1', 14)), lp_step(a, S_W1, range(gi('lo1', 4), gi('hi1', 13) + 1) if PF else [], 2 if RD else True))
h1m = lambda: (stepstamp(1), CT and code_touch(a, gi('ct1', 14)), lp_step(a, S_W1, range(gi('lo1', 4), gi('hi1', 13) + 1) if PF else []))
p1_peel = lambda: (RD and a(f"s_waitcnt lgkmcnt(0)\ns_add_u32 s{S_E}, s{S_E}, 1"), h1())
if RD:
    G0 = gi('g0', 0)
    iss = lambda: (jg3_rows(a), jg3_other(a), 8)[2]
    if gi('cb1', 1):
        producer_first(a, p1, pre_first, h1l, [None, iss, lambda: (a("s_waitcnt vmcnt(0)"), jg3_part(a, 0))[1]], peel_hook=p1_peel, early1=gi('early1', 1), split=(gi('sp1', 12), h1m))
        jg3_part(a, 1)
        a('s_barrier')
    else:
        producer_first(a, p1, pre_first, h1l, [iss, lambda: (a("s_waitcnt vmcnt(3)"), jg3_part(a, 0))[1], lambda: (a("s_waitcnt vmcnt(0)"), jg3_part(a, 1))[1]], peel_hook=p1_peel, early1=gi('early1', 1))
else:
    producer_first(a, p1, pre_first, h1l, [None, lambda: (jg2_loads(a), 3)[1], lambda: (a("s_waitcnt vmcnt(0)"), jg2_process(a, NoQ()))[1]], peel_hook=p1_peel, early1=gi('early1', 1), split=(gi('sp1', 12), h1m) if gi('sp1', 12) else None)
stamp(a, 3, True)
def own(sb=None):
    if sb is not None: stamp(a, sb, True)
    a('s_barrier')
def nf(mask, mk, sb, voff=30):
    st = {'n': 0}
    def f():
        need_check(a, mask, voff)
        if st['n'] == 0: stamp(a, sb, True)
        st['n'] += 1
    return (mk, f)
def lean_cfg(ph, tl, mask, sa, sb_, looped):
    bits = 4 if ph.S <= 16 else 2
    def allready():
        a(f"s_mov_b32 s{S_NM}, {mask:#x}")
        need_check(a, mask, 30)
        a(f"s_lshr_b64 s[{S_SEQ}:{S_SEQ+1}], s[{S_SEQ}:{S_SEQ+1}], {bits*tl}")
        if bits == 2: a(f"s_add_u32 s{S_T}, s{S_XR}, {tl}")
    def kcalc(ka, kb):
        K = [f"s_lshr_b64 s[{S_SEQ}:{S_SEQ+1}], s[{S_SEQ}:{S_SEQ+1}], {bits}"]
        if bits == 4: K += [f"s_add_u32 s{S_T0}, s{S_SEQ}, s{S_XR}", f"s_and_b32 s{S_T0}, s{S_T0}, 15"]
        else: K += [f"s_add_u32 s{S_T}, s{S_T}, 1", f"s_and_b32 s{S_T0}, s{S_SEQ}, 3", f"s_add_u32 s{S_T0}, s{S_T0}, s{S_T}"]
        return K + [f"s_lshl_b32 s{ka}, s{S_T0}, {sa}", f"s_lshl_b32 s{kb}, s{S_T0}, {sb_}"]
    return (tl, allready, kcalc, looped)
RF = gi('rf', 0)
rf = lambda m: RF and rdy_refresh(a, m, 30)
w1p2 = lambda: lp_step(a, S_W1, range(5, gi('hi2', 0) + 1) if PF else [])
def handoff(base, extra_off=None, sb=0):
    def f():
        a(f"s_lshl_b32 s{S_FO}, s{S_RB}, 7\ns_add_u32 s{S_FO}, s{S_FO}, {base}\ns_mov_b32 s{S_RDY}, 0")
        if STAMP['on']: a("s_mov_b32 s95, 0")
        if extra_off: extra_off()
        stamp(a, sb+1, True)
    return f
map_4x8(a)
p2_producer_setup(a, p2)
a(f"s_and_b32 s{S_XR}, s{S_RB}, {12 if gi('r2', 1) else 0}")
producer_fused(a, p2, handoff(FL_1, sb=4), thr=THR, mid=lambda: (p2x_dma(a, THR), own(4)), need=nf(0xffff, need_mask, 6), preA=gi('prea2', 3), PB=gi('pb2', None), lean=lean_cfg(p2, gi('ln2', 0), 0xffff, 11, 17, False) if gi('ln2', 0) else None, loop_hook=lambda: (stepstamp(2), rf(0xffff), CT and code_touch(a, gi('ct2', 10)), w1p2()), peel_hook=lambda: (stepstamp(2), rf(0xffff), w1p2()), first_hook=lambda: rf(0xffff))
if STAMP['on']: a('v_writelane_b32 v255, s95, 24')
stamp(a, 7, True)
map_p3(a)
p3_producer_setup(a, p3)
a(f"s_and_b32 s{S_XR}, s{S_RB}, {12 if M3 else 8}\ns_and_b32 s81, s{S_RB}, {3 if M3 else 7}")
h3 = lambda n=11: duty_hook(a, lambda: j3_process(a), n)
lp_setup(a)
h3l = lambda: (stepstamp(3), rf(0xffff), h3(11 if HL else 2), CT and code_touch(a, gi('ct3', 14)), lp_step(a, S_W2, range(gi('lo3', 5), gi('hi3', 13) + 1) if PF else [], True))
producer_fused(a, p3, handoff(FL_2, sb=8), thr=THR, mid=lambda: (j3_setup(a, lambda: duty_setup(a, p3, 81, [40, 39], None, 76), 76), own(8)),
               PB=gi('pb3', None), need=nf(0xffff, need_mask, 10),
               loop_hook=h3l, peel_hook=lambda: (stepstamp(3), rf(0xffff), h3()), first_hook=lambda: (stepstamp(3), rf(0xffff), h3()), tail=[lambda: 0, lambda: j3_issue(a, SF), lambda: j3_finish(a, 0, SF)])
j3_finish(a, 1)
a('s_barrier')
if STAMP['on']: a('v_writelane_b32 v255, s95, 25')
stamp(a, 11, True)
map_p4(a)
p4_producer_setup(a, p4)
a(f"s_lshr_b32 s{S_XR}, s{S_RB}, 2\ns_mul_i32 s{S_XR}, s{S_XR}, {7 if gi('r4', 0) else 0}\ns_sub_u32 s{S_XR}, s{S_XR}, 1")
producer_fused(a, p4, handoff(FL_3, extra_off=lambda: a(f"s_lshl_b32 s{S_T1}, s{S_KH}, 5\ns_add_u32 s{S_FO}, s{S_FO}, s{S_T1}"), sb=12), thr=gi('thr4', THR), mid=lambda: own(12), need=nf(0xff, need_mask_p4, 14), lean=lean_cfg(p4, gi('ln4', 0), 0xff, 11, 17, True) if gi('ln4', 0) else None, loop_hook=lambda: (stepstamp(4), rf(0xff), CT and code_touch(a, gi('ln4', 0) - 1 if gi('ln4', 0) else 23), lp_step(a, S_W2, range(5, 20) if PF else [])), peel_hook=lambda: (stepstamp(4), rf(0xff)), first_hook=lambda: (stepstamp(4), rf(0xff)))
if STAMP['on']: a('v_writelane_b32 v255, s95, 26')
stamp(a, 15, True)
a(f"s_cmp_lg_u32 s2, 0\ns_cbranch_scc1 L_pend\ns_cmp_lg_u32 s{S_WAVE}, 4\ns_cbranch_scc1 L_pend")
a(f"v_mov_b32 v28, 0\nv_mov_b32 v29, s{S_E}\ns_mov_b64 exec, 1\nbuffer_store_dword v29, v28, s[{SRD_F}:{SRD_F+3}], 0 offen sc1\ns_mov_b64 exec, -1")
a("L_pend:")
stamp_flush(a, 0, WS_TM)
a("L_done:\ns_endpgm\nKEND:")

ref = open('sequential_preLN__sliding_local_dilated__dense_activation_gelu__prompt.s.ref').read().split('\n')
hdr = [l for l in ref if l.startswith(';') and '@launch' not in l and 'Override' not in l and 'grid=ceil' not in l]
lst = '--list' in sys.argv
out = hdr + [f"; @launch " + (f"kernel={NAME} " if lst else "") + f"grid=(256,1,1) block=(512,1,1) lds={LDS}"]
out.append('.amdgcn_target "amdgcn-amd-amdhsa--gfx950"\n.text')
out.append(f".globl {NAME}\n.p2align 8\n.type {NAME},@function\n{NAME}:\n{a.text()}")
out.append('.section .rodata,"a"')
out.append(kernel_desc(NAME))
txt = '\n'.join(out) + '\n'
for x in hazard.check(txt): sys.stderr.write("HAZARD line %d [%s] -> line %d [%s]: need %d have %d\n" % x)
print(txt)
```
